```python
import torch

def _softmax(x, axis=-1):
    return torch.softmax(x, dim=axis)
def _gelu(x):
    return torch.nn.functional.gelu(x, approximate="tanh")
def _silu(x):
    return torch.nn.functional.silu(x)
def _sigmoid(x):
    return torch.sigmoid(x)
def _layernorm(x, axis=-1, eps=1e-5):
    m = x.mean(dim=axis, keepdim=True)
    v = x.var(dim=axis, keepdim=True, unbiased=False)
    return (x - m) / torch.sqrt(v + eps)
def _scatter_add(tgt, idx, src, axis=0):
    return tgt.clone().index_add_(axis, idx, src)
def _segment_sum(src, seg, n):
    out = torch.zeros((n,) + src.shape[1:], dtype=src.dtype)
    return out.index_add_(0, seg, src)
def _pad(x, pw):
    flat = tuple(v for pair in reversed(pw) for v in pair)
    return torch.nn.functional.pad(x, flat)

kernel_name = 'interleave_layers__sliding_block__glu_gated_swiglu__prompt'

def setup_inputs():

    _w = (lambda a: (lambda t: t.to(torch.bfloat16) if t.is_floating_point() else t)(torch.as_tensor(a)))
    def _A_setup():
        B, S, D = 1, 2048, 448
        return {
            "x": _w((lambda *s: torch.randn(*s, dtype=torch.bfloat16) * 0.05)(B, S, D)),
            "wqkv": _w((lambda *s: torch.randn(*s, dtype=torch.bfloat16) * 0.05)(D, 3 * D)),
            "wo": _w((lambda *s: torch.randn(*s, dtype=torch.bfloat16) * 0.05)(D, D)),
        }
    _A_in = _A_setup()

    def _B_setup():
        B, S, D, F = 1, 2048, 448, 1792
        return {
            "x": _w((lambda *s: torch.randn(*s, dtype=torch.bfloat16) * 0.05)(B, S, D)),
            "w1": _w((lambda *s: torch.randn(*s, dtype=torch.bfloat16) * 0.8)(D, F) * (2.0 / D) ** 0.5),
            "w3": _w((lambda *s: torch.randn(*s, dtype=torch.bfloat16) * 0.8)(D, F) * (2.0 / D) ** 0.5),
            "w2": _w((lambda *s: torch.randn(*s, dtype=torch.bfloat16) * 0.8)(F, D) * (2.0 / F) ** 0.5),
        }
    _B_in = _B_setup()

    return {
        "A_x": _A_in["x"],
        "A_wqkv": _A_in["wqkv"],
        "A_wo": _A_in["wo"],
        "B_x": _B_in["x"],
        "B_w1": _B_in["w1"],
        "B_w3": _B_in["w3"],
        "B_w2": _B_in["w2"],
    }

def reference(A_x, A_wqkv, A_wo, B_x, B_w1, B_w3, B_w2):
    def _A_ref(x, wqkv, wo):
        B, S, D = x.shape
        H = 16; Dh = D // H; W = 256
        qkv = (lambda x, *d: x.permute(*d))((x @ wqkv).reshape(B, S, 3, H, Dh), 2, 0, 3, 1, 4)
        q, k, v = qkv[0], qkv[1], qkv[2]
        scores = torch.einsum("bhqd,bhkd->bhqk", q, k) * (Dh ** -0.5)
        idx = torch.arange(S)
        mask = (idx[:, None] - idx[None, :] >= 0) & (idx[:, None] - idx[None, :] < W)
        scores = torch.where(mask[None, None], scores, -1e9)
        p = _softmax(scores, axis=-1)
        o = torch.einsum("bhqk,bhkd->bhqd", p, v)
        return (lambda x, *d: x.permute(*d))(o, 0, 2, 1, 3).reshape(B, S, D) @ wo

    def _B_ref(x, w1, w3, w2):
        gate = torch.einsum("bsd,df->bsf", x, w1)
        up = torch.einsum("bsd,df->bsf", x, w3)
        h = _silu(gate) * up
        out = torch.einsum("bsf,fd->bsd", h, w2)
        return out

    x = A_x
    x = x + _A_ref(_layernorm(x, axis=-1), A_wqkv, A_wo)
    x = x + _B_ref(_layernorm(x, axis=-1), B_w1, B_w3, B_w2)
    x = x + _A_ref(_layernorm(x, axis=-1), A_wqkv, A_wo)
    x = x + _B_ref(_layernorm(x, axis=-1), B_w1, B_w3, B_w2)
    return x
```

```python
import re

TRANS = ('v_exp_f32', 'v_log_f32', 'v_rcp_f32', 'v_rsq_f32', 'v_sqrt_f32', 'v_sin_f32', 'v_cos_f32',
         'v_rcp_iflag_f32')

_reg_re = re.compile(r'^(-|\|)?(abs\()?([vas])(\d+|\[(\d+):(\d+)\])\)?\|?$')


def parse_reg(tok):
    tok = tok.strip()
    if tok == 'vcc':
        return [('s', 106), ('s', 107)]
    if tok == 'vcc_lo':
        return [('s', 106)]
    if tok == 'vcc_hi':
        return [('s', 107)]
    if tok == 'exec':
        return [('s', 126), ('s', 127)]
    if tok == 'm0':
        return [('s', 124)]
    m = _reg_re.match(tok)
    if not m:
        return []
    f = m.group(3)
    if m.group(5) is not None:
        return [(f, i) for i in range(int(m.group(5)), int(m.group(6)) + 1)]
    return [(f, int(m.group(4)))]


def split_ops(s):
    out, depth, cur = [], 0, ''
    for ch in s:
        if ch in '[(':
            depth += 1
        if ch in '])':
            depth -= 1
        if ch == ',' and depth == 0:
            out.append(cur.strip())
            cur = ''
        else:
            cur += ch
    if cur.strip():
        out.append(cur.strip())
    return out


class Inst:
    __slots__ = ('text', 'op', 'reads', 'writes', 'kind', 'passes', 'srcc', 'srcab', 'wide_store_data', 'lds_dma',
                 'nstates', 'is_trans', 'is_dpp', 'is_permlane', 'is_readlane', 'cnt')


def classify(text):
    t = text.split(';')[0].strip()
    parts = t.split(None, 1)
    op = parts[0]
    rest = parts[1] if len(parts) > 1 else ''
    ops = split_ops(rest)
    mods = []
    clean = []
    for o in ops:
        ws = o.split()
        clean.append(ws[0] if ws else '')
        mods += ws[1:]
    ops = clean
    I = Inst()
    I.text = text
    I.op = op
    I.reads, I.writes = [], []
    I.kind = 'other'
    I.passes = 0
    I.srcc = []
    I.srcab = []
    I.wide_store_data = []
    I.lds_dma = False
    I.nstates = 1
    base = re.sub(r'_(e32|e64|dpp|sdwa)$', '', op)
    I.is_trans = base in TRANS
    I.is_dpp = op.endswith('_dpp')
    I.is_permlane = base.startswith('v_permlane')
    I.is_readlane = base in ('v_readfirstlane_b32', 'v_readlane_b32')
    I.cnt = None
    R = lambda k: parse_reg(ops[k]) if k < len(ops) else []
    allr = lambda a: [r for k in range(a, len(ops)) for r in parse_reg(ops[k])]
    if op == 's_nop':
        I.kind = 'nop'
        I.nstates = int(ops[0], 0) + 1
    elif op in ('s_waitcnt', 's_barrier', 's_endpgm', 's_sleep', 's_setprio', 's_branch') or op.startswith('s_cbranch'):
        I.kind = 'ctl'
        if op in ('s_cbranch_vccz', 's_cbranch_vccnz'):
            I.reads = parse_reg('vcc')
    elif op.startswith('v_mfma'):
        I.kind = 'mfma'
        I.writes = R(0)
        I.srcab = R(1) + R(2)
        I.srcc = R(3)
        I.reads = I.srcab + I.srcc
        if '32x32x16' in op:
            I.passes = 8
        elif '16x16x32' in op:
            I.passes = 4
        else:
            raise ValueError('unknown mfma ' + op)
    elif op.startswith('buffer_load') or op.startswith('global_load'):
        I.kind = 'vmem'
        I.cnt = 'vm'
        if 'lds' in mods:
            I.lds_dma = True
            I.reads = allr(0) + parse_reg('m0')
        else:
            I.writes = R(0)
            I.reads = allr(1)
            if 'd16' in op:
                I.reads = I.reads + R(0)
    elif op.startswith('buffer_store') or op.startswith('global_store'):
        I.kind = 'vmem'
        I.cnt = 'vm'
        I.reads = allr(0)
        if op.endswith('x4') or op.endswith('x3'):
            I.wide_store_data = R(0) if op.startswith('buffer') else R(1)
    elif op.startswith('buffer_atomic') or op.startswith('global_atomic'):
        I.kind = 'vmem'
        I.cnt = 'vm'
        I.reads = allr(0)
        if 'sc0' in mods:
            I.writes = R(0)
    elif op in ('buffer_inv', 'buffer_wbl2'):
        I.kind = 'vmem'
        I.cnt = 'vm'
    elif op.startswith('ds_read') or op.startswith('ds_bpermute') or op.startswith('ds_permute') or op.startswith('ds_swizzle'):
        I.kind = 'ds'
        I.cnt = 'lgkm'
        I.writes = R(0)
        I.reads = allr(1)
    elif op.startswith('ds_write') or op.startswith('ds_add') or op.startswith('ds_max'):
        I.kind = 'ds'
        I.cnt = 'lgkm'
        I.reads = allr(0)
    elif op.startswith('s_load') or op in ('s_memtime', 's_memrealtime'):
        I.kind = 'smem'
        I.cnt = 'smem'
        I.writes = R(0)
        I.reads = allr(1)
    elif op.startswith('s_cmp') or op.startswith('s_bitcmp'):
        I.kind = 'salu'
        I.reads = allr(0)
    elif op.startswith('s_'):
        I.kind = 'salu'
        I.writes = R(0)
        I.reads = allr(1)
        if 'saveexec' in op:
            I.writes = I.writes + parse_reg('exec')
            I.reads = I.reads + parse_reg('exec')
        if op in ('s_addk_i32', 's_mulk_i32'):
            I.reads = I.reads + R(0)
    elif op.startswith('v_'):
        I.kind = 'valu'
        if I.is_permlane or base == 'v_swap_b32':
            I.writes = R(0) + R(1)
            I.reads = R(0) + R(1)
        elif base.startswith('v_cmp'):
            I.writes = R(0)
            I.reads = allr(1)
            if base.startswith('v_cmpx'):
                I.writes = I.writes + parse_reg('exec')
        elif base in ('v_add_co_u32', 'v_sub_co_u32', 'v_addc_co_u32', 'v_subb_co_u32', 'v_subrev_co_u32'):
            I.writes = R(0) + R(1)
            I.reads = allr(2)
        else:
            I.writes = R(0)
            I.reads = allr(1)
            if base in ('v_fmac_f32', 'v_dot2c_f32_bf16', 'v_writelane_b32') or I.is_dpp:
                I.reads = I.reads + R(0)
            if base == 'v_cndmask_b32' and len(ops) == 3:
                I.reads = I.reads + parse_reg('vcc')
    else:
        raise ValueError('cannot classify: ' + text)
    return I


class Handle:
    def __init__(self, seq):
        self.seq = seq


class K:
    def __init__(self):
        self.lines = []
        self.hist = []
        self.pos = 0
        self.vm_seq = 0
        self.vm_done = 0
        self.lg_seq = 0
        self.lg_done = 0
        self.smem_pending = False
        self.pend = {}
        self.uid = 0
        self.nops_inserted = 0
        self.cond_stack = []

    def raw(self, s):
        self.lines.append(s)

    def comment(self, s):
        self.lines.append('    ; ' + s)

    def newlabel(self, base='L'):
        self.uid += 1
        return f'{base}_{self.uid}'

    def _emit_wait(self, vm=None, lg=None):
        parts = []
        if vm is not None:
            parts.append(f'vmcnt({min(vm, 63)})')
        if lg is not None:
            parts.append(f'lgkmcnt({min(lg, 15)})')
        self._push(classify('s_waitcnt ' + ' '.join(parts)))
        if vm is not None:
            self.vm_done = max(self.vm_done, self.vm_seq - min(vm, 63))
        if lg is not None:
            self.lg_done = max(self.lg_done, self.lg_seq - min(lg, 15))
            if lg == 0:
                self.smem_pending = False
        self._gc()

    def _gc(self):
        dead = []
        for r, (k, seq) in self.pend.items():
            if k == 'vm' and seq <= self.vm_done:
                dead.append(r)
            elif k == 'lgkm' and seq <= self.lg_done:
                dead.append(r)
            elif k == 'smem' and not self.smem_pending:
                dead.append(r)
        for r in dead:
            del self.pend[r]

    def vm_mark(self):
        return Handle(self.vm_seq)

    def lg_mark(self):
        return Handle(self.lg_seq)

    def wait_vm(self, h=None):
        seq = self.vm_seq if h is None else h.seq
        if seq <= self.vm_done:
            return
        self._emit_wait(vm=self.vm_seq - seq)

    def wait_lg(self, h=None):
        seq = self.lg_seq if h is None else h.seq
        if self.smem_pending:
            self._emit_wait(lg=0)
            return
        if seq <= self.lg_done:
            return
        self._emit_wait(lg=self.lg_seq - seq)

    def wait_all(self):
        self._emit_wait(vm=0, lg=0)

    def barrier(self):
        self.wait_lg()
        self('s_barrier')

    def _needed_states(self, I):
        need = 0
        rset = set(I.reads)
        wset = set(I.writes)
        for pos, P in reversed(self.hist):
            dist = self.pos - pos - P.nstates
            if dist >= 20:
                break
            req = 0
            pw = set(P.writes)
            if P.kind == 'valu':
                vw = {r for r in pw if r[0] in 'va'}
                sw = {r for r in pw if r[0] == 's'}
                if I.kind == 'mfma' and vw & rset:
                    req = max(req, 2)
                if P.op.startswith('v_dot') and vw & (rset | wset):
                    same_c = (I.op == P.op and I.writes == P.writes and not (vw & set(I.reads[:-len(I.writes)])))
                    if not same_c:
                        req = max(req, 3)
                if I.kind == 'valu':
                    if P.is_trans and not I.is_trans and vw & rset:
                        req = max(req, 1)
                    if P.is_trans and I.is_trans and vw & rset:
                        req = max(req, 1)
                    if I.is_readlane and vw & rset:
                        req = max(req, 1)
                    if (I.is_permlane or I.is_dpp) and vw & rset:
                        req = max(req, 2)
                    if sw & rset:
                        req = max(req, 4 if I.is_readlane else 2)
                if I.kind in ('vmem', 'ds') and sw & rset:
                    req = max(req, 5)
                if I.kind in ('vmem', 'ds') and P.is_trans and vw & rset:
                    req = max(req, 1)
                if I.kind in ('salu', 'ctl', 'smem') and sw & rset:
                    req = max(req, 1)
                if ('s', 126) in sw:
                    req = max(req, 5)
            elif P.kind == 'mfma':
                np_ = P.passes
                full = {4: 8, 8: 12}[np_]
                if I.kind == 'mfma':
                    if set(I.srcab) & pw:
                        req = max(req, full)
                    if set(I.srcc) & pw:
                        if I.srcc == P.writes and I.passes == P.passes:
                            pass
                        else:
                            req = max(req, np_ + 2)
                    if wset & pw and not (I.writes == P.writes and I.passes == P.passes):
                        req = max(req, full)
                else:
                    if (rset | wset) & pw:
                        req = max(req, full)
                    if I.kind in ('valu', 'vmem', 'ds') and wset & set(P.srcc):
                        req = max(req, {4: 3, 8: 7}[np_])
            elif P.kind == 'salu':
                if ('s', 124) in pw and (I.lds_dma or 'addtid' in I.op):
                    req = max(req, 1)
            if P.wide_store_data and wset & set(P.wide_store_data):
                req = max(req, 2)
            need = max(need, req - dist)
        return need

    def _push(self, I):
        self.lines.append('    ' + I.text)
        self.hist.append((self.pos, I))
        self.pos += I.nstates
        if len(self.hist) > 40:
            self.hist = self.hist[-40:]

    def __call__(self, text):
        for line in text.strip().split('\n'):
            line = line.strip()
            if not line or line.startswith(';'):
                continue
            self._one(line)

    def _one(self, line):
        I = classify(line)
        if I.op == 's_waitcnt':
            vm = re.search(r'vmcnt\((\d+)\)', line)
            lg = re.search(r'lgkmcnt\((\d+)\)', line)
            self._emit_wait(int(vm.group(1)) if vm else None, int(lg.group(1)) if lg else None)
            return
        need_vm, need_lg, need_smem = None, None, False
        for r in list(I.reads) + list(I.writes):
            p = self.pend.get(r)
            if p is None:
                continue
            k, seq = p
            if k == 'vm':
                if 'd16' in I.op and r in I.writes and I.kind == 'vmem':
                    continue
                n = self.vm_seq - seq
                need_vm = n if need_vm is None else min(need_vm, n)
            elif k == 'lgkm':
                n = self.lg_seq - seq
                need_lg = n if need_lg is None else min(need_lg, n)
            else:
                need_smem = True
        if need_smem or (need_lg is not None and self.smem_pending):
            need_lg = 0
        if need_vm is not None or need_lg is not None:
            self._emit_wait(need_vm, need_lg)
        n = self._needed_states(I)
        while n > 0:
            k = min(n, 16)
            self._push(classify(f's_nop {k - 1}'))
            self.nops_inserted += 1
            n -= k
        self._push(I)
        if I.cnt == 'vm':
            self.vm_seq += 1
            for r in I.writes:
                self.pend[r] = ('vm', self.vm_seq)
        elif I.cnt == 'lgkm':
            self.lg_seq += 1
            for r in I.writes:
                self.pend[r] = ('lgkm', self.lg_seq)
        elif I.cnt == 'smem':
            self.smem_pending = True
            for r in I.writes:
                self.pend[r] = ('smem', 0)

    def label(self, name, pad=True):
        self.lines.append(name + ':')
        if pad:
            self.hist = []
            self._push(classify('s_nop 7'))
            self._push(classify('s_nop 4'))

    def if_begin(self, skip_branch):
        lab = self.newlabel('Lskip')
        self(f'{skip_branch} {lab}')
        self.cond_stack.append((lab, self.vm_seq, self.vm_done, self.lg_seq, self.lg_done, dict(self.pend),
                                self.smem_pending))

    def if_end(self, pad=True):
        lab, vs, vd, ls, ld, pend, sp = self.cond_stack.pop()
        vm = 0 if self.vm_seq != vs and self.vm_done < self.vm_seq else None
        lg = 0 if (self.lg_seq != ls and self.lg_done < self.lg_seq) or self.smem_pending != sp else None
        if vm is not None or lg is not None:
            self._emit_wait(vm, lg)
        self.vm_seq, self.vm_done, self.lg_seq, self.lg_done, self.pend, self.smem_pending = vs, vd, ls, ld, pend, sp
        self.label(lab, pad)

    def drained(self):
        self.vm_done = self.vm_seq
        self.lg_done = self.lg_seq
        self.smem_pending = False
        self.pend = {}

    def text(self):
        return '\n'.join(self.lines) + '\n'


def vr(base, n=1, f='v'):
    return f'{f}{base}' if n == 1 else f'{f}[{base}:{base + n - 1}]'


def v4(b):
    return f'v[{b}:{b + 3}]'


def a4(b):
    return f'a[{b}:{b + 3}]'


def v16(b):
    return f'v[{b}:{b + 15}]'


def v2(b):
    return f'v[{b}:{b + 1}]'
```

```python
S, D, H, DH, F = 2048, 448, 16, 28, 1792
NT = 64
KS = 28

_off = 0
def _alloc(n):
    global _off
    o = _off
    _off += (n + 4095) // 4096 * 4096
    return o

WQKV_P = _alloc(16 * 3 * 28 * 1024)
WO_P = _alloc(14 * 32 * 1024)
W13_P = _alloc(112 * 28 * 1024)
W2_P = _alloc(14 * 112 * 1024)
CS_QKV = _alloc(48 * 128)
CS_13 = _alloc(112 * 128 + 1024)
XF = [_alloc(64 * 28 * 1024) for _ in range(4)]
ST = [_alloc(64 * 14 * 256) for _ in range(4)]
KV = [_alloc(16 * 64 * 4096) for _ in range(2)]
OF = [_alloc(64 * 32 * 1024) for _ in range(2)]
HF = [_alloc(64 * 112 * 1024) for _ in range(2)]
FLAGS = _alloc(65536)
TS = _alloc(1 << 20)
WS_USED = _off
WS_BYTES = 268435456

def swap23(m):
    return (m & ~12) | ((m & 4) << 1) | ((m & 8) >> 1)
```

```python
import sys, math
from dsl import *
from layout import *

NAME = 'interleave_layers__sliding_block__glu_gated_swiglu__prompt'
OOB = 0x40000000
ONES_BF16 = 0x3F803F80
LOG2E = 1.4426950408889634


def f32bits(x):
    import struct
    return struct.unpack('<I', struct.pack('<f', x))[0]


def kd(name, vg=256, sg=102, acc=256):
    return f'''.section .rodata,"a"
.p2align 6
.amdhsa_kernel {name}
  .amdhsa_next_free_vgpr {vg}
  .amdhsa_next_free_sgpr {sg}
  .amdhsa_accum_offset {acc}
  .amdhsa_group_segment_fixed_size 0
  .amdhsa_kernarg_size 80
  .amdhsa_user_sgpr_count 2
  .amdhsa_user_sgpr_kernarg_segment_ptr 1
  .amdhsa_system_sgpr_workgroup_id_x 1
.end_amdhsa_kernel
.text
'''


def kstart(k, name):
    k.raw(f'.globl {name}')
    k.raw('.p2align 8')
    k.raw(f'.type {name},@function')
    k.raw(f'{name}:')
    k.hist = []
    k.drained()


def load_args(k):
    k('''
    s_load_dwordx16 s[16:31], s[0:1], 0
    s_load_dwordx4 s[32:35], s[0:1], 64
    ''')


def ws_srd(k):
    k(f'''
    s_mov_b32 s8, s34
    s_mov_b32 s9, s35
    s_mov_b32 s10, {WS_BYTES}
    s_mov_b32 s11, 0x00020000
    ''')


K0_QKV0, K0_W13_0, K0_WO0, K0_W2_0, K0_X0, K0_N = 0, 48, 160, 174, 230, 342


def gen_k0(k, name):
    kstart(k, name)
    Lend = 'K0_end'
    k(f's_cmp_ge_u32 s2, {K0_N}')
    k(f's_cbranch_scc1 {Lend}')
    load_args(k)
    k('''
    v_lshrrev_b32 v1, 6, v0            ; wave
    v_and_b32 v2, 63, v0               ; lane
    v_readfirstlane_b32 s3, v1         ; s3 = wave
    v_and_b32 v3, 15, v2               ; m16
    v_bfe_u32 v4, v2, 4, 1             ; hh
    v_lshrrev_b32 v5, 5, v2            ; kq
    v_and_b32 v6, 3, v3
    v_and_b32 v7, 4, v3
    v_lshl_or_b32 v6, v7, 1, v6
    v_and_b32 v7, 8, v3
    v_lshrrev_b32 v7, 1, v7
    v_or_b32 v6, v6, v7                ; v6 = swap23(m16)
    v_lshlrev_b32 v8, 1, v5
    v_add_u32 v8, v8, v4
    v_lshlrev_b32 v8, 3, v8
    v_lshlrev_b32 v9, 10, v5
    v_lshl_or_b32 v9, v4, 9, v9
    v_lshl_or_b32 v9, v3, 4, v9
    s_lshr_b32 s4, s3, 1               ; s4 = half s
    s_and_b32 s5, s3, 1                ; s5 = k-half
    ''')
    ws_srd(k)
    k('s_mov_b32 s15, 0x00020000')
    k(f's_cmp_ge_u32 s2, {K0_X0}')
    k('s_cbranch_scc1 K0_x')
    k(f's_cmp_ge_u32 s2, {K0_W2_0}')
    k('s_cbranch_scc1 K0_w2')
    k(f's_cmp_ge_u32 s2, {K0_WO0}')
    k('s_cbranch_scc1 K0_wo')
    k(f's_cmp_ge_u32 s2, {K0_W13_0}')
    k('s_cbranch_scc1 K0_w13')

    def pack_body(npairs, RS, pair_rows, voffA, voffB, colsum):
        base = 64
        for i in range(npairs):
            for j in range(8):
                k(f's_add_u32 s42, s40, {i * pair_rows * RS + j * RS}')
                k(f'buffer_load_ushort v{base + 8 * i + j}, {voffA if j < 4 else voffB}, s[12:15], s42 offen')
        if colsum:
            k('v_mov_b32 v60, 0')
            k(f'v_mov_b32 v61, {ONES_BF16}')
        for i in range(npairs):
            o = 16 + 4 * (i % 2)
            for q in range(4):
                k(f'v_lshl_or_b32 v{o + q}, v{base + 8 * i + 2 * q + 1}, 16, v{base + 8 * i + 2 * q}')
            if colsum:
                for q in range(4):
                    k(f'v_dot2_f32_bf16 v60, v{o + q}, v61, v60')
            k(f's_add_u32 s42, s41, {i * 2048}')
            k(f'buffer_store_dwordx4 {v4(o)}, v9, s[8:11], s42 offen')

    def colsum_finish(plain_if_scc=None):
        k('''
        v_lshlrev_b32 v10, 2, v0
        ds_write_b32 v10, v60
        ''')
        k.barrier()
        k('s_cmp_lg_u32 s3, 0')
        k(f's_cbranch_scc1 {Lend}')
        k('''
        v_and_b32 v11, 31, v2              ; m
        v_lshrrev_b32 v12, 4, v11          ; s
        v_lshlrev_b32 v12, 9, v12
        v_lshl_or_b32 v12, v3, 2, v12      ; + m16*4
        ''')
        for q in range(8):
            k(f'ds_read_b32 v{24 + q}, v12 offset:{q * 64}')
        for q in range(1, 8):
            k(f'v_add_f32 v24, v24, v{24 + q}')
        k('''
        v_bfe_u32 v13, v11, 2, 1
        v_lshlrev_b32 v13, 4, v13
        v_lshrrev_b32 v14, 3, v11
        v_lshl_or_b32 v13, v14, 2, v13
        v_and_b32 v14, 3, v11
        v_or_b32 v13, v13, v14
        s_cmp_eq_u32 s44, 1
        s_cselect_b64 s[46:47], -1, 0
        v_cndmask_b32 v13, v13, v11, s[46:47]
        v_lshlrev_b32 v13, 2, v13
        buffer_store_dword v24, v13, s[8:11], s43 offen
        ''')
        k(f's_branch {Lend}')

    k(f'''
    s_mul_hi_u32 s36, s2, {(1 << 32) // 3 + 1}   ; h
    s_mul_i32 s37, s36, 3
    s_sub_u32 s37, s2, s37                        ; p
    s_mov_b32 s12, s18
    s_mov_b32 s13, s19
    s_mov_b32 s14, {448 * 1344 * 2 + 4}
    s_mul_i32 s38, s37, 448
    s_mul_i32 s39, s36, 28
    s_add_u32 s38, s38, s39
    s_lshl_b32 s39, s4, 4
    s_add_u32 s38, s38, s39
    s_lshl_b32 s38, s38, 1
    s_mul_i32 s40, s5, {7 * 32 * 2688}
    s_add_u32 s40, s40, s38
    v_mul_u32_u24 v10, 2688, v8
    v_lshl_add_u32 v10, v6, 1, v10
    v_mov_b32 v11, {OOB}
    s_cmp_eq_u32 s4, 1
    s_cselect_b32 s39, 12, 64
    v_cmp_gt_u32 vcc, s39, v6
    v_cndmask_b32 v10, v11, v10, vcc
    s_mul_i32 s41, s2, {28 * 1024}
    s_lshl_b32 s39, s4, 8
    s_add_u32 s41, s41, s39
    s_mul_i32 s39, s5, {7 * 2048}
    s_add_u32 s41, s41, s39
    s_add_u32 s41, s41, {WQKV_P}
    s_lshl_b32 s43, s2, 7
    s_add_u32 s43, s43, {CS_QKV}
    s_cmp_eq_u32 s37, 2
    s_cselect_b32 s44, 1, 0
    ''')
    pack_body(7, 2688, 32, 'v10', 'v10', True)
    colsum_finish()

    k.drained(); k.label('K0_w13')
    k(f'''
    s_sub_u32 s36, s2, {K0_W13_0}
    s_cmp_eq_u32 s4, 1
    s_cselect_b32 s12, s26, s24
    s_cselect_b32 s13, s27, s25
    s_mov_b32 s14, {448 * 1792 * 2 + 4}
    s_lshl_b32 s38, s36, 5                        ; 16t*2 bytes
    s_mul_i32 s40, s5, {7 * 32 * 3584}
    s_add_u32 s40, s40, s38
    v_mul_u32_u24 v10, 3584, v8
    v_lshl_add_u32 v10, v6, 1, v10
    s_mul_i32 s41, s36, {28 * 1024}
    s_lshl_b32 s39, s4, 8
    s_add_u32 s41, s41, s39
    s_mul_i32 s39, s5, {7 * 2048}
    s_add_u32 s41, s41, s39
    s_add_u32 s41, s41, {W13_P}
    s_lshl_b32 s43, s36, 7
    s_add_u32 s43, s43, {CS_13}
    s_mov_b32 s44, 0
    ''')
    pack_body(7, 3584, 32, 'v10', 'v10', True)
    colsum_finish()

    k.drained(); k.label('K0_wo')
    k(f'''
    s_sub_u32 s36, s2, {K0_WO0}
    s_mov_b32 s12, s20
    s_mov_b32 s13, s21
    s_mov_b32 s14, {448 * 448 * 2 + 4}
    s_lshl_b32 s38, s36, 6                        ; 32ft*2
    s_lshl_b32 s39, s4, 5                         ; 16s*2
    s_add_u32 s38, s38, s39
    s_mul_i32 s40, s5, {8 * 28 * 896}
    s_add_u32 s40, s40, s38
    v_mul_u32_u24 v10, 896, v8
    v_lshl_add_u32 v10, v6, 1, v10
    v_mov_b32 v11, {OOB}
    v_cmp_eq_u32 vcc, 24, v8
    v_cndmask_b32 v11, v10, v11, vcc
    s_lshl_b32 s41, s36, 15                       ; ft*32KB
    s_lshl_b32 s39, s4, 8
    s_add_u32 s41, s41, s39
    s_mul_i32 s39, s5, {8 * 2048}
    s_add_u32 s41, s41, s39
    s_add_u32 s41, s41, {WO_P}
    ''')
    pack_body(8, 896, 28, 'v10', 'v11', False)
    k(f's_branch {Lend}')

    k.drained(); k.label('K0_w2')
    k(f'''
    s_sub_u32 s36, s2, {K0_W2_0}
    s_lshr_b32 s37, s36, 2                        ; ft
    s_and_b32 s36, s36, 3
    s_lshl_b32 s36, s36, 1
    s_add_u32 s36, s36, s5
    s_mul_i32 s36, s36, 7                         ; pair0
    s_mov_b32 s12, s28
    s_mov_b32 s13, s29
    s_mov_b32 s14, {1792 * 448 * 2 + 4}
    s_lshl_b32 s38, s37, 6
    s_lshl_b32 s39, s4, 5
    s_add_u32 s38, s38, s39
    s_mul_i32 s40, s36, {32 * 896}
    s_add_u32 s40, s40, s38
    v_mul_u32_u24 v10, 896, v8
    v_lshl_add_u32 v10, v6, 1, v10
    s_mul_i32 s41, s37, {112 * 1024}
    s_lshl_b32 s39, s4, 8
    s_add_u32 s41, s41, s39
    s_lshl_b32 s39, s36, 11
    s_add_u32 s41, s41, s39
    s_add_u32 s41, s41, {W2_P}
    ''')
    pack_body(7, 896, 32, 'v10', 'v10', False)
    k(f's_branch {Lend}')

    k.drained(); k.label('K0_x')
    k(f'''
    s_sub_u32 s36, s2, {K0_X0}
    s_lshl_b32 s36, s36, 2
    s_add_u32 s36, s36, s3
    s_mul_hi_u32 s37, s36, {(1 << 32) // 7 + 1}   ; tt
    s_mul_i32 s38, s37, 7
    s_sub_u32 s38, s36, s38                       ; cb
    s_mov_b32 s12, s16
    s_mov_b32 s13, s17
    s_mov_b32 s14, {2048 * 448 * 2}
    v_and_b32 v10, 31, v2                         ; n
    v_mul_u32_u24 v11, 896, v10
    v_lshl_add_u32 v11, v5, 4, v11
    s_mul_i32 s40, s37, {32 * 896}
    s_lshl_b32 s39, s38, 7
    s_add_u32 s40, s40, s39
    ''')
    for i in range(4):
        k(f'buffer_load_dwordx4 {v4(16 + 4 * i)}, v11, s[12:15], s40 offen offset:{32 * i}')
    k(f'''
    v_lshlrev_b32 v12, 4, v2                      ; lane*16
    s_mul_i32 s41, s37, {28 * 1024}
    s_lshl_b32 s39, s38, 12
    s_add_u32 s41, s41, s39
    s_add_u32 s41, s41, {XF[0]}
    v_mov_b32 v61, {ONES_BF16}
    v_lshlrev_b32 v13, 3, v10
    v_lshl_or_b32 v13, v5, 2, v13                 ; n*8 + hh*4
    s_mul_i32 s43, s37, {14 * 256}
    s_lshl_b32 s39, s38, 9
    s_add_u32 s43, s43, s39
    s_add_u32 s43, s43, {ST[0]}
    ''')
    for i in range(4):
        k(f'buffer_store_dwordx4 {v4(16 + 4 * i)}, v12, s[8:11], s41 offen offset:{1024 * i}')
    for a in range(2):
        stats_from_packed(k, 16 + 8 * a, 40 + 2 * a, 41 + 2 * a, 61)
        k(f'buffer_store_dword v{40 + 2 * a}, v13, s[8:11], s43 offen offset:{256 * a}')
    k.drained(); k.label(Lend, pad=False)
    k('s_endpgm')


def stats_from_packed(k, pk, s1, s2, ones):
    k(f'v_mov_b32 v{s1}, 0')
    k(f'v_mov_b32 v{s2}, 0')
    for q in range(8):
        k(f'v_dot2_f32_bf16 v{s1}, v{pk + q}, v{ones}, v{s1}')
        k(f'v_dot2_f32_bf16 v{s2}, v{pk + q}, v{pk + q}, v{s2}')
    k('s_nop 2')
    k(f'v_permlane32_swap_b32 v{s1}, v{s2}')
    k(f'v_add_f32 v{s1}, v{s1}, v{s2}')


SLOT = 28672
KVB = 3 * SLOT
SCR = 5 * SLOT
SCR_CS = SCR + 1024
LDS_BYTES = 163840
sW, sRB, sIDX, sTT = 3, 4, 5, 6
sXIN, sSTIN, sKV, sOF, sX1, sST1, sHF, sXO, sSTO = 36, 37, 38, 39, 40, 41, 42, 43, 44
sLAST = 45
sT0, sT1, sT2, sT3, sT4, sT5 = 48, 49, 50, 51, 52, 53
sFT, sTT3 = 54, 55
sFTo, sTTo = 56, 57
sMASK = 64
sHI = 96
sN28 = 98
vL16, vLANE, vN, vHH, vSTO, vSTI, vL16b, vONES, vCS = 1, 2, 3, 4, 5, 6, 7, 8, 9
vMPK = 16
vM, vR, vT0, vT1, vT2, vT3 = 24, 25, 26, 27, 28, 29


def setup_common(k, end_label):
    k(f's_cmp_ge_u32 s2, 256')
    k(f's_cbranch_scc1 {end_label}')
    load_args(k)
    k(f"""
    v_lshrrev_b32 v10, 6, v0
    v_and_b32 v{vLANE}, 63, v0
    v_readfirstlane_b32 s{sW}, v10
    v_lshlrev_b32 v{vL16}, 4, v{vLANE}
    v_and_b32 v{vN}, 31, v{vLANE}
    v_lshrrev_b32 v{vHH}, 5, v{vLANE}
    v_lshlrev_b32 v{vSTO}, 3, v{vN}
    v_mul_u32_u24 v{vSTI}, 1792, v{vHH}
    v_add_u32 v{vSTI}, v{vSTI}, v{vSTO}
    v_lshl_or_b32 v{vSTO}, v{vHH}, 2, v{vSTO}
    v_add_u32 v{vL16b}, 57344, v{vL16}
    v_mov_b32 v{vONES}, {ONES_BF16}
    v_lshlrev_b32 v{vCS}, 6, v{vHH}              ; hh*64
    s_and_b32 s{sT0}, s2, 7
    s_lshr_b32 s{sT1}, s2, 3                     ; j
    s_lshr_b32 s{sT2}, s{sT1}, 4
    s_lshl_b32 s{sRB}, s{sT0}, 1
    s_add_u32 s{sRB}, s{sRB}, s{sT2}
    s_and_b32 s{sIDX}, s{sT1}, 15
    s_lshl_b32 s{sTT}, s{sRB}, 2
    s_add_u32 s{sTT}, s{sTT}, s{sW}
    ; P3/P5 roles: idx<14: tbl = idx/7, fb = idx%7 ; ft = 2fb + (w&1) ; tt3 = 4rb + 2tbl + (w>>1)
    s_cmp_ge_u32 s{sIDX}, 7
    s_cselect_b32 s{sT0}, 1, 0
    s_mul_i32 s{sT1}, s{sT0}, 7
    s_sub_u32 s{sT1}, s{sIDX}, s{sT1}            ; fb
    s_lshl_b32 s{sFT}, s{sT1}, 1
    s_and_b32 s{sT2}, s{sW}, 1
    s_add_u32 s{sFT}, s{sFT}, s{sT2}
    s_xor_b32 s{sFTo}, s{sFT}, 1
    s_lshl_b32 s{sTT3}, s{sRB}, 2
    s_lshl_b32 s{sT0}, s{sT0}, 1
    s_add_u32 s{sTT3}, s{sTT3}, s{sT0}
    s_lshr_b32 s{sT2}, s{sW}, 1
    s_add_u32 s{sTT3}, s{sTT3}, s{sT2}
    s_xor_b32 s{sTTo}, s{sTT3}, 1
    s_mov_b32 s{sHI}, 0
    s_mov_b32 s{sHI + 1}, -1
    v_cmp_eq_u32 s[{sN28}:{sN28 + 1}], 28, v{vN}
    """)
    ws_srd(k)
    k(f"""
    s_mov_b32 s12, s30
    s_mov_b32 s13, s31
    s_mov_b32 s14, {S * D * 2}
    s_mov_b32 s15, 0x00020000
    """)


def set_layer(k, l):
    k(f"""
    s_mov_b32 s{sXIN}, {XF[2 * l]}
    s_mov_b32 s{sSTIN}, {ST[2 * l]}
    s_mov_b32 s{sKV}, {KV[l]}
    s_mov_b32 s{sOF}, {OF[l]}
    s_mov_b32 s{sX1}, {XF[2 * l + 1]}
    s_mov_b32 s{sST1}, {ST[2 * l + 1]}
    s_mov_b32 s{sHF}, {HF[l]}
    s_mov_b32 s{sXO}, {XF[2]}
    s_mov_b32 s{sSTO}, {ST[2]}
    s_mov_b32 s{sLAST}, {l}
    """)


def load_frags(k, dsts, soff, tmp, extra=''):
    for i, d in enumerate(dsts):
        if i % 4 == 0:
            if i == 0:
                cur = soff
            else:
                k(f's_add_u32 s{tmp}, s{soff}, {i * 1024}')
                cur = tmp
        k(f'buffer_load_dwordx4 {d}, v{vL16}, s[8:11], s{cur} offen offset:{(i % 4) * 1024}{extra}')


def dma(k, n, ssrc, slds, tmp):
    for i in range(n):
        if i % 4 == 0:
            if i == 0:
                k(f's_mov_b32 m0, s{slds}')
                cur = ssrc
            else:
                k(f's_add_u32 s{tmp}, s{slds}, {i * 1024}')
                k(f's_mov_b32 m0, s{tmp}')
                k(f's_add_u32 s{tmp}, s{ssrc}, {i * 1024}')
                cur = tmp
        k(f'buffer_load_dwordx4 v{vL16}, s[8:11], s{cur} offen offset:{(i % 4) * 1024} lds')


def ln_stats_load(k, sbase, stt, dst):
    k(f's_mul_i32 s{sT0}, s{stt}, {14 * 256}')
    k(f's_add_u32 s{sT0}, s{sT0}, s{sbase}')
    for i in range(7):
        k(f'buffer_load_dwordx2 {v2(dst + 2 * i)}, v{vSTI}, s[8:11], s{sT0} offen offset:{256 * i}')


def ln_stats_finish(k, src):
    a, b = src, src + 1
    for i in range(1, 7):
        k(f'v_add_f32 v{a}, v{a}, v{src + 2 * i}')
        k(f'v_add_f32 v{b}, v{b}, v{src + 2 * i + 1}')
    k(f"""
    v_mov_b32 v{vT0}, v{a}
    v_mov_b32 v{vT1}, v{b}
    v_permlane32_swap_b32 v{a}, v{vT0}
    v_permlane32_swap_b32 v{b}, v{vT1}
    v_add_f32 v{a}, v{a}, v{vT0}
    v_add_f32 v{b}, v{b}, v{vT1}
    v_mul_f32 v{a}, {f32bits(1.0 / 448)}, v{a}          ; mean
    v_mul_f32 v{b}, {f32bits(1.0 / 448)}, v{b}
    v_fma_f32 v{b}, -v{a}, v{a}, v{b}                   ; var
    v_max_f32 v{b}, 0, v{b}
    v_cvt_pk_bf16_f32 v{vT0}, v{a}, v{b}
    v_lshlrev_b32 v{vM}, 16, v{vT0}
    v_and_b32 v{vT1}, 0xffff0000, v{vT0}
    v_add_f32 v{vT1}, {f32bits(1e-5)}, v{vT1}
    v_cvt_pk_bf16_f32 v{vT1}, v{vT1}, v{vT1}
    v_and_b32 v{vT1}, 0xffff0000, v{vT1}
    v_sqrt_f32 v{vT1}, v{vT1}
    v_cvt_pk_bf16_f32 v{vT1}, v{vT1}, v{vT1}
    v_and_b32 v{vT1}, 0xffff0000, v{vT1}
    v_rcp_f32 v{vR}, v{vT1}
    """)


def attn_masks(k):
    k(f"""
    v_lshlrev_b32 v{vT0}, 2, v{vHH}
    v_sub_u32 v{vT0}, v{vN}, v{vT0}              ; u = n - 4hh
    v_mov_b32 v{vT1}, 0xffff
    v_mov_b32 v{vT2}, 0xffff0000
    """)
    for r in range(16):
        c = 8 * (r >> 2) + (r & 3)
        k(f'v_cmp_ge_i32 s[{sMASK + 2 * r}:{sMASK + 2 * r + 1}], v{vT0}, {c}')
    for q in range(8):
        k(f'v_cndmask_b32 v{vMPK + q}, 0, v{vT1}, s[{sMASK + 4 * q}:{sMASK + 4 * q + 1}]')
        k(f'v_cndmask_b32 v{vT3}, 0, v{vT2}, s[{sMASK + 4 * q + 2}:{sMASK + 4 * q + 3}]')
        k(f'v_or_b32 v{vMPK + q}, v{vMPK + q}, v{vT3}')


A_X = 32
A_Q, A_K, A_V = 144, 160, 176
A_WB = 192
A_RT = 240


def A_prefetch(k):
    k(f"""
    s_mul_i32 s{sT0}, s{sIDX}, {3 * 28 * 1024}
    s_mul_i32 s{sT1}, s{sW}, {21 * 1024}
    s_add_u32 s{sT0}, s{sT0}, s{sT1}
    s_add_u32 s{sT0}, s{sT0}, {WQKV_P}
    """)
    dma(k, 21, sT0, sT1, sT2)
    return k.vm_mark()


def A_body(k, w_handle):
    k(f"""
    s_mul_i32 s{sT0}, s{sIDX}, 384
    s_add_u32 s{sT0}, s{sT0}, {CS_QKV}
    v_lshlrev_b32 v{vT0}, 2, v{vN}
    """)
    for i in range(4):
        k(f'buffer_load_dwordx4 {v4(A_Q + 4 * i)}, v{vCS}, s[8:11], s{sT0} offen offset:{16 * i}')
    for i in range(4):
        k(f'buffer_load_dwordx4 {v4(A_K + 4 * i)}, v{vCS}, s[8:11], s{sT0} offen offset:{128 + 16 * i}')
    k(f'buffer_load_dword v{vT3}, v{vT0}, s[8:11], s{sT0} offen offset:256')
    ln_stats_load(k, sSTIN, sTT, A_WB)
    k(f's_mul_i32 s{sT3}, s{sTT}, {28 * 1024}')
    k(f's_add_u32 s{sT3}, s{sT3}, s{sXIN}')
    load_frags(k, [v4(A_X + 4 * i) for i in range(28)], sT3, sT2)
    k(f'v_mov_b32 v15, v{vT3}')
    ln_stats_finish(k, A_WB)
    k(f"""
    s_lshl_b32 s{sT0}, s{sW}, 8
    s_add_u32 s{sT0}, s{sT0}, {SCR}
    v_lshlrev_b32 v{vT0}, 2, v{vN}
    v_add_u32 v{vT0}, s{sT0}, v{vT0}
    ds_write_b32 v{vT0}, v{vM}
    ds_write_b32 v{vT0}, v{vR} offset:128
    v_lshlrev_b32 v{vT1}, 4, v{vHH}
    v_add_u32 v{vT1}, s{sT0}, v{vT1}
    """)
    for g in range(4):
        k(f'ds_read_b128 {v4(A_V + 4 * g)}, v{vT1} offset:{32 * g}')
    for g in range(4):
        k(f'ds_read_b128 {v4(A_RT + 4 * g)}, v{vT1} offset:{128 + 32 * g}')
    for r in range(16):
        k(f'v_mul_f32 v{A_Q + r}, -v{vM}, v{A_Q + r}'.replace('v_mul_f32', 'v_mul_f32_e64'))
        k(f'v_mul_f32_e64 v{A_K + r}, -v{vM}, v{A_K + r}')
    for r in range(16):
        k(f'v_mul_f32_e64 v{A_V + r}, -v15, v{A_V + r}')
    k.wait_vm(w_handle)
    k.barrier()
    NST = 4

    def wread(ks):
        b = A_WB + 12 * (ks % NST)
        k(f'ds_read_b128 {v4(b)}, v{vL16} offset:{ks * 1024}')
        k(f'ds_read_b128 {v4(b + 4)}, v{vL16} offset:{(28 + ks) * 1024}')
        k(f'ds_read_b128 {v4(b + 8)}, v{vL16b} offset:{ks * 1024}')
    for ks in range(NST - 1):
        wread(ks)
    for ks in range(28):
        if ks + NST - 1 < 28:
            wread(ks + NST - 1)
        b = A_WB + 12 * (ks % NST)
        x = v4(A_X + 4 * ks)
        k(f'v_mfma_f32_32x32x16_bf16 {v16(A_K)}, {v4(b + 4)}, {x}, {v16(A_K)}')
        k(f'v_mfma_f32_32x32x16_bf16 {v16(A_V)}, {x}, {v4(b + 8)}, {v16(A_V)}')
        k(f'v_mfma_f32_32x32x16_bf16 {v16(A_Q)}, {v4(b)}, {x}, {v16(A_Q)}')
    QF, KF, VF = A_WB, A_WB + 8, A_WB + 16
    for r in range(16):
        k(f'v_mul_f32 v{A_K + r}, v{vR}, v{A_K + r}')
    for q in range(8):
        k(f'v_cvt_pk_bf16_f32 v{KF + q}, v{A_K + 2 * q}, v{A_K + 2 * q + 1}')
    for r in range(16):
        k(f'v_mul_f32 v{A_V + r}, v{A_RT + r}, v{A_V + r}')
    for q in range(8):
        k(f'v_cvt_pk_bf16_f32 v{VF + q}, v{A_V + 2 * q}, v{A_V + 2 * q + 1}')
    for q in range(8):
        k(f'v_cndmask_b32 v{VF + q}, v{VF + q}, v{vONES}, s[{sN28}:{sN28 + 1}]')
    k(f"""
    s_lshl_b32 s{sT0}, s{sIDX}, 6
    s_add_u32 s{sT0}, s{sT0}, s{sTT}
    s_lshl_b32 s{sT0}, s{sT0}, 12
    s_add_u32 s{sT0}, s{sT0}, s{sKV}                 ; KV[h][tt]
    s_lshl_b32 s{sT1}, s{sW}, 12
    s_add_u32 s{sT1}, s{sT1}, {KVB}
    v_add_u32 v14, s{sT1}, v{vL16}
    """)
    for i in range(4):
        k(f'buffer_store_dwordx4 {v4(KF + 4 * i)}, v{vL16}, s[8:11], s{sT0} offen offset:{1024 * i}')
    for i in range(4):
        k(f'ds_write_b128 v14, {v4(KF + 4 * i)} offset:{8 * 4096 + 1024 * i}')
    k(f'v_mul_f32 v{vT0}, {f32bits(28 ** -0.5 * LOG2E)}, v{vR}')
    for r in range(16):
        k(f'v_mul_f32 v{A_Q + r}, v{vT0}, v{A_Q + r}')
    for q in range(8):
        k(f'v_cvt_pk_bf16_f32 v{QF + q}, v{A_Q + 2 * q}, v{A_Q + 2 * q + 1}')
    k(f'v_mov_b32 v{vT1}, 0x3f80')
    k(f'v_cndmask_b32 v{QF + 6}, v{QF + 6}, v{vT1}, s[{sHI}:{sHI + 1}]')
    k(f"""
    s_lshl_b32 s{sT2}, s{sRB}, 2
    s_lshl_b32 s{sT3}, s{sW}, 1
    s_add_u32 s{sT2}, s{sT2}, s{sT3}
    s_sub_i32 s{sT2}, s{sT2}, 8
    s_lshl_b32 s{sT1}, s{sW}, 13
    s_add_u32 s{sT1}, s{sT1}, {KVB}
    s_cmp_lt_i32 s{sT2}, 0
    """)
    Lfill, Ljoin = k.newlabel('A_fill'), k.newlabel('A_join')
    k(f's_cbranch_scc1 {Lfill}')
    k(f"""
    s_lshl_b32 s{sT0}, s{sIDX}, 6
    s_add_u32 s{sT0}, s{sT0}, s{sT2}
    s_lshl_b32 s{sT0}, s{sT0}, 12
    s_add_u32 s{sT0}, s{sT0}, s{sKV}
    """)
    dma(k, 8, sT0, sT1, sT3)
    k.wait_all()
    k(f's_branch {Ljoin}')
    k.label(Lfill, pad=False)
    k(f"""
    v_mov_b32 v32, 0
    v_mov_b32 v33, 0
    v_mov_b32 v34, 0
    v_mov_b32 v35, 0
    v_mov_b32 v36, 0
    v_mov_b32 v37, 0
    v_mov_b32 v39, 0
    v_mov_b32 v{vT1}, 0xf14a
    v_cndmask_b32 v38, 0, v{vT1}, s[{sHI}:{sHI + 1}]
    v_add_u32 v{vT2}, s{sT1}, v{vL16}
    """)
    for t in range(2):
        k(f'ds_write_b128 v{vT2}, v[32:35] offset:{4096 * t}')
        k(f'ds_write_b128 v{vT2}, v[36:39] offset:{4096 * t + 1024}')
        k(f'ds_write_b128 v{vT2}, v[32:35] offset:{4096 * t + 2048}')
        k(f'ds_write_b128 v{vT2}, v[32:35] offset:{4096 * t + 3072}')
    k.wait_all()
    k.label(Ljoin)
    k.drained()
    k('s_barrier')
    SB = 32
    KB, VB, OA = 216, 232, 176
    S_ = lambda t: SB + 16 * t

    def kread(t):
        b = KB + 8 * (t % 2)
        k(f'ds_read_b128 {v4(b)}, v14 offset:{t * 4096}')
        k(f'ds_read_b128 {v4(b + 4)}, v14 offset:{t * 4096 + 1024}')

    def vread(t):
        b = VB + 8 * (t % 2)
        k(f'ds_read_b128 {v4(b)}, v14 offset:{t * 4096 + 2048}')
        k(f'ds_read_b128 {v4(b + 4)}, v14 offset:{t * 4096 + 3072}')
    order = [0, 8, 1, 2, 3, 4, 5, 6, 7]
    def kread2(pos):
        t = order[pos]
        b = KB + 8 * (pos % 2)
        k(f'ds_read_b128 {v4(b)}, v14 offset:{t * 4096}')
        k(f'ds_read_b128 {v4(b + 4)}, v14 offset:{t * 4096 + 1024}')
    kread2(0)
    for pos, t in enumerate(order):
        if pos + 1 < 9:
            kread2(pos + 1)
        b = KB + 8 * (pos % 2)
        k(f'v_mfma_f32_32x32x16_bf16 {v16(S_(t))}, {v4(b)}, {v4(QF)}, 0')
        k(f'v_mfma_f32_32x32x16_bf16 {v16(S_(t))}, {v4(b + 4)}, {v4(QF + 4)}, {v16(S_(t))}')
    for r in range(16):
        k(f'v_cndmask_b32 v{S_(8) + r}, v{S_(0) + r}, v{S_(8) + r}, s[{sMASK + 2 * r}:{sMASK + 2 * r + 1}]')
    mx = vT0
    k(f'v_max_f32 v{mx}, v{S_(8)}, v{S_(8) + 1}')
    for t in [8, 1, 2, 3, 4, 5, 6, 7]:
        for r in range(0, 16, 2):
            if t == 8 and r == 0:
                continue
            k(f'v_max3_f32 v{mx}, v{S_(t) + r}, v{S_(t) + r + 1}, v{mx}')
    k(f"""
    v_mov_b32 v{vT1}, v{mx}
    v_permlane32_swap_b32 v{mx}, v{vT1}
    v_max_f32 v{mx}, v{mx}, v{vT1}
    """)
    pv_order = [8, 0, 1, 2, 3, 4, 5, 6, 7]

    def vread2(pos):
        t = pv_order[pos]
        b = VB + 8 * (pos % 2)
        k(f'ds_read_b128 {v4(b)}, v14 offset:{t * 4096 + 2048}')
        k(f'ds_read_b128 {v4(b + 4)}, v14 offset:{t * 4096 + 3072}')

    def softmax_tile(t):
        for r in range(16):
            k(f'v_sub_f32 v{S_(t) + r}, v{S_(t) + r}, v{mx}')
        for r in range(16):
            k(f'v_exp_f32 v{S_(t) + r}, v{S_(t) + r}')
        for q in range(8):
            k(f'v_cvt_pk_bf16_f32 v{S_(t) + q}, v{S_(t) + 2 * q}, v{S_(t) + 2 * q + 1}')
    vread2(0)
    first = True
    for pos, t in enumerate(pv_order):
        if pos + 1 < 9:
            vread2(pos + 1)
        if t == 8:
            softmax_tile(8)
            for q in range(8):
                k(f'v_bfi_b32 v{S_(0) + q}, v{vMPK + q}, 0, v{S_(8) + q}')
                k(f'v_and_b32 v{S_(8) + q}, v{vMPK + q}, v{S_(8) + q}')
        elif t != 0:
            softmax_tile(t)
        b = VB + 8 * (pos % 2)
        c = '0' if first else v16(OA)
        first = False
        k(f'v_mfma_f32_32x32x16_bf16 {v16(OA)}, {v4(b)}, {v4(S_(t))}, {c}')
        k(f'v_mfma_f32_32x32x16_bf16 {v16(OA)}, {v4(b + 4)}, {v4(S_(t) + 4)}, {v16(OA)}')
    k(f"""
    v_mov_b32 v{vT0}, v{OA + 12}
    v_mov_b32 v{vT1}, v{OA + 12}
    v_permlane32_swap_b32 v{vT0}, v{vT1}
    v_rcp_f32 v{vT1}, v{vT1}
    """)
    for r in range(16):
        k(f'v_mul_f32 v{OA + r}, v{vT1}, v{OA + r}')
    for q in range(8):
        k(f'v_cvt_pk_bf16_f32 v{OA + q}, v{OA + 2 * q}, v{OA + 2 * q + 1}')
    k(f"""
    s_lshl_b32 s{sT0}, s{sTT}, 5
    s_lshl_b32 s{sT1}, s{sIDX}, 1
    s_add_u32 s{sT0}, s{sT0}, s{sT1}
    s_lshl_b32 s{sT0}, s{sT0}, 10
    s_add_u32 s{sT0}, s{sT0}, s{sOF}
    buffer_store_dwordx4 {v4(OA)}, v{vL16}, s[8:11], s{sT0} offen
    buffer_store_dwordx4 {v4(OA + 4)}, v{vL16}, s[8:11], s{sT0} offen offset:1024
    """)


def res_epilogue(k, acc, xo, sx_out, sst_out, final_ok):
    for q in range(8):
        k(f'v_lshlrev_b32 v{vT0}, 16, v{xo + q}')
        k(f'v_and_b32 v{vT1}, 0xffff0000, v{xo + q}')
        k(f'v_add_f32 v{acc + 2 * q}, v{acc + 2 * q}, v{vT0}')
        k(f'v_add_f32 v{acc + 2 * q + 1}, v{acc + 2 * q + 1}, v{vT1}')
        k(f'v_cvt_pk_bf16_f32 v{xo + q}, v{acc + 2 * q}, v{acc + 2 * q + 1}')
    if final_ok:
        Lfin, Ldone = k.newlabel('fin'), k.newlabel('fin_done')
        k(f's_cmp_eq_u32 s{sLAST}, 1')
        k(f's_cbranch_scc1 {Lfin}')
    k(f"""
    s_mul_i32 s{sT0}, s{sTT3}, 28
    s_lshl_b32 s{sT1}, s{sFT}, 1
    s_add_u32 s{sT0}, s{sT0}, s{sT1}
    s_lshl_b32 s{sT0}, s{sT0}, 10
    s_add_u32 s{sT0}, s{sT0}, s{sx_out}
    buffer_store_dwordx4 {v4(xo)}, v{vL16}, s[8:11], s{sT0} offen
    buffer_store_dwordx4 {v4(xo + 4)}, v{vL16}, s[8:11], s{sT0} offen offset:1024
    """)
    stats_from_packed(k, xo, vT0, vT1, vONES)
    k(f"""
    s_mul_i32 s{sT0}, s{sTT3}, 14
    s_add_u32 s{sT0}, s{sT0}, s{sFT}
    s_lshl_b32 s{sT0}, s{sT0}, 8
    s_add_u32 s{sT0}, s{sT0}, s{sst_out}
    buffer_store_dword v{vT0}, v{vSTO}, s[8:11], s{sT0} offen
    """)
    if final_ok:
        k(f's_branch {Ldone}')
        k.label(Lfin, pad=False)
        k(f"""
        v_mul_u32_u24 v{vT0}, 896, v{vN}
        v_lshl_add_u32 v{vT0}, v{vHH}, 4, v{vT0}
        s_mul_i32 s{sT0}, s{sTT3}, {32 * 896}
        s_lshl_b32 s{sT1}, s{sFT}, 6
        s_add_u32 s{sT0}, s{sT0}, s{sT1}
        buffer_store_dwordx4 {v4(xo)}, v{vT0}, s[12:15], s{sT0} offen
        buffer_store_dwordx4 {v4(xo + 4)}, v{vT0}, s[12:15], s{sT0} offen offset:32
        """)
        k.label(Ldone, pad=False)


def res_load(k, sx_in, xo):
    k(f"""
    s_mul_i32 s{sT0}, s{sTT3}, 28
    s_lshl_b32 s{sT1}, s{sFT}, 1
    s_add_u32 s{sT0}, s{sT0}, s{sT1}
    s_lshl_b32 s{sT0}, s{sT0}, 10
    s_add_u32 s{sT0}, s{sT0}, s{sx_in}
    buffer_load_dwordx4 {v4(xo)}, v{vL16}, s[8:11], s{sT0} offen
    buffer_load_dwordx4 {v4(xo + 4)}, v{vL16}, s[8:11], s{sT0} offen offset:1024
    """)


def P3_prefetch(k):
    k(f's_lshl_b32 s{sT0}, s{sFT}, 15')
    k(f's_add_u32 s{sT0}, s{sT0}, {WO_P}')
    load_frags(k, [a4(4 * i) for i in range(32)], sT0, sT1)


def P3_body(k):
    OB, ACC, XO = 32, 160, 176
    res_load(k, sXIN, XO)
    k(f's_lshl_b32 s{sT3}, s{sTT3}, 15')
    k(f's_add_u32 s{sT3}, s{sT3}, s{sOF}')
    load_frags(k, [v4(OB + 4 * i) for i in range(32)], sT3, sT2)
    for ks in range(32):
        c = '0' if ks == 0 else v16(ACC)
        k(f'v_mfma_f32_32x32x16_bf16 {v16(ACC)}, {a4(4 * ks)}, {v4(OB + 4 * ks)}, {c}')
    res_epilogue(k, ACC, XO, sX1, sST1, False)


def P4_dma_tile(k, i, slot):
    k(f"""
    s_mul_i32 s{sT0}, s{sIDX}, {7 * SLOT}
    s_mul_i32 s{sT1}, s{sW}, 7168
    s_add_u32 s{sT0}, s{sT0}, s{sT1}
    s_add_u32 s{sT0}, s{sT0}, {W13_P + i * SLOT}
    s_add_u32 s{sT1}, s{sT1}, {slot * SLOT}
    """)
    dma(k, 7, sT0, sT1, sT2)


def P4_prefetch(k):
    k(f"""
    s_mul_i32 s{sT0}, s{sIDX}, 896
    s_add_u32 s{sT0}, s{sT0}, {CS_13}
    s_mov_b32 s{sT1}, {SCR_CS}
    """)
    dma(k, 1, sT0, sT1, sT2)
    for i in range(5):
        P4_dma_tile(k, i, i)
    return k.vm_mark()


def P4_body(k, w_handle):
    XB = 32
    ACC = [144, 160]
    WB = 176
    NB = 8
    ET = 208
    ln_stats_load(k, sST1, sTT, ET)
    k(f's_mul_i32 s{sT3}, s{sTT}, {28 * 1024}')
    k(f's_add_u32 s{sT3}, s{sT3}, s{sX1}')
    load_frags(k, [v4(XB + 4 * i) for i in range(28)], sT3, sT2)
    ln_stats_finish(k, ET)
    k(f"""
    v_mul_f32 v10, {f32bits(-LOG2E)}, v{vR}
    v_mul_f32 v11, v{vR}, v{vR}                      ; rstd^2
    v_add_u32 v12, {SCR_CS}, v{vCS}
    v_add_u32 v13, {2 * SLOT}, v{vL16}
    v_add_u32 v14, {4 * SLOT}, v{vL16}
    s_mul_i32 s{sT4}, s{sTT}, 112
    s_mul_i32 s{sT5}, s{sIDX}, 7
    s_add_u32 s{sT4}, s{sT4}, s{sT5}
    s_lshl_b32 s{sT4}, s{sT4}, 10
    s_add_u32 s{sT4}, s{sT4}, s{sHF}                 ; HF[tt][7*idx]
    """)
    k.wait_vm(w_handle)
    k.barrier()
    slot_of = [0, 1, 2, 3, 4, 0, 1]

    def waddr(i, ks):
        s = slot_of[i]
        base = {0: vL16, 1: vL16, 2: 13, 3: 13, 4: 14}[s]
        off = (s % 2) * SLOT + ks * 1024 if s < 4 else ks * 1024
        return base, off
    seq = [(i, ks) for i in range(7) for ks in range(28)]

    def wread(n):
        i, ks = seq[n]
        base, off = waddr(i, ks)
        k(f'ds_read_b128 {v4(WB + 4 * (n % NB))}, v{base} offset:{off}')

    def acc_init(i):
        a = ACC[i % 2]
        for g in range(4):
            k(f'ds_read_b128 {v4(a + 4 * g)}, v12 offset:{128 * i + 16 * g}')
        for r in range(16):
            k(f'v_mul_f32_e64 v{a + r}, -v{vM}, v{a + r}')

    def epilogue(i):
        a = ACC[i % 2]
        for r in range(8):
            g, u = a + r, a + 8 + r
            e = ET + r
            k(f'v_mul_f32 v{e}, v10, v{g}')
            k(f'v_exp_f32 v{e}, v{e}')
            k(f'v_mul_f32 v{g}, v{g}, v{u}')
            k(f'v_add_f32 v{e}, 1.0, v{e}')
            k(f'v_rcp_f32 v{e}, v{e}')
            k(f'v_mul_f32 v{g}, v11, v{g}')
            k(f'v_mul_f32 v{g}, v{g}, v{e}')
        o = ET + 8 + 4 * (i % 2)
        for q in range(4):
            k(f'v_cvt_pk_bf16_f32 v{o + q}, v{a + 2 * q}, v{a + 2 * q + 1}')
        if i % 4 == 0 and i > 0:
            k(f's_add_u32 s{sT4}, s{sT4}, 4096')
        k(f'buffer_store_dwordx4 {v4(o)}, v{vL16}, s[8:11], s{sT4} offen offset:{(i % 4) * 1024}')

    PF = NB - 2
    late = None
    acc_init(0)
    nread = 0
    for i in range(7):
        for ks in range(28):
            n = i * 28 + ks
            while nread < min(n + PF + 1, len(seq)) and not (seq[nread][0] >= 5 and late != 'ready'):
                wread(nread)
                nread += 1
            k(f'v_mfma_f32_32x32x16_bf16 {v16(ACC[i % 2])}, {v4(WB + 4 * (n % NB))}, {v4(XB + 4 * ks)}, {v16(ACC[i % 2])}')
            if ks == 20 and i + 1 < 7:
                pass
        if i + 1 < 7:
            acc_init(i + 1)
        if i == 1:
            k.barrier()
            P4_dma_tile(k, 5, 0)
            P4_dma_tile(k, 6, 1)
            late = k.vm_mark()
        if i == 3:
            k.wait_vm(late)
            k.barrier()
            late = 'ready'
        epilogue(i)


def P5_prefetch(k):
    for q, sft in enumerate([sFT, sFTo]):
        k(f"""
        s_mul_i32 s{sT0}, s{sft}, {112 * 1024}
        s_mul_i32 s{sT1}, s{sW}, {28 * 1024}
        s_add_u32 s{sT0}, s{sT0}, s{sT1}
        s_add_u32 s{sT0}, s{sT0}, {W2_P}
        """)
        load_frags(k, [a4(112 * q + 4 * i) for i in range(28)], sT0, sT1)


def P5_body(k):
    ACC = [32, 48, 64, 80]
    XO = 96
    HB = 104
    res_load(k, sX1, XO)
    regs = [v4(HB + 4 * i) for i in range(38)] + [a4(224 + 4 * i) for i in range(8)]
    for q, stt in enumerate([sTT3, sTTo]):
        k(f"""
        s_mul_i32 s{sT3 + q}, s{stt}, {112 * 1024}
        s_mul_i32 s{sT1}, s{sW}, {28 * 1024}
        s_add_u32 s{sT3 + q}, s{sT3 + q}, s{sT1}
        s_add_u32 s{sT3 + q}, s{sT3 + q}, s{sHF}
        """)
    slot = {}
    free = list(range(46))

    def hload(ks):
        for q in range(2):
            s = free.pop(0)
            slot[(ks, q)] = s
            if ks % 4 == 0 and ks > 0:
                k(f's_add_u32 s{sT3 + q}, s{sT3 + q}, 4096')
            k(f'buffer_load_dwordx4 {regs[s]}, v{vL16}, s[8:11], s{sT3 + q} offen offset:{(ks % 4) * 1024}')
    nl = 0
    while nl < 23:
        hload(nl)
        nl += 1
    for ks in range(28):
        for qb in range(2):
            for qa in range(2):
                a = ACC[qa + 2 * qb]
                c = '0' if ks == 0 else v16(a)
                k(f'v_mfma_f32_32x32x16_bf16 {v16(a)}, {a4(112 * qa + 4 * ks)}, {regs[slot[(ks, qb)]]}, {c}')
        free.append(slot[(ks, 0)])
        free.append(slot[(ks, 1)])
        if nl < 28 and ks >= 1:
            hload(nl)
            nl += 1
    RB = 3 * SLOT
    for q in range(1, 4):
        k(f"""
        s_xor_b32 s{sT0}, s{sW}, {q}
        s_mul_i32 s{sT0}, s{sT0}, 12288
        s_add_u32 s{sT0}, s{sT0}, {RB + (q - 1) * 4096}
        v_add_u32 v{10 + q}, s{sT0}, v{vL16}
        """)
        for g in range(4):
            k(f'ds_write_b128 v{10 + q}, {v4(ACC[q] + 4 * g)} offset:{1024 * g}')
    k(f"""
    s_mul_i32 s{sT0}, s{sW}, 12288
    s_add_u32 s{sT0}, s{sT0}, {RB}
    v_add_u32 v10, s{sT0}, v{vL16}
    """)
    k.barrier()
    for q in range(1, 4):
        for g in range(4):
            k(f'ds_read_b128 {v4(ACC[q] + 4 * g)}, v10 offset:{(q - 1) * 4096 + 1024 * g}')
    for q in range(1, 4):
        for r in range(16):
            k(f'v_add_f32 v{ACC[0] + r}, v{ACC[0] + r}, v{ACC[q] + r}')
    res_epilogue(k, ACC[0], XO, sXO, sSTO, True)


def phase_kernel(k, name, phase, l):
    kstart(k, name)
    end = name + '_end'
    setup_common(k, end)
    set_layer(k, l)
    if phase == 'A':
        attn_masks(k)
        h = A_prefetch(k)
        A_body(k, h)
    elif phase in ('P3', 'P5'):
        k(f's_cmp_ge_u32 s{sIDX}, 14')
        k(f's_cbranch_scc1 {end}')
        if phase == 'P3':
            P3_prefetch(k)
            P3_body(k)
        else:
            P5_prefetch(k)
            P5_body(k)
    elif phase == 'P4':
        h = P4_prefetch(k)
        P4_body(k, h)
    k.drained()
    k.label(end, pad=False)
    k('s_endpgm')


def main():
    k = K()
    launches = [('k0_kernel', K0_N, 256, 1024)]
    kds = kd('k0_kernel', 128, 64, 128)
    gen_k0(k, 'k0_kernel')
    for l in range(2):
        for ph in ['A', 'P3', 'P4', 'P5']:
            nm = f'{ph.lower()}_{l}_kernel'
            phase_kernel(k, nm, ph, l)
            kds += kd(nm, 512, 102, 256)
            launches.append((nm, 256, 256, LDS_BYTES))
            if ph == 'A':
                launches.append((nm, 256, 256, LDS_BYTES))
    head = ''
    for kn, g, b, l in launches:
        head += f'; @launch kernel={kn} grid=({g},1,1) block=({b},1,1) lds={l}\n'
    head += '.amdgcn_target "amdgcn-amd-amdhsa--gfx950"\n.text\n'
    out = head + k.text() + kds
    open(sys.argv[1], 'w').write(out)
    print('nops inserted', k.nops_inserted)


if __name__ == '__main__':
    main()
```

```python
import sys, math, struct
from dsl import *
from layout import *

ONES_BF16 = 0x3F803F80
LOG2E = 1.4426950408889634
MF = 'v_mfma_f32_32x32x16_bf16'
SLOT = 28672
KVB = 3 * SLOT
SCR = 5 * SLOT
SCR_CS13 = SCR + 1024
SCR_CSQ = SCR + 9216
LDS_BYTES = 163840
SPIN_MAX = 400000

F_XIN = FLAGS
F_O = FLAGS + 64 * 128
F_X1 = FLAGS + 2 * 64 * 128
F_H = FLAGS + 3 * 64 * 128
F_KV = FLAGS + 4 * 64 * 128
FLAG_BYTES = 4 * 64 * 128 + 16 * 256


def f32bits(x):
    return struct.unpack('<I', struct.pack('<f', x))[0]


def kd(name, vg=256, sg=102, acc=256):
    return f'''.section .rodata,"a"
.p2align 6
.amdhsa_kernel {name}
  .amdhsa_next_free_vgpr {vg}
  .amdhsa_next_free_sgpr {sg}
  .amdhsa_accum_offset {acc}
  .amdhsa_group_segment_fixed_size 0
  .amdhsa_kernarg_size 80
  .amdhsa_user_sgpr_count 2
  .amdhsa_user_sgpr_kernarg_segment_ptr 1
  .amdhsa_system_sgpr_workgroup_id_x 1
.end_amdhsa_kernel
.text
'''


def kstart(k, name):
    k.raw(f'.globl {name}')
    k.raw('.p2align 8')
    k.raw(f'.type {name},@function')
    k.raw(f'{name}:')
    k.hist = []
    k.drained()


def lines(s):
    out = []
    for l in s.strip().split('\n'):
        l = l.split(';')[0].strip()
        if l:
            out.append(l)
    return out


def slots(text):
    if not isinstance(text, str):
        return 4 if text[0] == 'call' else 3
    op = text.split()[0]
    base = op.replace('_e64', '').replace('_e32', '')
    if base in TRANS:
        return 2
    if op.startswith('ds_write_b128') or op.startswith('buffer_store'):
        return 2
    return 1


class Ctx:
    sL = None


def emit_item(k, f):
    if isinstance(f, str):
        k(f)
        return
    if f[0] == 'call':
        f[1](k)
        return
    assert f[0] == 'L0'
    k(f's_cmp_lg_u32 s{Ctx.sL}, 0')
    k.skip_begin('s_cbranch_scc1')
    for x in f[1]:
        k(x)
    k.skip_end()


def emit(k, ls):
    for l in ls:
        emit_item(k, l)


def weave(k, mfmas, fillers=(), free=6, pairwait=True):
    q = list(fillers)
    n = len(mfmas)

    def pre_cost(i):
        if i >= n:
            return 0
        M = mfmas[i]
        c = sum(slots(p) for p in M.get('pre', [])) + M.get('w', 0)
        if M.get('need') and (not pairwait or i % 2 == 0):
            c += 1
        return c
    for i, M in enumerate(mfmas):
        while any(d is not None and d <= i for (_, d, _) in q):
            emit_item(k, q.pop(0)[2])
        for p in M.get('pre', []):
            emit_item(k, p)
        if pairwait and i % 2 == 0 and i + 1 < n:
            for tok in mfmas[i + 1].get('need', []):
                k.wait_reg(tok)
        k(M['m'])
        used = pre_cost(i + 1)
        while q and q[0][0] <= i and used + slots(q[0][2]) <= free:
            it = q.pop(0)[2]
            p0 = k.pos
            emit_item(k, it)
            used += max(slots(it), k.pos - p0)
    return q


def F(items, earliest=0, deadline=None):
    return [(earliest, deadline, it) for it in items]


def flush(k, q):
    for (_, _, it) in q:
        emit_item(k, it)


def stats_ops(pk, n, s1, s2, ones):
    out = []
    for q in range(n):
        out.append(f'v_dot2_f32_bf16 v{s1}, v{pk + q}, v{ones}, v{s1}')
        out.append(f'v_dot2_f32_bf16 v{s2}, v{pk + q}, v{pk + q}, v{s2}')
    return out


def ln_math(a, b, t0, t1, vM, vR):
    return lines(f"""
    v_mov_b32 v{t0}, v{a}
    v_mov_b32 v{t1}, v{b}
    v_permlane32_swap_b32 v{a}, v{t0}
    v_permlane32_swap_b32 v{b}, v{t1}
    v_add_f32 v{a}, v{a}, v{t0}
    v_add_f32 v{b}, v{b}, v{t1}
    v_mul_f32 v{a}, {f32bits(-1.0 / 448)}, v{a}
    v_mul_f32 v{b}, {f32bits(1.0 / 448)}, v{b}
    v_fma_f32 v{b}, -v{a}, v{a}, v{b}
    v_max_f32 v{b}, 0, v{b}
    v_cvt_pk_bf16_f32 v{vM}, v{a}, v{a}
    v_cvt_pk_bf16_f32 v{t1}, v{b}, v{b}
    v_and_b32 v{t1}, 0xffff0000, v{t1}
    v_add_f32 v{t1}, {f32bits(1e-5)}, v{t1}
    v_cvt_pk_bf16_f32 v{t1}, v{t1}, v{t1}
    v_and_b32 v{t1}, 0xffff0000, v{t1}
    v_sqrt_f32 v{t1}, v{t1}
    v_cvt_pk_bf16_f32 v{t1}, v{t1}, v{t1}
    v_and_b32 v{t1}, 0xffff0000, v{t1}
    v_rcp_f32 v{vR}, v{t1}
    """)


def split3(src, d0, d1, t0, t1):
    return lines(f"""
    v_cvt_pk_bf16_f32 v{t0}, v{src}, v{src}
    v_and_b32 v{t0}, 0xffff0000, v{t0}
    v_sub_f32 v{src}, v{src}, v{t0}
    v_cvt_pk_bf16_f32 v{t1}, v{src}, v{src}
    v_and_b32 v{t1}, 0xffff0000, v{t1}
    v_sub_f32 v{src}, v{src}, v{t1}
    v_lshrrev_b32 v{t0}, 16, v{t0}
    v_or_b32 v{d0}, v{t0}, v{t1}
    v_cvt_pk_bf16_f32 v{d1}, v{src}, 0
    """)
```

```python
import re

TRANS = ('v_exp_f32', 'v_log_f32', 'v_rcp_f32', 'v_rsq_f32', 'v_sqrt_f32', 'v_sin_f32', 'v_cos_f32',
         'v_rcp_iflag_f32')

_reg_re = re.compile(r'^(-|\|)?(abs\()?([vas])(\d+|\[(\d+):(\d+)\])\)?\|?$')


def parse_reg(tok):
    tok = tok.strip()
    if tok == 'vcc':
        return [('s', 106), ('s', 107)]
    if tok == 'vcc_lo':
        return [('s', 106)]
    if tok == 'vcc_hi':
        return [('s', 107)]
    if tok == 'exec':
        return [('s', 126), ('s', 127)]
    if tok == 'm0':
        return [('s', 124)]
    m = _reg_re.match(tok)
    if not m:
        return []
    f = m.group(3)
    if m.group(5) is not None:
        return [(f, i) for i in range(int(m.group(5)), int(m.group(6)) + 1)]
    return [(f, int(m.group(4)))]


def split_ops(s):
    out, depth, cur = [], 0, ''
    for ch in s:
        if ch in '[(':
            depth += 1
        if ch in '])':
            depth -= 1
        if ch == ',' and depth == 0:
            out.append(cur.strip())
            cur = ''
        else:
            cur += ch
    if cur.strip():
        out.append(cur.strip())
    return out


class Inst:
    __slots__ = ('text', 'op', 'reads', 'writes', 'kind', 'passes', 'srcc', 'srcab', 'wide_store_data', 'lds_dma',
                 'nstates', 'is_trans', 'is_dpp', 'is_permlane', 'is_readlane', 'cnt')


def classify(text):
    t = text.split(';')[0].strip()
    parts = t.split(None, 1)
    op = parts[0]
    rest = parts[1] if len(parts) > 1 else ''
    ops = split_ops(rest)
    mods = []
    clean = []
    for o in ops:
        ws = o.split()
        clean.append(ws[0] if ws else '')
        mods += ws[1:]
    ops = clean
    I = Inst()
    I.text = text
    I.op = op
    I.reads, I.writes = [], []
    I.kind = 'other'
    I.passes = 0
    I.srcc = []
    I.srcab = []
    I.wide_store_data = []
    I.lds_dma = False
    I.nstates = 1
    base = re.sub(r'_(e32|e64|dpp|sdwa)$', '', op)
    I.is_trans = base in TRANS
    I.is_dpp = op.endswith('_dpp')
    I.is_permlane = base.startswith('v_permlane')
    I.is_readlane = base in ('v_readfirstlane_b32', 'v_readlane_b32')
    I.cnt = None
    R = lambda k: parse_reg(ops[k]) if k < len(ops) else []
    allr = lambda a: [r for k in range(a, len(ops)) for r in parse_reg(ops[k])]
    if op == 's_nop':
        I.kind = 'nop'
        I.nstates = int(ops[0], 0) + 1
    elif op in ('s_waitcnt', 's_barrier', 's_endpgm', 's_sleep', 's_setprio', 's_branch') or op.startswith('s_cbranch'):
        I.kind = 'ctl'
        if op in ('s_cbranch_vccz', 's_cbranch_vccnz'):
            I.reads = parse_reg('vcc')
    elif op.startswith('v_mfma'):
        I.kind = 'mfma'
        I.writes = R(0)
        I.srcab = R(1) + R(2)
        I.srcc = R(3)
        I.reads = I.srcab + I.srcc
        if '32x32x16' in op:
            I.passes = 8
        elif '16x16x32' in op:
            I.passes = 4
        else:
            raise ValueError('unknown mfma ' + op)
    elif op.startswith('buffer_load') or op.startswith('global_load'):
        I.kind = 'vmem'
        I.cnt = 'vm'
        if 'lds' in mods:
            I.lds_dma = True
            I.reads = allr(0) + parse_reg('m0')
        else:
            I.writes = R(0)
            I.reads = allr(1)
            if 'd16' in op:
                I.reads = I.reads + R(0)
    elif op.startswith('buffer_store') or op.startswith('global_store'):
        I.kind = 'vmem'
        I.cnt = 'vm'
        I.reads = allr(0)
        if op.endswith('x4') or op.endswith('x3'):
            I.wide_store_data = R(0) if op.startswith('buffer') else R(1)
    elif op.startswith('buffer_atomic') or op.startswith('global_atomic'):
        I.kind = 'vmem'
        I.cnt = 'vm'
        I.reads = allr(0)
        if 'sc0' in mods:
            I.writes = R(0)
    elif op in ('buffer_inv', 'buffer_wbl2'):
        I.kind = 'vmem'
        I.cnt = 'vm'
    elif op.startswith('ds_read') or op.startswith('ds_bpermute') or op.startswith('ds_permute') or op.startswith('ds_swizzle'):
        I.kind = 'ds'
        I.cnt = 'lgkm'
        I.writes = R(0)
        I.reads = allr(1)
    elif op.startswith('ds_write') or op.startswith('ds_add') or op.startswith('ds_max'):
        I.kind = 'ds'
        I.cnt = 'lgkm'
        I.reads = allr(0)
    elif op.startswith('s_load') or op in ('s_memtime', 's_memrealtime'):
        I.kind = 'smem'
        I.cnt = 'smem'
        I.writes = R(0)
        I.reads = allr(1)
    elif op.startswith('s_cmp') or op.startswith('s_bitcmp'):
        I.kind = 'salu'
        I.reads = allr(0)
    elif op.startswith('s_'):
        I.kind = 'salu'
        I.writes = R(0)
        I.reads = allr(1)
        if 'saveexec' in op:
            I.writes = I.writes + parse_reg('exec')
            I.reads = I.reads + parse_reg('exec')
        if op in ('s_addk_i32', 's_mulk_i32'):
            I.reads = I.reads + R(0)
    elif op.startswith('v_'):
        I.kind = 'valu'
        if I.is_permlane or base == 'v_swap_b32':
            I.writes = R(0) + R(1)
            I.reads = R(0) + R(1)
        elif base.startswith('v_cmp'):
            I.writes = R(0)
            I.reads = allr(1)
            if base.startswith('v_cmpx'):
                I.writes = I.writes + parse_reg('exec')
        elif base in ('v_add_co_u32', 'v_sub_co_u32', 'v_addc_co_u32', 'v_subb_co_u32', 'v_subrev_co_u32'):
            I.writes = R(0) + R(1)
            I.reads = allr(2)
        else:
            I.writes = R(0)
            I.reads = allr(1)
            if base in ('v_fmac_f32', 'v_dot2c_f32_bf16', 'v_writelane_b32') or I.is_dpp:
                I.reads = I.reads + R(0)
            if base == 'v_cndmask_b32' and len(ops) == 3:
                I.reads = I.reads + parse_reg('vcc')
    else:
        raise ValueError('cannot classify: ' + text)
    return I


class Handle:
    def __init__(self, seq):
        self.seq = seq


class K:
    def __init__(self):
        self.lines = []
        self.hist = []
        self.pos = 0
        self.vm_seq = 0
        self.vm_done = 0
        self.lg_seq = 0
        self.lg_done = 0
        self.smem_pending = False
        self.pend = {}
        self.uid = 0
        self.nops_inserted = 0
        self.cond_stack = []
        self.skip_stack = []
        self.ignore = set()

    def raw(self, s):
        self.lines.append(s)

    def comment(self, s):
        self.lines.append('    ; ' + s)

    def newlabel(self, base='L'):
        self.uid += 1
        return f'{base}_{self.uid}'

    def _emit_wait(self, vm=None, lg=None):
        parts = []
        if vm is not None:
            parts.append(f'vmcnt({min(vm, 63)})')
        if lg is not None:
            parts.append(f'lgkmcnt({min(lg, 15)})')
        self._push(classify('s_waitcnt ' + ' '.join(parts)))
        if vm is not None:
            self.vm_done = max(self.vm_done, self.vm_seq - min(vm, 63))
        if lg is not None:
            self.lg_done = max(self.lg_done, self.lg_seq - min(lg, 15))
            if lg == 0:
                self.smem_pending = False
        self._gc()

    def _gc(self):
        dead = []
        for r, (k, seq) in self.pend.items():
            if k == 'vm' and seq <= self.vm_done:
                dead.append(r)
            elif k == 'lgkm' and seq <= self.lg_done:
                dead.append(r)
            elif k == 'smem' and not self.smem_pending:
                dead.append(r)
        for r in dead:
            del self.pend[r]

    def vm_mark(self):
        return Handle(self.vm_seq)

    def lg_mark(self):
        return Handle(self.lg_seq)

    def wait_vm(self, h=None):
        seq = self.vm_seq if h is None else h.seq
        if seq <= self.vm_done:
            return
        self._emit_wait(vm=self.vm_seq - seq)

    def wait_lg(self, h=None):
        seq = self.lg_seq if h is None else h.seq
        if self.smem_pending:
            self._emit_wait(lg=0)
            return
        if seq <= self.lg_done:
            return
        self._emit_wait(lg=self.lg_seq - seq)

    def wait_reg(self, tok):
        need_vm = need_lg = None
        for r in parse_reg(tok):
            p = self.pend.get(r)
            if p is None:
                continue
            if p[0] == 'vm':
                n = self.vm_seq - p[1]
                need_vm = n if need_vm is None else min(need_vm, n)
            elif p[0] == 'lgkm':
                n = self.lg_seq - p[1]
                need_lg = n if need_lg is None else min(need_lg, n)
            else:
                need_lg = 0
        if need_lg is not None and self.smem_pending:
            need_lg = 0
        if need_vm is not None or need_lg is not None:
            self._emit_wait(need_vm, need_lg)

    def wait_all(self):
        self._emit_wait(vm=0, lg=0)

    def barrier(self):
        self.wait_lg()
        self('s_barrier')

    def _needed_states(self, I):
        need = 0
        rset = set(I.reads)
        wset = set(I.writes)
        for pos, P in reversed(self.hist):
            dist = self.pos - pos - P.nstates
            if dist >= 20:
                continue
            req = 0
            pw = set(P.writes)
            if P.kind == 'valu':
                vw = {r for r in pw if r[0] in 'va'}
                sw = {r for r in pw if r[0] == 's'}
                if I.kind == 'mfma' and vw & rset:
                    req = max(req, 2)
                if P.op.startswith('v_dot') and vw & (rset | wset):
                    same_c = (I.op == P.op and I.writes == P.writes and not (vw & set(I.reads[:-len(I.writes)])))
                    if not same_c:
                        req = max(req, 3)
                if I.kind == 'valu':
                    if P.is_trans and not I.is_trans and vw & rset:
                        req = max(req, 1)
                    if P.is_trans and I.is_trans and vw & rset:
                        req = max(req, 1)
                    if I.is_readlane and vw & rset:
                        req = max(req, 1)
                    if (I.is_permlane or I.is_dpp) and vw & rset:
                        req = max(req, 2)
                    if sw & rset:
                        req = max(req, 4 if I.is_readlane else 2)
                if I.kind in ('vmem', 'ds') and sw & rset:
                    req = max(req, 5)
                if I.kind in ('vmem', 'ds') and P.is_trans and vw & rset:
                    req = max(req, 1)
                if I.kind in ('salu', 'ctl', 'smem') and sw & rset:
                    req = max(req, 1)
                if ('s', 126) in sw:
                    req = max(req, 5)
            elif P.kind == 'mfma':
                np_ = P.passes
                full = {4: 8, 8: 12}[np_]
                if I.kind == 'mfma':
                    if set(I.srcab) & pw:
                        req = max(req, full)
                    if set(I.srcc) & pw:
                        if I.srcc == P.writes and I.passes == P.passes:
                            pass
                        else:
                            req = max(req, np_ + 2)
                    if wset & pw and not (I.writes == P.writes and I.passes == P.passes):
                        req = max(req, full)
                else:
                    if (rset | wset) & pw:
                        req = max(req, full)
                    if I.kind in ('valu', 'vmem', 'ds') and wset & set(P.srcc):
                        req = max(req, {4: 3, 8: 7}[np_])
            elif P.kind == 'salu':
                if ('s', 124) in pw and (I.lds_dma or 'addtid' in I.op):
                    req = max(req, 1)
            if P.wide_store_data and wset & set(P.wide_store_data):
                req = max(req, 2)
            need = max(need, req - dist)
        return need

    def _push(self, I):
        self.lines.append('    ' + I.text)
        self.hist.append((self.pos, I))
        self.pos += I.nstates
        if len(self.hist) > 120:
            self.hist = [(p, i) for (p, i) in self.hist if self.pos - p < 40]

    def __call__(self, text):
        for line in text.strip().split('\n'):
            line = line.strip()
            if not line or line.startswith(';'):
                continue
            self._one(line)

    def _one(self, line):
        I = classify(line)
        if I.op == 's_waitcnt':
            vm = re.search(r'vmcnt\((\d+)\)', line)
            lg = re.search(r'lgkmcnt\((\d+)\)', line)
            self._emit_wait(int(vm.group(1)) if vm else None, int(lg.group(1)) if lg else None)
            return
        need_vm, need_lg, need_smem = None, None, False
        for r in list(I.reads) + list(I.writes):
            p = self.pend.get(r)
            if p is None:
                continue
            k, seq = p
            if k == 'vm':
                if 'd16' in I.op and r in I.writes and I.kind == 'vmem':
                    continue
                n = self.vm_seq - seq
                need_vm = n if need_vm is None else min(need_vm, n)
            elif k == 'lgkm':
                n = self.lg_seq - seq
                need_lg = n if need_lg is None else min(need_lg, n)
            else:
                need_smem = True
        if need_smem or (need_lg is not None and self.smem_pending):
            need_lg = 0
        if need_vm is not None or need_lg is not None:
            self._emit_wait(need_vm, need_lg)
        n = self._needed_states(I)
        while n > 0:
            k = min(n, 16)
            self._push(classify(f's_nop {k - 1}'))
            self.nops_inserted += 1
            n -= k
        self._push(I)
        if I.cnt == 'vm':
            self.vm_seq += 1
            for r in I.writes:
                if r not in self.ignore:
                    self.pend[r] = ('vm', self.vm_seq)
        elif I.cnt == 'lgkm':
            self.lg_seq += 1
            for r in I.writes:
                self.pend[r] = ('lgkm', self.lg_seq)
        elif I.cnt == 'smem':
            self.smem_pending = True
            for r in I.writes:
                self.pend[r] = ('smem', 0)

    def label(self, name, pad=True):
        self.lines.append(name + ':')
        if pad:
            self.hist = []
            self._push(classify('s_nop 7'))
            self._push(classify('s_nop 4'))

    def skip_begin(self, branch):
        lab = self.newlabel('sk')
        self(f'{branch} {lab}')
        self.skip_stack.append((lab, self.pos, list(self.hist), self.vm_seq, self.vm_done, self.lg_seq, self.lg_done,
                                dict(self.pend)))
        self.hist_mark = len(self.hist)

    def skip_end(self):
        lab, p0, hist0, vs, vd, ls, ld, pend = self.skip_stack.pop()
        assert self.lg_seq == ls or self.lg_done == self.lg_seq, 'LDS ops inside a skipped block must be drained'
        delta = self.pos - p0
        inside = [(p - delta, i) for (p, i) in self.hist if p >= p0]
        self.hist = hist0 + inside
        self.pos = p0
        self.vm_seq, self.vm_done, self.lg_seq, self.lg_done, self.pend = vs, vd, ls, ld, pend
        self.lines.append(lab + ':')

    def if_begin(self, skip_branch):
        lab = self.newlabel('Lskip')
        self(f'{skip_branch} {lab}')
        self.cond_stack.append((lab, self.vm_seq, self.vm_done, self.lg_seq, self.lg_done, dict(self.pend),
                                self.smem_pending))

    def if_end(self, pad=True):
        lab, vs, vd, ls, ld, pend, sp = self.cond_stack.pop()
        vm = 0 if self.vm_seq != vs and self.vm_done < self.vm_seq else None
        lg = 0 if (self.lg_seq != ls and self.lg_done < self.lg_seq) or self.smem_pending != sp else None
        if vm is not None or lg is not None:
            self._emit_wait(vm, lg)
        self.vm_seq, self.vm_done, self.lg_seq, self.lg_done, self.pend, self.smem_pending = vs, vd, ls, ld, pend, sp
        self.label(lab, pad)

    def drained(self):
        self.vm_done = self.vm_seq
        self.lg_done = self.lg_seq
        self.smem_pending = False
        self.pend = {}

    def text(self):
        return '\n'.join(self.lines) + '\n'


def vr(base, n=1, f='v'):
    return f'{f}{base}' if n == 1 else f'{f}[{base}:{base + n - 1}]'


def v4(b):
    return f'v[{b}:{b + 3}]'


def a4(b):
    return f'a[{b}:{b + 3}]'


def v16(b):
    return f'v[{b}:{b + 15}]'


def v2(b):
    return f'v[{b}:{b + 1}]'
```

```python
S, D, H, DH, F = 2048, 448, 16, 28, 1792
NT = 64
KS = 28

_off = 0
def _alloc(n):
    global _off
    o = _off
    _off += (n + 4095) // 4096 * 4096
    return o

WQKV_P = _alloc(16 * 3 * 28 * 1024)
WO_P = _alloc(14 * 32 * 1024)
W13_P = _alloc(112 * 28 * 1024)
W2_P = _alloc(14 * 112 * 1024)
CS_QKV = _alloc(48 * 128)
CS_13 = _alloc(112 * 128 + 1024)
XF = [_alloc(64 * 28 * 1024) for _ in range(4)]
ST = [_alloc(64 * 14 * 256) for _ in range(4)]
KV = [_alloc(16 * 64 * 4096) for _ in range(2)]
OF = [_alloc(64 * 32 * 1024) for _ in range(2)]
HF = [_alloc(64 * 112 * 1024) for _ in range(2)]
QFB = _alloc(16 * 64 * 2048)
CSF_QKV = _alloc(48 * 1024)
CSP_13 = _alloc(4 * 112 * 128 + 4096)
FLAGS = _alloc(131072)
TS = _alloc(1 << 20)
WS_USED = _off
WS_BYTES = 268435456

def swap23(m):
    return (m & ~12) | ((m & 4) << 1) | ((m & 8) >> 1)
```

```python
from common5 import *

sW, sRB, sIDX, sTT, sL = 3, 4, 5, 6, 7
sP2 = 24
sBW13, sLW, sBWQ, sLWQ, sBW2, sBWO = 25, 26, 27, 28, 29, 31
sTW13, sTWQ, sTW2, sTWO = 33, 34, 35, 36
sKV, sOF, sX1, sST1, sHF, sX2, sST2 = 37, 38, 39, 40, 41, 42, 43
sL1, sFAST, sACT, sSPIN = 44, 45, 46, 47
sT0, sT1, sT2, sT3, sT4, sT5 = 48, 49, 50, 51, 52, 53
sFT, sTT3, sFTo, sTTo = 54, 55, 56, 57
sTS = 58
sE, sHOFF, sCNT, sDM = 60, 61, 62, 63
sMASK = 64
sHI, sN28 = 96, 98
sOADR, sXADR = 100, 101
sSADR, sDS = 1, 0
Ctx.sL = sL
vDUM = 0
vL16, vLANE, vN, vHH, vSTO, vSTI, vL16b, vONES = 1, 2, 3, 4, 5, 6, 7, 8
vF14, vFH, vZERO, vKVA, vTS, vL2S, vL4S, vSCR = 9, 10, 11, 12, 13, 14, 15, 16
vKE, vFL, vTA, vM, vR, vT0, vT1, vT2, vT3, vNEG, vMX, vAD = 17, 18, 19, 20, 21, 22, 23, 24, 25, 26, 27, 28
MB = 28

TS_ON = False
FORCE_SLOW = False
FORCE_FALLBACK = False
_ts_names = []
XDEPTH = 10
WARM = True
DUTYPOS = 0
F_PK = FLAGS + 65536
MODE = 'fast'


def ts(k, name):
    if not TS_ON:
        return
    if name in _ts_names:
        i = _ts_names.index(name)
    else:
        i = len(_ts_names)
        _ts_names.append(name)
    assert i < 62
    k(f's_memrealtime s[{sTS}:{sTS + 1}]')
    k(f'v_writelane_b32 v{vTS}, s{sTS}, {i}')


def wait_flags(k, voff, soff, sexp):
    Lp, Ld = k.newlabel('poll'), k.newlabel('polled')
    k(f's_mov_b32 s{sSPIN}, 0')
    k.label(Lp, pad=False)
    k(f"""
    buffer_load_dword v{vFL}, v{voff}, s[8:11], s{soff} offen sc1
    s_add_u32 s{sSPIN}, s{sSPIN}, 1
    s_cmp_gt_u32 s{sSPIN}, {SPIN_MAX}
    s_cbranch_scc1 {Ld}
    s_waitcnt vmcnt(0)
    v_cmp_gt_u32 vcc, {sexp}, v{vFL}
    s_nop 1
    s_cbranch_vccnz {Lp}
    """)
    k.label(Ld, pad=False)
    k('s_waitcnt vmcnt(0)')


def publish(k, stores):
    for s_ in stores:
        k(s_ + ('' if MODE == 'fast' else ' sc1'))


def set_flag(k, soff, val, always_sc1=False, h=None):
    k(f'v_mov_b32 v{vFL}, {val}')
    if h is None:
        k('s_waitcnt vmcnt(0)')
    else:
        k.wait_vm(h)
    pol = ' sc1' if (always_sc1 or MODE != 'fast') else ''
    k('s_mov_b64 exec, 1')
    k(f'buffer_store_dword v{vFL}, v{vZERO}, s[8:11], s{soff} offen{pol}')
    k('s_mov_b64 exec, -1')


def dma_chunks(n, ssrc, src_off, slds, lds_off):
    out = []
    for i in range(n):
        c = []
        if i % 4 == 0:
            c += [f's_add_u32 m0, s{slds}, {lds_off + i * 1024}', f's_add_u32 s{sP2}, s{ssrc}, {src_off + i * 1024}']
        c.append(f'buffer_load_dwordx4 v{vL16}, s[8:11], s{sP2} offen offset:{(i % 4) * 1024} lds')
        out.append(c)
    return out


def load_chunks(dsts, ssrc, tmp, src_off=0, pol=''):
    out = []
    for i, d in enumerate(dsts):
        c = []
        if i % 4 == 0:
            c.append(f's_add_u32 s{tmp}, s{ssrc}, {src_off + i * 1024}')
        c.append(f'buffer_load_dwordx4 {d}, v{vL16}, s[8:11], s{tmp} offen offset:{(i % 4) * 1024}{pol}')
        out.append(c)
    return out


def touch(n, sbase, off=0):
    return [f'v_min_u32 v{vTA}, {n - 1}, v{vLANE}',
            f'v_lshlrev_b32 v{vTA}, 7, v{vTA}',
            f's_add_u32 s{sDS}, s{sbase}, {off}',
            f'buffer_load_dword v{vDUM}, v{vTA}, s[8:11], s{sDS} offen sc1']


def flat(chs):
    return [x for c in chs for x in c]


W13_SLOT = [1, 2, 0, 3, 4, 1, 2]


def pf_wqkv():
    return dma_chunks(21, sBWQ, 0, sLWQ, 0)


def pf_w13(i):
    return dma_chunks(7, sBW13, i * SLOT, sLW, W13_SLOT[i] * SLOT)


def pf_w2():
    ch = (load_chunks([a4(4 * i) for i in range(28)], sBW2, sDM) +
          load_chunks([a4(112 + 4 * i) for i in range(28)], sBW2 + 1, sDM))
    return [flat(ch[i:i + 4]) for i in range(0, 56, 4)]


def t_w13(i):
    return touch(28, sTW13, i * SLOT)


def t_wqkv():
    return touch(64, sTWQ, 0) + touch(20, sTWQ, 8192)


def t_w2():
    return touch(64, sTW2, 0) + touch(34, sTW2, 8192)


def t_wo():
    return touch(28, sTWO, 0)


def t_O():
    return touch(16, sOADR)


def t_X():
    return touch(16, sXADR) + touch(2, sSADR)


def t_H():
    return touch(56, sHOFF)


def L0(ls):
    return ('L0', list(ls))


def L1(ls):
    def fn(k):
        k(f's_cmp_eq_u32 s{sL}, 0')
        k.skip_begin('s_cbranch_scc1')
        for x in ls:
            k(x)
        k.skip_end()
    return ('call', fn)


def res_addr(k, dst, base):
    k(f"""
    s_mul_i32 s{dst}, s{sTT3}, 28
    s_lshl_b32 s{sT1}, s{sFT}, 1
    s_add_u32 s{dst}, s{dst}, s{sT1}
    s_lshl_b32 s{dst}, s{dst}, 10
    s_add_u32 s{dst}, s{dst}, {base}
    """)


def st_addr(k, dst, base):
    k(f"""
    s_mul_i32 s{dst}, s{sTT3}, 14
    s_add_u32 s{dst}, s{dst}, s{sFT}
    s_lshl_b32 s{dst}, s{dst}, 8
    s_add_u32 s{dst}, s{dst}, {base}
    """)


def setup(k, end_label):
    k('s_cmp_ge_u32 s2, 256')
    k(f's_cbranch_scc1 {end_label}')
    k(f"""
    s_load_dwordx16 s[72:87], s[0:1], 0
    s_load_dwordx2 s[16:17], s[0:1], 64
    s_load_dwordx2 s[8:9], s[0:1], 72
    v_lshrrev_b32 v{vT0}, 6, v0
    v_and_b32 v{vLANE}, 63, v0
    v_readfirstlane_b32 s{sW}, v{vT0}
    v_lshlrev_b32 v{vL16}, 4, v{vLANE}
    v_and_b32 v{vN}, 31, v{vLANE}
    v_lshrrev_b32 v{vHH}, 5, v{vLANE}
    s_and_b32 s{sT0}, s2, 7
    s_lshr_b32 s{sT1}, s2, 3
    s_lshr_b32 s{sT2}, s{sT1}, 4
    s_lshl_b32 s{sRB}, s{sT0}, 1
    s_add_u32 s{sRB}, s{sRB}, s{sT2}
    s_and_b32 s{sIDX}, s{sT1}, 15
    s_lshl_b32 s{sTT}, s{sRB}, 2
    s_add_u32 s{sTT}, s{sTT}, s{sW}
    s_mov_b32 s10, {WS_BYTES}
    s_mov_b32 s11, 0x00020000
    s_mov_b32 s14, {S * D * 2}
    s_mov_b32 s15, 0x00020000
    s_mov_b32 s18, 256
    s_mov_b32 s19, 0x00020000
    s_mov_b32 s22, {S * D * 2}
    s_mov_b32 s23, 0x00020000
    s_mov_b32 s{sL}, 0
    s_mov_b32 s{sHI}, 0
    s_mov_b32 s{sHI + 1}, -1
    s_lshl_b32 s{sT1}, s{sW}, 12
    s_add_u32 s{sT1}, s{sT1}, {KVB}
    v_add_u32 v{vKVA}, s{sT1}, v{vL16}
    v_mov_b32 v{vZERO}, 0
    v_mov_b32 v{vTS}, 0
    v_mov_b32 v{vONES}, {ONES_BF16}
    v_cmp_eq_u32 s[{sN28}:{sN28 + 1}], 28, v{vN}
    s_cmp_ge_u32 s{sIDX}, 7
    s_cselect_b32 s{sT0}, 1, 0
    s_mul_i32 s{sT1}, s{sT0}, 7
    s_sub_u32 s{sT1}, s{sIDX}, s{sT1}
    s_cmp_lt_u32 s{sIDX}, 14
    s_cselect_b32 s{sACT}, 1, 0
    s_cselect_b32 s{sT1}, s{sT1}, 0
    s_lshl_b32 s{sFT}, s{sT1}, 1
    s_and_b32 s{sT2}, s{sW}, 1
    s_add_u32 s{sFT}, s{sFT}, s{sT2}
    s_xor_b32 s{sFTo}, s{sFT}, 1
    s_lshl_b32 s{sTT3}, s{sRB}, 2
    s_lshl_b32 s{sT0}, s{sT0}, 1
    s_add_u32 s{sTT3}, s{sTT3}, s{sT0}
    s_lshr_b32 s{sT2}, s{sW}, 1
    s_add_u32 s{sTT3}, s{sTT3}, s{sT2}
    s_xor_b32 s{sTTo}, s{sTT3}, 1
    s_mul_i32 s{sLW}, s{sW}, 7168
    s_waitcnt lgkmcnt(0)
    s_mov_b32 s20, s72
    s_mov_b32 s21, s73
    s_mov_b32 s12, s86
    s_mov_b32 s13, s87
    """)


def setup2_salu():
    return lines(f"""
    s_mov_b32 s{sFAST}, 0
    s_mul_i32 s{sBW13}, s{sIDX}, {7 * SLOT}
    s_add_u32 s{sBW13}, s{sBW13}, {W13_P}
    s_add_u32 s{sBW13}, s{sBW13}, s{sLW}
    s_mul_i32 s{sLWQ}, s{sW}, {21 * 1024}
    s_mul_i32 s{sBWQ}, s{sIDX}, {84 * 1024}
    s_add_u32 s{sBWQ}, s{sBWQ}, {WQKV_P}
    s_add_u32 s{sBWQ}, s{sBWQ}, s{sLWQ}
    s_mul_i32 s{sP2}, s{sW}, {28 * 1024}
    s_add_u32 s{sP2}, s{sP2}, {W2_P}
    s_mul_i32 s{sBW2}, s{sFT}, {112 * 1024}
    s_add_u32 s{sBW2}, s{sBW2}, s{sP2}
    s_mul_i32 s{sBW2 + 1}, s{sFTo}, {112 * 1024}
    s_add_u32 s{sBW2 + 1}, s{sBW2 + 1}, s{sP2}
    s_lshl_b32 s{sP2}, s{sW}, 13
    s_add_u32 s{sP2}, s{sP2}, {WO_P}
    s_lshl_b32 s{sBWO}, s{sFT}, 15
    s_add_u32 s{sBWO}, s{sBWO}, s{sP2}
    s_lshl_b32 s{sBWO + 1}, s{sFTo}, 15
    s_add_u32 s{sBWO + 1}, s{sBWO + 1}, s{sP2}
    """)


def setup2_valu():
    out = lines(f"""
    v_lshlrev_b32 v{vSTO}, 3, v{vN}
    v_mul_u32_u24 v{vSTI}, 1792, v{vHH}
    v_add_u32 v{vSTI}, v{vSTI}, v{vSTO}
    v_lshl_or_b32 v{vSTO}, v{vHH}, 2, v{vSTO}
    v_add_u32 v{vL16b}, {2 * SLOT}, v{vL16}
    v_min_u32 v{vF14}, 13, v{vLANE}
    v_lshlrev_b32 v{vF14}, 2, v{vF14}
    v_add_u32 v{vL2S}, {2 * SLOT}, v{vL16}
    v_add_u32 v{vL4S}, {4 * SLOT}, v{vL16}
    v_add_u32 v{vSCR}, {SCR}, v{vL16}
    v_mov_b32 v{vNEG}, {f32bits(-1e30)}
    v_and_b32 v{vFH}, 3, v{vLANE}
    v_lshlrev_b32 v{vFH}, 2, v{vFH}
    v_bfe_u32 v{vT0}, v{vLANE}, 2, 1
    v_lshl_or_b32 v{vFH}, v{vT0}, 7, v{vFH}
    s_lshl_b32 s{sT1}, s{sW}, 4
    v_add_u32 v{vFH}, s{sT1}, v{vFH}
    v_lshlrev_b32 v{vT0}, 2, v{vHH}
    v_sub_u32 v{vT0}, v{vN}, v{vT0}
    """)
    for r in range(16):
        c = 8 * (r >> 2) + (r & 3)
        out.append(f'v_cmp_ge_i32 s[{sMASK + 2 * r}:{sMASK + 2 * r + 1}], v{vT0}, {c}')
    return out


def signal(k):
    k(f"""
    s_getreg_b32 s{sE}, hwreg(HW_REG_XCC_ID, 0, 4)
    s_mul_i32 s{sCNT}, s{sE}, s{sE}
    s_lshl_b32 s{sCNT}, s{sCNT}, 16
    s_lshl_b32 s{sE}, s{sE}, 8
    s_or_b32 s{sE}, s{sE}, s{sCNT}
    s_or_b32 s{sE}, s{sE}, 1
    v_mov_b32 v{vFL}, s{sE}
    s_lshl_b32 s{sCNT}, s{sRB}, 4
    s_cmp_eq_u32 s{sW}, 0
    s_cselect_b32 s{sCNT}, s{sCNT}, 4096
    s_mov_b64 exec, 1
    buffer_atomic_add v{vFL}, v{vZERO}, s[16:19], s{sCNT} offen sc1
    s_mov_b64 exec, -1
    """)


def global_check(k):
    Lp, Ld, Lg = k.newlabel('gpoll'), k.newlabel('gdone'), k.newlabel('ggood')
    k(f"""
    v_and_b32 v{vT1}, 15, v{vLANE}
    v_lshlrev_b32 v{vT1}, 4, v{vT1}
    s_mov_b32 s{sSPIN}, 0
    """)
    k.label(Lp, pad=False)
    k(f"""
    buffer_load_dword v{vFL}, v{vT1}, s[16:19], 0 offen sc1
    s_add_u32 s{sSPIN}, s{sSPIN}, 1
    s_cmp_gt_u32 s{sSPIN}, {SPIN_MAX}
    s_cbranch_scc1 {Ld}
    s_waitcnt vmcnt(0)
    v_and_b32 v{vT0}, 0xff, v{vFL}
    v_cmp_ne_u32 vcc, 16, v{vT0}
    s_nop 1
    s_cbranch_vccz {Lg}
    s_sleep 24
    s_branch {Lp}
    """)
    k.label(Lg, pad=False)
    k(f"""
    s_getreg_b32 s{sT0}, hwreg(HW_REG_XCC_ID, 0, 4)
    s_mul_i32 s{sT1}, s{sT0}, s{sT0}
    s_lshl_b32 s{sT1}, s{sT1}, 20
    s_lshl_b32 s{sT0}, s{sT0}, 12
    s_or_b32 s{sT0}, s{sT0}, s{sT1}
    s_or_b32 s{sT0}, s{sT0}, 16
    v_readlane_b32 s{sT1}, v{vFL}, s{sRB}
    s_nop 3
    s_cmp_eq_u32 s{sT0}, s{sT1}
    s_cselect_b32 s{sFAST}, {0 if FORCE_SLOW else 1}, 0
    """)
    k.label(Ld, pad=False)
    k('s_waitcnt vmcnt(0)')


def set_layer(k, l):
    fast = MODE == 'fast'
    k(f"""
    s_mov_b32 s{sL1}, {l + 1}
    s_mov_b32 s{sX1}, {XF[1] if fast else XF[2 * l + 1]}
    s_mov_b32 s{sX2}, {XF[1] if fast else XF[2]}
    s_mov_b32 s{sST1}, {ST[1] if fast else ST[2 * l + 1]}
    s_mov_b32 s{sST2}, {ST[2]}
    s_mov_b32 s{sKV}, {KV[l]}
    s_mov_b32 s{sOF}, {OF[0] if fast else OF[l]}
    s_mov_b32 s{sHF}, {HF[0] if fast else HF[l]}
    s_lshl_b32 s{sOADR}, s{sIDX}, 6
    s_add_u32 s{sOADR}, s{sOADR}, s{sTT}
    s_lshl_b32 s{sOADR}, s{sOADR}, 11
    s_add_u32 s{sOADR}, s{sOADR}, s{sOF}
    s_mul_i32 s{sHOFF}, s{sTT}, 112
    s_mul_i32 s{sT5}, s{sIDX}, 7
    s_add_u32 s{sHOFF}, s{sHOFF}, s{sT5}
    s_lshl_b32 s{sHOFF}, s{sHOFF}, 10
    s_add_u32 s{sHOFF}, s{sHOFF}, s{sHF}
    """)
    res_addr(k, sXADR, f's{sX1}')
    st_addr(k, sSADR, f's{sST1}')


def stats_loads(sbase, stt, dst):
    out = [f's_mul_i32 s{sT0}, s{stt}, {14 * 256}', f's_add_u32 s{sT0}, s{sT0}, s{sbase}']
    out += [f'buffer_load_dwordx2 {v2(dst + 2 * i)}, v{vSTI}, s[8:11], s{sT0} offen offset:{256 * i} sc1' for i in range(7)]
    return out


def stats_math(src):
    out = []
    for i in range(1, 7):
        out.append(f'v_add_f32 v{src}, v{src}, v{src + 2 * i}')
        out.append(f'v_add_f32 v{src + 1}, v{src + 1}, v{src + 2 * i + 1}')
    return out + ln_math(src, src + 1, vT0, vT1, vM, vR)


def mb_fill():
    return [f'v_mov_b32 v{MB + i}, v{vM}' for i in range(4)]


def halo(k, poll):
    k(f"""
    s_lshl_b32 s{sT2}, s{sRB}, 2
    s_lshl_b32 s{sT3}, s{sW}, 1
    s_add_u32 s{sT2}, s{sT2}, s{sT3}
    s_sub_i32 s{sT2}, s{sT2}, 8
    s_lshl_b32 s{sT5}, s{sW}, 13
    s_add_u32 s{sT5}, s{sT5}, {KVB}
    s_cmp_lt_i32 s{sT2}, 0
    """)
    Lfill, Ljoin = k.newlabel('A_fill'), k.newlabel('A_join')
    k(f's_cbranch_scc1 {Lfill}')
    st = (k.vm_seq, k.vm_done, k.lg_seq, k.lg_done, dict(k.pend))
    k(f"""
    s_lshl_b32 s{sT0}, s{sIDX}, 6
    s_add_u32 s{sT0}, s{sT0}, s{sT2}
    s_lshl_b32 s{sT4}, s{sT0}, 2
    s_add_u32 s{sT4}, s{sT4}, {F_KV}
    s_lshl_b32 s{sE}, s{sT0}, 12
    s_add_u32 s{sE}, s{sE}, s{sKV}
    """)
    if poll:
        k(f'v_and_b32 v{vT0}, 1, v{vLANE}')
        k(f'v_lshlrev_b32 v{vT0}, 2, v{vT0}')
        wait_flags(k, vT0, sT4, f's{sL1}')
    emit(k, flat(dma_chunks(8, sE, 0, sT5, 0)))
    k(f's_branch {Ljoin}')
    k.label(Lfill, pad=False)
    z = 248
    k(f"""
    v_mov_b32 v{z}, 0
    v_mov_b32 v{z + 1}, 0
    v_mov_b32 v{z + 2}, 0
    v_mov_b32 v{z + 3}, 0
    v_mov_b32 v{z + 4}, 0
    v_mov_b32 v{z + 5}, 0
    v_mov_b32 v{z + 7}, 0
    v_mov_b32 v{vT1}, 0xf14a
    v_cndmask_b32 v{z + 6}, 0, v{vT1}, s[{sHI}:{sHI + 1}]
    v_add_u32 v{vT0}, s{sT5}, v{vL16}
    """)
    for t in range(2):
        k(f'ds_write_b128 v{vT0}, {v4(z)} offset:{4096 * t}')
        k(f'ds_write_b128 v{vT0}, {v4(z + 4)} offset:{4096 * t + 1024}')
        k(f'ds_write_b128 v{vT0}, {v4(z)} offset:{4096 * t + 2048}')
        k(f'ds_write_b128 v{vT0}, {v4(z)} offset:{4096 * t + 3072}')
    k('s_waitcnt lgkmcnt(0)')
    k.label(Ljoin, pad=False)
    k.vm_seq, k.vm_done, k.lg_seq, k.lg_done, k.pend = st[0], st[1], st[2], st[3], dict(st[4])


QF, KF, VF = 232, 216, 224
WO_R = 128
SA, PA, OA, NM, KB, VB, OS = 32, 48, 64, 80, 96, 104, 112


def att_tile_body(k, last, mem):
    k(f'{MF} {v16(SA)}, {v4(KB)}, {v4(QF)}, {v16(NM)}')
    k(f'{MF} {v16(SA)}, {v4(KB + 4)}, {v4(QF + 4)}, {v16(SA)}')
    k(f'{MF} {v16(OA)}, {v4(VB)}, {v4(PA)}, {v16(OA)}')
    k(f'{MF} {v16(OA)}, {v4(VB + 4)}, {v4(PA + 4)}, {v16(OA)}')
    k(f'ds_read_b128 {v4(VB)}, v{vAD} offset:2048')
    k(f'ds_read_b128 {v4(VB + 4)}, v{vAD} offset:3072')
    k(f'v_subrev_u32 v{vAD}, 4096, v{vAD}')
    if not last:
        k(f'ds_read_b128 {v4(KB)}, v{vAD}')
        k(f'ds_read_b128 {v4(KB + 4)}, v{vAD} offset:1024')
    emit(k, mem)
    if last:
        for r in range(16):
            k(f'v_cndmask_b32 v{SA + r}, v{SA + r}, v{vNEG}, s[{sMASK + 2 * r}:{sMASK + 2 * r + 1}]')
    for q in range(8):
        k(f'v_exp_f32 v{SA + 2 * q}, v{SA + 2 * q}')
        k(f'v_exp_f32 v{SA + 2 * q + 1}, v{SA + 2 * q + 1}')
        if q:
            k(f'v_cvt_pk_bf16_f32 v{PA + q - 1}, v{SA + 2 * q - 2}, v{SA + 2 * q - 1}')
    k(f'v_cvt_pk_bf16_f32 v{PA + 7}, v{SA + 14}, v{SA + 15}')


def loop_dma():
    out = []
    for i in range(3):
        out += [f's_add_u32 m0, s{sDM}, {W13_SLOT[i] * SLOT}',
                f's_add_u32 s{sP2}, s{sDS}, {i * SLOT}',
                f'buffer_load_dwordx4 v{vL16}, s[8:11], s{sP2} offen lds']
    out += [f's_add_u32 s{sDM}, s{sDM}, 1024', f's_add_u32 s{sDS}, s{sDS}, 1024']
    return out


def attention(k):
    ts(k, 'ATT.start')
    k(f'{MF} {v16(SA)}, {v4(KF)}, {v4(QF)}, 0')
    k(f'{MF} {v16(SA)}, {v4(KF + 4)}, {v4(QF + 4)}, {v16(SA)}')
    k(f"""
    v_add_u32 v{vAD}, {7 * 4096}, v{vKVA}
    ds_read_b128 {v4(KB)}, v{vAD}
    ds_read_b128 {v4(KB + 4)}, v{vAD} offset:1024
    s_mov_b32 s{sDM}, s{sLW}
    s_mov_b32 s{sDS}, s{sBW13}
    """)
    wo = load_chunks([v4(WO_R + 4 * i) for i in range(8)], sBWO, sT2) + load_chunks([v4(WO_R + 32 + 4 * i) for i in range(8)], sBWO + 1, sT2)
    for q in range(8):
        k(f'v_mov_b32 v{VB + q}, v{VF + q}')
    for r in range(16):
        k(f'v_mov_b32 v{OA + r}, 0')
    for r in range(16):
        k(f'v_cndmask_b32 v{SA + r}, v{vNEG}, v{SA + r}, s[{sMASK + 2 * r}:{sMASK + 2 * r + 1}]')
    k(f'v_max_f32 v{vMX}, v{SA}, v{SA + 1}')
    for r in range(2, 16, 2):
        k(f'v_max3_f32 v{vMX}, v{SA + r}, v{SA + r + 1}, v{vMX}')
    k(f"""
    v_mov_b32 v{vT1}, v{vMX}
    v_permlane32_swap_b32 v{vMX}, v{vT1}
    v_max_f32 v{vMX}, v{vMX}, v{vT1}
    """)
    for r in range(16):
        k(f'v_sub_f32 v{SA + r}, v{SA + r}, v{vMX}')
    for r in range(16):
        k(f'v_sub_f32 v{NM + r}, 0, v{vMX}')
    for r in range(16):
        k(f'v_exp_f32 v{SA + r}, v{SA + r}')
        if r % 4 == 3:
            emit_item(k, L1(flat(wo[r - 3:r + 1])))
    for r in parse_reg(f'v[{WO_R}:{WO_R + 63}]'):
        k.pend.pop(r, None)
    for q in range(8):
        k(f'v_cvt_pk_bf16_f32 v{PA + q}, v{SA + 2 * q}, v{SA + 2 * q + 1}')
    LA, LAe, LB = k.newlabel('att1'), k.newlabel('att1e'), k.newlabel('att2')
    k(f's_mov_b32 s{sCNT}, s{sW}')
    k('s_waitcnt lgkmcnt(0)')
    k(f's_cmp_eq_u32 s{sCNT}, 0')
    k(f's_cbranch_scc1 {LAe}')
    k.label(LA, pad=False)
    k('s_nop 1')
    st = k.vm_seq
    att_tile_body(k, False, [L1(loop_dma())])
    k.vm_seq = st
    k(f"""
    s_sub_u32 s{sCNT}, s{sCNT}, 1
    s_cmp_lg_u32 s{sCNT}, 0
    s_waitcnt lgkmcnt(0)
    s_cbranch_scc1 {LA}
    """)
    k.label(LAe, pad=False)
    ts(k, 'ATT.st1')
    halo(k, True)
    k('s_waitcnt vmcnt(0)')
    ts(k, 'ATT.halo')
    k('s_barrier')
    k(f"""
    ds_read_b128 {v4(KB)}, v{vAD}
    ds_read_b128 {v4(KB + 4)}, v{vAD} offset:1024
    s_sub_u32 s{sCNT}, 7, s{sW}
    s_waitcnt lgkmcnt(0)
    """)
    k.label(LB, pad=False)
    k('s_nop 1')
    st = k.vm_seq
    att_tile_body(k, False, [L1(loop_dma())])
    k.vm_seq = st
    k(f"""
    s_sub_u32 s{sCNT}, s{sCNT}, 1
    s_cmp_lg_u32 s{sCNT}, 0
    s_waitcnt lgkmcnt(0)
    s_cbranch_scc1 {LB}
    """)
    k('s_nop 1')
    att_tile_body(k, True, [])
    k(f'{MF} {v16(OA)}, {v4(VB)}, {v4(PA)}, {v16(OA)}')
    k(f'{MF} {v16(OA)}, {v4(VB + 4)}, {v4(PA + 4)}, {v16(OA)}')
    k(f"""
    s_lshl_b32 s{sT4}, s{sTT}, 7
    s_lshl_b32 s{sT1}, s{sIDX}, 2
    s_add_u32 s{sT4}, s{sT4}, s{sT1}
    s_add_u32 s{sT4}, s{sT4}, {F_O}
    s_mov_b32 s{sT0}, {f32bits(2.0 ** 64)}
    """)
    Lok = k.newlabel('att_ok')
    k(f"""
    v_mov_b32 v{vT0}, v{OA + 12}
    v_mov_b32 v{vT1}, v{OA + 12}
    v_permlane32_swap_b32 v{vT0}, v{vT1}
    v_cmp_nge_f32 vcc, s{sT0}, v{vT1}
    s_nop 1
    """)
    k(f's_cbranch_vccz {Lok}' if not FORCE_FALLBACK else 's_nop 0')
    fallback(k)
    k.label(Lok)
    k(f'v_rcp_f32 v{vT1}, v{vT1}')
    for r in range(16):
        k(f'v_mul_f32 v{OA + r}, v{vT1}, v{OA + r}')
    for q in range(8):
        k(f'v_cvt_pk_bf16_f32 v{OA + q}, v{OA + 2 * q}, v{OA + 2 * q + 1}')
    ts(k, 'ATT.st2')
    publish(k, [f'buffer_store_dwordx4 {v4(OA)}, v{vL16}, s[8:11], s{sOADR} offen',
                f'buffer_store_dwordx4 {v4(OA + 4)}, v{vL16}, s[8:11], s{sOADR} offen offset:1024'])
    set_flag(k, sT4, f's{sL1}')
    ts(k, 'ATT.pub')
    k(f's_cmp_lg_u32 s{sL}, 0')
    Lw = k.newlabel('wready')
    k(f's_cbranch_scc1 {Lw}')
    st = (k.vm_seq, k.vm_done, dict(k.pend))
    k(f"""
    s_mul_i32 s{sT0}, s{sIDX}, 7
    s_add_u32 s{sT1}, s{sT0}, 6
    s_and_b32 s{sT0}, s{sT0}, -4
    s_or_b32 s{sT1}, s{sT1}, 3
    v_add_u32 v{vT0}, s{sT0}, v{vLANE}
    v_min_u32 v{vT0}, s{sT1}, v{vT0}
    s_lshr_b32 s{sT2}, s{sFT}, 1
    s_lshl_b32 s{sT0}, s{sT2}, 3
    s_add_u32 s{sT0}, s{sT0}, 112
    v_and_b32 v{vT1}, 7, v{vLANE}
    v_add_u32 v{vT1}, s{sT0}, v{vT1}
    v_cmp_le_u32 vcc, 16, v{vLANE}
    s_lshl_b32 s{sT0}, s{sT2}, 1
    s_add_u32 s{sT0}, s{sT0}, 168
    v_cndmask_b32 v{vT0}, v{vT0}, v{vT1}, vcc
    v_and_b32 v{vT1}, 1, v{vLANE}
    v_add_u32 v{vT1}, s{sT0}, v{vT1}
    v_cmp_le_u32 vcc, 24, v{vLANE}
    v_bfe_u32 v{vT2}, v{vLANE}, 1, 3
    v_and_b32 v{vT3}, 1, v{vLANE}
    v_cndmask_b32 v{vT0}, v{vT0}, v{vT1}, vcc
    v_lshl_add_u32 v{vT2}, v{vT3}, 7, v{vT2}
    s_lshl_b32 s{sT0}, s{sIDX}, 3
    v_add_u32 v{vT2}, s{sT0}, v{vT2}
    v_cndmask_b32 v{vT0}, v{vT0}, v{vT2}, s[{sHI}:{sHI + 1}]
    v_lshlrev_b32 v{vT0}, 7, v{vT0}
    s_mov_b32 s{sT0}, {F_PK}
    """)
    wait_flags(k, vT0, sT0, '1')
    ts(k, 'ATT.chk')
    emit(k, flat(wo))
    T0, T1 = sT0, sT1
    k(f"""
    v_lshlrev_b32 v{vT0}, 2, v{vN}
    v_lshl_add_u32 v{vT0}, v{vHH}, 9, v{vT0}
    s_mul_i32 s{T0}, s{sIDX}, 7
    s_add_u32 s{T0}, s{T0}, s{sW}
    s_lshl_b32 s{T0}, s{T0}, 7
    s_add_u32 s{T0}, s{T0}, {CSP_13}
    """)
    for q in range(4):
        k(f's_add_u32 s{T1}, s{T0}, {q * 112 * 128}')
        k(f'buffer_load_dword v{CSL + q}, v{vT0}, s[8:11], s{T1} offen')
    for q in range(4):
        k.pend.pop(('v', CSL + q), None)
    k.vm_seq, k.vm_done, k.pend = st
    k.label(Lw, pad=False)


def fallback(k):
    def s_tile(c):
        k(f"""
        ds_read_b128 {v4(KB)}, v{vAD}
        ds_read_b128 {v4(KB + 4)}, v{vAD} offset:1024
        ds_read_b128 {v4(VB)}, v{vAD} offset:2048
        ds_read_b128 {v4(VB + 4)}, v{vAD} offset:3072
        """)
        k(f'{MF} {v16(SA)}, {v4(KB)}, {v4(QF)}, {c}')
        k(f'{MF} {v16(SA)}, {v4(KB + 4)}, {v4(QF + 4)}, {v16(SA)}')
        for cntv, a, b in ((0, SA, None), (8, None, SA)):
            k(f's_cmp_lg_u32 s{sCNT}, {cntv}')
            k.skip_begin('s_cbranch_scc1')
            for r in range(16):
                m = f's[{sMASK + 2 * r}:{sMASK + 2 * r + 1}]'
                if cntv == 0:
                    k(f'v_cndmask_b32 v{SA + r}, v{SA + r}, v{vNEG}, {m}')
                else:
                    k(f'v_cndmask_b32 v{SA + r}, v{vNEG}, v{SA + r}, {m}')
            k.skip_end()
    La, Lb = k.newlabel('fb1'), k.newlabel('fb2')
    k(f"""
    s_nop 7
    s_nop 7
    v_mov_b32 v{vAD}, v{vKVA}
    v_mov_b32 v{vMX}, v{vNEG}
    s_mov_b32 s{sCNT}, 0
    """)
    k.label(La)
    s_tile('0')
    for r in range(0, 16, 2):
        k(f'v_max3_f32 v{vMX}, v{SA + r}, v{SA + r + 1}, v{vMX}')
    k(f"""
    v_add_u32 v{vAD}, 4096, v{vAD}
    s_add_u32 s{sCNT}, s{sCNT}, 1
    s_cmp_lt_u32 s{sCNT}, 9
    s_waitcnt lgkmcnt(0)
    s_cbranch_scc1 {La}
    v_mov_b32 v{vT1}, v{vMX}
    v_permlane32_swap_b32 v{vMX}, v{vT1}
    v_max_f32 v{vMX}, v{vMX}, v{vT1}
    v_mov_b32 v{vAD}, v{vKVA}
    s_mov_b32 s{sCNT}, 0
    """)
    for r in range(16):
        k(f'v_mov_b32 v{OA + r}, 0')
    k.label(Lb)
    s_tile('0')
    for r in range(16):
        k(f'v_sub_f32 v{SA + r}, v{SA + r}, v{vMX}')
    for r in range(16):
        k(f'v_exp_f32 v{SA + r}, v{SA + r}')
    for q in range(8):
        k(f'v_cvt_pk_bf16_f32 v{PA + q}, v{SA + 2 * q}, v{SA + 2 * q + 1}')
    k(f'{MF} {v16(OA)}, {v4(VB)}, {v4(PA)}, {v16(OA)}')
    k(f'{MF} {v16(OA)}, {v4(VB + 4)}, {v4(PA + 4)}, {v16(OA)}')
    k(f"""
    v_add_u32 v{vAD}, 4096, v{vAD}
    s_add_u32 s{sCNT}, s{sCNT}, 1
    s_cmp_lt_u32 s{sCNT}, 9
    s_waitcnt lgkmcnt(0)
    s_cbranch_scc1 {Lb}
    v_mov_b32 v{vT0}, v{OA + 12}
    v_mov_b32 v{vT1}, v{OA + 12}
    v_permlane32_swap_b32 v{vT0}, v{vT1}
    """)


SK_ACC = [32, 48, 64, 80]
SK_XO = 96
RED = 3 * SLOT


def red_writes():
    out = {}
    for q in range(1, 4):
        o = lines(f"""
        s_xor_b32 s{sT0}, s{sW}, {q}
        s_mul_i32 s{sT0}, s{sT0}, 12288
        s_add_u32 s{sT0}, s{sT0}, {RED + (q - 1) * 4096}
        v_add_u32 v{vT0 + q - 1}, s{sT0}, v{vL16}
        """)
        for g in range(4):
            o.append(f'ds_write_b128 v{vT0 + q - 1}, {v4(SK_ACC[q] + 4 * g)} offset:{1024 * g}')
        out[q] = o
    return out


XR = 200


def red_setup():
    return lines(f"""
    s_mul_i32 s{sT0}, s{sW}, 12288
    s_add_u32 s{sT0}, s{sT0}, {RED}
    v_add_u32 v{vT3}, s{sT0}, v{vL16}
    """)


def red_finish(k):
    ACC = SK_ACC
    k.barrier()
    for g in range(4):
        for q in range(1, 4):
            k(f'ds_read_b128 {v4(ACC[q] + 4 * g)}, v{vT3} offset:{(q - 1) * 4096 + 1024 * g}')


def red_sum(k, g):
    ACC = SK_ACC
    k.wait_reg(v4(ACC[3] + 4 * g))
    for r in (4 * g, 4 * g + 2):
        k(f'v_pk_add_f32 {v2(ACC[1] + r)}, {v2(ACC[1] + r)}, {v2(ACC[2] + r)}')
        k(f'v_pk_add_f32 {v2(ACC[0] + r)}, {v2(ACC[0] + r)}, {v2(ACC[3] + r)}')
    for r in (4 * g, 4 * g + 2):
        k(f'v_pk_add_f32 {v2(ACC[0] + r)}, {v2(ACC[0] + r)}, {v2(ACC[1] + r)}')


def unpack_res(xo, dst):
    out = []
    for q in range(8):
        out.append(f'v_lshlrev_b32 v{dst + 2 * q}, 16, v{xo + q}')
        out.append(f'v_and_b32 v{dst + 2 * q + 1}, 0xffff0000, v{xo + q}')
    return out


def flag_addr(dst, fbase):
    return lines(f"""
    s_lshl_b32 s{dst}, s{sTT3}, 7
    s_lshl_b32 s{sT1}, s{sFT}, 2
    s_add_u32 s{dst}, s{dst}, s{sT1}
    s_add_u32 s{dst}, s{dst}, {fbase}
    """)


def res_epilogue(k, xo, sflag, val, scale, xr, Lfin):
    acc = SK_ACC[0]
    for g in range(4):
        red_sum(k, g)
        if scale is not None:
            for r in (4 * g, 4 * g + 2):
                k(f'v_pk_fma_f32 {v2(acc + r)}, {v2(acc + r)}, {v2(scale)}, {v2(xr + r)}')
        for q in (2 * g, 2 * g + 1):
            k(f'v_cvt_pk_bf16_f32 v{xo + q}, v{acc + 2 * q}, v{acc + 2 * q + 1}')
        if g == 1 and Lfin is None:
            publish(k, [f'buffer_store_dwordx4 {v4(xo)}, v{vL16}, s[8:11], s{sXADR} offen'])
    if Lfin:
        k(f's_cmp_eq_u32 s{sL}, 1')
        k(f's_cbranch_scc1 {Lfin}')
        publish(k, [f'buffer_store_dwordx4 {v4(xo)}, v{vL16}, s[8:11], s{sXADR} offen'])
    publish(k, [f'buffer_store_dwordx4 {v4(xo + 4)}, v{vL16}, s[8:11], s{sXADR} offen offset:1024'])
    k(f'v_mov_b32 v{vT0}, 0')
    k(f'v_mov_b32 v{vT1}, 0')
    emit(k, stats_ops(xo, 8, vT0, vT1, vONES))
    k(f"""
    v_permlane32_swap_b32 v{vT0}, v{vT1}
    v_add_f32 v{vT0}, v{vT0}, v{vT1}
    """)
    publish(k, [f'buffer_store_dword v{vT0}, v{vSTO}, s[8:11], s{sSADR} offen'])
    set_flag(k, sflag, val)


def rowmajor_addr(k):
    k(f"""
    v_mul_u32_u24 v{vT0}, 896, v{vN}
    v_lshl_add_u32 v{vT0}, v{vHH}, 4, v{vT0}
    s_mul_i32 s{sT0}, s{sTT3}, {32 * 896}
    s_lshl_b32 s{sT1}, s{sFT}, 6
    s_add_u32 s{sT0}, s{sT0}, s{sT1}
    """)


def phase_P3(k):
    ACC, XO = SK_ACC, SK_XO
    O_R = 192
    Lskip, Lj = k.newlabel('p3_skip'), k.newlabel('p3_join')
    k(f's_cmp_eq_u32 s{sACT}, 0')
    k(f's_cbranch_scc1 {Lskip}')
    La, Lb = k.newlabel('p3_l1'), k.newlabel('p3_res')
    k(f's_cmp_lg_u32 s{sL}, 0')
    k(f's_cbranch_scc1 {La}')
    rowmajor_addr(k)
    k(f"""
    buffer_load_dwordx4 {v4(XO)}, v{vT0}, s[20:23], s{sT0} offen
    buffer_load_dwordx4 {v4(XO + 4)}, v{vT0}, s[20:23], s{sT0} offen offset:32
    s_branch {Lb}
    """)
    k.label(La, pad=False)
    k.vm_seq -= 2
    for r in parse_reg(f'v[{XO}:{XO + 7}]'):
        k.pend.pop(r, None)
    res_addr(k, sT0, f's{sX2}')
    k(f"""
    buffer_load_dwordx4 {v4(XO)}, v{vL16}, s[8:11], s{sT0} offen sc1
    buffer_load_dwordx4 {v4(XO + 4)}, v{vL16}, s[8:11], s{sT0} offen offset:1024 sc1
    """)
    k.label(Lb, pad=False)
    k(f"""
    s_and_b32 s{sT4}, s{sTT3}, -2
    s_lshl_b32 s{sT4}, s{sT4}, 7
    s_add_u32 s{sT4}, s{sT4}, {F_O}
    s_lshl_b32 s{sT1}, s{sW}, 19
    s_add_u32 s{sT1}, s{sT1}, s{sOF}
    s_lshl_b32 s{sT2}, s{sTT3}, 11
    s_add_u32 s{sT2}, s{sT2}, s{sT1}
    s_lshl_b32 s{sT3}, s{sTTo}, 11
    s_add_u32 s{sT3}, s{sT3}, s{sT1}
    """)
    emit(k, SCHED['P3_pre']())
    emit(k, red_setup() + flag_addr(sE, F_X1))
    k('s_barrier')
    emit(k, unpack_res(XO, ACC[0]))
    wait_flags(k, vFH, sT4, f's{sL1}')
    ts(k, 'P3.ready')
    for q in (1, 0):
        for i in range(8):
            if i and i % 2 == 0:
                k(f's_add_u32 s{sT2 + q}, s{sT2 + q}, {64 * 2048}')
            k(f'buffer_load_dwordx4 {v4(O_R + 32 * q + 4 * i)}, v{vL16}, s[8:11], s{sT2 + q} offen offset:{(i % 2) * 1024} sc1')

    def mf(qa, qb, ks):
        a = ACC[qa + 2 * qb]
        c = '0' if (ks == 0 and qa + qb) else v16(a)
        return dict(m=f'{MF} {v16(a)}, {v4(WO_R + 32 * qa + 4 * ks)}, {v4(O_R + 32 * qb + 4 * ks)}, {c}')
    rw = red_writes()
    M = [mf(qa, 1, ks) for ks in range(8) for qa in range(2)] + [mf(1, 0, ks) for ks in range(8)] + [mf(0, 0, ks) for ks in range(8)]
    fl = F(SCHED['P3_mm'](), earliest=2) + F(rw[2] + rw[3], earliest=18) + F(rw[1], earliest=26)
    flush(k, weave(k, M, fl, free=6, pairwait=False))
    ts(k, 'P3.mfma')
    red_finish(k)
    res_epilogue(k, XO, sE, f's{sL1}', None, None, None)
    ts(k, 'P3.pub')
    k(f's_branch {Lj}')
    k.label(Lskip, pad=False)
    emit(k, SCHED['P3_idle']())
    k.label(Lj, pad=False)
    k.drained()


def phase_P5(k, Lfin):
    ACC, XO = SK_ACC, SK_XO
    HB = 104
    HDEPTH = 6
    Lskip, Ljoin = k.newlabel('p5_skip'), k.newlabel('p5_join')
    k(f's_cmp_eq_u32 s{sACT}, 0')
    k(f's_cbranch_scc1 {Lskip}')
    res_addr(k, sT0, f's{sX1}')
    k(f"""
    buffer_load_dwordx4 {v4(XO)}, v{vL16}, s[8:11], s{sT0} offen sc1
    buffer_load_dwordx4 {v4(XO + 4)}, v{vL16}, s[8:11], s{sT0} offen offset:1024 sc1
    """)
    STT = 232
    emit(k, stats_loads(sST1, sTT3, STT))
    k(f"""
    s_and_b32 s{sT4}, s{sTT3}, -2
    s_lshl_b32 s{sT4}, s{sT4}, 7
    s_add_u32 s{sT4}, s{sT4}, {F_H}
    s_lshl_b32 s{sE}, s{sL}, 1
    s_add_u32 s{sE}, s{sE}, 1
    """)
    for q, stt in enumerate([sTT3, sTTo]):
        k(f"""
        s_mul_i32 s{sT2 + q}, s{stt}, {112 * 1024}
        s_mul_i32 s{sT1}, s{sW}, {28 * 1024}
        s_add_u32 s{sT2 + q}, s{sT2 + q}, s{sT1}
        s_add_u32 s{sT2 + q}, s{sT2 + q}, s{sHF}
        """)
    wait_flags(k, vFH, sT4, f's{sE}')
    ts(k, 'P5.ready')
    order = [ks for ks in range(28) if ks % 7 != 6] + [ks for ks in range(28) if ks % 7 == 6]
    NSL = 16
    reg = lambda pos, q: v4(HB + 8 * (pos % NSL) + 4 * q)

    def hload(pos):
        ks = order[pos]
        out = []
        for q in (1, 0):
            out += [f's_add_u32 s{sT0}, s{sT2 + q}, {ks * 1024}',
                    f'buffer_load_dwordx4 {reg(pos, q)}, v{vL16}, s[8:11], s{sT0} offen sc1']
        return out

    def mf(pos, qa, qb):
        a = ACC[qa + 2 * qb]
        c = '0' if pos == 0 else v16(a)
        return f'{MF} {v16(a)}, {a4(112 * qa + 4 * order[pos])}, {reg(pos, qb)}, {c}'
    for pos in range(HDEPTH):
        emit(k, hload(pos))
    emit(k, stats_math(STT))
    k(f'v_mul_f32 v{MB}, v{vR}, v{vR}')
    k(f'v_mul_f32 v{MB + 1}, v{vR}, v{vR}')
    pre_fill = unpack_res(XO, STT) + red_setup() + flag_addr(sT5, F_XIN)
    TAIL = 5

    def late_check(k):
        k(f'v_cmp_gt_u32 vcc, s{sE}, v{vFL}')
        k('s_nop 1')
        Lok = k.newlabel('lateok')
        k(f's_cbranch_vccz {Lok}')
        st = (k.vm_seq, k.vm_done, dict(k.pend), k.pos, list(k.hist))
        wait_flags(k, vFH, sT4, f's{sE}')
        k.vm_seq, k.vm_done, k.pend, k.pos, k.hist = st
        k.label(Lok, pad=False)
    M = []
    for pos in range(28):
        nxt = pos + HDEPTH
        pre = []
        if nxt == 24:
            pre.append(('call', late_check))
        if nxt < 28:
            pre += hload(nxt)
        if nxt == 19:
            pre += [f's_add_u32 s{sE}, s{sE}, 1', f'buffer_load_dword v{vFL}, v{vFH}, s[8:11], s{sT4} offen sc1']
        M.append(dict(pre=pre, m=mf(pos, 0, 1)))
        M.append(dict(m=mf(pos, 1, 1)))
        M.append(dict(m=mf(pos, 1, 0)))
        if pos < 28 - TAIL:
            M.append(dict(m=mf(pos, 0, 0)))
    n0 = len(M)
    M += [dict(m=mf(pos, 0, 0)) for pos in range(28 - TAIL, 28)]
    rw = red_writes()
    wq = pf_wqkv()
    wqg = [L0(flat(wq[i:i + 4])) for i in range(0, 21, 4)]
    first_free = 4 * (28 - HDEPTH)
    fl = F(pre_fill, earliest=1)
    for i, g in enumerate(wqg):
        fl += F([g], earliest=first_free + 2 * i)
    fl += F(rw[2] + rw[3] + rw[1], earliest=n0)
    flush(k, weave(k, M, fl, free=8, pairwait=False))
    ts(k, 'P5.mfma')
    red_finish(k)
    res_epilogue(k, XO, sT5, '1', MB, STT, Lfin)
    ts(k, 'P5.pub')
    k(f's_branch {Ljoin}')
    k.label(Lskip, pad=False)
    k(f's_cmp_eq_u32 s{sL}, 1')
    k('s_cbranch_scc1 MAIN_tail')
    emit(k, flat(pf_wqkv()))
    k.label(Ljoin, pad=False)
    k('s_waitcnt vmcnt(0) lgkmcnt(0)')
    k.drained()
    k('s_barrier')


def phase_P4(k):
    XB = 32
    ACC = [144, 160, 176]
    WB, NB, PF = 192, 8, 6
    ET = 224
    k(f"""
    s_lshl_b32 s{sT4}, s{sTT}, 7
    s_add_u32 s{sT4}, s{sT4}, {F_X1}
    s_mul_i32 s{sT3}, s{sTT}, {28 * 1024}
    s_add_u32 s{sT3}, s{sT3}, s{sX1}
    """)
    k('s_waitcnt vmcnt(0)')
    k(f's_cmp_lg_u32 s{sL}, 0')
    k.skip_begin('s_cbranch_scc1')
    emit(k, cs13_build())
    k.skip_end()
    k('s_barrier')
    emit(k, SCHED['P4_pre']())
    acc_of = [0, 1, 2, 0, 1, 2, 0]
    seq = [(i, ks) for ks in range(29) for i in range(2)] + [(i, ks) for i in range(2, 7) for ks in range(29)]
    start = {i: 58 + 29 * (i - 2) for i in range(2, 7)}
    endi = {0: 56, 1: 57}
    endi.update({i: start[i] + 28 for i in range(2, 7)})

    def wread(n):
        i, ks = seq[n]
        if ks == 28:
            return f'ds_read_b128 {v4(WB + 4 * (n % NB))}, v{vSCR} offset:{1024 + 1024 * i}'
        s = W13_SLOT[i]
        base = {0: vL16, 1: vL16, 2: vL2S, 3: vL2S, 4: vL4S}[s]
        off = (s % 2) * SLOT + ks * 1024 if s < 4 else ks * 1024
        return f'ds_read_b128 {v4(WB + 4 * (n % NB))}, v{base} offset:{off}'

    def mf(n):
        i, ks = seq[n]
        a = v16(ACC[acc_of[i]])
        b = v4(MB) if ks == 28 else v4(XB + 4 * ks)
        return f'{MF} {a}, {v4(WB + 4 * (n % NB))}, {b}, {"0" if ks == 0 else a}'
    for n in range(PF):
        k(wread(n))
    wait_flags(k, vF14, sT4, f's{sL1}')
    ts(k, 'P4.ready')
    xl = load_chunks([v4(XB + 4 * i) for i in range(28)], sT3, sT2, pol=' sc1')
    for i in range(4):
        emit(k, xl[i])
    emit(k, stats_loads(sST1, sTT, ET))
    for i in range(4, XDEPTH):
        emit(k, xl[i])

    def epi(i):
        a = ACC[acc_of[i]]
        out = []
        e0 = ET + 8 * (i % 2)
        for r in range(8):
            out.append(f'v_mul_f32 v{e0 + r}, v{vKE}, v{a + r}')
        for r in range(8):
            out.append(f'v_exp_f32 v{e0 + r}, v{e0 + r}')
            out.append(f'v_mul_f32 v{a + r}, v{a + r}, v{a + 8 + r}')
        for r in range(8):
            out.append(f'v_add_f32 v{e0 + r}, 1.0, v{e0 + r}')
        for r in range(8):
            out.append(f'v_rcp_f32 v{e0 + r}, v{e0 + r}')
            if r:
                out.append(f'v_mul_f32 v{a + r - 1}, v{a + r - 1}, v{e0 + r - 1}')
        out.append(f'v_mul_f32 v{a + 7}, v{a + 7}, v{e0 + 7}')
        o = 240 + 4 * (i % 2)
        for q in range(4):
            out.append(f'v_cvt_pk_bf16_f32 v{o + q}, v{a + 2 * q}, v{a + 2 * q + 1}')

        def st(k):
            if i == 4:
                k(f's_add_u32 s{sHOFF}, s{sHOFF}, 4096')
            st_ = f'buffer_store_dwordx4 {v4(o)}, v{vL16}, s[8:11], s{sHOFF} offen offset:{(i % 4) * 1024}'
            if MODE == 'fast':
                La, Lb = k.newlabel('h0'), k.newlabel('h1')
                k(f's_cmp_eq_u32 s{sL}, 0')
                k(f's_cbranch_scc1 {La}')
                k(st_)
                k(f's_branch {Lb}')
                k.label(La, pad=False)
                k.vm_seq -= 1
                k.pos -= 2
                k(st_ + ' sc1')
                k.label(Lb, pad=False)
            else:
                publish(k, [st_])
            hs[i] = k.vm_mark()
        out.append(('call', st))
        return out
    hs, hd = {}, {}

    def mark(name):
        def fn(k):
            hd[name] = k.vm_mark()
        return ('call', fn)

    def bar(name, tsn):
        def fn(k):
            k.wait_vm(hd[name])
            k.barrier()
            ts(k, tsn)
        return ('call', fn)
    b1, b2 = start[3] - PF, start[5] - PF
    M = []
    for n in range(len(seq)):
        pre = []
        if n == b1:
            pre.append(bar('t34', 'P4.b1'))
        if n == b2:
            pre.append(bar('t56', 'P4.b2'))
        if n + PF < len(seq):
            pre.append(wread(n + PF))
        i, ks = seq[n]
        if n < 58 and i == 0 and ks + XDEPTH < 28:
            pre += xl[ks + XDEPTH]
        M.append(dict(pre=pre, m=mf(n), need=[v4(WB + 4 * (n % NB))], w=1 if (n < 56 and i == 0) else 0))
    nx = 2 * (28 - XDEPTH)
    fl = F(stats_math(ET) + mb_fill() + [f'v_mul_f32 v{vKE}, {f32bits(-LOG2E)}, v{vR}'], earliest=6, deadline=54)
    fl += F(lines(f"""
    s_lshl_b32 s{sT4}, s{sTT}, 7
    s_lshl_b32 s{sT1}, s{sIDX}, 2
    s_add_u32 s{sT4}, s{sT4}, s{sT1}
    s_add_u32 s{sT4}, s{sT4}, {F_H}
    s_lshl_b32 s{sE}, s{sL}, 1
    s_add_u32 s{sE}, s{sE}, 1
    """), earliest=6)
    fl.append((6, None, ('call', lambda k: (res_addr(k, sXADR, f's{sX2}'), st_addr(k, sSADR, f's{sST2}')))))
    c34 = pf_w13(3) + pf_w13(4)
    for j, c in enumerate(c34):
        fl += F(c, earliest=nx + (j * 3) // 2, deadline=b1 - 8)
    fl.append((0, b1 - 8, mark('t34')))
    fl += F(flat(SCHED['P4_p1']()), earliest=58)

    def interleave(ep, mem, e0, dl):
        out = []
        step = max(1, len(ep) // (len(mem) + 1)) if mem else 10 ** 9
        mem = list(mem)
        for j, x in enumerate(ep):
            out.append(x)
            if mem and j % step == step - 1:
                out += mem.pop(0)
        for m in mem:
            out += m
        return F(out, earliest=e0, deadline=dl)
    S4 = SCHED['P4_mid']()
    n4 = len(S4)
    fl += interleave(epi(0), [], endi[0] + 3, start[3])
    fl += interleave(epi(1), [], endi[1] + 3, start[4])
    c56 = pf_w13(5) + pf_w13(6) + [[mark('t56')]]
    fl += interleave(epi(2), c56, max(endi[2] + 3, b1 + 1), b2 - 10)
    fl += interleave(epi(3), S4[:n4 // 3], endi[3] + 3, start[6])
    fl += interleave(epi(4), S4[n4 // 3:2 * n4 // 3], endi[4] + 3, None)
    fl += interleave(epi(5), S4[2 * n4 // 3:], endi[5] + 3, len(seq) - 6)
    rest = weave(k, M, fl, free=6)
    flush(k, rest)
    set_flag(k, sT4, f's{sE}', h=hs[5])
    ts(k, 'P4.mfma')
    emit(k, epi(6))
    k(f's_add_u32 s{sT5}, s{sE}, 1')
    set_flag(k, sT4, f's{sT5}')
    ts(k, 'P4.pub')
    k.barrier()


def phase_G(k):
    A_X, A_Q, A_K, A_V, WB, RT = 32, 144, 160, 176, 192, 240
    NB, PF = 6, 4
    NQ1 = 6
    k(f"""
    s_lshl_b32 s{sT4}, s{sTT}, 7
    s_add_u32 s{sT4}, s{sT4}, {F_XIN}
    s_mul_i32 s{sT3}, s{sTT}, {28 * 1024}
    s_add_u32 s{sT3}, s{sT3}, s{sX2}
    """)
    seq = []
    for ks in range(29):
        seq += [('K', ks), ('V', ks)]
        if ks < NQ1:
            seq.append(('Q', ks))
    n1 = len(seq)
    seq += [('Q', ks) for ks in range(NQ1, 29)]
    pidx = {'Q': 0, 'K': 1, 'V': 2}

    def wread(n):
        p, ks = seq[n]
        b = v4(WB + 4 * (n % NB))
        if ks == 28:
            return f'ds_read_b128 {b}, v{vSCR} offset:{9216 + 1024 * pidx[p]}'
        if p == 'V':
            return f'ds_read_b128 {b}, v{vL16b} offset:{ks * 1024}'
        return f'ds_read_b128 {b}, v{vL16} offset:{(pidx[p] * 28 + ks) * 1024}'

    def mf(n):
        p, ks = seq[n]
        b = v4(WB + 4 * (n % NB))
        x = v4(MB) if ks == 28 else v4(A_X + 4 * ks)
        a = {'Q': A_Q, 'K': A_K, 'V': A_V}[p]
        c = '0' if ks == 0 else v16(a)
        if p == 'V':
            return f'{MF} {v16(a)}, {x}, {b}, {c}'
        return f'{MF} {v16(a)}, {b}, {x}, {c}'
    for n in range(PF):
        k(wread(n))
    emit(k, SCHED['G_pre']())
    ts(k, 'G.start')
    wait_flags(k, vF14, sT4, '1')
    ts(k, 'G.ready')
    xl = load_chunks([v4(A_X + 4 * i) for i in range(28)], sT3, sT2, pol=' sc1')
    STT = 216
    for i in range(4):
        emit(k, xl[i])
    emit(k, stats_loads(sST2, sTT, STT))
    for i in range(4, XDEPTH):
        emit(k, xl[i])
    M = []
    for n in range(len(seq)):
        pre = [wread(n + PF)] if n + PF < len(seq) else []
        p, ks = seq[n]
        if p == 'K' and ks + XDEPTH < 28:
            pre = pre + xl[ks + XDEPTH]
        M.append(dict(pre=pre, m=mf(n), need=[v4(WB + 4 * (n % NB))], w=1 if p == 'K' else 0))
    gather = lines(f"""
    s_lshl_b32 s{sT0}, s{sW}, 8
    s_add_u32 s{sT0}, s{sT0}, {SCR}
    v_lshlrev_b32 v{vT0}, 2, v{vN}
    v_add_u32 v{vT0}, s{sT0}, v{vT0}
    ds_write_b32 v{vT0}, v{vR}
    v_lshlrev_b32 v{vT1}, 4, v{vHH}
    v_add_u32 v{vT1}, s{sT0}, v{vT1}
    """) + [f'ds_read_b128 {v4(RT + 4 * g)}, v{vT1} offset:{32 * g}' for g in range(4)]
    fl = F(stats_math(STT) + mb_fill() + gather, earliest=8, deadline=n1 - 6)
    fl += F(lines(f"""
    s_lshl_b32 s{sT0}, s{sIDX}, 6
    s_add_u32 s{sT0}, s{sT0}, s{sTT}
    s_lshl_b32 s{sT4}, s{sT0}, 2
    s_add_u32 s{sT4}, s{sT4}, {F_KV}
    s_lshl_b32 s{sT5}, s{sT0}, 12
    s_add_u32 s{sT5}, s{sT5}, s{sKV}
    """), earliest=8)
    ep = []
    for r in range(16):
        ep.append(f'v_mul_f32 v{A_K + r}, v{vR}, v{A_K + r}')
    for q in range(8):
        ep.append(f'v_cvt_pk_bf16_f32 v{KF + q}, v{A_K + 2 * q}, v{A_K + 2 * q + 1}')
    for i in range(2):
        ep.append(f'buffer_store_dwordx4 {v4(KF + 4 * i)}, v{vL16}, s[8:11], s{sT5} offen offset:{1024 * i} sc1')
    for r in range(16):
        ep.append(f'v_mul_f32 v{A_V + r}, v{RT + r}, v{A_V + r}')
    for q in range(8):
        ep.append(f'v_cvt_pk_bf16_f32 v{VF + q}, v{A_V + 2 * q}, v{A_V + 2 * q + 1}')
        ep.append(f'v_cndmask_b32 v{VF + q}, v{VF + q}, v{vONES}, s[{sN28}:{sN28 + 1}]')
    for i in range(2, 4):
        ep.append(f'buffer_store_dwordx4 {v4(KF + 4 * i)}, v{vL16}, s[8:11], s{sT5} offen offset:{1024 * i} sc1')
    hk = {}
    ep.append(('call', lambda k: hk.__setitem__('h', k.vm_mark())))
    for i in range(4):
        ep.append(f'ds_write_b128 v{vKVA}, {v4(KF + 4 * i)} offset:{8 * 4096 + 1024 * i}')
    ep += SCHED['G_q']()
    fl += F(ep, earliest=n1 + 1)
    flush(k, weave(k, M, fl, free=6))
    ts(k, 'G.mfma')
    k(f'v_mul_f32 v{vT0}, {f32bits(28 ** -0.5 * LOG2E)}, v{vR}')
    for r in range(16):
        k(f'v_mul_f32 v{A_Q + r}, v{vT0}, v{A_Q + r}')
    for q in range(8):
        k(f'v_cvt_pk_bf16_f32 v{QF + q}, v{A_Q + 2 * q}, v{A_Q + 2 * q + 1}')
    k(f'v_mov_b32 v{vT1}, 0x3f80')
    k(f'v_cndmask_b32 v{QF + 6}, v{QF + 6}, v{vT1}, s[{sHI}:{sHI + 1}]')
    set_flag(k, sT4, '2', always_sc1=True, h=hk['h'])
    ts(k, 'G.pub')
    k.barrier()


F_DUTY = 3 * SLOT
F_SCR = SCR
F_CSX = LDS_BYTES - 1536
F_XR = F_DUTY + 29184
OOBS = 0x20000000


def front(k):
    T0, T1, T2, T3, T4, T5 = sT0, sT1, sT2, sT3, sT4, sT5
    sKIND, sDST, sCSD, sA1, sWOFF, sPIT, sSRC, sXRB = 88, 89, 90, 91, 92, 93, 94, 95
    sPAD, sHP, sXT, sIMG, sXS, sZM, sSA, sSB, sD8 = 72, 74, 77, 78, 79, 80, 82, 83, 84
    vTR, vTR2, vXO, vDT, vS1, vS2, vCSK, vCSV, vCSQ, vIMG, vOQ, vOQ2, vDS = 5, 6, 7, 9, 10, 14, 15, 16, 17, 19, 26, 27, 144
    X, AQ, AK, AV, WB, RT = 32, 144, 160, 176, 192, 240
    NB, PF = 6, 4
    XA = 240
    k(f"""
    v_and_b32 v{vT0}, 3, v{vLANE}
    v_lshrrev_b32 v{vT1}, 2, v{vLANE}
    s_lshl_b32 s{T0}, s{sRB}, 2
    v_add_u32 v{vT2}, s{T0}, v{vT0}
    v_lshlrev_b32 v{vT3}, 7, v{vT2}
    s_lshl_b32 s{T1}, s{sIDX}, 2
    s_add_u32 s{T1}, s{T1}, {F_O}
    v_add_u32 v{vT3}, s{T1}, v{vT3}                  ; F_O
    v_and_b32 v5, 1, v{vT1}
    v_lshl_add_u32 v{vT3}, v5, 14, v{vT3}            ; kind 1: F_H = F_O + 16384
    s_and_b32 s{T0}, s{sTT3}, -2
    s_and_b32 s{T1}, s{sFT}, -2
    v_lshrrev_b32 v6, 1, v{vT0}
    v_add_u32 v6, s{T0}, v6                          ; tt3
    v_and_b32 v7, 1, v{vT0}
    v_add_u32 v7, s{T1}, v7                          ; ft
    v_lshlrev_b32 v6, 7, v6
    v_lshl_add_u32 v6, v7, 2, v6
    v_add_u32 v6, {F_XIN}, v6
    v_lshl_add_u32 v6, v5, 14, v6
    v_cmp_le_u32 vcc, 2, v{vT1}
    s_lshl_b32 s{T0}, s{sIDX}, 8
    s_add_u32 s{T0}, s{T0}, {F_KV}
    v_cndmask_b32 v{vT3}, v{vT3}, v6, vcc
    v_lshlrev_b32 v6, 2, v{vT2}
    v_add_u32 v6, s{T0}, v6
    v_cmp_le_u32 vcc, 4, v{vT1}
    s_lshl_b32 s{T0}, s2, 7
    s_add_u32 s{T0}, s{T0}, {F_PK}
    v_cndmask_b32 v{vT3}, v{vT3}, v6, vcc
    v_mov_b32 v6, s{T0}
    v_cmp_le_u32 vcc, 5, v{vT1}
    s_cmp_eq_u32 s{sW}, 0
    s_cselect_b32 s{T0}, 0, {OOBS}
    v_cndmask_b32 v{vT3}, v{vT3}, v6, vcc
    s_mov_b64 exec, 0x1fffff
    buffer_store_dword v{vZERO}, v{vT3}, s[8:11], s{T0} offen sc1
    s_mov_b64 exec, -1
    """)
    h_zero = k.vm_mark()
    assert F_H - F_O == 16384 and F_X1 - F_XIN == 16384
    k(f"""
    s_mov_b32 s64, s74
    s_mov_b32 s65, s75
    s_mov_b32 s66, {448 * 1344 * 2}
    s_mov_b32 s67, 0x00020000
    s_mov_b32 s71, 0x00020000
    """)
    Lw2, Lwo, Lnone, Ldec = 'F_w2', 'F_wo', 'F_none', 'F_dec'
    k(f"""
    s_lshr_b32 s{T4}, s{sW}, 1
    s_and_b32 s{T5}, s{sW}, 1
    s_cmp_ge_u32 s2, 182
    s_cbranch_scc1 {Lnone}
    s_cmp_ge_u32 s2, 168
    s_cbranch_scc1 {Lwo}
    s_cmp_ge_u32 s2, 112
    s_cbranch_scc1 {Lw2}
    s_lshr_b32 s{T0}, s2, 2
    s_and_b32 s{T1}, s2, 3
    s_cmp_eq_u32 s{T4}, 1
    s_cselect_b32 s68, s82, s80
    s_cselect_b32 s69, s83, s81
    s_mov_b32 s70, {448 * 1792 * 2}
    s_mov_b32 s{sKIND}, 0
    s_mov_b32 s{sPIT}, 3584
    s_mul_i32 s{sSRC}, s{T1}, 112
    s_mul_i32 s{T2}, s{T5}, 56
    s_add_u32 s{sSRC}, s{sSRC}, s{T2}
    s_mul_i32 s{sSRC}, s{sSRC}, 3584
    s_lshl_b32 s{T2}, s{T0}, 7
    s_add_u32 s{sSRC}, s{sSRC}, s{T2}
    s_lshl_b32 s{T2}, s{T0}, 2
    s_add_u32 s{T2}, s{T2}, s{sW}
    s_mul_i32 s{sDST}, s{T2}, 28
    s_mul_i32 s{T0}, s{T1}, 7
    s_add_u32 s{sDST}, s{sDST}, s{T0}
    s_lshl_b32 s{sDST}, s{sDST}, 10
    s_add_u32 s{sDST}, s{sDST}, {W13_P}
    s_mul_i32 s{sCSD}, s{T1}, 112
    s_add_u32 s{sCSD}, s{sCSD}, s{T2}
    s_lshl_b32 s{sCSD}, s{sCSD}, 7
    s_add_u32 s{sCSD}, s{sCSD}, {CSP_13}
    s_mov_b32 s{sA1}, 14336
    s_lshl_b32 s{sWOFF}, s{sW}, 5
    s_branch {Ldec}
    """)
    k.label(Lw2, pad=False)
    k(f"""
    s_sub_u32 s{T0}, s2, 112
    s_and_b32 s{T1}, s{T0}, 7
    s_lshr_b32 s{T0}, s{T0}, 3
    s_mov_b32 s68, s84
    s_mov_b32 s69, s85
    s_mov_b32 s70, {1792 * 448 * 2}
    s_mov_b32 s{sKIND}, 1
    s_mov_b32 s{sPIT}, 896
    s_mul_i32 s{sSRC}, s{T1}, 224
    s_mul_i32 s{T2}, s{sW}, 56
    s_add_u32 s{sSRC}, s{sSRC}, s{T2}
    s_mul_i32 s{sSRC}, s{sSRC}, 896
    s_lshl_b32 s{T2}, s{T0}, 7
    s_add_u32 s{sSRC}, s{sSRC}, s{T2}
    s_lshl_b32 s{T2}, s{T0}, 1
    s_add_u32 s{T2}, s{T2}, s{T5}
    s_mul_i32 s{sDST}, s{T2}, 112
    s_mul_i32 s{T0}, s{T1}, 14
    s_add_u32 s{sDST}, s{sDST}, s{T0}
    s_mul_i32 s{T0}, s{T4}, 7
    s_add_u32 s{sDST}, s{sDST}, s{T0}
    s_lshl_b32 s{sDST}, s{sDST}, 10
    s_add_u32 s{sDST}, s{sDST}, {W2_P}
    s_mov_b32 s{sCSD}, 0
    s_mov_b32 s{sA1}, 32
    s_mul_i32 s{sWOFF}, s{T4}, {112 * 128}
    s_lshl_b32 s{T0}, s{T5}, 6
    s_add_u32 s{sWOFF}, s{sWOFF}, s{T0}
    s_branch {Ldec}
    """)
    k.label(Lwo, pad=False)
    k(f"""
    s_sub_u32 s{T0}, s2, 168
    s_and_b32 s{T1}, s{T0}, 1
    s_lshr_b32 s{T0}, s{T0}, 1
    s_mov_b32 s68, s76
    s_mov_b32 s69, s77
    s_mov_b32 s70, {448 * 448 * 2}
    s_mov_b32 s{sKIND}, 2
    s_mov_b32 s{sPIT}, 896
    s_mul_i32 s{sSRC}, s{T1}, 224
    s_mul_i32 s{T2}, s{sW}, 56
    s_add_u32 s{sSRC}, s{sSRC}, s{T2}
    s_mul_i32 s{sSRC}, s{sSRC}, 896
    s_lshl_b32 s{T2}, s{T0}, 7
    s_add_u32 s{sSRC}, s{sSRC}, s{T2}
    s_lshl_b32 s{T2}, s{T0}, 1
    s_add_u32 s{T2}, s{T2}, s{T5}
    s_lshl_b32 s{sDST}, s{T2}, 5
    s_lshl_b32 s{T0}, s{T1}, 4
    s_add_u32 s{sDST}, s{sDST}, s{T0}
    s_lshl_b32 s{T0}, s{T4}, 3
    s_add_u32 s{sDST}, s{sDST}, s{T0}
    s_lshl_b32 s{sDST}, s{sDST}, 10
    s_add_u32 s{sDST}, s{sDST}, {WO_P}
    s_mov_b32 s{sCSD}, 0
    s_mov_b32 s{sA1}, 32
    s_mul_i32 s{sWOFF}, s{T4}, {112 * 128}
    s_lshl_b32 s{T0}, s{T5}, 6
    s_add_u32 s{sWOFF}, s{sWOFF}, s{T0}
    s_branch {Ldec}
    """)
    k.label(Lnone, pad=False)
    k(f"""
    s_mov_b32 s68, s76
    s_mov_b32 s69, s77
    s_mov_b32 s70, 0
    s_mov_b32 s{sKIND}, 3
    s_mov_b32 s{sPIT}, 0
    s_mov_b32 s{sSRC}, 0
    s_mov_b32 s{sDST}, 0
    s_mov_b32 s{sCSD}, 0
    s_mov_b32 s{sA1}, 0
    s_mov_b32 s{sWOFF}, 0
    """)
    k.label(Ldec, pad=False)
    k(f"""
    v_lshrrev_b32 v{vT1}, 3, v{vLANE}
    v_mul_lo_u32 v{vDS}, v{vT1}, s{sPIT}
    v_and_b32 v{vT2}, 7, v{vLANE}
    v_lshl_add_u32 v{vDS}, v{vT2}, 4, v{vDS}
    s_lshl_b32 s{sPIT}, s{sPIT}, 3
    v_xor_b32 v{vT2}, v{vT2}, v{vT1}
    v_mul_u32_u24 v{vXO}, 896, v{vT1}
    v_lshl_add_u32 v{vXO}, v{vT2}, 4, v{vXO}
    v_lshrrev_b32 v{vIMG}, 2, v{vLANE}
    v_mul_u32_u24 v{vIMG}, 2688, v{vIMG}
    v_and_b32 v{vT1}, 3, v{vLANE}
    v_lshl_add_u32 v{vIMG}, v{vT1}, 4, v{vIMG}
    s_mul_i32 s{sIMG}, s{sW}, {7 * 16 * 2688}
    s_mul_i32 s{T2}, s{sIDX}, 56
    s_add_u32 s{sIMG}, s{sIMG}, s{T2}
    s_mul_i32 s{sXS}, s{sTT}, {32 * 896}
    """)
    hx, himg = {}, {}
    def xslot(c):
        return [0, 1, 2, 0, 1, 2, 1][c]

    def xbase(c):
        return [(sLW, 0), (sXRB, 0), (sXRB, 4096)][xslot(c)]

    def duty_dma():
        for i in range(7):
            k(f's_add_u32 m0, s{sLW}, {F_DUTY + i * 1024}')
            k(f'buffer_load_dwordx4 v{vDS}, s[68:71], s{sSRC} offen lds')
            k(f's_add_u32 s{sSRC}, s{sSRC}, s{sPIT}')

    def xdma(c):
        b, o = xbase(c)
        for i in range(4):
            k(f's_add_u32 m0, s{b}, {o + i * 1024}')
            k(f's_add_u32 s{sXT}, s{sXS}, {i * 8 * 896 + c * 128}')
            k(f'buffer_load_dwordx4 v{vXO}, s[20:23], s{sXT} offen lds')
        hx[c] = k.vm_mark()

    def img_dma(p):
        for i in range(7):
            k(f's_add_u32 m0, s{sLW}, {p * SLOT + i * 1024}')
            k(f's_add_u32 s{sXT}, s{sIMG}, {i * 16 * 2688 + p * 896}')
            k(f'buffer_load_dwordx4 v{vIMG}, s[64:67], s{sXT} offen lds')
        himg[p] = k.vm_mark()
    k(f"""
    s_lshl_b32 s{sXRB}, s{sW}, 13
    s_add_u32 s{sXRB}, s{sXRB}, {F_XR}
    """)
    if WARM:
        k(f"""
        s_lshr_b32 s{T0}, s2, 3
        s_lshl_b32 s{T0}, s{T0}, 2
        s_add_u32 s{T0}, s{T0}, s{sW}
        v_lshlrev_b32 v{vT1}, 7, v{vLANE}
        s_mul_i32 s{T2}, s{T0}, {74 * 128}
        buffer_load_dword v{vDUM}, v{vT1}, s[64:67], s{T2} offen
        v_min_u32 v{vT2}, 9, v{vLANE}
        v_lshlrev_b32 v{vT2}, 7, v{vT2}
        s_add_u32 s{T2}, s{T2}, 8192
        buffer_load_dword v{vDUM}, v{vT2}, s[64:67], s{T2} offen
        v_min_u32 v{vT2}, 13, v{vLANE}
        v_lshlrev_b32 v{vT2}, 7, v{vT2}
        s_lshr_b32 s{T2}, s{sRB}, 1
        s_mul_i32 s{T2}, s{T2}, {256 * 896}
        s_mul_i32 s{T0}, s{T0}, 1792
        s_add_u32 s{T2}, s{T2}, s{T0}
        buffer_load_dword v{vDUM}, v{vT2}, s[20:23], s{T2} offen
        """)
    if DUTYPOS == 0:
        duty_dma()
    xdma(0)
    xdma(1)
    xdma(2)
    k.wait_vm(h_zero)
    signal(k)
    img_dma(1)
    if DUTYPOS == 1:
        duty_dma()
    ts(k, 'F.issued')
    k(f"""
    v_lshlrev_b32 v{vT1}, 3, v{vHH}
    v_bfe_u32 v{vT2}, v{vLANE}, 2, 2
    v_add_u32 v{vT1}, v{vT1}, v{vT2}
    v_and_b32 v{vT2}, 1, v{vLANE}
    v_lshlrev_b32 v{vT2}, 4, v{vT2}
    v_bfe_u32 v{vT3}, v{vLANE}, 1, 1
    v_lshl_or_b32 v{vT2}, v{vT3}, 3, v{vT2}
    v_bfe_u32 v{vT3}, v{vLANE}, 4, 1
    v_lshl_add_u32 v{vTR}, v{vT1}, 6, v{vT2}
    v_lshl_add_u32 v{vTR}, v{vT3}, 5, v{vTR}
    v_add_u32 v{vTR2}, {2 * SLOT}, v{vTR}
    v_lshl_add_u32 v{vDT}, v{vT1}, 7, v{vT2}
    v_mad_u32_u24 v{vDT}, v{vT3}, s{sA1}, v{vDT}
    s_add_u32 s{T0}, s{sWOFF}, {F_DUTY}
    v_add_u32 v{vDT}, s{T0}, v{vDT}
    v_add_u32 v{vOQ}, s{sLW}, v{vTR}
    v_add_u32 v{vOQ2}, s{sLW}, v{vTR2}
    v_mov_b32 v{vS1}, 0
    v_mov_b32 v{vS2}, 0
    v_mov_b32 v{vCSK}, 0
    v_mov_b32 v{vCSV}, 0
    v_mov_b32 v{vCSQ}, 0
    v_cmp_le_u32 s[{sPAD}:{sPAD + 1}], 28, v{vN}
    s_sub_u32 s{T0}, s{sXRB}, s{sLW}
    """)
    for i in range(4):
        k(f"""
        v_add_u32 v{vT1}, {2 * i}, v{vHH}
        v_and_b32 v{vT2}, 7, v{vN}
        v_xor_b32 v{vT1}, v{vT1}, v{vT2}
        v_lshlrev_b32 v{vT1}, 4, v{vT1}
        v_lshl_add_u32 v{XA + i}, v{vN}, 7, v{vT1}
        v_add_u32 v{XA + i}, s{sLW}, v{XA + i}
        v_add_u32 v{XA + 4 + i}, s{T0}, v{XA + i}
        """)
    k(f's_or_b64 s[{sHP}:{sHP + 1}], s[{sHI}:{sHI + 1}], s[{sPAD}:{sPAD + 1}]')
    emit(k, setup2_salu())
    set_layer(k, 0)

    k(f"""
    s_movk_i32 s{sSA}, 2048
    s_cmp_eq_u32 s{sKIND}, 2
    s_cselect_b32 s{sSA}, 1792, s{sSA}
    s_cselect_b32 s{sSB}, 256, 0
    s_mov_b32 s{sZM}, 0
    s_cselect_b32 s{sZM + 1}, -1, 0
    s_add_u32 s{T0}, s{sDST}, 4096
    s_cmp_eq_u32 s{sKIND}, 2
    s_cselect_b32 s{sD8}, s{T0}, {OOBS}
    s_cmp_eq_u32 s{sKIND}, 0
    s_cselect_b32 s{sCSD}, s{sCSD}, {OOBS}
    s_cmp_eq_u32 s{sKIND}, 3
    s_cselect_b32 s{sDST}, {OOBS}, s{sDST}
    """)

    def x_rd(c):
        k.wait_vm(hx[c])
        for i in range(4):
            a, o = (XA + i, 0) if xslot(c) == 0 else (XA + 4 + i, 4096 * (xslot(c) - 1))
            k(f'ds_read_b128 {v4(X + 16 * c + 4 * i)}, v{a} offset:{o}')

    def x_st(c):
        emit(k, stats_ops(X + 16 * c, 16, vS1, vS2, vONES))

    def own_quarter(p, acc, buf):
        k.wait_vm(himg[p])
        base = vOQ if p < 2 else vOQ2
        for i in range(7):
            off = (p * SLOT if p < 2 else 0) + i * 1024
            k(f'ds_read_b64_tr_b16 {v2(buf + 4 * i)}, v{base} offset:{off}')
            k(f'ds_read_b64_tr_b16 {v2(buf + 4 * i + 2)}, v{base} offset:{off + 256}')
        for i in range(28):
            k(f'v_dot2_f32_bf16 v{acc}, v{buf + i}, v{vONES}, v{acc}')
        k(f"""
        v_mov_b32 v{vT0}, v{acc}
        v_permlane32_swap_b32 v{acc}, v{vT0}
        v_add_f32 v{acc}, v{acc}, v{vT0}
        s_mul_i32 s{T0}, s{sW}, 384
        s_add_u32 s{T0}, s{T0}, {F_CSX}
        v_lshlrev_b32 v{vT3}, 2, v{vN}
        v_add_u32 v{vT2}, s{T0}, v{vT3}
        ds_write_b32 v{vT2}, v{acc} offset:{128 * p}
        """)
    for c in range(3):
        x_rd(c)
    k.wait_lg()
    for c in range(3, 6):
        xdma(c)
    img_dma(2)
    ts(k, 'F.iss2')
    for c in range(3):
        x_st(c)
    own_quarter(1, vCSK, WB)
    x_rd(3)
    x_rd(4)
    k.wait_lg()
    xdma(6)
    if DUTYPOS == 2:
        duty_dma()
    ts(k, 'F.iss3')
    x_rd(5)
    for c in range(3, 6):
        x_st(c)
    own_quarter(2, vCSV, WB)
    x_rd(6)
    x_st(6)
    emit(k, ln_math(vS1, vS2, vT0, vT1, vM, vR) + mb_fill())
    k(f'v_lshlrev_b32 v{vT3}, 2, v{vN}')
    k(f'v_add_u32 v{vS1}, {F_CSX}, v{vT3}')
    gather = lines(f"""
    s_lshl_b32 s{T0}, s{sW}, 8
    s_add_u32 s{T0}, s{T0}, {F_SCR}
    v_add_u32 v{vT1}, s{T0}, v{vT3}
    ds_write_b32 v{vT1}, v{vR}
    v_lshlrev_b32 v{vT1}, 4, v{vHH}
    v_add_u32 v{vT1}, s{T0}, v{vT1}
    """) + [f'ds_read_b128 {v4(RT + 4 * g)}, v{vT1} offset:{32 * g}' for g in range(4)]
    ts(k, 'F.pre')
    k.barrier()
    ts(k, 'F.barA')
    pidx = {'Q': 0, 'K': 1, 'V': 2}

    def gemm(seq, CFR):
        def wread(n):
            p, ks = seq[n]
            b = WB + 4 * (n % NB)
            base, off = (vTR2, ks * 1024) if p == 'V' else (vTR, pidx[p] * SLOT + ks * 1024)
            return [f'ds_read_b64_tr_b16 {v2(b)}, v{base} offset:{off}',
                    f'ds_read_b64_tr_b16 {v2(b + 2)}, v{base} offset:{off + 256}']
        M = []
        for n, (p, ks) in enumerate(seq):
            b = v4(WB + 4 * (n % NB))
            x = v4(X + 4 * ks)
            a = {'Q': AQ, 'K': AK, 'V': AV}[p]
            c = '0' if ks == 0 else v16(a)
            m = f'{MF} {v16(a)}, {x}, {b}, {c}' if p == 'V' else f'{MF} {v16(a)}, {b}, {x}, {c}'
            M.append(dict(pre=wread(n + PF) if n + PF < len(seq) else [], m=m, need=[b]))
        for p, cf in CFR:
            a = {'Q': AQ, 'K': AK, 'V': AV}[p]
            M.append(dict(m=f'{MF} {v16(a)}, {v4(MB)}, {v4(cf)}, {v16(a)}' if p == 'V' else f'{MF} {v16(a)}, {v4(cf)}, {v4(MB)}, {v16(a)}'))
        for n in range(PF):
            emit(k, wread(n))
        return M

    def cs_frag(p, cf, t):
        fl = [f'ds_read_b32 v{t + w}, v{vS1} offset:{w * 384 + p * 128}' for w in range(4)]
        fl += ['s_nop 0'] * 6
        fl += [f'v_add_f32 v{t}, v{t}, v{t + 1}', f'v_add_f32 v{t + 2}, v{t + 2}, v{t + 3}', f'v_add_f32 v{t}, v{t}, v{t + 2}',
               f'v_cndmask_b32 v{t}, v{t}, 0, s[{sHP}:{sHP + 1}]']
        fl += split3(t, cf, cf + 1, vT0, vT2)
        fl += [f'v_mov_b32 v{cf + 2}, 0', f'v_mov_b32 v{cf + 3}, 0',
               ('call', lambda k: cs_store(k, cf))]
        return fl

    def cs_store(k, cf):
        k(f'ds_write_b128 v{vS2}, {v4(cf)}')
        k(f'v_add_u32 v{vS2}, 1024, v{vS2}')
    k(f'v_add_u32 v{vS2}, {SCR_CSQ + 1024}, v{vL16}')
    M = gemm([(p, ks) for ks in range(28) for p in 'KV'], [('K', QF), ('V', QF + 4)])
    fl = F(gather + cs_frag(1, QF, KF) + cs_frag(2, QF + 4, KF), earliest=1, deadline=54)
    late = []
    for i in range(7):
        late.append([f's_add_u32 m0, s{sLW}, {i * 1024}', f's_add_u32 s{sXT}, s{sIMG}, {i * 16 * 2688}',
                     f'buffer_load_dwordx4 v{vIMG}, s[64:67], s{sXT} offen lds'])
    late[-1].append(('call', lambda k: himg.__setitem__(0, k.vm_mark())))
    for j, c in enumerate(late):
        n = 1 + 5 * j
        M[n]['pre'] = M[n]['pre'] + c
    fl += F(lines(f"""
    s_lshl_b32 s{T0}, s{sIDX}, 6
    s_add_u32 s{T0}, s{T0}, s{sTT}
    s_lshl_b32 s{T4}, s{T0}, 2
    s_add_u32 s{T4}, s{T4}, {F_KV}
    s_lshl_b32 s{T5}, s{T0}, 12
    s_add_u32 s{T5}, s{T5}, s{sKV}
    """), earliest=2)
    flush(k, weave(k, M, fl, free=6))
    ts(k, 'F.kv')
    for r in range(16):
        k(f'v_mul_f32 v{AK + r}, v{vR}, v{AK + r}')
    for q in range(8):
        k(f'v_cvt_pk_bf16_f32 v{KF + q}, v{AK + 2 * q}, v{AK + 2 * q + 1}')
    k(f'v_cndmask_b32 v{KF + 6}, v{KF + 6}, 0, s[{sHI}:{sHI + 1}]')
    k(f'v_cndmask_b32 v{KF + 7}, v{KF + 7}, 0, s[{sHI}:{sHI + 1}]')
    for i in range(2):
        k(f'buffer_store_dwordx4 {v4(KF + 4 * i)}, v{vL16}, s[8:11], s{T5} offen offset:{1024 * i} sc1')
    for r in range(16):
        k(f'v_mul_f32 v{AV + r}, v{RT + r}, v{AV + r}')
    for q in range(8):
        k(f'v_cvt_pk_bf16_f32 v{VF + q}, v{AV + 2 * q}, v{AV + 2 * q + 1}')
        k(f'v_cndmask_b32 v{VF + q}, v{VF + q}, v{vONES}, s[{sN28}:{sN28 + 1}]')
    for i in range(2, 4):
        k(f'buffer_store_dwordx4 {v4(KF + 4 * i)}, v{vL16}, s[8:11], s{T5} offen offset:{1024 * i} sc1')
    hkv = k.vm_mark()
    for i in range(4):
        k(f'ds_write_b128 v{vKVA}, {v4(KF + 4 * i)} offset:{8 * 4096 + 1024 * i}')
    own_quarter(0, vCSQ, AK)
    set_flag(k, T4, '1', always_sc1=True, h=hkv)
    emit(k, SCHED['PRO']())
    ts(k, 'F.kvpub')
    k.barrier()
    share = lines(f"""
    s_cmp_ge_u32 s{sRB}, 7
    s_cselect_b32 s{T0}, 1, 0
    s_cmp_ge_u32 s{sRB}, 14
    s_cselect_b32 s{T0}, 2, s{T0}
    s_mul_i32 s{T1}, s{T0}, 7
    s_sub_u32 s{T1}, s{sRB}, s{T1}
    s_mul_i32 s{T0}, s{T0}, {SLOT}
    s_lshl_b32 s{T1}, s{T1}, 10
    s_add_u32 s{T0}, s{T0}, s{T1}
    v_add_u32 v{vT1}, s{T0}, v{vOQ}
    ds_read_b64_tr_b16 {v2(AV)}, v{vT1}
    ds_read_b64_tr_b16 {v2(AV + 2)}, v{vT1} offset:256
    s_mul_i32 s{T2}, s{sIDX}, {84 * 1024}
    s_add_u32 s{T2}, s{T2}, s{sLW}
    s_add_u32 s{T2}, s{T2}, {WQKV_P}
    s_add_u32 s{T3}, s{T2}, s{T0}
    s_min_u32 s{T1}, s{sRB}, 4
    s_lshl_b32 s{T1}, s{T1}, 10
    s_add_u32 s{T1}, s{T1}, {2 * SLOT + 2048}
    v_add_u32 v{vT1}, s{T1}, v{vOQ}
    ds_read_b64_tr_b16 {v2(AV + 4)}, v{vT1}
    ds_read_b64_tr_b16 {v2(AV + 6)}, v{vT1} offset:256
    s_add_u32 s{T2}, s{T2}, s{T1}
    """) + ['s_nop 0'] * 4
    share += [f'v_cndmask_b32 v{AV + q}, v{AV + q}, 0, s[{sPAD}:{sPAD + 1}]' for q in range(8)]
    share += [f'buffer_store_dwordx4 {v4(AV)}, v{vL16}, s[8:11], s{T3} offen sc1',
              f'buffer_store_dwordx4 {v4(AV + 4)}, v{vL16}, s[8:11], s{T2} offen sc1']
    k(f'v_add_u32 v{vS2}, {SCR_CSQ}, v{vL16}')
    M = gemm([('Q', ks) for ks in range(28)], [('Q', AK)])
    fl = F(cs_frag(0, AK, AK + 4), earliest=1, deadline=26) + F(share, earliest=1)
    flush(k, weave(k, M, fl, free=6))
    DB = 32
    for i in range(8):
        k(f'ds_read_b64_tr_b16 {v2(DB + 4 * i)}, v{vDT}')
        k(f'ds_read_b64_tr_b16 {v2(DB + 4 * i + 2)}, v{vDT} offset:512')
        k(f's_{"add" if i % 2 == 0 else "sub"}_u32 s{T0}, s{sSA}, s{sSB}')
        k(f'v_add_u32 v{vDT}, s{T0}, v{vDT}')
    k(f'v_mov_b32 v{vT1}, 0')
    for i in range(8):
        if i & 1:
            k(f'v_cndmask_b32 v{DB + 4 * i + 2}, v{DB + 4 * i + 2}, 0, s[{sZM}:{sZM + 1}]')
            k(f'v_cndmask_b32 v{DB + 4 * i + 3}, v{DB + 4 * i + 3}, 0, s[{sZM}:{sZM + 1}]')
        if i == 4:
            k(f's_add_u32 s{sDST}, s{sDST}, 4096')
        k(f'buffer_store_dwordx4 {v4(DB + 4 * i)}, v{vL16}, s[8:11], s{sD8 if i == 7 else sDST} offen offset:{(i % 4) * 1024} sc1')
    for i in range(28):
        k(f'v_dot2_f32_bf16 v{vT1}, v{DB + i}, v{vONES}, v{vT1}')
    k(f"""
    v_mov_b32 v{vT0}, v{vT1}
    v_permlane32_swap_b32 v{vT1}, v{vT0}
    v_add_f32 v{vT1}, v{vT1}, v{vT0}
    v_lshlrev_b32 v{vT3}, 2, v{vN}
    buffer_store_dword v{vT1}, v{vT3}, s[8:11], s{sCSD} offen sc1
    """)
    ts(k, 'F.duty')
    emit(k, setup2_valu())
    k(f'v_mul_f32 v{vT0}, {f32bits(28 ** -0.5 * LOG2E)}, v{vR}')
    for r in range(16):
        k(f'v_mul_f32 v{AQ + r}, v{vT0}, v{AQ + r}')
    for q in range(8):
        k(f'v_cvt_pk_bf16_f32 v{QF + q}, v{AQ + 2 * q}, v{AQ + 2 * q + 1}')
    k(f"""
    v_mov_b32 v{vT1}, 0x3f80
    v_cndmask_b32 v{QF + 6}, v{QF + 6}, v{vT1}, s[{sHI}:{sHI + 1}]
    v_cndmask_b32 v{QF + 7}, v{QF + 7}, 0, s[{sHI}:{sHI + 1}]
    """)
    ts(k, 'F.q')
    global_check(k)
    ts(k, 'F.chk')
    k.barrier()
    k(f's_cmp_lg_u32 s{sW}, 0')
    k.skip_begin('s_cbranch_scc1')
    k(f"""
    s_lshl_b32 s{T0}, s2, 7
    s_add_u32 s{T0}, s{T0}, {F_PK}
    v_mov_b32 v{vFL}, 1
    s_mov_b64 exec, 1
    buffer_store_dword v{vFL}, v{vZERO}, s[8:11], s{T0} offen sc1
    s_mov_b64 exec, -1
    """)
    k.skip_end()
    k(f's_cmp_eq_u32 s{sFAST}, 0')
    k('s_cbranch_scc1 SLOW_entry')


CSL = 112


def cs13_build():
    c = CSL
    out = [f'v_add_f32 v{c}, v{c}, v{c + 1}', f'v_add_f32 v{c + 2}, v{c + 2}, v{c + 3}', f'v_add_f32 v{c}, v{c}, v{c + 2}']
    out += split3(c, c + 4, c + 5, vT1, vT2)
    out += [f'v_mov_b32 v{c + i}, 0' for i in range(6, 12)]
    out += lines(f"""
    s_lshl_b32 s{sT0}, s{sW}, 10
    s_add_u32 s{sT0}, s{sT0}, {SCR_CS13}
    v_lshlrev_b32 v{vT0}, 4, v{vN}
    v_lshl_add_u32 v{vT0}, v{vHH}, 12, v{vT0}
    v_add_u32 v{vT0}, s{sT0}, v{vT0}
    ds_write_b128 v{vT0}, {v4(c + 4)}
    ds_write_b128 v{vT0}, {v4(c + 8)} offset:512
    s_waitcnt lgkmcnt(0)
    """)
    return out


SCHED = {}


def sched_a(v='a'):
    w2 = pf_w2()
    none = lambda: []
    t012 = lambda: [L0(flat(c[i:i + 4])) for c in (pf_w13(0), pf_w13(1), pf_w13(2)) for i in (0, 4)]
    SCHED.update({
        'PRO': lambda: t_X() + t_O(),
        'P3_pre': none,
        'P3_mm': lambda: [L1(t_H())] + t012(),
        'P3_idle': lambda: ['s_barrier'] + [L1(t_H())] + t012(),
        'P4_pre': none, 'P4_p1': none,
        'P4_mid': lambda: [[L0(g)] for g in w2] + [[L0(touch(2, sSADR))]],
        'G_pre': lambda: t_O(), 'G_q': none,
    })


def body(k, sfx):
    if sfx == '_s':
        k.label('SLOW_entry', pad=False)
        set_layer(k, 0)
    k.label('ATT' + sfx)
    k.lg_done = k.lg_seq
    k.pend = {}
    attention(k)
    phase_P3(k)
    phase_P4(k)
    phase_P5(k, 'MAIN_fin')
    k(f's_mov_b32 s{sL}, 1')
    if TS_ON:
        k(f'v_accvgpr_write_b32 a255, v{vTS}')
        k(f'v_mov_b32 v{vTS}, 0')
    set_layer(k, 1)
    phase_G(k)
    k('s_branch ATT' + sfx)


def gen_main(k, name):
    global MODE
    kstart(k, name)
    k.ignore.add(('v', vDUM))
    end = 'MAIN_end'
    MODE = 'fast'
    setup(k, end)
    ts(k, 'start')
    front(k)
    body(k, '_f')
    k.label('MAIN_fin', pad=False)
    rowmajor_addr(k)
    k(f"""
    buffer_store_dwordx4 {v4(SK_XO)}, v{vT0}, s[12:15], s{sT0} offen
    buffer_store_dwordx4 {v4(SK_XO + 4)}, v{vT0}, s[12:15], s{sT0} offen offset:32
    """)
    ts(k, 'P5.pub')
    k.label('MAIN_tail', pad=False)
    if TS_ON:
        k(f"""
        v_writelane_b32 v{vTS}, s{sFAST}, 63
        s_lshl_b32 s{sT0}, s2, 2
        s_add_u32 s{sT0}, s{sT0}, s{sW}
        s_lshl_b32 s{sT0}, s{sT0}, 9
        s_add_u32 s{sT0}, s{sT0}, {TS}
        v_lshlrev_b32 v{vT0}, 2, v{vLANE}
        buffer_store_dword a255, v{vT0}, s[8:11], s{sT0} offen
        buffer_store_dword v{vTS}, v{vT0}, s[8:11], s{sT0} offen offset:256
        """)
    k.drained()
    k.label(end, pad=False)
    k('s_endpgm')
    MODE = 'slow'
    k.drained()
    body(k, '_s')


HEADER = """; Persistent single-launch implementation (generated by a Python script written for this task).
"""


def main():
    global TS_ON, FORCE_SLOW, FORCE_FALLBACK
    TS_ON = '-ts' in sys.argv
    FORCE_SLOW = '-slow' in sys.argv
    FORCE_FALLBACK = '-fb' in sys.argv
    global WARM
    WARM = '-nowarm' not in sys.argv
    global DUTYPOS
    DUTYPOS = int([a[2:] for a in sys.argv if a.startswith('-d')][0]) if any(a.startswith('-d') for a in sys.argv) else 2
    sched_a()
    k = K()
    final = '-final' in sys.argv
    kn = 'interleave_layers__sliding_block__glu_gated_swiglu__prompt_kernel' if final else 'main_kernel'
    gen_main(k, kn)
    if final:
        head = HEADER + f'; @launch grid=(256,1,1) block=(256,1,1) lds={LDS_BYTES}\n'
    else:
        head = f'; @launch kernel=main_kernel grid=(256,1,1) block=(256,1,1) lds={LDS_BYTES}\n'
    head += '.amdgcn_target "amdgcn-amd-amdhsa--gfx950"\n.text\n'
    open(sys.argv[1], 'w').write(head + k.text() + kd(kn, 512, 102, 256))
    print('nops inserted', k.nops_inserted, 'lines', len(k.lines))
    if TS_ON:
        open(sys.argv[1] + '.names', 'w').write('\n'.join(_ts_names))


if __name__ == '__main__':
    main()
```

```python
import sys, math, struct
from dsl import *
from layout import *

ONES_BF16 = 0x3F803F80
LOG2E = 1.4426950408889634
MF = 'v_mfma_f32_32x32x16_bf16'
SLOT = 28672
KVB = 3 * SLOT
SCR = 5 * SLOT
SCR_CS13 = SCR + 1024
SCR_CSQ = SCR + 9216
LDS_BYTES = 163840
SPIN_MAX = 400000

F_XIN = FLAGS
F_O = FLAGS + 64 * 128
F_X1 = FLAGS + 2 * 64 * 128
F_H = FLAGS + 3 * 64 * 128
F_KV = FLAGS + 4 * 64 * 128
FLAG_BYTES = 4 * 64 * 128 + 16 * 256


def f32bits(x):
    return struct.unpack('<I', struct.pack('<f', x))[0]


def kd(name, vg=256, sg=102, acc=256):
    return f'''.section .rodata,"a"
.p2align 6
.amdhsa_kernel {name}
  .amdhsa_next_free_vgpr {vg}
  .amdhsa_next_free_sgpr {sg}
  .amdhsa_accum_offset {acc}
  .amdhsa_group_segment_fixed_size 0
  .amdhsa_kernarg_size 80
  .amdhsa_user_sgpr_count 2
  .amdhsa_user_sgpr_kernarg_segment_ptr 1
  .amdhsa_system_sgpr_workgroup_id_x 1
.end_amdhsa_kernel
.text
'''


def kstart(k, name):
    k.raw(f'.globl {name}')
    k.raw('.p2align 8')
    k.raw(f'.type {name},@function')
    k.raw(f'{name}:')
    k.hist = []
    k.drained()


def lines(s):
    out = []
    for l in s.strip().split('\n'):
        l = l.split(';')[0].strip()
        if l:
            out.append(l)
    return out


def slots(text):
    if not isinstance(text, str):
        if text[0] == 'seq':
            return min(5, sum(slots(x) for x in text[1]))
        return 4 if text[0] == 'call' else 3
    op = text.split()[0]
    base = op.replace('_e64', '').replace('_e32', '')
    if base in TRANS:
        return 2
    if op.startswith('ds_write_b128') or op.startswith('buffer_store'):
        return 2
    return 1


class Ctx:
    sL = None


def emit_item(k, f):
    if isinstance(f, str):
        k(f)
        return
    if f[0] == 'call':
        f[1](k)
        return
    if f[0] == 'seq':
        for x in f[1]:
            emit_item(k, x)
        return
    assert f[0] == 'L0'
    k(f's_cmp_lg_u32 s{Ctx.sL}, 0')
    k.skip_begin('s_cbranch_scc1')
    for x in f[1]:
        k(x)
    k.skip_end()


def emit(k, ls):
    for l in ls:
        emit_item(k, l)


def weave(k, mfmas, fillers=(), free=6, pairwait=True):
    q = list(fillers)
    n = len(mfmas)

    def pre_cost(i):
        if i >= n:
            return 0
        M = mfmas[i]
        c = sum(slots(p) for p in M.get('pre', [])) + M.get('w', 0)
        if M.get('need') and (not pairwait or i % 2 == 0):
            c += 1
        return c
    for i, M in enumerate(mfmas):
        while any(d is not None and d <= i for (_, d, _) in q):
            emit_item(k, q.pop(0)[2])
        for p in M.get('pre', []):
            emit_item(k, p)
        if pairwait and i % 2 == 0 and i + 1 < n:
            for tok in mfmas[i + 1].get('need', []):
                k.wait_reg(tok)
        k(M['m'])
        used = pre_cost(i + 1)
        while q and q[0][0] <= i and used + slots(q[0][2]) <= free:
            it = q.pop(0)[2]
            p0 = k.pos
            emit_item(k, it)
            used += max(slots(it), k.pos - p0)
    return q


def F(items, earliest=0, deadline=None):
    return [(earliest, deadline, it) for it in items]


def flush(k, q):
    for (_, _, it) in q:
        emit_item(k, it)


def stats_ops(pk, n, s1, s2, ones):
    out = []
    for q in range(n):
        out.append(f'v_dot2_f32_bf16 v{s1}, v{pk + q}, v{ones}, v{s1}')
        out.append(f'v_dot2_f32_bf16 v{s2}, v{pk + q}, v{pk + q}, v{s2}')
    return out


def ln_math(a, b, t0, t1, vM, vR):
    return lines(f"""
    v_mov_b32 v{t0}, v{a}
    v_mov_b32 v{t1}, v{b}
    v_permlane32_swap_b32 v{a}, v{t0}
    v_permlane32_swap_b32 v{b}, v{t1}
    v_add_f32 v{a}, v{a}, v{t0}
    v_add_f32 v{b}, v{b}, v{t1}
    v_mul_f32 v{a}, {f32bits(-1.0 / 448)}, v{a}
    v_mul_f32 v{b}, {f32bits(1.0 / 448)}, v{b}
    v_fma_f32 v{b}, -v{a}, v{a}, v{b}
    v_max_f32 v{b}, 0, v{b}
    v_cvt_pk_bf16_f32 v{vM}, v{a}, v{a}
    v_cvt_pk_bf16_f32 v{t1}, v{b}, v{b}
    v_and_b32 v{t1}, 0xffff0000, v{t1}
    v_add_f32 v{t1}, {f32bits(1e-5)}, v{t1}
    v_cvt_pk_bf16_f32 v{t1}, v{t1}, v{t1}
    v_and_b32 v{t1}, 0xffff0000, v{t1}
    v_sqrt_f32 v{t1}, v{t1}
    v_cvt_pk_bf16_f32 v{t1}, v{t1}, v{t1}
    v_and_b32 v{t1}, 0xffff0000, v{t1}
    v_rcp_f32 v{vR}, v{t1}
    """)


def split3(src, d0, d1, t0, t1):
    return lines(f"""
    v_cvt_pk_bf16_f32 v{t0}, v{src}, v{src}
    v_and_b32 v{t0}, 0xffff0000, v{t0}
    v_sub_f32 v{src}, v{src}, v{t0}
    v_cvt_pk_bf16_f32 v{t1}, v{src}, v{src}
    v_and_b32 v{t1}, 0xffff0000, v{t1}
    v_sub_f32 v{src}, v{src}, v{t1}
    v_lshrrev_b32 v{t0}, 16, v{t0}
    v_or_b32 v{d0}, v{t0}, v{t1}
    v_cvt_pk_bf16_f32 v{d1}, v{src}, 0
    """)
```

```python
from common5 import *

sW, sRB, sIDX, sTT, sL = 3, 4, 5, 6, 7
sP2 = 24
sBW13, sLW, sBWQ, sLWQ, sBW2, sBWO = 25, 26, 27, 28, 29, 31
sTW13, sTWQ, sTW2, sTWO = 33, 34, 35, 36
sKV, sOF, sX1, sST1, sHF, sX2, sST2 = 37, 38, 39, 40, 41, 42, 43
sL1, sFAST, sACT, sSPIN = 44, 45, 46, 47
sT0, sT1, sT2, sT3, sT4, sT5 = 48, 49, 50, 51, 52, 53
sFT, sTT3, sFTo, sTTo = 54, 55, 56, 57
sTS = 58
sE, sHOFF, sCNT, sDM = 60, 61, 62, 63
sMASK = 64
sHI, sN28 = 96, 98
sOADR, sXADR = 100, 101
sSADR, sDS = 1, 0
Ctx.sL = sL
vDUM = 0
vL16, vLANE, vN, vHH, vSTO, vSTI, vL16b, vONES = 1, 2, 3, 4, 5, 6, 7, 8
vF14, vFH, vZERO, vKVA, vTS, vL2S, vL4S, vSCR = 9, 10, 11, 12, 13, 14, 15, 16
vKE, vFL, vTA, vM, vR, vT0, vT1, vT2, vT3, vNEG, vMX, vAD = 17, 18, 19, 20, 21, 22, 23, 24, 25, 26, 27, 28
MB = 28

TS_ON = False
FORCE_SLOW = False
FORCE_FALLBACK = False
_ts_names = []
XDEPTH = 10
WARM = True
PROPOS = 2
GNQ1 = 6
LAYER = None
DUTYPOS = 0
F_PK = FLAGS + 65536
MODE = 'fast'


def ts(k, name):
    if not TS_ON:
        return
    if name in _ts_names:
        i = _ts_names.index(name)
    else:
        i = len(_ts_names)
        _ts_names.append(name)
    assert i < 62
    k(f's_memrealtime s[{sTS}:{sTS + 1}]')
    k(f'v_writelane_b32 v{vTS}, s{sTS}, {i}')


def wait_flags(k, voff, soff, sexp):
    Lp, Ld = k.newlabel('poll'), k.newlabel('polled')
    k(f's_mov_b32 s{sSPIN}, 0')
    k.label(Lp, pad=False)
    k(f"""
    buffer_load_dword v{vFL}, v{voff}, s[8:11], s{soff} offen sc1
    s_add_u32 s{sSPIN}, s{sSPIN}, 1
    s_cmp_gt_u32 s{sSPIN}, {SPIN_MAX}
    s_cbranch_scc1 {Ld}
    s_waitcnt vmcnt(0)
    v_cmp_gt_u32 vcc, {sexp}, v{vFL}
    s_nop 1
    s_cbranch_vccnz {Lp}
    """)
    k.label(Ld, pad=False)
    k('s_waitcnt vmcnt(0)')


def publish(k, stores):
    for s_ in stores:
        k(s_ + ('' if MODE == 'fast' else ' sc1'))


def set_flag(k, soff, val, always_sc1=False, h=None):
    k(f'v_mov_b32 v{vFL}, {val}')
    if h is None:
        k('s_waitcnt vmcnt(0)')
    else:
        k.wait_vm(h)
    pol = ' sc1' if (always_sc1 or MODE != 'fast') else ''
    k('s_mov_b64 exec, 1')
    k(f'buffer_store_dword v{vFL}, v{vZERO}, s[8:11], s{soff} offen{pol}')
    k('s_mov_b64 exec, -1')


def dma_chunks(n, ssrc, src_off, slds, lds_off):
    out = []
    for i in range(n):
        c = []
        if i % 4 == 0:
            c += [f's_add_u32 m0, s{slds}, {lds_off + i * 1024}', f's_add_u32 s{sP2}, s{ssrc}, {src_off + i * 1024}']
        c.append(f'buffer_load_dwordx4 v{vL16}, s[8:11], s{sP2} offen offset:{(i % 4) * 1024} lds')
        out.append(c)
    return out


def load_chunks(dsts, ssrc, tmp, src_off=0, pol=''):
    out = []
    for i, d in enumerate(dsts):
        c = []
        if i % 4 == 0:
            c.append(f's_add_u32 s{tmp}, s{ssrc}, {src_off + i * 1024}')
        c.append(f'buffer_load_dwordx4 {d}, v{vL16}, s[8:11], s{tmp} offen offset:{(i % 4) * 1024}{pol}')
        out.append(c)
    return out


def touch(n, sbase, off=0):
    return [f'v_min_u32 v{vTA}, {n - 1}, v{vLANE}',
            f'v_lshlrev_b32 v{vTA}, 7, v{vTA}',
            f's_add_u32 s{sDS}, s{sbase}, {off}',
            f'buffer_load_dword v{vDUM}, v{vTA}, s[8:11], s{sDS} offen sc1']


def flat(chs):
    return [x for c in chs for x in c]


W13_SLOT = [0, 1, 2, 3, 4, 0, 1]


def pf_wqkv():
    return dma_chunks(21, sBWQ, 0, sLWQ, 0)


def pf_w13(i):
    return dma_chunks(7, sBW13, i * SLOT, sLW, W13_SLOT[i] * SLOT)


def pf_w2():
    ch = (load_chunks([a4(4 * i) for i in range(28)], sBW2, sDM) +
          load_chunks([a4(112 + 4 * i) for i in range(28)], sBW2 + 1, sDM))
    return [flat(ch[i:i + 4]) for i in range(0, 56, 4)]


def t_w13(i):
    return touch(28, sTW13, i * SLOT)


def t_wqkv():
    return touch(64, sTWQ, 0) + touch(20, sTWQ, 8192)


def t_w2():
    return touch(64, sTW2, 0) + touch(34, sTW2, 8192)


def t_wo():
    return touch(28, sTWO, 0)


def t_O():
    return touch(16, sOADR)


def t_X():
    return touch(16, sXADR) + touch(2, sSADR)


def t_H():
    return touch(56, sHOFF)


def idle_q():
    return lines(f"""
    s_and_b32 s{sT5}, s{sRB}, 1
    s_lshl_b32 s{sT5}, s{sT5}, 1
    s_add_u32 s{sT5}, s{sT5}, s{sIDX}
    s_sub_u32 s{sT5}, s{sT5}, 14
    s_lshl_b32 s{sT5}, s{sT5}, 2
    s_add_u32 s{sT5}, s{sT5}, s{sW}
    v_lshlrev_b32 v{vTA}, 7, v{vLANE}
    """)


def idle_touch(base, per_wave, n, first=0):
    out = [f's_mul_i32 s{sT4}, s{sT5}, {per_wave}', f's_add_u32 s{sT4}, s{sT4}, {base + first * 8192}']
    for i in range(n):
        out += [f'buffer_load_dword v{vDUM}, v{vTA}, s[8:11], s{sT4} offen',
                f's_add_u32 s{sT4}, s{sT4}, 8192']
    return out


def L0(ls):
    if LAYER is not None:
        return ('seq', list(ls) if LAYER == 0 else [])
    return ('L0', list(ls))


def L1(ls):
    if LAYER is not None:
        return ('seq', list(ls) if LAYER == 1 else [])

    def fn(k):
        k(f's_cmp_eq_u32 s{sL}, 0')
        k.skip_begin('s_cbranch_scc1')
        for x in ls:
            k(x)
        k.skip_end()
    return ('call', fn)


def res_addr(k, dst, base):
    k(f"""
    s_mul_i32 s{dst}, s{sTT3}, 28
    s_lshl_b32 s{sT1}, s{sFT}, 1
    s_add_u32 s{dst}, s{dst}, s{sT1}
    s_lshl_b32 s{dst}, s{dst}, 10
    s_add_u32 s{dst}, s{dst}, {base}
    """)


def st_addr(k, dst, base):
    k(f"""
    s_mul_i32 s{dst}, s{sTT3}, 14
    s_add_u32 s{dst}, s{dst}, s{sFT}
    s_lshl_b32 s{dst}, s{dst}, 8
    s_add_u32 s{dst}, s{dst}, {base}
    """)


def setup(k, end_label):
    k('s_cmp_ge_u32 s2, 256')
    k(f's_cbranch_scc1 {end_label}')
    k(f"""
    s_load_dwordx16 s[72:87], s[0:1], 0
    s_load_dwordx2 s[16:17], s[0:1], 64
    s_load_dwordx2 s[8:9], s[0:1], 72
    v_lshrrev_b32 v{vT0}, 6, v0
    v_and_b32 v{vLANE}, 63, v0
    v_readfirstlane_b32 s{sW}, v{vT0}
    v_lshlrev_b32 v{vL16}, 4, v{vLANE}
    v_and_b32 v{vN}, 31, v{vLANE}
    v_lshrrev_b32 v{vHH}, 5, v{vLANE}
    s_and_b32 s{sT0}, s2, 7
    s_lshr_b32 s{sT1}, s2, 3
    s_lshr_b32 s{sT2}, s{sT1}, 4
    s_lshl_b32 s{sRB}, s{sT0}, 1
    s_add_u32 s{sRB}, s{sRB}, s{sT2}
    s_and_b32 s{sIDX}, s{sT1}, 15
    s_lshl_b32 s{sTT}, s{sRB}, 2
    s_add_u32 s{sTT}, s{sTT}, s{sW}
    s_mov_b32 s10, {WS_BYTES}
    s_mov_b32 s11, 0x00020000
    s_mov_b32 s14, {S * D * 2}
    s_mov_b32 s15, 0x00020000
    s_mov_b32 s18, 256
    s_mov_b32 s19, 0x00020000
    s_mov_b32 s22, {S * D * 2}
    s_mov_b32 s23, 0x00020000
    s_mov_b32 s{sL}, 0
    s_mov_b32 s{sHI}, 0
    s_mov_b32 s{sHI + 1}, -1
    s_lshl_b32 s{sT1}, s{sW}, 12
    s_add_u32 s{sT1}, s{sT1}, {KVB}
    v_add_u32 v{vKVA}, s{sT1}, v{vL16}
    v_mov_b32 v{vZERO}, 0
    v_mov_b32 v{vTS}, 0
    v_mov_b32 v{vONES}, {ONES_BF16}
    v_cmp_eq_u32 s[{sN28}:{sN28 + 1}], 28, v{vN}
    s_cmp_ge_u32 s{sIDX}, 7
    s_cselect_b32 s{sT0}, 1, 0
    s_mul_i32 s{sT1}, s{sT0}, 7
    s_sub_u32 s{sT1}, s{sIDX}, s{sT1}
    s_cmp_lt_u32 s{sIDX}, 14
    s_cselect_b32 s{sACT}, 1, 0
    s_cselect_b32 s{sT1}, s{sT1}, 0
    s_lshl_b32 s{sFT}, s{sT1}, 1
    s_and_b32 s{sT2}, s{sW}, 1
    s_add_u32 s{sFT}, s{sFT}, s{sT2}
    s_xor_b32 s{sFTo}, s{sFT}, 1
    s_lshl_b32 s{sTT3}, s{sRB}, 2
    s_lshl_b32 s{sT0}, s{sT0}, 1
    s_add_u32 s{sTT3}, s{sTT3}, s{sT0}
    s_lshr_b32 s{sT2}, s{sW}, 1
    s_add_u32 s{sTT3}, s{sTT3}, s{sT2}
    s_xor_b32 s{sTTo}, s{sTT3}, 1
    s_mul_i32 s{sLW}, s{sW}, 7168
    s_waitcnt lgkmcnt(0)
    s_mov_b32 s20, s72
    s_mov_b32 s21, s73
    s_mov_b32 s12, s86
    s_mov_b32 s13, s87
    """)


def setup2_salu():
    return lines(f"""
    s_mov_b32 s{sFAST}, 0
    s_mul_i32 s{sBW13}, s{sIDX}, {7 * SLOT}
    s_add_u32 s{sBW13}, s{sBW13}, {W13_P}
    s_add_u32 s{sBW13}, s{sBW13}, s{sLW}
    s_mul_i32 s{sLWQ}, s{sW}, {21 * 1024}
    s_mul_i32 s{sBWQ}, s{sIDX}, {84 * 1024}
    s_add_u32 s{sBWQ}, s{sBWQ}, {WQKV_P}
    s_add_u32 s{sBWQ}, s{sBWQ}, s{sLWQ}
    s_mul_i32 s{sP2}, s{sW}, {28 * 1024}
    s_add_u32 s{sP2}, s{sP2}, {W2_P}
    s_mul_i32 s{sBW2}, s{sFT}, {112 * 1024}
    s_add_u32 s{sBW2}, s{sBW2}, s{sP2}
    s_mul_i32 s{sBW2 + 1}, s{sFTo}, {112 * 1024}
    s_add_u32 s{sBW2 + 1}, s{sBW2 + 1}, s{sP2}
    s_lshl_b32 s{sP2}, s{sW}, 13
    s_add_u32 s{sP2}, s{sP2}, {WO_P}
    s_lshl_b32 s{sBWO}, s{sFT}, 15
    s_add_u32 s{sBWO}, s{sBWO}, s{sP2}
    s_lshl_b32 s{sBWO + 1}, s{sFTo}, 15
    s_add_u32 s{sBWO + 1}, s{sBWO + 1}, s{sP2}
    """)


def setup2_valu():
    out = lines(f"""
    v_lshlrev_b32 v{vSTO}, 3, v{vN}
    v_mul_u32_u24 v{vSTI}, 1792, v{vHH}
    v_add_u32 v{vSTI}, v{vSTI}, v{vSTO}
    v_lshl_or_b32 v{vSTO}, v{vHH}, 2, v{vSTO}
    v_add_u32 v{vL16b}, {2 * SLOT}, v{vL16}
    v_min_u32 v{vF14}, 13, v{vLANE}
    v_lshlrev_b32 v{vF14}, 2, v{vF14}
    v_add_u32 v{vL2S}, {2 * SLOT}, v{vL16}
    v_add_u32 v{vL4S}, {4 * SLOT}, v{vL16}
    v_add_u32 v{vSCR}, {SCR}, v{vL16}
    v_mov_b32 v{vNEG}, {f32bits(-1e30)}
    v_and_b32 v{vFH}, 3, v{vLANE}
    v_lshlrev_b32 v{vFH}, 2, v{vFH}
    v_bfe_u32 v{vT0}, v{vLANE}, 2, 1
    v_lshl_or_b32 v{vFH}, v{vT0}, 7, v{vFH}
    s_lshl_b32 s{sT1}, s{sW}, 4
    v_add_u32 v{vFH}, s{sT1}, v{vFH}
    v_lshlrev_b32 v{vT0}, 2, v{vHH}
    v_sub_u32 v{vT0}, v{vN}, v{vT0}
    """)
    for r in range(16):
        c = 8 * (r >> 2) + (r & 3)
        out.append(f'v_cmp_ge_i32 s[{sMASK + 2 * r}:{sMASK + 2 * r + 1}], v{vT0}, {c}')
    return out


def signal(k):
    k(f"""
    s_getreg_b32 s{sE}, hwreg(HW_REG_XCC_ID, 0, 4)
    s_mul_i32 s{sCNT}, s{sE}, s{sE}
    s_lshl_b32 s{sCNT}, s{sCNT}, 16
    s_lshl_b32 s{sE}, s{sE}, 8
    s_or_b32 s{sE}, s{sE}, s{sCNT}
    s_or_b32 s{sE}, s{sE}, 1
    v_mov_b32 v{vFL}, s{sE}
    s_lshl_b32 s{sCNT}, s{sRB}, 4
    s_cmp_eq_u32 s{sW}, 0
    s_cselect_b32 s{sCNT}, s{sCNT}, 4096
    s_mov_b64 exec, 1
    buffer_atomic_add v{vFL}, v{vZERO}, s[16:19], s{sCNT} offen sc1
    s_mov_b64 exec, -1
    """)


def global_check(k, pre=False):
    Lp, Ld, Lg = k.newlabel('gpoll'), k.newlabel('gdone'), k.newlabel('ggood')
    k(f"""
    v_and_b32 v{vT1}, 15, v{vLANE}
    v_lshlrev_b32 v{vT1}, 4, v{vT1}
    s_mov_b32 s{sSPIN}, 0
    """)
    if pre:
        k(f"""
        v_and_b32 v{vT0}, 0xff, v{vFL}
        v_cmp_ne_u32 vcc, 16, v{vT0}
        s_nop 1
        s_cbranch_vccz {Lg}
        """)
    k.label(Lp, pad=False)
    k(f"""
    buffer_load_dword v{vFL}, v{vT1}, s[16:19], 0 offen sc1
    s_add_u32 s{sSPIN}, s{sSPIN}, 1
    s_cmp_gt_u32 s{sSPIN}, {SPIN_MAX}
    s_cbranch_scc1 {Ld}
    s_waitcnt vmcnt(0)
    v_and_b32 v{vT0}, 0xff, v{vFL}
    v_cmp_ne_u32 vcc, 16, v{vT0}
    s_nop 1
    s_cbranch_vccz {Lg}
    s_sleep 24
    s_branch {Lp}
    """)
    k.label(Lg, pad=False)
    k(f"""
    s_getreg_b32 s{sT0}, hwreg(HW_REG_XCC_ID, 0, 4)
    s_mul_i32 s{sT1}, s{sT0}, s{sT0}
    s_lshl_b32 s{sT1}, s{sT1}, 20
    s_lshl_b32 s{sT0}, s{sT0}, 12
    s_or_b32 s{sT0}, s{sT0}, s{sT1}
    s_or_b32 s{sT0}, s{sT0}, 16
    v_readlane_b32 s{sT1}, v{vFL}, s{sRB}
    s_nop 3
    s_cmp_eq_u32 s{sT0}, s{sT1}
    s_cselect_b32 s{sFAST}, {0 if FORCE_SLOW else 1}, 0
    """)
    k.label(Ld, pad=False)
    k('s_waitcnt vmcnt(0)')


def set_layer(k, l):
    fast = MODE == 'fast'
    k(f"""
    s_mov_b32 s{sL1}, {l + 1}
    s_mov_b32 s{sX1}, {XF[1] if fast else XF[2 * l + 1]}
    s_mov_b32 s{sX2}, {XF[1] if fast else XF[2]}
    s_mov_b32 s{sST1}, {ST[1] if fast else ST[2 * l + 1]}
    s_mov_b32 s{sST2}, {ST[2]}
    s_mov_b32 s{sKV}, {KV[l]}
    s_mov_b32 s{sOF}, {OF[0] if fast else OF[l]}
    s_mov_b32 s{sHF}, {HF[0] if fast else HF[l]}
    s_lshl_b32 s{sOADR}, s{sIDX}, 6
    s_add_u32 s{sOADR}, s{sOADR}, s{sTT}
    s_lshl_b32 s{sOADR}, s{sOADR}, 11
    s_add_u32 s{sOADR}, s{sOADR}, s{sOF}
    s_mul_i32 s{sHOFF}, s{sTT}, 112
    s_mul_i32 s{sT5}, s{sIDX}, 7
    s_add_u32 s{sHOFF}, s{sHOFF}, s{sT5}
    s_lshl_b32 s{sHOFF}, s{sHOFF}, 10
    s_add_u32 s{sHOFF}, s{sHOFF}, s{sHF}
    """)
    res_addr(k, sXADR, f's{sX1}')
    st_addr(k, sSADR, f's{sST1}')


def stats_loads(sbase, stt, dst):
    out = [f's_mul_i32 s{sT0}, s{stt}, {14 * 256}', f's_add_u32 s{sT0}, s{sT0}, s{sbase}']
    out += [f'buffer_load_dwordx2 {v2(dst + 2 * i)}, v{vSTI}, s[8:11], s{sT0} offen offset:{256 * i} sc1' for i in range(7)]
    return out


def stats_math(src):
    out = []
    for i in range(1, 7):
        out.append(f'v_add_f32 v{src}, v{src}, v{src + 2 * i}')
        out.append(f'v_add_f32 v{src + 1}, v{src + 1}, v{src + 2 * i + 1}')
    return out + ln_math(src, src + 1, vT0, vT1, vM, vR)


def mb_fill():
    return [f'v_mov_b32 v{MB + i}, v{vM}' for i in range(4)]


def halo(k, poll):
    k(f"""
    s_lshl_b32 s{sT2}, s{sRB}, 2
    s_lshl_b32 s{sT3}, s{sW}, 1
    s_add_u32 s{sT2}, s{sT2}, s{sT3}
    s_sub_i32 s{sT2}, s{sT2}, 8
    s_lshl_b32 s{sT5}, s{sW}, 13
    s_add_u32 s{sT5}, s{sT5}, {KVB}
    s_cmp_lt_i32 s{sT2}, 0
    """)
    Lfill, Ljoin = k.newlabel('A_fill'), k.newlabel('A_join')
    k(f's_cbranch_scc1 {Lfill}')
    st = (k.vm_seq, k.vm_done, k.lg_seq, k.lg_done, dict(k.pend))
    k(f"""
    s_lshl_b32 s{sT0}, s{sIDX}, 6
    s_add_u32 s{sT0}, s{sT0}, s{sT2}
    s_lshl_b32 s{sT4}, s{sT0}, 2
    s_add_u32 s{sT4}, s{sT4}, {F_KV}
    s_lshl_b32 s{sE}, s{sT0}, 12
    s_add_u32 s{sE}, s{sE}, s{sKV}
    """)
    if poll:
        k(f'v_and_b32 v{vT0}, 1, v{vLANE}')
        k(f'v_lshlrev_b32 v{vT0}, 2, v{vT0}')
        wait_flags(k, vT0, sT4, f's{sL1}')
    emit(k, flat(dma_chunks(8, sE, 0, sT5, 0)))
    k(f's_branch {Ljoin}')
    k.label(Lfill, pad=False)
    z = 248
    k(f"""
    v_mov_b32 v{z}, 0
    v_mov_b32 v{z + 1}, 0
    v_mov_b32 v{z + 2}, 0
    v_mov_b32 v{z + 3}, 0
    v_mov_b32 v{z + 4}, 0
    v_mov_b32 v{z + 5}, 0
    v_mov_b32 v{z + 7}, 0
    v_mov_b32 v{vT1}, 0xf14a
    v_cndmask_b32 v{z + 6}, 0, v{vT1}, s[{sHI}:{sHI + 1}]
    v_add_u32 v{vT0}, s{sT5}, v{vL16}
    """)
    for t in range(2):
        k(f'ds_write_b128 v{vT0}, {v4(z)} offset:{4096 * t}')
        k(f'ds_write_b128 v{vT0}, {v4(z + 4)} offset:{4096 * t + 1024}')
        k(f'ds_write_b128 v{vT0}, {v4(z)} offset:{4096 * t + 2048}')
        k(f'ds_write_b128 v{vT0}, {v4(z)} offset:{4096 * t + 3072}')
    k('s_waitcnt lgkmcnt(0)')
    k.label(Ljoin, pad=False)
    k.vm_seq, k.vm_done, k.lg_seq, k.lg_done, k.pend = st[0], st[1], st[2], st[3], dict(st[4])


QF, KF, VF = 232, 216, 224
WO_R = 128
SA, PA, OA, NM, KB, VB, OS = 32, 48, 64, 80, 96, 104, 112


def att_tile_body(k, last, mem):
    k(f'{MF} {v16(SA)}, {v4(KB)}, {v4(QF)}, {v16(NM)}')
    k(f'{MF} {v16(SA)}, {v4(KB + 4)}, {v4(QF + 4)}, {v16(SA)}')
    k(f'{MF} {v16(OA)}, {v4(VB)}, {v4(PA)}, {v16(OA)}')
    k(f'{MF} {v16(OA)}, {v4(VB + 4)}, {v4(PA + 4)}, {v16(OA)}')
    k(f'ds_read_b128 {v4(VB)}, v{vAD} offset:2048')
    k(f'ds_read_b128 {v4(VB + 4)}, v{vAD} offset:3072')
    k(f'v_subrev_u32 v{vAD}, 4096, v{vAD}')
    if not last:
        k(f'ds_read_b128 {v4(KB)}, v{vAD}')
        k(f'ds_read_b128 {v4(KB + 4)}, v{vAD} offset:1024')
    emit(k, mem)
    if last:
        for r in range(16):
            k(f'v_cndmask_b32 v{SA + r}, v{SA + r}, v{vNEG}, s[{sMASK + 2 * r}:{sMASK + 2 * r + 1}]')
    for q in range(8):
        k(f'v_exp_f32 v{SA + 2 * q}, v{SA + 2 * q}')
        k(f'v_exp_f32 v{SA + 2 * q + 1}, v{SA + 2 * q + 1}')
        if q:
            k(f'v_cvt_pk_bf16_f32 v{PA + q - 1}, v{SA + 2 * q - 2}, v{SA + 2 * q - 1}')
    k(f'v_cvt_pk_bf16_f32 v{PA + 7}, v{SA + 14}, v{SA + 15}')


def loop_dma():
    out = []
    for i in range(3):
        out += [f's_add_u32 m0, s{sDM}, {W13_SLOT[i] * SLOT}',
                f's_add_u32 s{sP2}, s{sDS}, {i * SLOT}',
                f'buffer_load_dwordx4 v{vL16}, s[8:11], s{sP2} offen lds']
    out += [f's_add_u32 s{sDM}, s{sDM}, 1024', f's_add_u32 s{sDS}, s{sDS}, 1024']
    return out


def loop_dma0():
    out = [f's_min_u32 m0, s{sDM}, {80 * 1024}', f's_add_u32 s{sP2}, s{sDS}, m0']
    out += [f'buffer_load_dwordx4 v{vL16}, s[8:11], s{sP2} offen offset:{i * 1024} lds' for i in range(4)]
    out.append(f's_add_u32 s{sDM}, s{sDM}, 4096')
    return out


def attention(k):
    ts(k, 'ATT.start')
    k(f'{MF} {v16(SA)}, {v4(KF)}, {v4(QF)}, 0')
    k(f'{MF} {v16(SA)}, {v4(KF + 4)}, {v4(QF + 4)}, {v16(SA)}')
    k(f"""
    v_add_u32 v{vAD}, {7 * 4096}, v{vKVA}
    ds_read_b128 {v4(KB)}, v{vAD}
    ds_read_b128 {v4(KB + 4)}, v{vAD} offset:1024
    s_mul_i32 s{sT0}, s{sW}, s{sW}
    s_mul_i32 s{sDM}, s{sW}, 30
    s_lshl_b32 s{sT0}, s{sT0}, 1
    s_sub_u32 s{sDM}, s{sDM}, s{sT0}
    s_lshl_b32 s{sDM}, s{sDM}, 10
    s_sub_u32 s{sDS}, s{sBW13}, s{sLW}
    """)
    wo = load_chunks([v4(WO_R + 4 * i) for i in range(8)], sBWO, sT2) + load_chunks([v4(WO_R + 32 + 4 * i) for i in range(8)], sBWO + 1, sT2)
    for q in range(8):
        k(f'v_mov_b32 v{VB + q}, v{VF + q}')
    for r in range(16):
        k(f'v_mov_b32 v{OA + r}, 0')
    for r in range(16):
        k(f'v_cndmask_b32 v{SA + r}, v{vNEG}, v{SA + r}, s[{sMASK + 2 * r}:{sMASK + 2 * r + 1}]')
    k(f'v_max_f32 v{vMX}, v{SA}, v{SA + 1}')
    for r in range(2, 16, 2):
        k(f'v_max3_f32 v{vMX}, v{SA + r}, v{SA + r + 1}, v{vMX}')
    k(f"""
    v_mov_b32 v{vT1}, v{vMX}
    v_permlane32_swap_b32 v{vMX}, v{vT1}
    v_max_f32 v{vMX}, v{vMX}, v{vT1}
    """)
    for r in range(16):
        k(f'v_sub_f32 v{SA + r}, v{SA + r}, v{vMX}')
    for r in range(16):
        k(f'v_sub_f32 v{NM + r}, 0, v{vMX}')
    for r in range(16):
        k(f'v_exp_f32 v{SA + r}, v{SA + r}')
        if r % 4 == 3:
            emit_item(k, L1(flat(wo[r - 3:r + 1])))
    for r in parse_reg(f'v[{WO_R}:{WO_R + 63}]'):
        k.pend.pop(r, None)
    for q in range(8):
        k(f'v_cvt_pk_bf16_f32 v{PA + q}, v{SA + 2 * q}, v{SA + 2 * q + 1}')
    ts(k, 'ATT.diag')
    halo(k, True)
    LA, LAe, LB = k.newlabel('att1'), k.newlabel('att1e'), k.newlabel('att2')
    k(f's_mov_b32 s{sCNT}, s{sW}')
    k('s_waitcnt lgkmcnt(0)')
    k(f's_cmp_eq_u32 s{sCNT}, 0')
    k(f's_cbranch_scc1 {LAe}')
    k.label(LA, pad=False)
    k('s_nop 1')
    st = k.vm_seq
    att_tile_body(k, False, [])
    k.vm_seq = st
    k(f"""
    s_sub_u32 s{sCNT}, s{sCNT}, 1
    s_cmp_lg_u32 s{sCNT}, 0
    s_waitcnt lgkmcnt(0)
    s_cbranch_scc1 {LA}
    """)
    k.label(LAe, pad=False)
    ts(k, 'ATT.st1')
    Lw = k.newlabel('wready')
    if LAYER is None:
        k(f's_cmp_lg_u32 s{sL}, 0')
        k(f's_cbranch_scc1 {Lw}')
    elif LAYER == 1:
        k(f's_branch {Lw}')
    st = (k.vm_seq, k.vm_done, dict(k.pend))
    k(f"""
    s_mul_i32 s{sT0}, s{sIDX}, 7
    s_add_u32 s{sT1}, s{sT0}, 6
    s_and_b32 s{sT0}, s{sT0}, -4
    s_or_b32 s{sT1}, s{sT1}, 3
    v_add_u32 v{vT0}, s{sT0}, v{vLANE}
    v_min_u32 v{vT0}, s{sT1}, v{vT0}
    s_lshr_b32 s{sT2}, s{sFT}, 1
    s_lshl_b32 s{sT0}, s{sT2}, 3
    s_add_u32 s{sT0}, s{sT0}, 112
    v_and_b32 v{vT1}, 7, v{vLANE}
    v_add_u32 v{vT1}, s{sT0}, v{vT1}
    v_cmp_le_u32 vcc, 16, v{vLANE}
    s_lshl_b32 s{sT0}, s{sT2}, 1
    s_add_u32 s{sT0}, s{sT0}, 168
    v_cndmask_b32 v{vT0}, v{vT0}, v{vT1}, vcc
    v_and_b32 v{vT1}, 1, v{vLANE}
    v_add_u32 v{vT1}, s{sT0}, v{vT1}
    v_cmp_le_u32 vcc, 24, v{vLANE}
    v_bfe_u32 v{vT2}, v{vLANE}, 1, 3
    v_and_b32 v{vT3}, 1, v{vLANE}
    v_cndmask_b32 v{vT0}, v{vT0}, v{vT1}, vcc
    v_lshl_add_u32 v{vT2}, v{vT3}, 7, v{vT2}
    s_lshl_b32 s{sT0}, s{sIDX}, 3
    v_add_u32 v{vT2}, s{sT0}, v{vT2}
    v_cndmask_b32 v{vT0}, v{vT0}, v{vT2}, s[{sHI}:{sHI + 1}]
    v_lshlrev_b32 v{vT0}, 7, v{vT0}
    s_mov_b32 s{sT0}, {F_PK}
    """)
    wait_flags(k, vT0, sT0, '1')
    k.vm_seq, k.vm_done, k.pend = st
    k.label(Lw, pad=False)
    k('s_waitcnt vmcnt(0)')
    ts(k, 'ATT.halo')
    k('s_barrier')
    k(f"""
    ds_read_b128 {v4(KB)}, v{vAD}
    ds_read_b128 {v4(KB + 4)}, v{vAD} offset:1024
    s_sub_u32 s{sCNT}, 7, s{sW}
    """)
    emit_item(k, L0(([x.replace(f's{sDS},', f's{sT3},').replace(f's{sDS} ', f's{sT3} ') for x in SCHED['PRO']()] if PROPOS == 2 else []) + flat(wo) + lines(f"""
    v_lshlrev_b32 v{vT0}, 2, v{vN}
    v_lshl_add_u32 v{vT0}, v{vHH}, 9, v{vT0}
    s_mul_i32 s{sT0}, s{sIDX}, 7
    s_add_u32 s{sT0}, s{sT0}, s{sW}
    s_lshl_b32 s{sT0}, s{sT0}, 7
    s_add_u32 s{sT0}, s{sT0}, {CSP_13}
    """) + flat([[f's_add_u32 s{sT1}, s{sT0}, {q * 112 * 128}',
                 f'buffer_load_dword v{CSL + q}, v{vT0}, s[8:11], s{sT1} offen'] for q in range(4)])))
    k('s_waitcnt lgkmcnt(0)')
    k.label(LB, pad=False)
    k('s_nop 1')
    st = k.vm_seq
    att_tile_body(k, False, loop_dma0())
    k.vm_seq = st
    k(f"""
    s_sub_u32 s{sCNT}, s{sCNT}, 1
    s_cmp_lg_u32 s{sCNT}, 0
    s_waitcnt lgkmcnt(0)
    s_cbranch_scc1 {LB}
    """)
    k('s_nop 1')
    att_tile_body(k, True, [])
    k(f'{MF} {v16(OA)}, {v4(VB)}, {v4(PA)}, {v16(OA)}')
    k(f'{MF} {v16(OA)}, {v4(VB + 4)}, {v4(PA + 4)}, {v16(OA)}')
    k(f"""
    s_lshl_b32 s{sT4}, s{sTT}, 7
    s_lshl_b32 s{sT1}, s{sIDX}, 2
    s_add_u32 s{sT4}, s{sT4}, s{sT1}
    s_add_u32 s{sT4}, s{sT4}, {F_O}
    s_mov_b32 s{sT0}, {f32bits(2.0 ** 64)}
    """)
    Lok = k.newlabel('att_ok')
    k(f"""
    v_mov_b32 v{vT0}, v{OA + 12}
    v_mov_b32 v{vT1}, v{OA + 12}
    v_permlane32_swap_b32 v{vT0}, v{vT1}
    v_cmp_nge_f32 vcc, s{sT0}, v{vT1}
    s_nop 1
    """)
    k(f's_cbranch_vccz {Lok}' if not FORCE_FALLBACK else 's_nop 0')
    fallback(k)
    k.label(Lok)
    k(f'v_rcp_f32 v{vT1}, v{vT1}')
    for r in range(16):
        k(f'v_mul_f32 v{OA + r}, v{vT1}, v{OA + r}')
    for q in range(8):
        k(f'v_cvt_pk_bf16_f32 v{OA + q}, v{OA + 2 * q}, v{OA + 2 * q + 1}')
    ts(k, 'ATT.st2')
    publish(k, [f'buffer_store_dwordx4 {v4(OA)}, v{vL16}, s[8:11], s{sOADR} offen',
                f'buffer_store_dwordx4 {v4(OA + 4)}, v{vL16}, s[8:11], s{sOADR} offen offset:1024'])
    set_flag(k, sT4, f's{sL1}')
    ts(k, 'ATT.pub')


def fallback(k):
    def s_tile(c):
        k(f"""
        ds_read_b128 {v4(KB)}, v{vAD}
        ds_read_b128 {v4(KB + 4)}, v{vAD} offset:1024
        ds_read_b128 {v4(VB)}, v{vAD} offset:2048
        ds_read_b128 {v4(VB + 4)}, v{vAD} offset:3072
        """)
        k(f'{MF} {v16(SA)}, {v4(KB)}, {v4(QF)}, {c}')
        k(f'{MF} {v16(SA)}, {v4(KB + 4)}, {v4(QF + 4)}, {v16(SA)}')
        for cntv, a, b in ((0, SA, None), (8, None, SA)):
            k(f's_cmp_lg_u32 s{sCNT}, {cntv}')
            k.skip_begin('s_cbranch_scc1')
            for r in range(16):
                m = f's[{sMASK + 2 * r}:{sMASK + 2 * r + 1}]'
                if cntv == 0:
                    k(f'v_cndmask_b32 v{SA + r}, v{SA + r}, v{vNEG}, {m}')
                else:
                    k(f'v_cndmask_b32 v{SA + r}, v{vNEG}, v{SA + r}, {m}')
            k.skip_end()
    La, Lb = k.newlabel('fb1'), k.newlabel('fb2')
    k(f"""
    s_nop 7
    s_nop 7
    v_mov_b32 v{vAD}, v{vKVA}
    v_mov_b32 v{vMX}, v{vNEG}
    s_mov_b32 s{sCNT}, 0
    """)
    k.label(La)
    s_tile('0')
    for r in range(0, 16, 2):
        k(f'v_max3_f32 v{vMX}, v{SA + r}, v{SA + r + 1}, v{vMX}')
    k(f"""
    v_add_u32 v{vAD}, 4096, v{vAD}
    s_add_u32 s{sCNT}, s{sCNT}, 1
    s_cmp_lt_u32 s{sCNT}, 9
    s_waitcnt lgkmcnt(0)
    s_cbranch_scc1 {La}
    v_mov_b32 v{vT1}, v{vMX}
    v_permlane32_swap_b32 v{vMX}, v{vT1}
    v_max_f32 v{vMX}, v{vMX}, v{vT1}
    v_mov_b32 v{vAD}, v{vKVA}
    s_mov_b32 s{sCNT}, 0
    """)
    for r in range(16):
        k(f'v_mov_b32 v{OA + r}, 0')
    k.label(Lb)
    s_tile('0')
    for r in range(16):
        k(f'v_sub_f32 v{SA + r}, v{SA + r}, v{vMX}')
    for r in range(16):
        k(f'v_exp_f32 v{SA + r}, v{SA + r}')
    for q in range(8):
        k(f'v_cvt_pk_bf16_f32 v{PA + q}, v{SA + 2 * q}, v{SA + 2 * q + 1}')
    k(f'{MF} {v16(OA)}, {v4(VB)}, {v4(PA)}, {v16(OA)}')
    k(f'{MF} {v16(OA)}, {v4(VB + 4)}, {v4(PA + 4)}, {v16(OA)}')
    k(f"""
    v_add_u32 v{vAD}, 4096, v{vAD}
    s_add_u32 s{sCNT}, s{sCNT}, 1
    s_cmp_lt_u32 s{sCNT}, 9
    s_waitcnt lgkmcnt(0)
    s_cbranch_scc1 {Lb}
    v_mov_b32 v{vT0}, v{OA + 12}
    v_mov_b32 v{vT1}, v{OA + 12}
    v_permlane32_swap_b32 v{vT0}, v{vT1}
    """)


SK_ACC = [32, 48, 64, 80]
SK_XO = 96
RED = 3 * SLOT


def red_writes():
    out = {}
    for q in range(1, 4):
        o = lines(f"""
        s_xor_b32 s{sT0}, s{sW}, {q}
        s_mul_i32 s{sT0}, s{sT0}, 12288
        s_add_u32 s{sT0}, s{sT0}, {RED + (q - 1) * 4096}
        v_add_u32 v{vT0 + q - 1}, s{sT0}, v{vL16}
        """)
        for g in range(4):
            o.append(f'ds_write_b128 v{vT0 + q - 1}, {v4(SK_ACC[q] + 4 * g)} offset:{1024 * g}')
        out[q] = o
    return out


XR = 200


def red_setup():
    return lines(f"""
    s_mul_i32 s{sT0}, s{sW}, 12288
    s_add_u32 s{sT0}, s{sT0}, {RED}
    v_add_u32 v{vT3}, s{sT0}, v{vL16}
    """)


def red_finish(k):
    ACC = SK_ACC
    k.barrier()
    for g in range(4):
        for q in range(1, 4):
            k(f'ds_read_b128 {v4(ACC[q] + 4 * g)}, v{vT3} offset:{(q - 1) * 4096 + 1024 * g}')


def red_sum(k, g):
    ACC = SK_ACC
    k.wait_reg(v4(ACC[3] + 4 * g))
    for r in (4 * g, 4 * g + 2):
        k(f'v_pk_add_f32 {v2(ACC[1] + r)}, {v2(ACC[1] + r)}, {v2(ACC[2] + r)}')
        k(f'v_pk_add_f32 {v2(ACC[0] + r)}, {v2(ACC[0] + r)}, {v2(ACC[3] + r)}')
    for r in (4 * g, 4 * g + 2):
        k(f'v_pk_add_f32 {v2(ACC[0] + r)}, {v2(ACC[0] + r)}, {v2(ACC[1] + r)}')


def unpack_res(xo, dst):
    out = []
    for q in range(8):
        out.append(f'v_lshlrev_b32 v{dst + 2 * q}, 16, v{xo + q}')
        out.append(f'v_and_b32 v{dst + 2 * q + 1}, 0xffff0000, v{xo + q}')
    return out


def flag_addr(dst, fbase):
    return lines(f"""
    s_lshl_b32 s{dst}, s{sTT3}, 7
    s_lshl_b32 s{sT1}, s{sFT}, 2
    s_add_u32 s{dst}, s{dst}, s{sT1}
    s_add_u32 s{dst}, s{dst}, {fbase}
    """)


def res_epilogue(k, xo, sflag, val, scale, xr, Lfin):
    acc = SK_ACC[0]
    for g in range(4):
        red_sum(k, g)
        if scale is not None:
            for r in (4 * g, 4 * g + 2):
                k(f'v_pk_fma_f32 {v2(acc + r)}, {v2(acc + r)}, {v2(scale)}, {v2(xr + r)}')
        for q in (2 * g, 2 * g + 1):
            k(f'v_cvt_pk_bf16_f32 v{xo + q}, v{acc + 2 * q}, v{acc + 2 * q + 1}')
        if g == 1 and Lfin is None:
            publish(k, [f'buffer_store_dwordx4 {v4(xo)}, v{vL16}, s[8:11], s{sXADR} offen'])
    if Lfin:
        if LAYER == 1:
            k(f's_branch {Lfin}')
            return
        if LAYER is None:
            k(f's_cmp_eq_u32 s{sL}, 1')
            k(f's_cbranch_scc1 {Lfin}')
        publish(k, [f'buffer_store_dwordx4 {v4(xo)}, v{vL16}, s[8:11], s{sXADR} offen'])
    publish(k, [f'buffer_store_dwordx4 {v4(xo + 4)}, v{vL16}, s[8:11], s{sXADR} offen offset:1024'])
    k(f'v_mov_b32 v{vT0}, 0')
    k(f'v_mov_b32 v{vT1}, 0')
    emit(k, stats_ops(xo, 8, vT0, vT1, vONES))
    k(f"""
    v_permlane32_swap_b32 v{vT0}, v{vT1}
    v_add_f32 v{vT0}, v{vT0}, v{vT1}
    """)
    publish(k, [f'buffer_store_dword v{vT0}, v{vSTO}, s[8:11], s{sSADR} offen'])
    set_flag(k, sflag, val)


def rowmajor_addr(k):
    k(f"""
    v_mul_u32_u24 v{vT0}, 896, v{vN}
    v_lshl_add_u32 v{vT0}, v{vHH}, 4, v{vT0}
    s_mul_i32 s{sT0}, s{sTT3}, {32 * 896}
    s_lshl_b32 s{sT1}, s{sFT}, 6
    s_add_u32 s{sT0}, s{sT0}, s{sT1}
    """)


def phase_P3(k):
    ACC, XO = SK_ACC, SK_XO
    O_R = 192
    Lskip, Lj = k.newlabel('p3_skip'), k.newlabel('p3_join')
    k(f's_cmp_eq_u32 s{sACT}, 0')
    k(f's_cbranch_scc1 {Lskip}')
    La, Lb = k.newlabel('p3_l1'), k.newlabel('p3_res')
    if LAYER is None:
        k(f's_cmp_lg_u32 s{sL}, 0')
        k(f's_cbranch_scc1 {La}')
    if LAYER != 1:
        rowmajor_addr(k)
        k(f"""
        buffer_load_dwordx4 {v4(XO)}, v{vT0}, s[20:23], s{sT0} offen
        buffer_load_dwordx4 {v4(XO + 4)}, v{vT0}, s[20:23], s{sT0} offen offset:32
        """)
    if LAYER is None:
        k(f's_branch {Lb}')
        k.label(La, pad=False)
        k.vm_seq -= 2
        for r in parse_reg(f'v[{XO}:{XO + 7}]'):
            k.pend.pop(r, None)
    if LAYER != 0:
        res_addr(k, sT0, f's{sX2}')
        k(f"""
        buffer_load_dwordx4 {v4(XO)}, v{vL16}, s[8:11], s{sT0} offen sc1
        buffer_load_dwordx4 {v4(XO + 4)}, v{vL16}, s[8:11], s{sT0} offen offset:1024 sc1
        """)
    k.label(Lb, pad=False)
    k(f"""
    s_and_b32 s{sT4}, s{sTT3}, -2
    s_lshl_b32 s{sT4}, s{sT4}, 7
    s_add_u32 s{sT4}, s{sT4}, {F_O}
    s_lshl_b32 s{sT1}, s{sW}, 19
    s_add_u32 s{sT1}, s{sT1}, s{sOF}
    s_lshl_b32 s{sT2}, s{sTT3}, 11
    s_add_u32 s{sT2}, s{sT2}, s{sT1}
    s_lshl_b32 s{sT3}, s{sTTo}, 11
    s_add_u32 s{sT3}, s{sT3}, s{sT1}
    """)
    emit(k, SCHED['P3_pre']())
    emit(k, red_setup() + flag_addr(sE, F_X1))
    k('s_barrier')
    emit(k, unpack_res(XO, ACC[0]))
    wait_flags(k, vFH, sT4, f's{sL1}')
    ts(k, 'P3.ready')
    for q in (1, 0):
        for i in range(8):
            if i and i % 2 == 0:
                k(f's_add_u32 s{sT2 + q}, s{sT2 + q}, {64 * 2048}')
            k(f'buffer_load_dwordx4 {v4(O_R + 32 * q + 4 * i)}, v{vL16}, s[8:11], s{sT2 + q} offen offset:{(i % 2) * 1024} sc1')

    def mf(qa, qb, ks):
        a = ACC[qa + 2 * qb]
        c = '0' if (ks == 0 and qa + qb) else v16(a)
        return dict(m=f'{MF} {v16(a)}, {v4(WO_R + 32 * qa + 4 * ks)}, {v4(O_R + 32 * qb + 4 * ks)}, {c}')
    rw = red_writes()
    M = [mf(qa, 1, ks) for ks in range(8) for qa in range(2)] + [mf(1, 0, ks) for ks in range(8)] + [mf(0, 0, ks) for ks in range(8)]
    fl = F(SCHED['P3_mm'](), earliest=2) + F(rw[2] + rw[3], earliest=18) + F(rw[1], earliest=26)
    flush(k, weave(k, M, fl, free=6, pairwait=False))
    ts(k, 'P3.mfma')
    red_finish(k)
    res_epilogue(k, XO, sE, f's{sL1}', None, None, None)
    ts(k, 'P3.pub')
    k(f's_branch {Lj}')
    k.label(Lskip, pad=False)
    emit(k, SCHED['P3_idle']())
    k.label(Lj, pad=False)
    k.drained()


def phase_P5(k, Lfin):
    ACC, XO = SK_ACC, SK_XO
    HB = 104
    HDEPTH = 6
    Lskip, Ljoin = k.newlabel('p5_skip'), k.newlabel('p5_join')
    k(f's_cmp_eq_u32 s{sACT}, 0')
    k(f's_cbranch_scc1 {Lskip}')
    res_addr(k, sT0, f's{sX1}')
    k(f"""
    buffer_load_dwordx4 {v4(XO)}, v{vL16}, s[8:11], s{sT0} offen sc1
    buffer_load_dwordx4 {v4(XO + 4)}, v{vL16}, s[8:11], s{sT0} offen offset:1024 sc1
    """)
    STT = 232
    emit(k, stats_loads(sST1, sTT3, STT))
    k(f"""
    s_and_b32 s{sT4}, s{sTT3}, -2
    s_lshl_b32 s{sT4}, s{sT4}, 7
    s_add_u32 s{sT4}, s{sT4}, {F_H}
    s_lshl_b32 s{sE}, s{sL}, 1
    s_add_u32 s{sE}, s{sE}, 1
    """)
    for q, stt in enumerate([sTT3, sTTo]):
        k(f"""
        s_mul_i32 s{sT2 + q}, s{stt}, {112 * 1024}
        s_mul_i32 s{sT1}, s{sW}, {28 * 1024}
        s_add_u32 s{sT2 + q}, s{sT2 + q}, s{sT1}
        s_add_u32 s{sT2 + q}, s{sT2 + q}, s{sHF}
        """)
    wait_flags(k, vFH, sT4, f's{sE}')
    ts(k, 'P5.ready')
    order = [ks for ks in range(28) if ks % 7 != 6] + [ks for ks in range(28) if ks % 7 == 6]
    NSL = 16
    reg = lambda pos, q: v4(HB + 8 * (pos % NSL) + 4 * q)

    def hload(pos):
        ks = order[pos]
        out = []
        for q in (1, 0):
            out += [f's_add_u32 s{sT0}, s{sT2 + q}, {ks * 1024}',
                    f'buffer_load_dwordx4 {reg(pos, q)}, v{vL16}, s[8:11], s{sT0} offen sc1']
        return out

    def mf(pos, qa, qb):
        a = ACC[qa + 2 * qb]
        c = '0' if pos == 0 else v16(a)
        return f'{MF} {v16(a)}, {a4(112 * qa + 4 * order[pos])}, {reg(pos, qb)}, {c}'
    for pos in range(HDEPTH):
        emit(k, hload(pos))
    emit(k, stats_math(STT))
    k(f'v_mul_f32 v{MB}, v{vR}, v{vR}')
    k(f'v_mul_f32 v{MB + 1}, v{vR}, v{vR}')
    pre_fill = unpack_res(XO, STT) + red_setup() + flag_addr(sT5, F_XIN)
    TAIL = 5

    def late_check(k):
        k(f'v_cmp_gt_u32 vcc, s{sE}, v{vFL}')
        k('s_nop 1')
        Lok = k.newlabel('lateok')
        k(f's_cbranch_vccz {Lok}')
        st = (k.vm_seq, k.vm_done, dict(k.pend), k.pos, list(k.hist))
        wait_flags(k, vFH, sT4, f's{sE}')
        k.vm_seq, k.vm_done, k.pend, k.pos, k.hist = st
        k.label(Lok, pad=False)
    M = []
    for pos in range(28):
        nxt = pos + HDEPTH
        pre = []
        if nxt == 24:
            pre.append(('call', late_check))
        if nxt < 28:
            pre += hload(nxt)
        if nxt == 19:
            pre += [f's_add_u32 s{sE}, s{sE}, 1', f'buffer_load_dword v{vFL}, v{vFH}, s[8:11], s{sT4} offen sc1']
        M.append(dict(pre=pre, m=mf(pos, 0, 1)))
        M.append(dict(m=mf(pos, 1, 1)))
        M.append(dict(m=mf(pos, 1, 0)))
        if pos < 28 - TAIL:
            M.append(dict(m=mf(pos, 0, 0)))
    n0 = len(M)
    M += [dict(m=mf(pos, 0, 0)) for pos in range(28 - TAIL, 28)]
    rw = red_writes()
    wq = pf_wqkv()
    wqg = [L0(flat(wq[i:i + 4])) for i in range(0, 21, 4)]
    first_free = 4 * (28 - HDEPTH)
    fl = F(pre_fill, earliest=1)
    for i, g in enumerate(wqg):
        fl += F([g], earliest=first_free + 2 * i)
    fl += F(rw[2] + rw[3] + rw[1], earliest=n0)
    flush(k, weave(k, M, fl, free=8, pairwait=False))
    ts(k, 'P5.mfma')
    red_finish(k)
    res_epilogue(k, XO, sT5, '1', MB, STT, Lfin)
    if LAYER != 1:
        ts(k, 'P5.pub')
        k(f's_branch {Ljoin}')
    k.label(Lskip, pad=False)
    if LAYER == 1:
        k('s_branch MAIN_tail')
        return
    if LAYER is None:
        k(f's_cmp_eq_u32 s{sL}, 1')
        k('s_cbranch_scc1 MAIN_tail')
    emit(k, SCHED['P5_idle']())
    emit(k, flat(pf_wqkv()))
    k.label(Ljoin, pad=False)
    k('s_waitcnt vmcnt(0) lgkmcnt(0)')
    k.drained()
    k('s_barrier')


def phase_P4(k):
    XB = 32
    ACC = [144, 160, 176]
    WB, NB, PF = 192, 8, 6
    ET = 224
    k(f"""
    s_lshl_b32 s{sT4}, s{sTT}, 7
    s_add_u32 s{sT4}, s{sT4}, {F_X1}
    s_mul_i32 s{sT3}, s{sTT}, {28 * 1024}
    s_add_u32 s{sT3}, s{sT3}, s{sX1}
    """)
    k('s_waitcnt vmcnt(0)')
    if LAYER is None:
        k(f's_cmp_lg_u32 s{sL}, 0')
        k.skip_begin('s_cbranch_scc1')
        emit(k, cs13_build())
        k.skip_end()
    elif LAYER == 0:
        emit(k, cs13_build())
    k('s_barrier')
    emit(k, SCHED['P4_pre']())
    acc_of = [0, 1, 2, 0, 1, 2, 0]
    seq = [(i, ks) for ks in range(29) for i in range(2)] + [(i, ks) for i in range(2, 7) for ks in range(29)]
    start = {i: 58 + 29 * (i - 2) for i in range(2, 7)}
    endi = {0: 56, 1: 57}
    endi.update({i: start[i] + 28 for i in range(2, 7)})

    def wread(n):
        i, ks = seq[n]
        if ks == 28:
            return f'ds_read_b128 {v4(WB + 4 * (n % NB))}, v{vSCR} offset:{1024 + 1024 * i}'
        s = W13_SLOT[i]
        base = {0: vL16, 1: vL16, 2: vL2S, 3: vL2S, 4: vL4S}[s]
        off = (s % 2) * SLOT + ks * 1024 if s < 4 else ks * 1024
        return f'ds_read_b128 {v4(WB + 4 * (n % NB))}, v{base} offset:{off}'

    def mf(n):
        i, ks = seq[n]
        a = v16(ACC[acc_of[i]])
        b = v4(MB) if ks == 28 else v4(XB + 4 * ks)
        return f'{MF} {a}, {v4(WB + 4 * (n % NB))}, {b}, {"0" if ks == 0 else a}'
    for n in range(PF):
        k(wread(n))
    wait_flags(k, vF14, sT4, f's{sL1}')
    ts(k, 'P4.ready')
    xl = load_chunks([v4(XB + 4 * i) for i in range(28)], sT3, sT2, pol=' sc1')
    for i in range(4):
        emit(k, xl[i])
    emit(k, stats_loads(sST1, sTT, ET))
    for i in range(4, XDEPTH):
        emit(k, xl[i])

    def epi(i):
        a = ACC[acc_of[i]]
        out = []
        e0 = ET + 8 * (i % 2)
        for r in range(8):
            out.append(f'v_mul_f32 v{e0 + r}, v{vKE}, v{a + r}')
        for r in range(8):
            out.append(f'v_exp_f32 v{e0 + r}, v{e0 + r}')
            out.append(f'v_mul_f32 v{a + r}, v{a + r}, v{a + 8 + r}')
        for r in range(8):
            out.append(f'v_add_f32 v{e0 + r}, 1.0, v{e0 + r}')
        for r in range(8):
            out.append(f'v_rcp_f32 v{e0 + r}, v{e0 + r}')
            if r:
                out.append(f'v_mul_f32 v{a + r - 1}, v{a + r - 1}, v{e0 + r - 1}')
        out.append(f'v_mul_f32 v{a + 7}, v{a + 7}, v{e0 + 7}')
        o = 240 + 4 * (i % 2)
        for q in range(4):
            out.append(f'v_cvt_pk_bf16_f32 v{o + q}, v{a + 2 * q}, v{a + 2 * q + 1}')

        def st(k):
            if i == 4:
                k(f's_add_u32 s{sHOFF}, s{sHOFF}, 4096')
            st_ = f'buffer_store_dwordx4 {v4(o)}, v{vL16}, s[8:11], s{sHOFF} offen offset:{(i % 4) * 1024}'
            if MODE == 'fast' and LAYER is not None:
                k(st_ + (' sc1' if LAYER == 0 else ''))
            elif MODE == 'fast':
                La, Lb = k.newlabel('h0'), k.newlabel('h1')
                k(f's_cmp_eq_u32 s{sL}, 0')
                k(f's_cbranch_scc1 {La}')
                k(st_)
                k(f's_branch {Lb}')
                k.label(La, pad=False)
                k.vm_seq -= 1
                k.pos -= 2
                k(st_ + ' sc1')
                k.label(Lb, pad=False)
            else:
                publish(k, [st_])
            hs[i] = k.vm_mark()
        out.append(('call', st))
        return out
    hs, hd = {}, {}

    def mark(name):
        def fn(k):
            hd[name] = k.vm_mark()
        return ('call', fn)

    def bar(name, tsn):
        def fn(k):
            k.wait_vm(hd[name])
            k.barrier()
            ts(k, tsn)
        return ('call', fn)
    b1, b2 = start[3] - PF, start[5] - PF
    M = []
    for n in range(len(seq)):
        pre = []
        if n == b1:
            pre.append(bar('t34', 'P4.b1'))
        if n == b2:
            pre.append(bar('t56', 'P4.b2'))
        if n + PF < len(seq):
            pre.append(wread(n + PF))
        i, ks = seq[n]
        if n < 58 and i == 0 and ks + XDEPTH < 28:
            pre += xl[ks + XDEPTH]
        M.append(dict(pre=pre, m=mf(n), need=[v4(WB + 4 * (n % NB))], w=1 if (n < 56 and i == 0) else 0))
    nx = 2 * (28 - XDEPTH)
    fl = F(stats_math(ET) + mb_fill() + [f'v_mul_f32 v{vKE}, {f32bits(-LOG2E)}, v{vR}'], earliest=6, deadline=54)
    fl += F(lines(f"""
    s_lshl_b32 s{sT4}, s{sTT}, 7
    s_lshl_b32 s{sT1}, s{sIDX}, 2
    s_add_u32 s{sT4}, s{sT4}, s{sT1}
    s_add_u32 s{sT4}, s{sT4}, {F_H}
    s_lshl_b32 s{sE}, s{sL}, 1
    s_add_u32 s{sE}, s{sE}, 1
    """), earliest=6)
    fl.append((6, None, ('call', lambda k: (res_addr(k, sXADR, f's{sX2}'), st_addr(k, sSADR, f's{sST2}')))))
    c34 = pf_w13(3) + pf_w13(4)
    for j, c in enumerate(c34):
        fl += F(c, earliest=nx + (j * 3) // 2, deadline=b1 - 8)
    fl.append((0, b1 - 8, mark('t34')))
    fl += F(flat(SCHED['P4_p1']()), earliest=58)

    def interleave(ep, mem, e0, dl):
        out = []
        step = max(1, len(ep) // (len(mem) + 1)) if mem else 10 ** 9
        mem = list(mem)
        for j, x in enumerate(ep):
            out.append(x)
            if mem and j % step == step - 1:
                out += mem.pop(0)
        for m in mem:
            out += m
        return F(out, earliest=e0, deadline=dl)
    S4 = SCHED['P4_mid']()
    n4 = len(S4)
    fl += interleave(epi(0), [], endi[0] + 3, start[3])
    fl += interleave(epi(1), [], endi[1] + 3, start[4])
    c56 = pf_w13(5) + pf_w13(6) + [[mark('t56')]]
    fl += interleave(epi(2), c56, max(endi[2] + 3, b1 + 1), b2 - 10)
    fl += interleave(epi(3), S4[:n4 // 3], endi[3] + 3, start[6])
    fl += interleave(epi(4), S4[n4 // 3:2 * n4 // 3], endi[4] + 3, None)
    fl += interleave(epi(5), S4[2 * n4 // 3:], endi[5] + 3, len(seq) - 6)
    rest = weave(k, M, fl, free=6)
    flush(k, rest)
    set_flag(k, sT4, f's{sE}', h=hs[5])
    ts(k, 'P4.mfma')
    emit(k, epi(6))
    k(f's_add_u32 s{sT5}, s{sE}, 1')
    set_flag(k, sT4, f's{sT5}')
    ts(k, 'P4.pub')
    k.barrier()


def phase_G(k):
    A_X, A_Q, A_K, A_V, WB, RT = 32, 144, 160, 176, 192, 240
    NB, PF = 6, 4
    NQ1 = GNQ1
    k(f"""
    s_lshl_b32 s{sT4}, s{sTT}, 7
    s_add_u32 s{sT4}, s{sT4}, {F_XIN}
    s_mul_i32 s{sT3}, s{sTT}, {28 * 1024}
    s_add_u32 s{sT3}, s{sT3}, s{sX2}
    """)
    seq = []
    for ks in range(29):
        seq += [('K', ks), ('V', ks)]
        if ks < NQ1:
            seq.append(('Q', ks))
    n1 = len(seq)
    seq += [('Q', ks) for ks in range(NQ1, 29)]
    pidx = {'Q': 0, 'K': 1, 'V': 2}

    def wread(n):
        p, ks = seq[n]
        b = v4(WB + 4 * (n % NB))
        if ks == 28:
            return f'ds_read_b128 {b}, v{vSCR} offset:{9216 + 1024 * pidx[p]}'
        if p == 'V':
            return f'ds_read_b128 {b}, v{vL16b} offset:{ks * 1024}'
        return f'ds_read_b128 {b}, v{vL16} offset:{(pidx[p] * 28 + ks) * 1024}'

    def mf(n):
        p, ks = seq[n]
        b = v4(WB + 4 * (n % NB))
        x = v4(MB) if ks == 28 else v4(A_X + 4 * ks)
        a = {'Q': A_Q, 'K': A_K, 'V': A_V}[p]
        c = '0' if ks == 0 else v16(a)
        if p == 'V':
            return f'{MF} {v16(a)}, {x}, {b}, {c}'
        return f'{MF} {v16(a)}, {b}, {x}, {c}'
    for n in range(PF):
        k(wread(n))
    emit(k, SCHED['G_pre']())
    ts(k, 'G.start')
    wait_flags(k, vF14, sT4, '1')
    ts(k, 'G.ready')
    xl = load_chunks([v4(A_X + 4 * i) for i in range(28)], sT3, sT2, pol=' sc1')
    STT = 216
    for i in range(4):
        emit(k, xl[i])
    emit(k, stats_loads(sST2, sTT, STT))
    for i in range(4, XDEPTH):
        emit(k, xl[i])
    M = []
    for n in range(len(seq)):
        pre = [wread(n + PF)] if n + PF < len(seq) else []
        p, ks = seq[n]
        if p == 'K' and ks + XDEPTH < 28:
            pre = pre + xl[ks + XDEPTH]
        M.append(dict(pre=pre, m=mf(n), need=[v4(WB + 4 * (n % NB))], w=1 if p == 'K' else 0))
    gather = lines(f"""
    s_lshl_b32 s{sT0}, s{sW}, 8
    s_add_u32 s{sT0}, s{sT0}, {SCR}
    v_lshlrev_b32 v{vT0}, 2, v{vN}
    v_add_u32 v{vT0}, s{sT0}, v{vT0}
    ds_write_b32 v{vT0}, v{vR}
    v_lshlrev_b32 v{vT1}, 4, v{vHH}
    v_add_u32 v{vT1}, s{sT0}, v{vT1}
    """) + [f'ds_read_b128 {v4(RT + 4 * g)}, v{vT1} offset:{32 * g}' for g in range(4)]
    fl = F(stats_math(STT) + mb_fill() + gather, earliest=8, deadline=n1 - 6)
    fl += F(lines(f"""
    s_lshl_b32 s{sT0}, s{sIDX}, 6
    s_add_u32 s{sT0}, s{sT0}, s{sTT}
    s_lshl_b32 s{sT4}, s{sT0}, 2
    s_add_u32 s{sT4}, s{sT4}, {F_KV}
    s_lshl_b32 s{sT5}, s{sT0}, 12
    s_add_u32 s{sT5}, s{sT5}, s{sKV}
    """), earliest=8)
    ep = []
    for r in range(16):
        ep.append(f'v_mul_f32 v{A_K + r}, v{vR}, v{A_K + r}')
    for q in range(8):
        ep.append(f'v_cvt_pk_bf16_f32 v{KF + q}, v{A_K + 2 * q}, v{A_K + 2 * q + 1}')
    for i in range(2):
        ep.append(f'buffer_store_dwordx4 {v4(KF + 4 * i)}, v{vL16}, s[8:11], s{sT5} offen offset:{1024 * i} sc1')
    for r in range(16):
        ep.append(f'v_mul_f32 v{A_V + r}, v{RT + r}, v{A_V + r}')
    for q in range(8):
        ep.append(f'v_cvt_pk_bf16_f32 v{VF + q}, v{A_V + 2 * q}, v{A_V + 2 * q + 1}')
        ep.append(f'v_cndmask_b32 v{VF + q}, v{VF + q}, v{vONES}, s[{sN28}:{sN28 + 1}]')
    for i in range(2, 4):
        ep.append(f'buffer_store_dwordx4 {v4(KF + 4 * i)}, v{vL16}, s[8:11], s{sT5} offen offset:{1024 * i} sc1')
    hk = {}
    ep.append(('call', lambda k: hk.__setitem__('h', k.vm_mark())))
    for i in range(4):
        ep.append(f'ds_write_b128 v{vKVA}, {v4(KF + 4 * i)} offset:{8 * 4096 + 1024 * i}')
    ep += SCHED['G_q']()
    fl += F(ep, earliest=n1 + 1)
    fl.append((len(seq) - 2, None, ('call', lambda k: set_flag(k, sT4, '2', always_sc1=True, h=hk['h']))))
    flush(k, weave(k, M, fl, free=6))
    ts(k, 'G.mfma')
    k(f'v_mul_f32 v{vT0}, {f32bits(28 ** -0.5 * LOG2E)}, v{vR}')
    for r in range(16):
        k(f'v_mul_f32 v{A_Q + r}, v{vT0}, v{A_Q + r}')
    for q in range(8):
        k(f'v_cvt_pk_bf16_f32 v{QF + q}, v{A_Q + 2 * q}, v{A_Q + 2 * q + 1}')
    k(f'v_mov_b32 v{vT1}, 0x3f80')
    k(f'v_cndmask_b32 v{QF + 6}, v{QF + 6}, v{vT1}, s[{sHI}:{sHI + 1}]')
    ts(k, 'G.pub')
    k.barrier()


F_DUTY = 3 * SLOT
F_SCR = SCR
F_CSX = LDS_BYTES - 1536
F_XR = F_DUTY + 29184
OOBS = 0x20000000


def front(k):
    T0, T1, T2, T3, T4, T5 = sT0, sT1, sT2, sT3, sT4, sT5
    sKIND, sDST, sCSD, sA1, sWOFF, sPIT, sSRC, sXRB = 88, 89, 90, 91, 92, 93, 94, 95
    sPAD, sHP, sXT, sIMG, sXS, sZM, sSA, sSB, sD8 = 72, 74, 77, 78, 79, 80, 82, 83, 84
    vTR, vTR2, vXO, vDT, vS1, vS2, vCSK, vCSV, vCSQ, vIMG, vOQ, vOQ2, vDS = 5, 6, 7, 9, 10, 14, 15, 16, 17, 19, 26, 27, 144
    X, AQ, AK, AV, WB, RT = 32, 144, 160, 176, 192, 240
    NB, PF = 6, 4
    XA = 240
    k(f"""
    v_and_b32 v{vT0}, 3, v{vLANE}
    v_lshrrev_b32 v{vT1}, 2, v{vLANE}
    s_lshl_b32 s{T0}, s{sRB}, 2
    v_add_u32 v{vT2}, s{T0}, v{vT0}
    v_lshlrev_b32 v{vT3}, 7, v{vT2}
    s_lshl_b32 s{T1}, s{sIDX}, 2
    s_add_u32 s{T1}, s{T1}, {F_O}
    v_add_u32 v{vT3}, s{T1}, v{vT3}                  ; F_O
    v_and_b32 v5, 1, v{vT1}
    v_lshl_add_u32 v{vT3}, v5, 14, v{vT3}            ; kind 1: F_H = F_O + 16384
    s_and_b32 s{T0}, s{sTT3}, -2
    s_and_b32 s{T1}, s{sFT}, -2
    v_lshrrev_b32 v6, 1, v{vT0}
    v_add_u32 v6, s{T0}, v6                          ; tt3
    v_and_b32 v7, 1, v{vT0}
    v_add_u32 v7, s{T1}, v7                          ; ft
    v_lshlrev_b32 v6, 7, v6
    v_lshl_add_u32 v6, v7, 2, v6
    v_add_u32 v6, {F_XIN}, v6
    v_lshl_add_u32 v6, v5, 14, v6
    v_cmp_le_u32 vcc, 2, v{vT1}
    s_lshl_b32 s{T0}, s{sIDX}, 8
    s_add_u32 s{T0}, s{T0}, {F_KV}
    v_cndmask_b32 v{vT3}, v{vT3}, v6, vcc
    v_lshlrev_b32 v6, 2, v{vT2}
    v_add_u32 v6, s{T0}, v6
    v_cmp_le_u32 vcc, 4, v{vT1}
    s_lshl_b32 s{T0}, s2, 7
    s_add_u32 s{T0}, s{T0}, {F_PK}
    v_cndmask_b32 v{vT3}, v{vT3}, v6, vcc
    v_mov_b32 v6, s{T0}
    v_cmp_le_u32 vcc, 5, v{vT1}
    s_cmp_eq_u32 s{sW}, 0
    s_cselect_b32 s{T0}, 0, {OOBS}
    v_cndmask_b32 v{vT3}, v{vT3}, v6, vcc
    s_mov_b64 exec, 0x1fffff
    buffer_store_dword v{vZERO}, v{vT3}, s[8:11], s{T0} offen sc1
    s_mov_b64 exec, -1
    """)
    h_zero = k.vm_mark()
    assert F_H - F_O == 16384 and F_X1 - F_XIN == 16384
    k(f"""
    s_mov_b32 s64, s74
    s_mov_b32 s65, s75
    s_mov_b32 s66, {448 * 1344 * 2}
    s_mov_b32 s67, 0x00020000
    s_mov_b32 s71, 0x00020000
    """)
    Lw2, Lwo, Lnone, Ldec = 'F_w2', 'F_wo', 'F_none', 'F_dec'
    k(f"""
    s_lshr_b32 s{T4}, s{sW}, 1
    s_and_b32 s{T5}, s{sW}, 1
    s_cmp_ge_u32 s2, 182
    s_cbranch_scc1 {Lnone}
    s_cmp_ge_u32 s2, 168
    s_cbranch_scc1 {Lwo}
    s_cmp_ge_u32 s2, 112
    s_cbranch_scc1 {Lw2}
    s_lshr_b32 s{T0}, s2, 2
    s_and_b32 s{T1}, s2, 3
    s_cmp_eq_u32 s{T4}, 1
    s_cselect_b32 s68, s82, s80
    s_cselect_b32 s69, s83, s81
    s_mov_b32 s70, {448 * 1792 * 2}
    s_mov_b32 s{sKIND}, 0
    s_mov_b32 s{sPIT}, 3584
    s_mul_i32 s{sSRC}, s{T1}, 112
    s_mul_i32 s{T2}, s{T5}, 56
    s_add_u32 s{sSRC}, s{sSRC}, s{T2}
    s_mul_i32 s{sSRC}, s{sSRC}, 3584
    s_lshl_b32 s{T2}, s{T0}, 7
    s_add_u32 s{sSRC}, s{sSRC}, s{T2}
    s_lshl_b32 s{T2}, s{T0}, 2
    s_add_u32 s{T2}, s{T2}, s{sW}
    s_mul_i32 s{sDST}, s{T2}, 28
    s_mul_i32 s{T0}, s{T1}, 7
    s_add_u32 s{sDST}, s{sDST}, s{T0}
    s_lshl_b32 s{sDST}, s{sDST}, 10
    s_add_u32 s{sDST}, s{sDST}, {W13_P}
    s_mul_i32 s{sCSD}, s{T1}, 112
    s_add_u32 s{sCSD}, s{sCSD}, s{T2}
    s_lshl_b32 s{sCSD}, s{sCSD}, 7
    s_add_u32 s{sCSD}, s{sCSD}, {CSP_13}
    s_mov_b32 s{sA1}, 14336
    s_lshl_b32 s{sWOFF}, s{sW}, 5
    s_branch {Ldec}
    """)
    k.label(Lw2, pad=False)
    k(f"""
    s_sub_u32 s{T0}, s2, 112
    s_and_b32 s{T1}, s{T0}, 7
    s_lshr_b32 s{T0}, s{T0}, 3
    s_mov_b32 s68, s84
    s_mov_b32 s69, s85
    s_mov_b32 s70, {1792 * 448 * 2}
    s_mov_b32 s{sKIND}, 1
    s_mov_b32 s{sPIT}, 896
    s_mul_i32 s{sSRC}, s{T1}, 224
    s_mul_i32 s{T2}, s{sW}, 56
    s_add_u32 s{sSRC}, s{sSRC}, s{T2}
    s_mul_i32 s{sSRC}, s{sSRC}, 896
    s_lshl_b32 s{T2}, s{T0}, 7
    s_add_u32 s{sSRC}, s{sSRC}, s{T2}
    s_lshl_b32 s{T2}, s{T0}, 1
    s_add_u32 s{T2}, s{T2}, s{T5}
    s_mul_i32 s{sDST}, s{T2}, 112
    s_mul_i32 s{T0}, s{T1}, 14
    s_add_u32 s{sDST}, s{sDST}, s{T0}
    s_mul_i32 s{T0}, s{T4}, 7
    s_add_u32 s{sDST}, s{sDST}, s{T0}
    s_lshl_b32 s{sDST}, s{sDST}, 10
    s_add_u32 s{sDST}, s{sDST}, {W2_P}
    s_mov_b32 s{sCSD}, 0
    s_mov_b32 s{sA1}, 32
    s_mul_i32 s{sWOFF}, s{T4}, {112 * 128}
    s_lshl_b32 s{T0}, s{T5}, 6
    s_add_u32 s{sWOFF}, s{sWOFF}, s{T0}
    s_branch {Ldec}
    """)
    k.label(Lwo, pad=False)
    k(f"""
    s_sub_u32 s{T0}, s2, 168
    s_and_b32 s{T1}, s{T0}, 1
    s_lshr_b32 s{T0}, s{T0}, 1
    s_mov_b32 s68, s76
    s_mov_b32 s69, s77
    s_mov_b32 s70, {448 * 448 * 2}
    s_mov_b32 s{sKIND}, 2
    s_mov_b32 s{sPIT}, 896
    s_mul_i32 s{sSRC}, s{T1}, 224
    s_mul_i32 s{T2}, s{sW}, 56
    s_add_u32 s{sSRC}, s{sSRC}, s{T2}
    s_mul_i32 s{sSRC}, s{sSRC}, 896
    s_lshl_b32 s{T2}, s{T0}, 7
    s_add_u32 s{sSRC}, s{sSRC}, s{T2}
    s_lshl_b32 s{T2}, s{T0}, 1
    s_add_u32 s{T2}, s{T2}, s{T5}
    s_lshl_b32 s{sDST}, s{T2}, 5
    s_lshl_b32 s{T0}, s{T1}, 4
    s_add_u32 s{sDST}, s{sDST}, s{T0}
    s_lshl_b32 s{T0}, s{T4}, 3
    s_add_u32 s{sDST}, s{sDST}, s{T0}
    s_lshl_b32 s{sDST}, s{sDST}, 10
    s_add_u32 s{sDST}, s{sDST}, {WO_P}
    s_mov_b32 s{sCSD}, 0
    s_mov_b32 s{sA1}, 32
    s_mul_i32 s{sWOFF}, s{T4}, {112 * 128}
    s_lshl_b32 s{T0}, s{T5}, 6
    s_add_u32 s{sWOFF}, s{sWOFF}, s{T0}
    s_branch {Ldec}
    """)
    k.label(Lnone, pad=False)
    k(f"""
    s_mov_b32 s68, s76
    s_mov_b32 s69, s77
    s_mov_b32 s70, 0
    s_mov_b32 s{sKIND}, 3
    s_mov_b32 s{sPIT}, 0
    s_mov_b32 s{sSRC}, 0
    s_mov_b32 s{sDST}, 0
    s_mov_b32 s{sCSD}, 0
    s_mov_b32 s{sA1}, 0
    s_mov_b32 s{sWOFF}, 0
    """)
    k.label(Ldec, pad=False)
    k(f"""
    v_lshrrev_b32 v{vT1}, 3, v{vLANE}
    v_mul_lo_u32 v{vDS}, v{vT1}, s{sPIT}
    v_and_b32 v{vT2}, 7, v{vLANE}
    v_lshl_add_u32 v{vDS}, v{vT2}, 4, v{vDS}
    s_lshl_b32 s{sPIT}, s{sPIT}, 3
    v_xor_b32 v{vT2}, v{vT2}, v{vT1}
    v_mul_u32_u24 v{vXO}, 896, v{vT1}
    v_lshl_add_u32 v{vXO}, v{vT2}, 4, v{vXO}
    v_lshrrev_b32 v{vIMG}, 2, v{vLANE}
    v_mul_u32_u24 v{vIMG}, 2688, v{vIMG}
    v_and_b32 v{vT1}, 3, v{vLANE}
    v_lshl_add_u32 v{vIMG}, v{vT1}, 4, v{vIMG}
    s_mul_i32 s{sIMG}, s{sW}, {7 * 16 * 2688}
    s_mul_i32 s{T2}, s{sIDX}, 56
    s_add_u32 s{sIMG}, s{sIMG}, s{T2}
    s_mul_i32 s{sXS}, s{sTT}, {32 * 896}
    """)
    hx, himg = {}, {}
    def xslot(c):
        return [0, 1, 2, 0, 1, 2, 1][c]

    def xbase(c):
        return [(sLW, 0), (sXRB, 0), (sXRB, 4096)][xslot(c)]

    def duty_dma():
        for i in range(7):
            k(f's_add_u32 m0, s{sLW}, {F_DUTY + i * 1024}')
            k(f'buffer_load_dwordx4 v{vDS}, s[68:71], s{sSRC} offen lds')
            k(f's_add_u32 s{sSRC}, s{sSRC}, s{sPIT}')

    def xdma(c):
        b, o = xbase(c)
        for i in range(4):
            k(f's_add_u32 m0, s{b}, {o + i * 1024}')
            k(f's_add_u32 s{sXT}, s{sXS}, {i * 8 * 896 + c * 128}')
            k(f'buffer_load_dwordx4 v{vXO}, s[20:23], s{sXT} offen lds')
        hx[c] = k.vm_mark()

    def img_dma(p):
        for i in range(7):
            k(f's_add_u32 m0, s{sLW}, {p * SLOT + i * 1024}')
            k(f's_add_u32 s{sXT}, s{sIMG}, {i * 16 * 2688 + p * 896}')
            k(f'buffer_load_dwordx4 v{vIMG}, s[64:67], s{sXT} offen lds')
        himg[p] = k.vm_mark()
    k(f"""
    s_lshl_b32 s{sXRB}, s{sW}, 13
    s_add_u32 s{sXRB}, s{sXRB}, {F_XR}
    """)
    if WARM:
        k(f"""
        s_lshr_b32 s{T0}, s2, 3
        s_lshl_b32 s{T0}, s{T0}, 2
        s_add_u32 s{T0}, s{T0}, s{sW}
        v_lshlrev_b32 v{vT1}, 7, v{vLANE}
        s_mul_i32 s{T2}, s{T0}, {74 * 128}
        buffer_load_dword v{vDUM}, v{vT1}, s[64:67], s{T2} offen
        v_min_u32 v{vT2}, 9, v{vLANE}
        v_lshlrev_b32 v{vT2}, 7, v{vT2}
        s_add_u32 s{T2}, s{T2}, 8192
        buffer_load_dword v{vDUM}, v{vT2}, s[64:67], s{T2} offen
        v_min_u32 v{vT2}, 13, v{vLANE}
        v_lshlrev_b32 v{vT2}, 7, v{vT2}
        s_lshr_b32 s{T2}, s{sRB}, 1
        s_mul_i32 s{T2}, s{T2}, {256 * 896}
        s_mul_i32 s{T0}, s{T0}, 1792
        s_add_u32 s{T2}, s{T2}, s{T0}
        buffer_load_dword v{vDUM}, v{vT2}, s[20:23], s{T2} offen
        """)
    set_layer(k, 0)
    if PROPOS == 0:
        emit(k, [x.replace(f'v{vTA},', f'v{vT3},').replace(f'v{vTA}', f'v{vT3}') for x in SCHED['PRO']()])
    if DUTYPOS == 0:
        duty_dma()
    xdma(0)
    xdma(1)
    xdma(2)
    k.wait_vm(h_zero)
    signal(k)
    img_dma(1)
    if DUTYPOS == 1:
        duty_dma()
    ts(k, 'F.issued')
    k(f"""
    v_lshlrev_b32 v{vT1}, 3, v{vHH}
    v_bfe_u32 v{vT2}, v{vLANE}, 2, 2
    v_add_u32 v{vT1}, v{vT1}, v{vT2}
    v_and_b32 v{vT2}, 1, v{vLANE}
    v_lshlrev_b32 v{vT2}, 4, v{vT2}
    v_bfe_u32 v{vT3}, v{vLANE}, 1, 1
    v_lshl_or_b32 v{vT2}, v{vT3}, 3, v{vT2}
    v_bfe_u32 v{vT3}, v{vLANE}, 4, 1
    v_lshl_add_u32 v{vTR}, v{vT1}, 6, v{vT2}
    v_lshl_add_u32 v{vTR}, v{vT3}, 5, v{vTR}
    v_add_u32 v{vTR2}, {2 * SLOT}, v{vTR}
    v_lshl_add_u32 v{vDT}, v{vT1}, 7, v{vT2}
    v_mad_u32_u24 v{vDT}, v{vT3}, s{sA1}, v{vDT}
    s_add_u32 s{T0}, s{sWOFF}, {F_DUTY}
    v_add_u32 v{vDT}, s{T0}, v{vDT}
    v_add_u32 v{vOQ}, s{sLW}, v{vTR}
    v_add_u32 v{vOQ2}, s{sLW}, v{vTR2}
    v_mov_b32 v{vS1}, 0
    v_mov_b32 v{vS2}, 0
    v_mov_b32 v{vCSK}, 0
    v_mov_b32 v{vCSV}, 0
    v_mov_b32 v{vCSQ}, 0
    v_cmp_le_u32 s[{sPAD}:{sPAD + 1}], 28, v{vN}
    s_sub_u32 s{T0}, s{sXRB}, s{sLW}
    """)
    for i in range(4):
        k(f"""
        v_add_u32 v{vT1}, {2 * i}, v{vHH}
        v_and_b32 v{vT2}, 7, v{vN}
        v_xor_b32 v{vT1}, v{vT1}, v{vT2}
        v_lshlrev_b32 v{vT1}, 4, v{vT1}
        v_lshl_add_u32 v{XA + i}, v{vN}, 7, v{vT1}
        v_add_u32 v{XA + i}, s{sLW}, v{XA + i}
        v_add_u32 v{XA + 4 + i}, s{T0}, v{XA + i}
        """)
    k(f's_or_b64 s[{sHP}:{sHP + 1}], s[{sHI}:{sHI + 1}], s[{sPAD}:{sPAD + 1}]')
    emit(k, setup2_salu())

    k(f"""
    s_movk_i32 s{sSA}, 2048
    s_cmp_eq_u32 s{sKIND}, 2
    s_cselect_b32 s{sSA}, 1792, s{sSA}
    s_cselect_b32 s{sSB}, 256, 0
    s_mov_b32 s{sZM}, 0
    s_cselect_b32 s{sZM + 1}, -1, 0
    s_add_u32 s{T0}, s{sDST}, 4096
    s_cmp_eq_u32 s{sKIND}, 2
    s_cselect_b32 s{sD8}, s{T0}, {OOBS}
    s_cmp_eq_u32 s{sKIND}, 0
    s_cselect_b32 s{sCSD}, s{sCSD}, {OOBS}
    s_cmp_eq_u32 s{sKIND}, 3
    s_cselect_b32 s{sDST}, {OOBS}, s{sDST}
    """)

    def x_rd(c):
        k.wait_vm(hx[c])
        for i in range(4):
            a, o = (XA + i, 0) if xslot(c) == 0 else (XA + 4 + i, 4096 * (xslot(c) - 1))
            k(f'ds_read_b128 {v4(X + 16 * c + 4 * i)}, v{a} offset:{o}')

    def x_st(c):
        emit(k, stats_ops(X + 16 * c, 16, vS1, vS2, vONES))

    def own_quarter(p, acc, buf):
        k.wait_vm(himg[p])
        base = vOQ if p < 2 else vOQ2
        for i in range(7):
            off = (p * SLOT if p < 2 else 0) + i * 1024
            k(f'ds_read_b64_tr_b16 {v2(buf + 4 * i)}, v{base} offset:{off}')
            k(f'ds_read_b64_tr_b16 {v2(buf + 4 * i + 2)}, v{base} offset:{off + 256}')
        for i in range(28):
            k(f'v_dot2_f32_bf16 v{acc}, v{buf + i}, v{vONES}, v{acc}')
        k(f"""
        v_mov_b32 v{vT0}, v{acc}
        v_permlane32_swap_b32 v{acc}, v{vT0}
        v_add_f32 v{acc}, v{acc}, v{vT0}
        s_mul_i32 s{T0}, s{sW}, 384
        s_add_u32 s{T0}, s{T0}, {F_CSX}
        v_lshlrev_b32 v{vT3}, 2, v{vN}
        v_add_u32 v{vT2}, s{T0}, v{vT3}
        ds_write_b32 v{vT2}, v{acc} offset:{128 * p}
        """)
    for c in range(3):
        x_rd(c)
    k.wait_lg()
    for c in range(3, 6):
        xdma(c)
    img_dma(2)
    ts(k, 'F.iss2')
    for c in range(3):
        x_st(c)
    own_quarter(1, vCSK, WB)
    x_rd(3)
    x_rd(4)
    k.wait_lg()
    xdma(6)
    if DUTYPOS == 2:
        duty_dma()
    ts(k, 'F.iss3')
    x_rd(5)
    for c in range(3, 6):
        x_st(c)
    own_quarter(2, vCSV, WB)
    x_rd(6)
    x_st(6)
    emit(k, ln_math(vS1, vS2, vT0, vT1, vM, vR) + mb_fill())
    k(f'v_lshlrev_b32 v{vT3}, 2, v{vN}')
    k(f'v_add_u32 v{vS1}, {F_CSX}, v{vT3}')
    gather = lines(f"""
    s_lshl_b32 s{T0}, s{sW}, 8
    s_add_u32 s{T0}, s{T0}, {F_SCR}
    v_add_u32 v{vT1}, s{T0}, v{vT3}
    ds_write_b32 v{vT1}, v{vR}
    v_lshlrev_b32 v{vT1}, 4, v{vHH}
    v_add_u32 v{vT1}, s{T0}, v{vT1}
    """) + [f'ds_read_b128 {v4(RT + 4 * g)}, v{vT1} offset:{32 * g}' for g in range(4)]
    ts(k, 'F.pre')
    k.barrier()
    ts(k, 'F.barA')
    pidx = {'Q': 0, 'K': 1, 'V': 2}

    def gemm(seq, CFR):
        def wread(n):
            p, ks = seq[n]
            b = WB + 4 * (n % NB)
            base, off = (vTR2, ks * 1024) if p == 'V' else (vTR, pidx[p] * SLOT + ks * 1024)
            return [f'ds_read_b64_tr_b16 {v2(b)}, v{base} offset:{off}',
                    f'ds_read_b64_tr_b16 {v2(b + 2)}, v{base} offset:{off + 256}']
        M = []
        for n, (p, ks) in enumerate(seq):
            b = v4(WB + 4 * (n % NB))
            x = v4(X + 4 * ks)
            a = {'Q': AQ, 'K': AK, 'V': AV}[p]
            c = '0' if ks == 0 else v16(a)
            m = f'{MF} {v16(a)}, {x}, {b}, {c}' if p == 'V' else f'{MF} {v16(a)}, {b}, {x}, {c}'
            M.append(dict(pre=wread(n + PF) if n + PF < len(seq) else [], m=m, need=[b]))
        for p, cf in CFR:
            a = {'Q': AQ, 'K': AK, 'V': AV}[p]
            M.append(dict(m=f'{MF} {v16(a)}, {v4(MB)}, {v4(cf)}, {v16(a)}' if p == 'V' else f'{MF} {v16(a)}, {v4(cf)}, {v4(MB)}, {v16(a)}'))
        for n in range(PF):
            emit(k, wread(n))
        return M

    def cs_frag(p, cf, t):
        fl = [f'ds_read_b32 v{t + w}, v{vS1} offset:{w * 384 + p * 128}' for w in range(4)]
        fl += ['s_nop 0'] * 6
        fl += [f'v_add_f32 v{t}, v{t}, v{t + 1}', f'v_add_f32 v{t + 2}, v{t + 2}, v{t + 3}', f'v_add_f32 v{t}, v{t}, v{t + 2}',
               f'v_cndmask_b32 v{t}, v{t}, 0, s[{sHP}:{sHP + 1}]']
        fl += split3(t, cf, cf + 1, vT0, vT2)
        fl += [f'v_mov_b32 v{cf + 2}, 0', f'v_mov_b32 v{cf + 3}, 0',
               ('call', lambda k: cs_store(k, cf))]
        return fl

    def cs_store(k, cf):
        k(f'ds_write_b128 v{vS2}, {v4(cf)}')
        k(f'v_add_u32 v{vS2}, 1024, v{vS2}')
    k(f'v_add_u32 v{vS2}, {SCR_CSQ + 1024}, v{vL16}')
    M = gemm([(p, ks) for ks in range(28) for p in 'KV'], [('K', QF), ('V', QF + 4)])
    fl = F(gather + cs_frag(1, QF, KF) + cs_frag(2, QF + 4, KF), earliest=1, deadline=54)
    late = []
    for i in range(7):
        late.append([f's_add_u32 m0, s{sLW}, {i * 1024}', f's_add_u32 s{sXT}, s{sIMG}, {i * 16 * 2688}',
                     f'buffer_load_dwordx4 v{vIMG}, s[64:67], s{sXT} offen lds'])
    late[-1].append(('call', lambda k: himg.__setitem__(0, k.vm_mark())))
    for j, c in enumerate(late):
        n = 1 + 5 * j
        M[n]['pre'] = M[n]['pre'] + c
    fl += F(lines(f"""
    s_lshl_b32 s{T0}, s{sIDX}, 6
    s_add_u32 s{T0}, s{T0}, s{sTT}
    s_lshl_b32 s{T4}, s{T0}, 2
    s_add_u32 s{T4}, s{T4}, {F_KV}
    s_lshl_b32 s{T5}, s{T0}, 12
    s_add_u32 s{T5}, s{T5}, s{sKV}
    """), earliest=2)
    flush(k, weave(k, M, fl, free=6))
    ts(k, 'F.kv')
    for r in range(16):
        k(f'v_mul_f32 v{AK + r}, v{vR}, v{AK + r}')
    for q in range(8):
        k(f'v_cvt_pk_bf16_f32 v{KF + q}, v{AK + 2 * q}, v{AK + 2 * q + 1}')
    k(f'v_cndmask_b32 v{KF + 6}, v{KF + 6}, 0, s[{sHI}:{sHI + 1}]')
    k(f'v_cndmask_b32 v{KF + 7}, v{KF + 7}, 0, s[{sHI}:{sHI + 1}]')
    for i in range(2):
        k(f'buffer_store_dwordx4 {v4(KF + 4 * i)}, v{vL16}, s[8:11], s{T5} offen offset:{1024 * i} sc1')
    for r in range(16):
        k(f'v_mul_f32 v{AV + r}, v{RT + r}, v{AV + r}')
    for q in range(8):
        k(f'v_cvt_pk_bf16_f32 v{VF + q}, v{AV + 2 * q}, v{AV + 2 * q + 1}')
        k(f'v_cndmask_b32 v{VF + q}, v{VF + q}, v{vONES}, s[{sN28}:{sN28 + 1}]')
    for i in range(2, 4):
        k(f'buffer_store_dwordx4 {v4(KF + 4 * i)}, v{vL16}, s[8:11], s{T5} offen offset:{1024 * i} sc1')
    hkv = k.vm_mark()
    for i in range(4):
        k(f'ds_write_b128 v{vKVA}, {v4(KF + 4 * i)} offset:{8 * 4096 + 1024 * i}')
    own_quarter(0, vCSQ, AK)
    set_flag(k, T4, '1', always_sc1=True, h=hkv)
    if PROPOS == 1:
        emit(k, SCHED['PRO']())
    ts(k, 'F.kvpub')
    k.barrier()
    k(f"""
    v_and_b32 v{vXO}, 15, v{vLANE}
    v_lshlrev_b32 v{vXO}, 4, v{vXO}
    buffer_load_dword v{vCSK}, v{vXO}, s[16:19], 0 offen sc1
    """)
    DB = AK
    for i in range(8):
        k(f'ds_read_b64_tr_b16 {v2(DB + 4 * i)}, v{vDT}')
        k(f'ds_read_b64_tr_b16 {v2(DB + 4 * i + 2)}, v{vDT} offset:512')
        k(f's_{"add" if i % 2 == 0 else "sub"}_u32 s{T0}, s{sSA}, s{sSB}')
        k(f'v_add_u32 v{vDT}, s{T0}, v{vDT}')
    k(f'v_mov_b32 v{vT1}, 0')
    dst = []
    for i in range(8):
        if i & 1:
            k(f'v_cndmask_b32 v{DB + 4 * i + 2}, v{DB + 4 * i + 2}, 0, s[{sZM}:{sZM + 1}]')
            k(f'v_cndmask_b32 v{DB + 4 * i + 3}, v{DB + 4 * i + 3}, 0, s[{sZM}:{sZM + 1}]')
        dst.append(([f's_add_u32 s{sDST}, s{sDST}, 4096'] if i == 4 else []) +
                   [f'buffer_store_dwordx4 {v4(DB + 4 * i)}, v{vL16}, s[8:11], s{sD8 if i == 7 else sDST} offen offset:{(i % 4) * 1024} sc1'])
    emit(k, dst[0] + dst[1])
    for i in range(28):
        k(f'v_dot2_f32_bf16 v{vT1}, v{DB + i}, v{vONES}, v{vT1}')
    k(f"""
    v_mov_b32 v{vT0}, v{vT1}
    v_permlane32_swap_b32 v{vT1}, v{vT0}
    v_add_f32 v{vT1}, v{vT1}, v{vT0}
    v_lshlrev_b32 v{vT3}, 2, v{vN}
    buffer_store_dword v{vT1}, v{vT3}, s[8:11], s{sCSD} offen sc1
    """)
    ts(k, 'F.duty')
    SH = RT + 8
    share = lines(f"""
    s_cmp_ge_u32 s{sRB}, 7
    s_cselect_b32 s{T0}, 1, 0
    s_cmp_ge_u32 s{sRB}, 14
    s_cselect_b32 s{T0}, 2, s{T0}
    s_mul_i32 s{T1}, s{T0}, 7
    s_sub_u32 s{T1}, s{sRB}, s{T1}
    s_mul_i32 s{T0}, s{T0}, {SLOT}
    s_lshl_b32 s{T1}, s{T1}, 10
    s_add_u32 s{T0}, s{T0}, s{T1}
    v_add_u32 v{vT1}, s{T0}, v{vOQ}
    ds_read_b64_tr_b16 {v2(SH)}, v{vT1}
    ds_read_b64_tr_b16 {v2(SH + 2)}, v{vT1} offset:256
    s_mul_i32 s{T2}, s{sIDX}, {84 * 1024}
    s_add_u32 s{T2}, s{T2}, s{sLW}
    s_add_u32 s{T2}, s{T2}, {WQKV_P}
    s_add_u32 s{T3}, s{T2}, s{T0}
    s_min_u32 s{T1}, s{sRB}, 4
    s_lshl_b32 s{T1}, s{T1}, 10
    s_add_u32 s{T1}, s{T1}, {2 * SLOT + 2048}
    v_add_u32 v{vT1}, s{T1}, v{vOQ}
    ds_read_b64_tr_b16 {v2(SH + 4)}, v{vT1}
    ds_read_b64_tr_b16 {v2(SH + 6)}, v{vT1} offset:256
    s_add_u32 s{T2}, s{T2}, s{T1}
    s_cmp_gt_u32 s{sRB}, 4
    s_cselect_b32 s{T2}, {OOBS}, s{T2}
    """) + ['s_nop 0'] * 2
    share += [f'v_cndmask_b32 v{SH + q}, v{SH + q}, 0, s[{sPAD}:{sPAD + 1}]' for q in range(8)]
    share += [f'buffer_store_dwordx4 {v4(SH)}, v{vL16}, s[8:11], s{T3} offen sc1',
              f'buffer_store_dwordx4 {v4(SH + 4)}, v{vL16}, s[8:11], s{T2} offen sc1']
    k(f'v_add_u32 v{vS2}, {SCR_CSQ}, v{vL16}')
    M = gemm([('Q', ks) for ks in range(28)], [('Q', RT)])
    for i in range(2, 8):
        M[3 * (i - 2) + 1]['pre'] = M[3 * (i - 2) + 1]['pre'] + dst[i]
    fl = F(cs_frag(0, RT, RT + 4), earliest=1, deadline=26) + F(share, earliest=1)
    flush(k, weave(k, M, fl, free=6))
    k(f'v_mov_b32 v{vFL}, v{vCSK}')
    emit(k, setup2_valu())
    k(f'v_mul_f32 v{vT0}, {f32bits(28 ** -0.5 * LOG2E)}, v{vR}')
    for r in range(16):
        k(f'v_mul_f32 v{AQ + r}, v{vT0}, v{AQ + r}')
    for q in range(8):
        k(f'v_cvt_pk_bf16_f32 v{QF + q}, v{AQ + 2 * q}, v{AQ + 2 * q + 1}')
    k(f"""
    v_mov_b32 v{vT1}, 0x3f80
    v_cndmask_b32 v{QF + 6}, v{QF + 6}, v{vT1}, s[{sHI}:{sHI + 1}]
    v_cndmask_b32 v{QF + 7}, v{QF + 7}, 0, s[{sHI}:{sHI + 1}]
    """)
    ts(k, 'F.q')
    global_check(k, pre=True)
    ts(k, 'F.chk')
    k.barrier()
    k(f's_cmp_lg_u32 s{sW}, 0')
    k.skip_begin('s_cbranch_scc1')
    k(f"""
    s_lshl_b32 s{T0}, s2, 7
    s_add_u32 s{T0}, s{T0}, {F_PK}
    v_mov_b32 v{vFL}, 1
    s_mov_b64 exec, 1
    buffer_store_dword v{vFL}, v{vZERO}, s[8:11], s{T0} offen sc1
    s_mov_b64 exec, -1
    """)
    k.skip_end()
    k(f's_cmp_eq_u32 s{sFAST}, 0')
    k('s_cbranch_scc1 SLOW_entry')


CSL = 112


def cs13_build():
    c = CSL
    out = [f'v_add_f32 v{c}, v{c}, v{c + 1}', f'v_add_f32 v{c + 2}, v{c + 2}, v{c + 3}', f'v_add_f32 v{c}, v{c}, v{c + 2}']
    out += split3(c, c + 4, c + 5, vT1, vT2)
    out += [f'v_mov_b32 v{c + i}, 0' for i in range(6, 12)]
    out += lines(f"""
    s_lshl_b32 s{sT0}, s{sW}, 10
    s_add_u32 s{sT0}, s{sT0}, {SCR_CS13}
    v_lshlrev_b32 v{vT0}, 4, v{vN}
    v_lshl_add_u32 v{vT0}, v{vHH}, 12, v{vT0}
    v_add_u32 v{vT0}, s{sT0}, v{vT0}
    ds_write_b128 v{vT0}, {v4(c + 4)}
    ds_write_b128 v{vT0}, {v4(c + 8)} offset:512
    s_waitcnt lgkmcnt(0)
    """)
    return out


SCHED = {}


def sched_a(v='a'):
    w2 = pf_w2()
    none = lambda: []
    SCHED.update({
        'PRO': lambda: t_X() + t_O(),
        'P3_pre': none,
        'P3_mm': lambda: [L1(t_H())] + [L0(g) for g in w2[:4]],
        'P3_idle': lambda: ['s_barrier'] + [L1(t_H())],
        'P5_idle': none,
        'P4_pre': none, 'P4_p1': none,
        'P4_mid': lambda: [[L0(g)] for g in w2[4:]] + [[L0(touch(2, sSADR))]],
        'G_pre': lambda: t_O(), 'G_q': none,
    })
    if v in 'ef':
        ch = (load_chunks([a4(4 * i) for i in range(28)], sBW2, sDM) + load_chunks([a4(112 + 4 * i) for i in range(28)], sBW2 + 1, sDM))
        n0 = 16 if v == 'e' else 24
        SCHED.update({
            'P3_mm': lambda: [L1(t_H())] + [L0(flat(ch[i:i + 2])) for i in range(0, n0, 2)],
            'P4_mid': lambda: [[L0(c)] for c in ch[n0:]] + [[L0(touch(2, sSADR))]],
        })
    if v in 'bc':
        n3 = 7 if v == 'b' else 10
        SCHED.update({
            'P3_idle': lambda: ['s_barrier'] + [L1(t_H())] + idle_q() + idle_touch(W13_P + 3 * SLOT, 7 * SLOT, n3),
            'P5_idle': lambda: idle_q() + idle_touch(WQKV_P, 84 * 1024, 11) + idle_touch(WO_P, 28 * 1024, 4),
        })
    if v == 'd':
        SCHED.update({
            'P3_idle': lambda: ['s_barrier'] + [L1(t_H())] + idle_q() + [L0(idle_touch(W2_P, 98 * 1024, 7, 4)), L1(idle_touch(W13_P + 3 * SLOT, 7 * SLOT, 7))],
            'P5_idle': lambda: idle_q() + idle_touch(WQKV_P, 84 * 1024, 11) + idle_touch(WO_P, 28 * 1024, 4) + idle_touch(W13_P, 7 * SLOT, 7),
        })


def layer_switch(k):
    k(f's_mov_b32 s{sL}, 1')
    if TS_ON:
        k(f'v_accvgpr_write_b32 a255, v{vTS}')
        k(f'v_mov_b32 v{vTS}, 0')
    set_layer(k, 1)
    phase_G(k)


def phases(k):
    k.lg_done = k.lg_seq
    k.pend = {}
    attention(k)
    phase_P3(k)
    phase_P4(k)
    phase_P5(k, 'MAIN_fin')


def body(k, sfx):
    global LAYER
    if sfx == '_s':
        LAYER = None
        k.label('SLOW_entry', pad=False)
        set_layer(k, 0)
        k.label('ATT' + sfx)
        phases(k)
        layer_switch(k)
        k('s_branch ATT' + sfx)
    else:
        LAYER = 0
        phases(k)
        LAYER = 1
        layer_switch(k)
        phases(k)


def gen_main(k, name):
    global MODE
    kstart(k, name)
    k.ignore.add(('v', vDUM))
    end = 'MAIN_end'
    MODE = 'fast'
    setup(k, end)
    ts(k, 'start')
    front(k)
    body(k, '_f')
    k.label('MAIN_fin', pad=False)
    rowmajor_addr(k)
    k(f"""
    buffer_store_dwordx4 {v4(SK_XO)}, v{vT0}, s[12:15], s{sT0} offen
    buffer_store_dwordx4 {v4(SK_XO + 4)}, v{vT0}, s[12:15], s{sT0} offen offset:32
    """)
    ts(k, 'P5.pub')
    k.label('MAIN_tail', pad=False)
    if TS_ON:
        k(f"""
        v_writelane_b32 v{vTS}, s{sFAST}, 63
        s_lshl_b32 s{sT0}, s2, 2
        s_add_u32 s{sT0}, s{sT0}, s{sW}
        s_lshl_b32 s{sT0}, s{sT0}, 9
        s_add_u32 s{sT0}, s{sT0}, {TS}
        v_lshlrev_b32 v{vT0}, 2, v{vLANE}
        buffer_store_dword a255, v{vT0}, s[8:11], s{sT0} offen
        buffer_store_dword v{vTS}, v{vT0}, s[8:11], s{sT0} offen offset:256
        """)
    k.drained()
    k.label(end, pad=False)
    k('s_endpgm')
    MODE = 'slow'
    k.drained()
    body(k, '_s')


HEADER = """; Persistent single-launch implementation (generated by a Python script written for this task).
"""


def main():
    global TS_ON, FORCE_SLOW, FORCE_FALLBACK
    TS_ON = '-ts' in sys.argv
    FORCE_SLOW = '-slow' in sys.argv
    FORCE_FALLBACK = '-fb' in sys.argv
    global WARM
    WARM = '-nowarm' not in sys.argv
    global PROPOS
    PROPOS = int([a[2:] for a in sys.argv if a.startswith('-p')][0]) if any(a.startswith('-p') for a in sys.argv) else 2
    global GNQ1
    GNQ1 = int([a[2:] for a in sys.argv if a.startswith('-q')][0]) if any(a.startswith('-q') for a in sys.argv) else 6
    global DUTYPOS
    DUTYPOS = int([a[2:] for a in sys.argv if a.startswith('-d')][0]) if any(a.startswith('-d') for a in sys.argv) else 2
    sched_a([a[2:] for a in sys.argv if a.startswith('-s') and len(a) == 3][0] if any(a.startswith('-s') and len(a) == 3 for a in sys.argv) else 'a')
    k = K()
    final = '-final' in sys.argv
    kn = 'interleave_layers__sliding_block__glu_gated_swiglu__prompt_kernel' if final else 'main_kernel'
    gen_main(k, kn)
    if final:
        head = HEADER + f'; @launch grid=(256,1,1) block=(256,1,1) lds={LDS_BYTES}\n'
    else:
        head = f'; @launch kernel=main_kernel grid=(256,1,1) block=(256,1,1) lds={LDS_BYTES}\n'
    head += '.amdgcn_target "amdgcn-amd-amdhsa--gfx950"\n.text\n'
    open(sys.argv[1], 'w').write(head + k.text() + kd(kn, 512, 102, 256))
    print('nops inserted', k.nops_inserted, 'lines', len(k.lines))
    if TS_ON:
        open(sys.argv[1] + '.names', 'w').write('\n'.join(_ts_names))


if __name__ == '__main__':
    main()
```

```python
from common5 import *

sW, sRB, sIDX, sTT, sL = 3, 4, 5, 6, 7
sP2 = 24
sBW13, sLW, sBWQ, sLWQ, sBW2, sBWO = 25, 26, 27, 28, 29, 31
sTW13, sTWQ, sTW2, sTWO = 33, 34, 35, 36
sKV, sOF, sX1, sST1, sHF, sX2, sST2 = 37, 38, 39, 40, 41, 42, 43
sL1, sFAST, sACT, sSPIN = 44, 45, 46, 47
sT0, sT1, sT2, sT3, sT4, sT5 = 48, 49, 50, 51, 52, 53
sFT, sTT3, sFTo, sTTo = 54, 55, 56, 57
sTS = 58
sE, sHOFF, sCNT, sDM = 60, 61, 62, 63
sMASK = 64
sHI, sN28 = 96, 98
sOADR, sXADR = 100, 101
sSADR, sDS = 1, 0
Ctx.sL = sL
vDUM = 0
vL16, vLANE, vN, vHH, vSTO, vSTI, vL16b, vONES = 1, 2, 3, 4, 5, 6, 7, 8
vF14, vFH, vZERO, vKVA, vTS, vL2S, vL4S, vSCR = 9, 10, 11, 12, 13, 14, 15, 16
vKE, vFL, vTA, vM, vR, vT0, vT1, vT2, vT3, vNEG, vMX, vAD = 17, 18, 19, 20, 21, 22, 23, 24, 25, 26, 27, 28
MB = 28

TS_ON = False
FORCE_SLOW = False
FORCE_FALLBACK = False
_ts_names = []
XDEPTH = 10
WARM = True
CODEPF = 47 * 1024
PROPOS = 1
GNQ1 = 6
LAYER = None
DUTYPOS = 0
F_PK = FLAGS + 65536
MODE = 'fast'


def ts(k, name):
    if not TS_ON:
        return
    if name in _ts_names:
        i = _ts_names.index(name)
    else:
        i = len(_ts_names)
        _ts_names.append(name)
    assert i < 62
    k(f's_memrealtime s[{sTS}:{sTS + 1}]')
    k(f'v_writelane_b32 v{vTS}, s{sTS}, {i}')


def wait_flags(k, voff, soff, sexp):
    Lp, Ld = k.newlabel('poll'), k.newlabel('polled')
    k(f's_mov_b32 s{sSPIN}, 0')
    k.label(Lp, pad=False)
    k(f"""
    buffer_load_dword v{vFL}, v{voff}, s[8:11], s{soff} offen sc1
    s_add_u32 s{sSPIN}, s{sSPIN}, 1
    s_cmp_gt_u32 s{sSPIN}, {SPIN_MAX}
    s_cbranch_scc1 {Ld}
    s_waitcnt vmcnt(0)
    v_cmp_gt_u32 vcc, {sexp}, v{vFL}
    s_nop 1
    s_cbranch_vccnz {Lp}
    """)
    k.label(Ld, pad=False)
    k('s_waitcnt vmcnt(0)')


def publish(k, stores):
    for s_ in stores:
        k(s_ + ('' if MODE == 'fast' else ' sc1'))


def set_flag(k, soff, val, always_sc1=False, h=None):
    k(f'v_mov_b32 v{vFL}, {val}')
    if h is None:
        k('s_waitcnt vmcnt(0)')
    else:
        k.wait_vm(h)
    pol = ' sc1' if (always_sc1 or MODE != 'fast') else ''
    k('s_mov_b64 exec, 1')
    k(f'buffer_store_dword v{vFL}, v{vZERO}, s[8:11], s{soff} offen{pol}')
    k('s_mov_b64 exec, -1')


def dma_chunks(n, ssrc, src_off, slds, lds_off):
    out = []
    for i in range(n):
        c = []
        if i % 4 == 0:
            c += [f's_add_u32 m0, s{slds}, {lds_off + i * 1024}', f's_add_u32 s{sP2}, s{ssrc}, {src_off + i * 1024}']
        c.append(f'buffer_load_dwordx4 v{vL16}, s[8:11], s{sP2} offen offset:{(i % 4) * 1024} lds')
        out.append(c)
    return out


def load_chunks(dsts, ssrc, tmp, src_off=0, pol=''):
    out = []
    for i, d in enumerate(dsts):
        c = []
        if i % 4 == 0:
            c.append(f's_add_u32 s{tmp}, s{ssrc}, {src_off + i * 1024}')
        c.append(f'buffer_load_dwordx4 {d}, v{vL16}, s[8:11], s{tmp} offen offset:{(i % 4) * 1024}{pol}')
        out.append(c)
    return out


def touch(n, sbase, off=0):
    return [f'v_min_u32 v{vTA}, {n - 1}, v{vLANE}',
            f'v_lshlrev_b32 v{vTA}, 7, v{vTA}',
            f's_add_u32 s{sDS}, s{sbase}, {off}',
            f'buffer_load_dword v{vDUM}, v{vTA}, s[8:11], s{sDS} offen sc1']


def flat(chs):
    return [x for c in chs for x in c]


W13_SLOT = [0, 1, 2, 3, 4, 0, 1]


def pf_wqkv():
    return dma_chunks(21, sBWQ, 0, sLWQ, 0)


def pf_w13(i):
    return dma_chunks(7, sBW13, i * SLOT, sLW, W13_SLOT[i] * SLOT)


def pf_w2():
    ch = (load_chunks([a4(4 * i) for i in range(28)], sBW2, sDM) +
          load_chunks([a4(112 + 4 * i) for i in range(28)], sBW2 + 1, sDM))
    return [flat(ch[i:i + 4]) for i in range(0, 56, 4)]


def t_w13(i):
    return touch(28, sTW13, i * SLOT)


def t_wqkv():
    return touch(64, sTWQ, 0) + touch(20, sTWQ, 8192)


def t_w2():
    return touch(64, sTW2, 0) + touch(34, sTW2, 8192)


def t_wo():
    return touch(28, sTWO, 0)


def t_O():
    return touch(16, sOADR)


def t_X():
    return touch(16, sXADR) + touch(2, sSADR)


def t_H():
    return touch(56, sHOFF)


def idle_q():
    return lines(f"""
    s_and_b32 s{sT5}, s{sRB}, 1
    s_lshl_b32 s{sT5}, s{sT5}, 1
    s_add_u32 s{sT5}, s{sT5}, s{sIDX}
    s_sub_u32 s{sT5}, s{sT5}, 14
    s_lshl_b32 s{sT5}, s{sT5}, 2
    s_add_u32 s{sT5}, s{sT5}, s{sW}
    v_lshlrev_b32 v{vTA}, 7, v{vLANE}
    """)


def idle_touch(base, per_wave, n, first=0):
    out = [f's_mul_i32 s{sT4}, s{sT5}, {per_wave}', f's_add_u32 s{sT4}, s{sT4}, {base + first * 8192}']
    for i in range(n):
        out += [f'buffer_load_dword v{vDUM}, v{vTA}, s[8:11], s{sT4} offen',
                f's_add_u32 s{sT4}, s{sT4}, 8192']
    return out


def L0(ls):
    if LAYER is not None:
        return ('seq', list(ls) if LAYER == 0 else [])
    return ('L0', list(ls))


def L1(ls):
    if LAYER is not None:
        return ('seq', list(ls) if LAYER == 1 else [])

    def fn(k):
        k(f's_cmp_eq_u32 s{sL}, 0')
        k.skip_begin('s_cbranch_scc1')
        for x in ls:
            k(x)
        k.skip_end()
    return ('call', fn)


def res_addr(k, dst, base):
    k(f"""
    s_mul_i32 s{dst}, s{sTT3}, 28
    s_lshl_b32 s{sT1}, s{sFT}, 1
    s_add_u32 s{dst}, s{dst}, s{sT1}
    s_lshl_b32 s{dst}, s{dst}, 10
    s_add_u32 s{dst}, s{dst}, {base}
    """)


def st_addr(k, dst, base):
    k(f"""
    s_mul_i32 s{dst}, s{sTT3}, 14
    s_add_u32 s{dst}, s{dst}, s{sFT}
    s_lshl_b32 s{dst}, s{dst}, 8
    s_add_u32 s{dst}, s{dst}, {base}
    """)


def setup(k, end_label):
    k('s_cmp_ge_u32 s2, 256')
    k(f's_cbranch_scc1 {end_label}')
    k(f"""
    s_load_dwordx16 s[72:87], s[0:1], 0
    s_load_dwordx2 s[16:17], s[0:1], 64
    s_load_dwordx2 s[8:9], s[0:1], 72
    v_lshrrev_b32 v{vT0}, 6, v0
    v_and_b32 v{vLANE}, 63, v0
    v_readfirstlane_b32 s{sW}, v{vT0}
    v_lshlrev_b32 v{vL16}, 4, v{vLANE}
    v_and_b32 v{vN}, 31, v{vLANE}
    v_lshrrev_b32 v{vHH}, 5, v{vLANE}
    s_and_b32 s{sT0}, s2, 7
    s_lshr_b32 s{sT1}, s2, 3
    s_lshr_b32 s{sT2}, s{sT1}, 4
    s_lshl_b32 s{sRB}, s{sT0}, 1
    s_add_u32 s{sRB}, s{sRB}, s{sT2}
    s_and_b32 s{sIDX}, s{sT1}, 15
    s_lshl_b32 s{sTT}, s{sRB}, 2
    s_add_u32 s{sTT}, s{sTT}, s{sW}
    s_mov_b32 s10, {WS_BYTES}
    s_mov_b32 s11, 0x00020000
    s_mov_b32 s14, {S * D * 2}
    s_mov_b32 s15, 0x00020000
    s_mov_b32 s18, 256
    s_mov_b32 s19, 0x00020000
    s_mov_b32 s22, {S * D * 2}
    s_mov_b32 s23, 0x00020000
    s_mov_b32 s{sL}, 0
    s_mov_b32 s{sHI}, 0
    s_mov_b32 s{sHI + 1}, -1
    s_lshl_b32 s{sT1}, s{sW}, 12
    s_add_u32 s{sT1}, s{sT1}, {KVB}
    v_add_u32 v{vKVA}, s{sT1}, v{vL16}
    v_mov_b32 v{vZERO}, 0
    v_mov_b32 v{vTS}, 0
    v_mov_b32 v{vONES}, {ONES_BF16}
    v_cmp_eq_u32 s[{sN28}:{sN28 + 1}], 28, v{vN}
    s_cmp_ge_u32 s{sIDX}, 7
    s_cselect_b32 s{sT0}, 1, 0
    s_mul_i32 s{sT1}, s{sT0}, 7
    s_sub_u32 s{sT1}, s{sIDX}, s{sT1}
    s_cmp_lt_u32 s{sIDX}, 14
    s_cselect_b32 s{sACT}, 1, 0
    s_cselect_b32 s{sT1}, s{sT1}, 0
    s_lshl_b32 s{sFT}, s{sT1}, 1
    s_and_b32 s{sT2}, s{sW}, 1
    s_add_u32 s{sFT}, s{sFT}, s{sT2}
    s_xor_b32 s{sFTo}, s{sFT}, 1
    s_lshl_b32 s{sTT3}, s{sRB}, 2
    s_lshl_b32 s{sT0}, s{sT0}, 1
    s_add_u32 s{sTT3}, s{sTT3}, s{sT0}
    s_lshr_b32 s{sT2}, s{sW}, 1
    s_add_u32 s{sTT3}, s{sTT3}, s{sT2}
    s_xor_b32 s{sTTo}, s{sTT3}, 1
    s_mul_i32 s{sLW}, s{sW}, 7168
    s_waitcnt lgkmcnt(0)
    s_mov_b32 s20, s72
    s_mov_b32 s21, s73
    s_mov_b32 s12, s86
    s_mov_b32 s13, s87
    """)


def setup2_salu():
    return lines(f"""
    s_mov_b32 s{sFAST}, 0
    s_mul_i32 s{sBW13}, s{sIDX}, {7 * SLOT}
    s_add_u32 s{sBW13}, s{sBW13}, {W13_P}
    s_add_u32 s{sBW13}, s{sBW13}, s{sLW}
    s_mul_i32 s{sLWQ}, s{sW}, {21 * 1024}
    s_mul_i32 s{sBWQ}, s{sIDX}, {84 * 1024}
    s_add_u32 s{sBWQ}, s{sBWQ}, {WQKV_P}
    s_add_u32 s{sBWQ}, s{sBWQ}, s{sLWQ}
    s_mul_i32 s{sP2}, s{sW}, {28 * 1024}
    s_add_u32 s{sP2}, s{sP2}, {W2_P}
    s_mul_i32 s{sBW2}, s{sFT}, {112 * 1024}
    s_add_u32 s{sBW2}, s{sBW2}, s{sP2}
    s_mul_i32 s{sBW2 + 1}, s{sFTo}, {112 * 1024}
    s_add_u32 s{sBW2 + 1}, s{sBW2 + 1}, s{sP2}
    s_lshl_b32 s{sP2}, s{sW}, 13
    s_add_u32 s{sP2}, s{sP2}, {WO_P}
    s_lshl_b32 s{sBWO}, s{sFT}, 15
    s_add_u32 s{sBWO}, s{sBWO}, s{sP2}
    s_lshl_b32 s{sBWO + 1}, s{sFTo}, 15
    s_add_u32 s{sBWO + 1}, s{sBWO + 1}, s{sP2}
    """)


def setup2_valu():
    out = lines(f"""
    v_lshlrev_b32 v{vSTO}, 3, v{vN}
    v_mul_u32_u24 v{vSTI}, 1792, v{vHH}
    v_add_u32 v{vSTI}, v{vSTI}, v{vSTO}
    v_lshl_or_b32 v{vSTO}, v{vHH}, 2, v{vSTO}
    v_add_u32 v{vL16b}, {2 * SLOT}, v{vL16}
    v_min_u32 v{vF14}, 13, v{vLANE}
    v_lshlrev_b32 v{vF14}, 2, v{vF14}
    v_add_u32 v{vL2S}, {2 * SLOT}, v{vL16}
    v_add_u32 v{vL4S}, {4 * SLOT}, v{vL16}
    v_add_u32 v{vSCR}, {SCR}, v{vL16}
    v_mov_b32 v{vNEG}, {f32bits(-1e30)}
    v_and_b32 v{vFH}, 3, v{vLANE}
    v_lshlrev_b32 v{vFH}, 2, v{vFH}
    v_bfe_u32 v{vT0}, v{vLANE}, 2, 1
    v_lshl_or_b32 v{vFH}, v{vT0}, 7, v{vFH}
    s_lshl_b32 s{sT1}, s{sW}, 4
    v_add_u32 v{vFH}, s{sT1}, v{vFH}
    v_lshlrev_b32 v{vT0}, 2, v{vHH}
    v_sub_u32 v{vT0}, v{vN}, v{vT0}
    """)
    for r in range(16):
        c = 8 * (r >> 2) + (r & 3)
        out.append(f'v_cmp_ge_i32 s[{sMASK + 2 * r}:{sMASK + 2 * r + 1}], v{vT0}, {c}')
    return out


def signal(k):
    k(f"""
    s_getreg_b32 s{sE}, hwreg(HW_REG_XCC_ID, 0, 4)
    s_mul_i32 s{sCNT}, s{sE}, s{sE}
    s_lshl_b32 s{sCNT}, s{sCNT}, 16
    s_lshl_b32 s{sE}, s{sE}, 8
    s_or_b32 s{sE}, s{sE}, s{sCNT}
    s_or_b32 s{sE}, s{sE}, 1
    v_mov_b32 v{vFL}, s{sE}
    s_lshl_b32 s{sCNT}, s{sRB}, 4
    s_cmp_eq_u32 s{sW}, 0
    s_cselect_b32 s{sCNT}, s{sCNT}, 4096
    s_mov_b64 exec, 1
    buffer_atomic_add v{vFL}, v{vZERO}, s[16:19], s{sCNT} offen sc1
    s_mov_b64 exec, -1
    """)


def global_check(k, pre=False):
    Lp, Ld, Lg = k.newlabel('gpoll'), k.newlabel('gdone'), k.newlabel('ggood')
    k(f"""
    v_and_b32 v{vT1}, 15, v{vLANE}
    v_lshlrev_b32 v{vT1}, 4, v{vT1}
    s_mov_b32 s{sSPIN}, 0
    """)
    if pre:
        k(f"""
        v_and_b32 v{vT0}, 0xff, v{vFL}
        v_cmp_ne_u32 vcc, 16, v{vT0}
        s_nop 1
        s_cbranch_vccz {Lg}
        """)
    k.label(Lp, pad=False)
    k(f"""
    buffer_load_dword v{vFL}, v{vT1}, s[16:19], 0 offen sc1
    s_add_u32 s{sSPIN}, s{sSPIN}, 1
    s_cmp_gt_u32 s{sSPIN}, {SPIN_MAX}
    s_cbranch_scc1 {Ld}
    s_waitcnt vmcnt(0)
    v_and_b32 v{vT0}, 0xff, v{vFL}
    v_cmp_ne_u32 vcc, 16, v{vT0}
    s_nop 1
    s_cbranch_vccz {Lg}
    s_sleep 24
    s_branch {Lp}
    """)
    k.label(Lg, pad=False)
    k(f"""
    s_getreg_b32 s{sT0}, hwreg(HW_REG_XCC_ID, 0, 4)
    s_mul_i32 s{sT1}, s{sT0}, s{sT0}
    s_lshl_b32 s{sT1}, s{sT1}, 20
    s_lshl_b32 s{sT0}, s{sT0}, 12
    s_or_b32 s{sT0}, s{sT0}, s{sT1}
    s_or_b32 s{sT0}, s{sT0}, 16
    v_readlane_b32 s{sT1}, v{vFL}, s{sRB}
    s_nop 3
    s_cmp_eq_u32 s{sT0}, s{sT1}
    s_cselect_b32 s{sFAST}, {0 if FORCE_SLOW else 1}, 0
    """)
    k.label(Ld, pad=False)
    k('s_waitcnt vmcnt(0)')


def set_layer(k, l):
    fast = MODE == 'fast'
    k(f"""
    s_mov_b32 s{sL1}, {l + 1}
    s_mov_b32 s{sX1}, {XF[1] if fast else XF[2 * l + 1]}
    s_mov_b32 s{sX2}, {XF[1] if fast else XF[2]}
    s_mov_b32 s{sST1}, {ST[1] if fast else ST[2 * l + 1]}
    s_mov_b32 s{sST2}, {ST[2]}
    s_mov_b32 s{sKV}, {KV[l]}
    s_mov_b32 s{sOF}, {OF[0] if fast else OF[l]}
    s_mov_b32 s{sHF}, {HF[0] if fast else HF[l]}
    s_lshl_b32 s{sOADR}, s{sIDX}, 6
    s_add_u32 s{sOADR}, s{sOADR}, s{sTT}
    s_lshl_b32 s{sOADR}, s{sOADR}, 11
    s_add_u32 s{sOADR}, s{sOADR}, s{sOF}
    s_mul_i32 s{sHOFF}, s{sTT}, 112
    s_mul_i32 s{sT5}, s{sIDX}, 7
    s_add_u32 s{sHOFF}, s{sHOFF}, s{sT5}
    s_lshl_b32 s{sHOFF}, s{sHOFF}, 10
    s_add_u32 s{sHOFF}, s{sHOFF}, s{sHF}
    """)
    res_addr(k, sXADR, f's{sX1}')
    st_addr(k, sSADR, f's{sST1}')


def stats_loads(sbase, stt, dst):
    out = [f's_mul_i32 s{sT0}, s{stt}, {14 * 256}', f's_add_u32 s{sT0}, s{sT0}, s{sbase}']
    out += [f'buffer_load_dwordx2 {v2(dst + 2 * i)}, v{vSTI}, s[8:11], s{sT0} offen offset:{256 * i} sc1' for i in range(7)]
    return out


def stats_math(src):
    out = []
    for i in range(1, 7):
        out.append(f'v_add_f32 v{src}, v{src}, v{src + 2 * i}')
        out.append(f'v_add_f32 v{src + 1}, v{src + 1}, v{src + 2 * i + 1}')
    return out + ln_math(src, src + 1, vT0, vT1, vM, vR)


def mb_fill():
    return [f'v_mov_b32 v{MB + i}, v{vM}' for i in range(4)]


def halo(k, poll):
    k(f"""
    s_lshl_b32 s{sT2}, s{sRB}, 2
    s_lshl_b32 s{sT3}, s{sW}, 1
    s_add_u32 s{sT2}, s{sT2}, s{sT3}
    s_sub_i32 s{sT2}, s{sT2}, 8
    s_lshl_b32 s{sT5}, s{sW}, 13
    s_add_u32 s{sT5}, s{sT5}, {KVB}
    s_cmp_lt_i32 s{sT2}, 0
    """)
    Lfill, Ljoin = k.newlabel('A_fill'), k.newlabel('A_join')
    k(f's_cbranch_scc1 {Lfill}')
    st = (k.vm_seq, k.vm_done, k.lg_seq, k.lg_done, dict(k.pend))
    k(f"""
    s_lshl_b32 s{sT0}, s{sIDX}, 6
    s_add_u32 s{sT0}, s{sT0}, s{sT2}
    s_lshl_b32 s{sT4}, s{sT0}, 2
    s_add_u32 s{sT4}, s{sT4}, {F_KV}
    s_lshl_b32 s{sE}, s{sT0}, 12
    s_add_u32 s{sE}, s{sE}, s{sKV}
    """)
    if poll:
        k(f'v_and_b32 v{vT0}, 1, v{vLANE}')
        k(f'v_lshlrev_b32 v{vT0}, 2, v{vT0}')
        wait_flags(k, vT0, sT4, f's{sL1}')
    emit(k, flat(dma_chunks(8, sE, 0, sT5, 0)))
    k(f's_branch {Ljoin}')
    k.label(Lfill, pad=False)
    z = 248
    k(f"""
    v_mov_b32 v{z}, 0
    v_mov_b32 v{z + 1}, 0
    v_mov_b32 v{z + 2}, 0
    v_mov_b32 v{z + 3}, 0
    v_mov_b32 v{z + 4}, 0
    v_mov_b32 v{z + 5}, 0
    v_mov_b32 v{z + 7}, 0
    v_mov_b32 v{vT1}, 0xf14a
    v_cndmask_b32 v{z + 6}, 0, v{vT1}, s[{sHI}:{sHI + 1}]
    v_add_u32 v{vT0}, s{sT5}, v{vL16}
    """)
    for t in range(2):
        k(f'ds_write_b128 v{vT0}, {v4(z)} offset:{4096 * t}')
        k(f'ds_write_b128 v{vT0}, {v4(z + 4)} offset:{4096 * t + 1024}')
        k(f'ds_write_b128 v{vT0}, {v4(z)} offset:{4096 * t + 2048}')
        k(f'ds_write_b128 v{vT0}, {v4(z)} offset:{4096 * t + 3072}')
    k('s_waitcnt lgkmcnt(0)')
    k.label(Ljoin, pad=False)
    k.vm_seq, k.vm_done, k.lg_seq, k.lg_done, k.pend = st[0], st[1], st[2], st[3], dict(st[4])


QF, KF, VF = 232, 216, 224
WO_R = 128
SA, PA, OA, NM, KB, VB, OS = 32, 48, 64, 80, 96, 104, 112


def att_tile_body(k, last, mem):
    k(f'{MF} {v16(SA)}, {v4(KB)}, {v4(QF)}, {v16(NM)}')
    k(f'{MF} {v16(SA)}, {v4(KB + 4)}, {v4(QF + 4)}, {v16(SA)}')
    k(f'{MF} {v16(OA)}, {v4(VB)}, {v4(PA)}, {v16(OA)}')
    k(f'{MF} {v16(OA)}, {v4(VB + 4)}, {v4(PA + 4)}, {v16(OA)}')
    k(f'ds_read_b128 {v4(VB)}, v{vAD} offset:2048')
    k(f'ds_read_b128 {v4(VB + 4)}, v{vAD} offset:3072')
    k(f'v_subrev_u32 v{vAD}, 4096, v{vAD}')
    if not last:
        k(f'ds_read_b128 {v4(KB)}, v{vAD}')
        k(f'ds_read_b128 {v4(KB + 4)}, v{vAD} offset:1024')
    emit(k, mem)
    if last:
        for r in range(16):
            k(f'v_cndmask_b32 v{SA + r}, v{SA + r}, v{vNEG}, s[{sMASK + 2 * r}:{sMASK + 2 * r + 1}]')
    for q in range(8):
        k(f'v_exp_f32 v{SA + 2 * q}, v{SA + 2 * q}')
        k(f'v_exp_f32 v{SA + 2 * q + 1}, v{SA + 2 * q + 1}')
        if q:
            k(f'v_cvt_pk_bf16_f32 v{PA + q - 1}, v{SA + 2 * q - 2}, v{SA + 2 * q - 1}')
    k(f'v_cvt_pk_bf16_f32 v{PA + 7}, v{SA + 14}, v{SA + 15}')


def loop_dma():
    out = []
    for i in range(3):
        out += [f's_add_u32 m0, s{sDM}, {W13_SLOT[i] * SLOT}',
                f's_add_u32 s{sP2}, s{sDS}, {i * SLOT}',
                f'buffer_load_dwordx4 v{vL16}, s[8:11], s{sP2} offen lds']
    out += [f's_add_u32 s{sDM}, s{sDM}, 1024', f's_add_u32 s{sDS}, s{sDS}, 1024']
    return out


def loop_dma0():
    out = [f's_min_u32 m0, s{sDM}, {80 * 1024}', f's_add_u32 s{sP2}, s{sDS}, m0']
    out += [f'buffer_load_dwordx4 v{vL16}, s[8:11], s{sP2} offen offset:{i * 1024} lds' for i in range(4)]
    out.append(f's_add_u32 s{sDM}, s{sDM}, 4096')
    return out


def attention(k):
    ts(k, 'ATT.start')
    k(f'{MF} {v16(SA)}, {v4(KF)}, {v4(QF)}, 0')
    k(f'{MF} {v16(SA)}, {v4(KF + 4)}, {v4(QF + 4)}, {v16(SA)}')
    k(f"""
    v_add_u32 v{vAD}, {7 * 4096}, v{vKVA}
    ds_read_b128 {v4(KB)}, v{vAD}
    ds_read_b128 {v4(KB + 4)}, v{vAD} offset:1024
    s_mul_i32 s{sT0}, s{sW}, s{sW}
    s_mul_i32 s{sDM}, s{sW}, 30
    s_lshl_b32 s{sT0}, s{sT0}, 1
    s_sub_u32 s{sDM}, s{sDM}, s{sT0}
    s_lshl_b32 s{sDM}, s{sDM}, 10
    s_sub_u32 s{sDS}, s{sBW13}, s{sLW}
    """)
    wo = load_chunks([v4(WO_R + 4 * i) for i in range(8)], sBWO, sT2) + load_chunks([v4(WO_R + 32 + 4 * i) for i in range(8)], sBWO + 1, sT2)
    for q in range(8):
        k(f'v_mov_b32 v{VB + q}, v{VF + q}')
    for r in range(16):
        k(f'v_mov_b32 v{OA + r}, 0')
    for r in range(16):
        k(f'v_cndmask_b32 v{SA + r}, v{vNEG}, v{SA + r}, s[{sMASK + 2 * r}:{sMASK + 2 * r + 1}]')
    k(f'v_max_f32 v{vMX}, v{SA}, v{SA + 1}')
    for r in range(2, 16, 2):
        k(f'v_max3_f32 v{vMX}, v{SA + r}, v{SA + r + 1}, v{vMX}')
    k(f"""
    v_mov_b32 v{vT1}, v{vMX}
    v_permlane32_swap_b32 v{vMX}, v{vT1}
    v_max_f32 v{vMX}, v{vMX}, v{vT1}
    """)
    for r in range(16):
        k(f'v_sub_f32 v{SA + r}, v{SA + r}, v{vMX}')
    for r in range(16):
        k(f'v_sub_f32 v{NM + r}, 0, v{vMX}')
    for r in range(16):
        k(f'v_exp_f32 v{SA + r}, v{SA + r}')
        if r % 4 == 3:
            emit_item(k, L1(flat(wo[r - 3:r + 1])))
    for r in parse_reg(f'v[{WO_R}:{WO_R + 63}]'):
        k.pend.pop(r, None)
    for q in range(8):
        k(f'v_cvt_pk_bf16_f32 v{PA + q}, v{SA + 2 * q}, v{SA + 2 * q + 1}')
    ts(k, 'ATT.diag')
    halo(k, True)
    LA, LAe, LB = k.newlabel('att1'), k.newlabel('att1e'), k.newlabel('att2')
    k(f's_mov_b32 s{sCNT}, s{sW}')
    k('s_waitcnt lgkmcnt(0)')
    k(f's_cmp_eq_u32 s{sCNT}, 0')
    k(f's_cbranch_scc1 {LAe}')
    k.label(LA, pad=False)
    k('s_nop 1')
    st = k.vm_seq
    att_tile_body(k, False, [])
    k.vm_seq = st
    k(f"""
    s_sub_u32 s{sCNT}, s{sCNT}, 1
    s_cmp_lg_u32 s{sCNT}, 0
    s_waitcnt lgkmcnt(0)
    s_cbranch_scc1 {LA}
    """)
    k.label(LAe, pad=False)
    ts(k, 'ATT.st1')
    Lw = k.newlabel('wready')
    if LAYER is None:
        k(f's_cmp_lg_u32 s{sL}, 0')
        k(f's_cbranch_scc1 {Lw}')
    elif LAYER == 1:
        k(f's_branch {Lw}')
    st = (k.vm_seq, k.vm_done, dict(k.pend))
    k(f"""
    s_mul_i32 s{sT0}, s{sIDX}, 7
    s_add_u32 s{sT1}, s{sT0}, 6
    s_and_b32 s{sT0}, s{sT0}, -4
    s_or_b32 s{sT1}, s{sT1}, 3
    v_add_u32 v{vT0}, s{sT0}, v{vLANE}
    v_min_u32 v{vT0}, s{sT1}, v{vT0}
    s_lshr_b32 s{sT2}, s{sFT}, 1
    s_lshl_b32 s{sT0}, s{sT2}, 3
    s_add_u32 s{sT0}, s{sT0}, 112
    v_and_b32 v{vT1}, 7, v{vLANE}
    v_add_u32 v{vT1}, s{sT0}, v{vT1}
    v_cmp_le_u32 vcc, 16, v{vLANE}
    s_lshl_b32 s{sT0}, s{sT2}, 1
    s_add_u32 s{sT0}, s{sT0}, 168
    v_cndmask_b32 v{vT0}, v{vT0}, v{vT1}, vcc
    v_and_b32 v{vT1}, 1, v{vLANE}
    v_add_u32 v{vT1}, s{sT0}, v{vT1}
    v_cmp_le_u32 vcc, 24, v{vLANE}
    v_bfe_u32 v{vT2}, v{vLANE}, 1, 3
    v_and_b32 v{vT3}, 1, v{vLANE}
    v_cndmask_b32 v{vT0}, v{vT0}, v{vT1}, vcc
    v_lshl_add_u32 v{vT2}, v{vT3}, 7, v{vT2}
    s_lshl_b32 s{sT0}, s{sIDX}, 3
    v_add_u32 v{vT2}, s{sT0}, v{vT2}
    v_cndmask_b32 v{vT0}, v{vT0}, v{vT2}, s[{sHI}:{sHI + 1}]
    v_lshlrev_b32 v{vT0}, 7, v{vT0}
    s_mov_b32 s{sT0}, {F_PK}
    """)
    wait_flags(k, vT0, sT0, '1')
    k.vm_seq, k.vm_done, k.pend = st
    k.label(Lw, pad=False)
    k('s_waitcnt vmcnt(0)')
    ts(k, 'ATT.halo')
    k('s_barrier')
    k(f"""
    ds_read_b128 {v4(KB)}, v{vAD}
    ds_read_b128 {v4(KB + 4)}, v{vAD} offset:1024
    s_sub_u32 s{sCNT}, 7, s{sW}
    """)
    emit_item(k, L0(([x.replace(f's{sDS},', f's{sT3},').replace(f's{sDS} ', f's{sT3} ') for x in SCHED['PRO']()] if PROPOS == 2 else []) + flat(wo) + lines(f"""
    v_lshlrev_b32 v{vT0}, 2, v{vN}
    v_lshl_add_u32 v{vT0}, v{vHH}, 9, v{vT0}
    s_mul_i32 s{sT0}, s{sIDX}, 7
    s_add_u32 s{sT0}, s{sT0}, s{sW}
    s_lshl_b32 s{sT0}, s{sT0}, 7
    s_add_u32 s{sT0}, s{sT0}, {CSP_13}
    """) + flat([[f's_add_u32 s{sT1}, s{sT0}, {q * 112 * 128}',
                 f'buffer_load_dword v{CSL + q}, v{vT0}, s[8:11], s{sT1} offen'] for q in range(4)])))
    k('s_waitcnt lgkmcnt(0)')
    k.label(LB, pad=False)
    k('s_nop 1')
    st = k.vm_seq
    att_tile_body(k, False, loop_dma0())
    k.vm_seq = st
    k(f"""
    s_sub_u32 s{sCNT}, s{sCNT}, 1
    s_cmp_lg_u32 s{sCNT}, 0
    s_waitcnt lgkmcnt(0)
    s_cbranch_scc1 {LB}
    """)
    k('s_nop 1')
    att_tile_body(k, True, [])
    k(f'{MF} {v16(OA)}, {v4(VB)}, {v4(PA)}, {v16(OA)}')
    k(f'{MF} {v16(OA)}, {v4(VB + 4)}, {v4(PA + 4)}, {v16(OA)}')
    k(f"""
    s_lshl_b32 s{sT4}, s{sTT}, 7
    s_lshl_b32 s{sT1}, s{sIDX}, 2
    s_add_u32 s{sT4}, s{sT4}, s{sT1}
    s_add_u32 s{sT4}, s{sT4}, {F_O}
    s_mov_b32 s{sT0}, {f32bits(2.0 ** 64)}
    """)
    Lok = k.newlabel('att_ok')
    k(f"""
    v_mov_b32 v{vT0}, v{OA + 12}
    v_mov_b32 v{vT1}, v{OA + 12}
    v_permlane32_swap_b32 v{vT0}, v{vT1}
    v_cmp_nge_f32 vcc, s{sT0}, v{vT1}
    s_nop 1
    """)
    k(f's_cbranch_vccz {Lok}' if not FORCE_FALLBACK else 's_nop 0')
    fallback(k)
    k.label(Lok)
    k(f'v_rcp_f32 v{vT1}, v{vT1}')
    for r in range(16):
        k(f'v_mul_f32 v{OA + r}, v{vT1}, v{OA + r}')
    for q in range(8):
        k(f'v_cvt_pk_bf16_f32 v{OA + q}, v{OA + 2 * q}, v{OA + 2 * q + 1}')
    ts(k, 'ATT.st2')
    publish(k, [f'buffer_store_dwordx4 {v4(OA)}, v{vL16}, s[8:11], s{sOADR} offen',
                f'buffer_store_dwordx4 {v4(OA + 4)}, v{vL16}, s[8:11], s{sOADR} offen offset:1024'])
    set_flag(k, sT4, f's{sL1}')
    ts(k, 'ATT.pub')


def fallback(k):
    def s_tile(c):
        k(f"""
        ds_read_b128 {v4(KB)}, v{vAD}
        ds_read_b128 {v4(KB + 4)}, v{vAD} offset:1024
        ds_read_b128 {v4(VB)}, v{vAD} offset:2048
        ds_read_b128 {v4(VB + 4)}, v{vAD} offset:3072
        """)
        k(f'{MF} {v16(SA)}, {v4(KB)}, {v4(QF)}, {c}')
        k(f'{MF} {v16(SA)}, {v4(KB + 4)}, {v4(QF + 4)}, {v16(SA)}')
        for cntv, a, b in ((0, SA, None), (8, None, SA)):
            k(f's_cmp_lg_u32 s{sCNT}, {cntv}')
            k.skip_begin('s_cbranch_scc1')
            for r in range(16):
                m = f's[{sMASK + 2 * r}:{sMASK + 2 * r + 1}]'
                if cntv == 0:
                    k(f'v_cndmask_b32 v{SA + r}, v{SA + r}, v{vNEG}, {m}')
                else:
                    k(f'v_cndmask_b32 v{SA + r}, v{vNEG}, v{SA + r}, {m}')
            k.skip_end()
    La, Lb = k.newlabel('fb1'), k.newlabel('fb2')
    k(f"""
    s_nop 7
    s_nop 7
    v_mov_b32 v{vAD}, v{vKVA}
    v_mov_b32 v{vMX}, v{vNEG}
    s_mov_b32 s{sCNT}, 0
    """)
    k.label(La)
    s_tile('0')
    for r in range(0, 16, 2):
        k(f'v_max3_f32 v{vMX}, v{SA + r}, v{SA + r + 1}, v{vMX}')
    k(f"""
    v_add_u32 v{vAD}, 4096, v{vAD}
    s_add_u32 s{sCNT}, s{sCNT}, 1
    s_cmp_lt_u32 s{sCNT}, 9
    s_waitcnt lgkmcnt(0)
    s_cbranch_scc1 {La}
    v_mov_b32 v{vT1}, v{vMX}
    v_permlane32_swap_b32 v{vMX}, v{vT1}
    v_max_f32 v{vMX}, v{vMX}, v{vT1}
    v_mov_b32 v{vAD}, v{vKVA}
    s_mov_b32 s{sCNT}, 0
    """)
    for r in range(16):
        k(f'v_mov_b32 v{OA + r}, 0')
    k.label(Lb)
    s_tile('0')
    for r in range(16):
        k(f'v_sub_f32 v{SA + r}, v{SA + r}, v{vMX}')
    for r in range(16):
        k(f'v_exp_f32 v{SA + r}, v{SA + r}')
    for q in range(8):
        k(f'v_cvt_pk_bf16_f32 v{PA + q}, v{SA + 2 * q}, v{SA + 2 * q + 1}')
    k(f'{MF} {v16(OA)}, {v4(VB)}, {v4(PA)}, {v16(OA)}')
    k(f'{MF} {v16(OA)}, {v4(VB + 4)}, {v4(PA + 4)}, {v16(OA)}')
    k(f"""
    v_add_u32 v{vAD}, 4096, v{vAD}
    s_add_u32 s{sCNT}, s{sCNT}, 1
    s_cmp_lt_u32 s{sCNT}, 9
    s_waitcnt lgkmcnt(0)
    s_cbranch_scc1 {Lb}
    v_mov_b32 v{vT0}, v{OA + 12}
    v_mov_b32 v{vT1}, v{OA + 12}
    v_permlane32_swap_b32 v{vT0}, v{vT1}
    """)


SK_ACC = [32, 48, 64, 80]
SK_XO = 96
RED = 3 * SLOT


def red_writes():
    out = {}
    for q in range(1, 4):
        o = lines(f"""
        s_xor_b32 s{sT0}, s{sW}, {q}
        s_mul_i32 s{sT0}, s{sT0}, 12288
        s_add_u32 s{sT0}, s{sT0}, {RED + (q - 1) * 4096}
        v_add_u32 v{vT0 + q - 1}, s{sT0}, v{vL16}
        """)
        for g in range(4):
            o.append(f'ds_write_b128 v{vT0 + q - 1}, {v4(SK_ACC[q] + 4 * g)} offset:{1024 * g}')
        out[q] = o
    return out


XR = 200


def red_setup():
    return lines(f"""
    s_mul_i32 s{sT0}, s{sW}, 12288
    s_add_u32 s{sT0}, s{sT0}, {RED}
    v_add_u32 v{vT3}, s{sT0}, v{vL16}
    """)


def red_finish(k):
    ACC = SK_ACC
    k.barrier()
    for g in range(4):
        for q in range(1, 4):
            k(f'ds_read_b128 {v4(ACC[q] + 4 * g)}, v{vT3} offset:{(q - 1) * 4096 + 1024 * g}')


def red_sum(k, g):
    ACC = SK_ACC
    k.wait_reg(v4(ACC[3] + 4 * g))
    for r in (4 * g, 4 * g + 2):
        k(f'v_pk_add_f32 {v2(ACC[1] + r)}, {v2(ACC[1] + r)}, {v2(ACC[2] + r)}')
        k(f'v_pk_add_f32 {v2(ACC[0] + r)}, {v2(ACC[0] + r)}, {v2(ACC[3] + r)}')
    for r in (4 * g, 4 * g + 2):
        k(f'v_pk_add_f32 {v2(ACC[0] + r)}, {v2(ACC[0] + r)}, {v2(ACC[1] + r)}')


def unpack_res(xo, dst):
    out = []
    for q in range(8):
        out.append(f'v_lshlrev_b32 v{dst + 2 * q}, 16, v{xo + q}')
        out.append(f'v_and_b32 v{dst + 2 * q + 1}, 0xffff0000, v{xo + q}')
    return out


def flag_addr(dst, fbase):
    return lines(f"""
    s_lshl_b32 s{dst}, s{sTT3}, 7
    s_lshl_b32 s{sT1}, s{sFT}, 2
    s_add_u32 s{dst}, s{dst}, s{sT1}
    s_add_u32 s{dst}, s{dst}, {fbase}
    """)


def res_epilogue(k, xo, sflag, val, scale, xr, Lfin):
    acc = SK_ACC[0]
    for g in range(4):
        red_sum(k, g)
        if scale is not None:
            for r in (4 * g, 4 * g + 2):
                k(f'v_pk_fma_f32 {v2(acc + r)}, {v2(acc + r)}, {v2(scale)}, {v2(xr + r)}')
        for q in (2 * g, 2 * g + 1):
            k(f'v_cvt_pk_bf16_f32 v{xo + q}, v{acc + 2 * q}, v{acc + 2 * q + 1}')
        if g == 1 and Lfin is None:
            publish(k, [f'buffer_store_dwordx4 {v4(xo)}, v{vL16}, s[8:11], s{sXADR} offen'])
    if Lfin:
        if LAYER == 1:
            k(f's_branch {Lfin}')
            return
        if LAYER is None:
            k(f's_cmp_eq_u32 s{sL}, 1')
            k(f's_cbranch_scc1 {Lfin}')
        publish(k, [f'buffer_store_dwordx4 {v4(xo)}, v{vL16}, s[8:11], s{sXADR} offen'])
    publish(k, [f'buffer_store_dwordx4 {v4(xo + 4)}, v{vL16}, s[8:11], s{sXADR} offen offset:1024'])
    k(f'v_mov_b32 v{vT0}, 0')
    k(f'v_mov_b32 v{vT1}, 0')
    emit(k, stats_ops(xo, 8, vT0, vT1, vONES))
    k(f"""
    v_permlane32_swap_b32 v{vT0}, v{vT1}
    v_add_f32 v{vT0}, v{vT0}, v{vT1}
    """)
    publish(k, [f'buffer_store_dword v{vT0}, v{vSTO}, s[8:11], s{sSADR} offen'])
    set_flag(k, sflag, val)


def rowmajor_addr(k):
    k(f"""
    v_mul_u32_u24 v{vT0}, 896, v{vN}
    v_lshl_add_u32 v{vT0}, v{vHH}, 4, v{vT0}
    s_mul_i32 s{sT0}, s{sTT3}, {32 * 896}
    s_lshl_b32 s{sT1}, s{sFT}, 6
    s_add_u32 s{sT0}, s{sT0}, s{sT1}
    """)


def phase_P3(k):
    ACC, XO = SK_ACC, SK_XO
    O_R = 192
    Lskip, Lj = k.newlabel('p3_skip'), k.newlabel('p3_join')
    k(f's_cmp_eq_u32 s{sACT}, 0')
    k(f's_cbranch_scc1 {Lskip}')
    La, Lb = k.newlabel('p3_l1'), k.newlabel('p3_res')
    if LAYER is None:
        k(f's_cmp_lg_u32 s{sL}, 0')
        k(f's_cbranch_scc1 {La}')
    if LAYER != 1:
        rowmajor_addr(k)
        k(f"""
        buffer_load_dwordx4 {v4(XO)}, v{vT0}, s[20:23], s{sT0} offen
        buffer_load_dwordx4 {v4(XO + 4)}, v{vT0}, s[20:23], s{sT0} offen offset:32
        """)
    if LAYER is None:
        k(f's_branch {Lb}')
        k.label(La, pad=False)
        k.vm_seq -= 2
        for r in parse_reg(f'v[{XO}:{XO + 7}]'):
            k.pend.pop(r, None)
    if LAYER != 0:
        res_addr(k, sT0, f's{sX2}')
        k(f"""
        buffer_load_dwordx4 {v4(XO)}, v{vL16}, s[8:11], s{sT0} offen sc1
        buffer_load_dwordx4 {v4(XO + 4)}, v{vL16}, s[8:11], s{sT0} offen offset:1024 sc1
        """)
    k.label(Lb, pad=False)
    k(f"""
    s_and_b32 s{sT4}, s{sTT3}, -2
    s_lshl_b32 s{sT4}, s{sT4}, 7
    s_add_u32 s{sT4}, s{sT4}, {F_O}
    s_lshl_b32 s{sT1}, s{sW}, 19
    s_add_u32 s{sT1}, s{sT1}, s{sOF}
    s_lshl_b32 s{sT2}, s{sTT3}, 11
    s_add_u32 s{sT2}, s{sT2}, s{sT1}
    s_lshl_b32 s{sT3}, s{sTTo}, 11
    s_add_u32 s{sT3}, s{sT3}, s{sT1}
    """)
    emit(k, SCHED['P3_pre']())
    emit(k, red_setup() + flag_addr(sE, F_X1))
    k('s_barrier')
    emit(k, unpack_res(XO, ACC[0]))
    wait_flags(k, vFH, sT4, f's{sL1}')
    ts(k, 'P3.ready')
    for q in (1, 0):
        for i in range(8):
            if i and i % 2 == 0:
                k(f's_add_u32 s{sT2 + q}, s{sT2 + q}, {64 * 2048}')
            k(f'buffer_load_dwordx4 {v4(O_R + 32 * q + 4 * i)}, v{vL16}, s[8:11], s{sT2 + q} offen offset:{(i % 2) * 1024} sc1')

    def mf(qa, qb, ks):
        a = ACC[qa + 2 * qb]
        c = '0' if (ks == 0 and qa + qb) else v16(a)
        return dict(m=f'{MF} {v16(a)}, {v4(WO_R + 32 * qa + 4 * ks)}, {v4(O_R + 32 * qb + 4 * ks)}, {c}')
    rw = red_writes()
    M = [mf(qa, 1, ks) for ks in range(8) for qa in range(2)] + [mf(1, 0, ks) for ks in range(8)] + [mf(0, 0, ks) for ks in range(8)]
    fl = F(SCHED['P3_mm'](), earliest=2) + F(rw[2] + rw[3], earliest=18) + F(rw[1], earliest=26)
    flush(k, weave(k, M, fl, free=6, pairwait=False))
    ts(k, 'P3.mfma')
    red_finish(k)
    res_epilogue(k, XO, sE, f's{sL1}', None, None, None)
    ts(k, 'P3.pub')
    k(f's_branch {Lj}')
    k.label(Lskip, pad=False)
    emit(k, SCHED['P3_idle']())
    k.label(Lj, pad=False)
    k.drained()


def phase_P5(k, Lfin):
    ACC, XO = SK_ACC, SK_XO
    HB = 104
    HDEPTH = 6
    Lskip, Ljoin = k.newlabel('p5_skip'), k.newlabel('p5_join')
    k(f's_cmp_eq_u32 s{sACT}, 0')
    k(f's_cbranch_scc1 {Lskip}')
    res_addr(k, sT0, f's{sX1}')
    k(f"""
    buffer_load_dwordx4 {v4(XO)}, v{vL16}, s[8:11], s{sT0} offen sc1
    buffer_load_dwordx4 {v4(XO + 4)}, v{vL16}, s[8:11], s{sT0} offen offset:1024 sc1
    """)
    STT = 232
    emit(k, stats_loads(sST1, sTT3, STT))
    k(f"""
    s_and_b32 s{sT4}, s{sTT3}, -2
    s_lshl_b32 s{sT4}, s{sT4}, 7
    s_add_u32 s{sT4}, s{sT4}, {F_H}
    s_lshl_b32 s{sE}, s{sL}, 1
    s_add_u32 s{sE}, s{sE}, 1
    """)
    for q, stt in enumerate([sTT3, sTTo]):
        k(f"""
        s_mul_i32 s{sT2 + q}, s{stt}, {112 * 1024}
        s_mul_i32 s{sT1}, s{sW}, {28 * 1024}
        s_add_u32 s{sT2 + q}, s{sT2 + q}, s{sT1}
        s_add_u32 s{sT2 + q}, s{sT2 + q}, s{sHF}
        """)
    wait_flags(k, vFH, sT4, f's{sE}')
    ts(k, 'P5.ready')
    order = [ks for ks in range(28) if ks % 7 != 6] + [ks for ks in range(28) if ks % 7 == 6]
    NSL = 16
    reg = lambda pos, q: v4(HB + 8 * (pos % NSL) + 4 * q)

    def hload(pos):
        ks = order[pos]
        out = []
        for q in (1, 0):
            out += [f's_add_u32 s{sT0}, s{sT2 + q}, {ks * 1024}',
                    f'buffer_load_dwordx4 {reg(pos, q)}, v{vL16}, s[8:11], s{sT0} offen sc1']
        return out

    def mf(pos, qa, qb):
        a = ACC[qa + 2 * qb]
        c = '0' if pos == 0 else v16(a)
        return f'{MF} {v16(a)}, {a4(112 * qa + 4 * order[pos])}, {reg(pos, qb)}, {c}'
    for pos in range(HDEPTH):
        emit(k, hload(pos))
    emit(k, stats_math(STT))
    k(f'v_mul_f32 v{MB}, v{vR}, v{vR}')
    k(f'v_mul_f32 v{MB + 1}, v{vR}, v{vR}')
    pre_fill = unpack_res(XO, STT) + red_setup() + flag_addr(sT5, F_XIN)
    TAIL = 5

    def late_check(k):
        k(f'v_cmp_gt_u32 vcc, s{sE}, v{vFL}')
        k('s_nop 1')
        Lok = k.newlabel('lateok')
        k(f's_cbranch_vccz {Lok}')
        st = (k.vm_seq, k.vm_done, dict(k.pend), k.pos, list(k.hist))
        wait_flags(k, vFH, sT4, f's{sE}')
        k.vm_seq, k.vm_done, k.pend, k.pos, k.hist = st
        k.label(Lok, pad=False)
    M = []
    for pos in range(28):
        nxt = pos + HDEPTH
        pre = []
        if nxt == 24:
            pre.append(('call', late_check))
        if nxt < 28:
            pre += hload(nxt)
        if nxt == 19:
            pre += [f's_add_u32 s{sE}, s{sE}, 1', f'buffer_load_dword v{vFL}, v{vFH}, s[8:11], s{sT4} offen sc1']
        M.append(dict(pre=pre, m=mf(pos, 0, 1)))
        M.append(dict(m=mf(pos, 1, 1)))
        M.append(dict(m=mf(pos, 1, 0)))
        if pos < 28 - TAIL:
            M.append(dict(m=mf(pos, 0, 0)))
    n0 = len(M)
    M += [dict(m=mf(pos, 0, 0)) for pos in range(28 - TAIL, 28)]
    rw = red_writes()
    wq = pf_wqkv()
    wqg = [L0(flat(wq[i:i + 4])) for i in range(0, 21, 4)]
    first_free = 4 * (28 - HDEPTH)
    fl = F(pre_fill, earliest=1)
    for i, g in enumerate(wqg):
        fl += F([g], earliest=first_free + 2 * i)
    fl += F(rw[2] + rw[3] + rw[1], earliest=n0)
    flush(k, weave(k, M, fl, free=8, pairwait=False))
    ts(k, 'P5.mfma')
    red_finish(k)
    res_epilogue(k, XO, sT5, '1', MB, STT, Lfin)
    if LAYER != 1:
        ts(k, 'P5.pub')
        k(f's_branch {Ljoin}')
    k.label(Lskip, pad=False)
    if LAYER == 1:
        k('s_branch MAIN_tail')
        return
    if LAYER is None:
        k(f's_cmp_eq_u32 s{sL}, 1')
        k('s_cbranch_scc1 MAIN_tail')
    emit(k, SCHED['P5_idle']())
    emit(k, flat(pf_wqkv()))
    k.label(Ljoin, pad=False)
    k('s_waitcnt vmcnt(0) lgkmcnt(0)')
    k.drained()
    k('s_barrier')


def phase_P4(k):
    XB = 32
    ACC = [144, 160, 176]
    WB, NB, PF = 192, 8, 6
    ET = 224
    k(f"""
    s_lshl_b32 s{sT4}, s{sTT}, 7
    s_add_u32 s{sT4}, s{sT4}, {F_X1}
    s_mul_i32 s{sT3}, s{sTT}, {28 * 1024}
    s_add_u32 s{sT3}, s{sT3}, s{sX1}
    """)
    k('s_waitcnt vmcnt(0)')
    if LAYER is None:
        k(f's_cmp_lg_u32 s{sL}, 0')
        k.skip_begin('s_cbranch_scc1')
        emit(k, cs13_build())
        k.skip_end()
    elif LAYER == 0:
        emit(k, cs13_build())
    k('s_barrier')
    emit(k, SCHED['P4_pre']())
    acc_of = [0, 1, 2, 0, 1, 2, 0]
    seq = [(i, ks) for ks in range(29) for i in range(2)] + [(i, ks) for i in range(2, 7) for ks in range(29)]
    start = {i: 58 + 29 * (i - 2) for i in range(2, 7)}
    endi = {0: 56, 1: 57}
    endi.update({i: start[i] + 28 for i in range(2, 7)})

    def wread(n):
        i, ks = seq[n]
        if ks == 28:
            return f'ds_read_b128 {v4(WB + 4 * (n % NB))}, v{vSCR} offset:{1024 + 1024 * i}'
        s = W13_SLOT[i]
        base = {0: vL16, 1: vL16, 2: vL2S, 3: vL2S, 4: vL4S}[s]
        off = (s % 2) * SLOT + ks * 1024 if s < 4 else ks * 1024
        return f'ds_read_b128 {v4(WB + 4 * (n % NB))}, v{base} offset:{off}'

    def mf(n):
        i, ks = seq[n]
        a = v16(ACC[acc_of[i]])
        b = v4(MB) if ks == 28 else v4(XB + 4 * ks)
        return f'{MF} {a}, {v4(WB + 4 * (n % NB))}, {b}, {"0" if ks == 0 else a}'
    for n in range(PF):
        k(wread(n))
    wait_flags(k, vF14, sT4, f's{sL1}')
    ts(k, 'P4.ready')
    xl = load_chunks([v4(XB + 4 * i) for i in range(28)], sT3, sT2, pol=' sc1')
    for i in range(4):
        emit(k, xl[i])
    emit(k, stats_loads(sST1, sTT, ET))
    for i in range(4, XDEPTH):
        emit(k, xl[i])

    def epi(i):
        a = ACC[acc_of[i]]
        out = []
        e0 = ET + 8 * (i % 2)
        for r in range(8):
            out.append(f'v_mul_f32 v{e0 + r}, v{vKE}, v{a + r}')
        for r in range(8):
            out.append(f'v_exp_f32 v{e0 + r}, v{e0 + r}')
            out.append(f'v_mul_f32 v{a + r}, v{a + r}, v{a + 8 + r}')
        for r in range(8):
            out.append(f'v_add_f32 v{e0 + r}, 1.0, v{e0 + r}')
        for r in range(8):
            out.append(f'v_rcp_f32 v{e0 + r}, v{e0 + r}')
            if r:
                out.append(f'v_mul_f32 v{a + r - 1}, v{a + r - 1}, v{e0 + r - 1}')
        out.append(f'v_mul_f32 v{a + 7}, v{a + 7}, v{e0 + 7}')
        o = 240 + 4 * (i % 2)
        for q in range(4):
            out.append(f'v_cvt_pk_bf16_f32 v{o + q}, v{a + 2 * q}, v{a + 2 * q + 1}')

        def st(k):
            if i == 4:
                k(f's_add_u32 s{sHOFF}, s{sHOFF}, 4096')
            st_ = f'buffer_store_dwordx4 {v4(o)}, v{vL16}, s[8:11], s{sHOFF} offen offset:{(i % 4) * 1024}'
            if MODE == 'fast' and LAYER is not None:
                k(st_ + (' sc1' if LAYER == 0 else ''))
            elif MODE == 'fast':
                La, Lb = k.newlabel('h0'), k.newlabel('h1')
                k(f's_cmp_eq_u32 s{sL}, 0')
                k(f's_cbranch_scc1 {La}')
                k(st_)
                k(f's_branch {Lb}')
                k.label(La, pad=False)
                k.vm_seq -= 1
                k.pos -= 2
                k(st_ + ' sc1')
                k.label(Lb, pad=False)
            else:
                publish(k, [st_])
            hs[i] = k.vm_mark()
        out.append(('call', st))
        return out
    hs, hd = {}, {}

    def mark(name):
        def fn(k):
            hd[name] = k.vm_mark()
        return ('call', fn)

    def bar(name, tsn):
        def fn(k):
            k.wait_vm(hd[name])
            k.barrier()
            ts(k, tsn)
        return ('call', fn)
    b1, b2 = start[3] - PF, start[5] - PF
    M = []
    for n in range(len(seq)):
        pre = []
        if n == b1:
            pre.append(bar('t34', 'P4.b1'))
        if n == b2:
            pre.append(bar('t56', 'P4.b2'))
        if n + PF < len(seq):
            pre.append(wread(n + PF))
        i, ks = seq[n]
        if n < 58 and i == 0 and ks + XDEPTH < 28:
            pre += xl[ks + XDEPTH]
        M.append(dict(pre=pre, m=mf(n), need=[v4(WB + 4 * (n % NB))], w=1 if (n < 56 and i == 0) else 0))
    nx = 2 * (28 - XDEPTH)
    fl = F(stats_math(ET) + mb_fill() + [f'v_mul_f32 v{vKE}, {f32bits(-LOG2E)}, v{vR}'], earliest=6, deadline=54)
    fl += F(lines(f"""
    s_lshl_b32 s{sT4}, s{sTT}, 7
    s_lshl_b32 s{sT1}, s{sIDX}, 2
    s_add_u32 s{sT4}, s{sT4}, s{sT1}
    s_add_u32 s{sT4}, s{sT4}, {F_H}
    s_lshl_b32 s{sE}, s{sL}, 1
    s_add_u32 s{sE}, s{sE}, 1
    """), earliest=6)
    fl.append((6, None, ('call', lambda k: (res_addr(k, sXADR, f's{sX2}'), st_addr(k, sSADR, f's{sST2}')))))
    c34 = pf_w13(3) + pf_w13(4)
    for j, c in enumerate(c34):
        fl += F(c, earliest=nx + (j * 3) // 2, deadline=b1 - 8)
    fl.append((0, b1 - 8, mark('t34')))
    fl += F(flat(SCHED['P4_p1']()), earliest=58)

    def interleave(ep, mem, e0, dl):
        out = []
        step = max(1, len(ep) // (len(mem) + 1)) if mem else 10 ** 9
        mem = list(mem)
        for j, x in enumerate(ep):
            out.append(x)
            if mem and j % step == step - 1:
                out += mem.pop(0)
        for m in mem:
            out += m
        return F(out, earliest=e0, deadline=dl)
    S4 = SCHED['P4_mid']()
    n4 = len(S4)
    fl += interleave(epi(0), [], endi[0] + 3, start[3])
    fl += interleave(epi(1), [], endi[1] + 3, start[4])
    c56 = pf_w13(5) + pf_w13(6) + [[mark('t56')]]
    fl += interleave(epi(2), c56, max(endi[2] + 3, b1 + 1), b2 - 10)
    fl += interleave(epi(3), S4[:n4 // 3], endi[3] + 3, start[6])
    fl += interleave(epi(4), S4[n4 // 3:2 * n4 // 3], endi[4] + 3, None)
    fl += interleave(epi(5), S4[2 * n4 // 3:], endi[5] + 3, len(seq) - 6)
    rest = weave(k, M, fl, free=6)
    flush(k, rest)
    set_flag(k, sT4, f's{sE}', h=hs[5])
    ts(k, 'P4.mfma')
    emit(k, epi(6))
    k(f's_add_u32 s{sT5}, s{sE}, 1')
    set_flag(k, sT4, f's{sT5}')
    ts(k, 'P4.pub')
    k.barrier()


def phase_G(k):
    A_X, A_Q, A_K, A_V, WB, RT = 32, 144, 160, 176, 192, 240
    NB, PF = 6, 4
    NQ1 = GNQ1
    k(f"""
    s_lshl_b32 s{sT4}, s{sTT}, 7
    s_add_u32 s{sT4}, s{sT4}, {F_XIN}
    s_mul_i32 s{sT3}, s{sTT}, {28 * 1024}
    s_add_u32 s{sT3}, s{sT3}, s{sX2}
    """)
    seq = []
    for ks in range(29):
        seq += [('K', ks), ('V', ks)]
        if ks < NQ1:
            seq.append(('Q', ks))
    n1 = len(seq)
    seq += [('Q', ks) for ks in range(NQ1, 29)]
    pidx = {'Q': 0, 'K': 1, 'V': 2}

    def wread(n):
        p, ks = seq[n]
        b = v4(WB + 4 * (n % NB))
        if ks == 28:
            return f'ds_read_b128 {b}, v{vSCR} offset:{9216 + 1024 * pidx[p]}'
        if p == 'V':
            return f'ds_read_b128 {b}, v{vL16b} offset:{ks * 1024}'
        return f'ds_read_b128 {b}, v{vL16} offset:{(pidx[p] * 28 + ks) * 1024}'

    def mf(n):
        p, ks = seq[n]
        b = v4(WB + 4 * (n % NB))
        x = v4(MB) if ks == 28 else v4(A_X + 4 * ks)
        a = {'Q': A_Q, 'K': A_K, 'V': A_V}[p]
        c = '0' if ks == 0 else v16(a)
        if p == 'V':
            return f'{MF} {v16(a)}, {x}, {b}, {c}'
        return f'{MF} {v16(a)}, {b}, {x}, {c}'
    for n in range(PF):
        k(wread(n))
    emit(k, SCHED['G_pre']())
    ts(k, 'G.start')
    wait_flags(k, vF14, sT4, '1')
    ts(k, 'G.ready')
    xl = load_chunks([v4(A_X + 4 * i) for i in range(28)], sT3, sT2, pol=' sc1')
    STT = 216
    for i in range(4):
        emit(k, xl[i])
    emit(k, stats_loads(sST2, sTT, STT))
    for i in range(4, XDEPTH):
        emit(k, xl[i])
    M = []
    for n in range(len(seq)):
        pre = [wread(n + PF)] if n + PF < len(seq) else []
        p, ks = seq[n]
        if p == 'K' and ks + XDEPTH < 28:
            pre = pre + xl[ks + XDEPTH]
        M.append(dict(pre=pre, m=mf(n), need=[v4(WB + 4 * (n % NB))], w=1 if p == 'K' else 0))
    gather = lines(f"""
    s_lshl_b32 s{sT0}, s{sW}, 8
    s_add_u32 s{sT0}, s{sT0}, {SCR}
    v_lshlrev_b32 v{vT0}, 2, v{vN}
    v_add_u32 v{vT0}, s{sT0}, v{vT0}
    ds_write_b32 v{vT0}, v{vR}
    v_lshlrev_b32 v{vT1}, 4, v{vHH}
    v_add_u32 v{vT1}, s{sT0}, v{vT1}
    """) + [f'ds_read_b128 {v4(RT + 4 * g)}, v{vT1} offset:{32 * g}' for g in range(4)]
    fl = F(stats_math(STT) + mb_fill() + gather, earliest=8, deadline=n1 - 6)
    fl += F(lines(f"""
    s_lshl_b32 s{sT0}, s{sIDX}, 6
    s_add_u32 s{sT0}, s{sT0}, s{sTT}
    s_lshl_b32 s{sT4}, s{sT0}, 2
    s_add_u32 s{sT4}, s{sT4}, {F_KV}
    s_lshl_b32 s{sT5}, s{sT0}, 12
    s_add_u32 s{sT5}, s{sT5}, s{sKV}
    """), earliest=8)
    ep = []
    for r in range(16):
        ep.append(f'v_mul_f32 v{A_K + r}, v{vR}, v{A_K + r}')
    for q in range(8):
        ep.append(f'v_cvt_pk_bf16_f32 v{KF + q}, v{A_K + 2 * q}, v{A_K + 2 * q + 1}')
    for i in range(2):
        ep.append(f'buffer_store_dwordx4 {v4(KF + 4 * i)}, v{vL16}, s[8:11], s{sT5} offen offset:{1024 * i} sc1')
    for r in range(16):
        ep.append(f'v_mul_f32 v{A_V + r}, v{RT + r}, v{A_V + r}')
    for q in range(8):
        ep.append(f'v_cvt_pk_bf16_f32 v{VF + q}, v{A_V + 2 * q}, v{A_V + 2 * q + 1}')
        ep.append(f'v_cndmask_b32 v{VF + q}, v{VF + q}, v{vONES}, s[{sN28}:{sN28 + 1}]')
    for i in range(2, 4):
        ep.append(f'buffer_store_dwordx4 {v4(KF + 4 * i)}, v{vL16}, s[8:11], s{sT5} offen offset:{1024 * i} sc1')
    hk = {}
    ep.append(('call', lambda k: hk.__setitem__('h', k.vm_mark())))
    for i in range(4):
        ep.append(f'ds_write_b128 v{vKVA}, {v4(KF + 4 * i)} offset:{8 * 4096 + 1024 * i}')
    ep += SCHED['G_q']()
    fl += F(ep, earliest=n1 + 1)
    fl.append((len(seq) - 2, None, ('call', lambda k: set_flag(k, sT4, '2', always_sc1=True, h=hk['h']))))
    flush(k, weave(k, M, fl, free=6))
    ts(k, 'G.mfma')
    k(f'v_mul_f32 v{vT0}, {f32bits(28 ** -0.5 * LOG2E)}, v{vR}')
    for r in range(16):
        k(f'v_mul_f32 v{A_Q + r}, v{vT0}, v{A_Q + r}')
    for q in range(8):
        k(f'v_cvt_pk_bf16_f32 v{QF + q}, v{A_Q + 2 * q}, v{A_Q + 2 * q + 1}')
    k(f'v_mov_b32 v{vT1}, 0x3f80')
    k(f'v_cndmask_b32 v{QF + 6}, v{QF + 6}, v{vT1}, s[{sHI}:{sHI + 1}]')
    ts(k, 'G.pub')
    k.barrier()


F_DUTY = 3 * SLOT
F_SCR = SCR
F_CSX = LDS_BYTES - 1536
F_XR = F_DUTY + 29184
OOBS = 0x20000000


def front(k):
    T0, T1, T2, T3, T4, T5 = sT0, sT1, sT2, sT3, sT4, sT5
    sKIND, sDST, sCSD, sA1, sWOFF, sPIT, sSRC, sXRB = 88, 89, 90, 91, 92, 93, 94, 95
    sPAD, sHP, sXT, sIMG, sXS, sZM, sSA, sSB, sD8 = 72, 74, 77, 78, 79, 80, 82, 83, 84
    vTR, vTR2, vXO, vDT, vS1, vS2, vCSK, vCSV, vCSQ, vIMG, vOQ, vOQ2, vDS = 5, 6, 7, 9, 10, 14, 15, 16, 17, 19, 26, 27, 144
    X, AQ, AK, AV, WB, RT = 32, 144, 160, 176, 192, 240
    NB, PF = 6, 4
    XA = 240
    k(f"""
    v_and_b32 v{vT0}, 3, v{vLANE}
    v_lshrrev_b32 v{vT1}, 2, v{vLANE}
    s_lshl_b32 s{T0}, s{sRB}, 2
    v_add_u32 v{vT2}, s{T0}, v{vT0}
    v_lshlrev_b32 v{vT3}, 7, v{vT2}
    s_lshl_b32 s{T1}, s{sIDX}, 2
    s_add_u32 s{T1}, s{T1}, {F_O}
    v_add_u32 v{vT3}, s{T1}, v{vT3}                  ; F_O
    v_and_b32 v5, 1, v{vT1}
    v_lshl_add_u32 v{vT3}, v5, 14, v{vT3}            ; kind 1: F_H = F_O + 16384
    s_and_b32 s{T0}, s{sTT3}, -2
    s_and_b32 s{T1}, s{sFT}, -2
    v_lshrrev_b32 v6, 1, v{vT0}
    v_add_u32 v6, s{T0}, v6                          ; tt3
    v_and_b32 v7, 1, v{vT0}
    v_add_u32 v7, s{T1}, v7                          ; ft
    v_lshlrev_b32 v6, 7, v6
    v_lshl_add_u32 v6, v7, 2, v6
    v_add_u32 v6, {F_XIN}, v6
    v_lshl_add_u32 v6, v5, 14, v6
    v_cmp_le_u32 vcc, 2, v{vT1}
    s_lshl_b32 s{T0}, s{sIDX}, 8
    s_add_u32 s{T0}, s{T0}, {F_KV}
    v_cndmask_b32 v{vT3}, v{vT3}, v6, vcc
    v_lshlrev_b32 v6, 2, v{vT2}
    v_add_u32 v6, s{T0}, v6
    v_cmp_le_u32 vcc, 4, v{vT1}
    s_lshl_b32 s{T0}, s2, 7
    s_add_u32 s{T0}, s{T0}, {F_PK}
    v_cndmask_b32 v{vT3}, v{vT3}, v6, vcc
    v_mov_b32 v6, s{T0}
    v_cmp_le_u32 vcc, 5, v{vT1}
    s_cmp_eq_u32 s{sW}, 0
    s_cselect_b32 s{T0}, 0, {OOBS}
    v_cndmask_b32 v{vT3}, v{vT3}, v6, vcc
    s_mov_b64 exec, 0x1fffff
    buffer_store_dword v{vZERO}, v{vT3}, s[8:11], s{T0} offen sc1
    s_mov_b64 exec, -1
    """)
    h_zero = k.vm_mark()
    assert F_H - F_O == 16384 and F_X1 - F_XIN == 16384
    k(f"""
    s_mov_b32 s64, s74
    s_mov_b32 s65, s75
    s_mov_b32 s66, {448 * 1344 * 2}
    s_mov_b32 s67, 0x00020000
    s_mov_b32 s71, 0x00020000
    """)
    Lw2, Lwo, Lnone, Ldec = 'F_w2', 'F_wo', 'F_none', 'F_dec'
    k(f"""
    s_lshr_b32 s{T4}, s{sW}, 1
    s_and_b32 s{T5}, s{sW}, 1
    s_cmp_ge_u32 s2, 182
    s_cbranch_scc1 {Lnone}
    s_cmp_ge_u32 s2, 168
    s_cbranch_scc1 {Lwo}
    s_cmp_ge_u32 s2, 112
    s_cbranch_scc1 {Lw2}
    s_lshr_b32 s{T0}, s2, 2
    s_and_b32 s{T1}, s2, 3
    s_cmp_eq_u32 s{T4}, 1
    s_cselect_b32 s68, s82, s80
    s_cselect_b32 s69, s83, s81
    s_mov_b32 s70, {448 * 1792 * 2}
    s_mov_b32 s{sKIND}, 0
    s_mov_b32 s{sPIT}, 3584
    s_mul_i32 s{sSRC}, s{T1}, 112
    s_mul_i32 s{T2}, s{T5}, 56
    s_add_u32 s{sSRC}, s{sSRC}, s{T2}
    s_mul_i32 s{sSRC}, s{sSRC}, 3584
    s_lshl_b32 s{T2}, s{T0}, 7
    s_add_u32 s{sSRC}, s{sSRC}, s{T2}
    s_lshl_b32 s{T2}, s{T0}, 2
    s_add_u32 s{T2}, s{T2}, s{sW}
    s_mul_i32 s{sDST}, s{T2}, 28
    s_mul_i32 s{T0}, s{T1}, 7
    s_add_u32 s{sDST}, s{sDST}, s{T0}
    s_lshl_b32 s{sDST}, s{sDST}, 10
    s_add_u32 s{sDST}, s{sDST}, {W13_P}
    s_mul_i32 s{sCSD}, s{T1}, 112
    s_add_u32 s{sCSD}, s{sCSD}, s{T2}
    s_lshl_b32 s{sCSD}, s{sCSD}, 7
    s_add_u32 s{sCSD}, s{sCSD}, {CSP_13}
    s_mov_b32 s{sA1}, 14336
    s_lshl_b32 s{sWOFF}, s{sW}, 5
    s_branch {Ldec}
    """)
    k.label(Lw2, pad=False)
    k(f"""
    s_sub_u32 s{T0}, s2, 112
    s_and_b32 s{T1}, s{T0}, 7
    s_lshr_b32 s{T0}, s{T0}, 3
    s_mov_b32 s68, s84
    s_mov_b32 s69, s85
    s_mov_b32 s70, {1792 * 448 * 2}
    s_mov_b32 s{sKIND}, 1
    s_mov_b32 s{sPIT}, 896
    s_mul_i32 s{sSRC}, s{T1}, 224
    s_mul_i32 s{T2}, s{sW}, 56
    s_add_u32 s{sSRC}, s{sSRC}, s{T2}
    s_mul_i32 s{sSRC}, s{sSRC}, 896
    s_lshl_b32 s{T2}, s{T0}, 7
    s_add_u32 s{sSRC}, s{sSRC}, s{T2}
    s_lshl_b32 s{T2}, s{T0}, 1
    s_add_u32 s{T2}, s{T2}, s{T5}
    s_mul_i32 s{sDST}, s{T2}, 112
    s_mul_i32 s{T0}, s{T1}, 14
    s_add_u32 s{sDST}, s{sDST}, s{T0}
    s_mul_i32 s{T0}, s{T4}, 7
    s_add_u32 s{sDST}, s{sDST}, s{T0}
    s_lshl_b32 s{sDST}, s{sDST}, 10
    s_add_u32 s{sDST}, s{sDST}, {W2_P}
    s_mov_b32 s{sCSD}, 0
    s_mov_b32 s{sA1}, 32
    s_mul_i32 s{sWOFF}, s{T4}, {112 * 128}
    s_lshl_b32 s{T0}, s{T5}, 6
    s_add_u32 s{sWOFF}, s{sWOFF}, s{T0}
    s_branch {Ldec}
    """)
    k.label(Lwo, pad=False)
    k(f"""
    s_sub_u32 s{T0}, s2, 168
    s_and_b32 s{T1}, s{T0}, 1
    s_lshr_b32 s{T0}, s{T0}, 1
    s_mov_b32 s68, s76
    s_mov_b32 s69, s77
    s_mov_b32 s70, {448 * 448 * 2}
    s_mov_b32 s{sKIND}, 2
    s_mov_b32 s{sPIT}, 896
    s_mul_i32 s{sSRC}, s{T1}, 224
    s_mul_i32 s{T2}, s{sW}, 56
    s_add_u32 s{sSRC}, s{sSRC}, s{T2}
    s_mul_i32 s{sSRC}, s{sSRC}, 896
    s_lshl_b32 s{T2}, s{T0}, 7
    s_add_u32 s{sSRC}, s{sSRC}, s{T2}
    s_lshl_b32 s{T2}, s{T0}, 1
    s_add_u32 s{T2}, s{T2}, s{T5}
    s_lshl_b32 s{sDST}, s{T2}, 5
    s_lshl_b32 s{T0}, s{T1}, 4
    s_add_u32 s{sDST}, s{sDST}, s{T0}
    s_lshl_b32 s{T0}, s{T4}, 3
    s_add_u32 s{sDST}, s{sDST}, s{T0}
    s_lshl_b32 s{sDST}, s{sDST}, 10
    s_add_u32 s{sDST}, s{sDST}, {WO_P}
    s_mov_b32 s{sCSD}, 0
    s_mov_b32 s{sA1}, 32
    s_mul_i32 s{sWOFF}, s{T4}, {112 * 128}
    s_lshl_b32 s{T0}, s{T5}, 6
    s_add_u32 s{sWOFF}, s{sWOFF}, s{T0}
    s_branch {Ldec}
    """)
    k.label(Lnone, pad=False)
    k(f"""
    s_mov_b32 s68, s76
    s_mov_b32 s69, s77
    s_mov_b32 s70, 0
    s_mov_b32 s{sKIND}, 3
    s_mov_b32 s{sPIT}, 0
    s_mov_b32 s{sSRC}, 0
    s_mov_b32 s{sDST}, 0
    s_mov_b32 s{sCSD}, 0
    s_mov_b32 s{sA1}, 0
    s_mov_b32 s{sWOFF}, 0
    """)
    k.label(Ldec, pad=False)
    k(f"""
    v_lshrrev_b32 v{vT1}, 3, v{vLANE}
    v_mul_lo_u32 v{vDS}, v{vT1}, s{sPIT}
    v_and_b32 v{vT2}, 7, v{vLANE}
    v_lshl_add_u32 v{vDS}, v{vT2}, 4, v{vDS}
    s_lshl_b32 s{sPIT}, s{sPIT}, 3
    v_xor_b32 v{vT2}, v{vT2}, v{vT1}
    v_mul_u32_u24 v{vXO}, 896, v{vT1}
    v_lshl_add_u32 v{vXO}, v{vT2}, 4, v{vXO}
    v_lshrrev_b32 v{vIMG}, 2, v{vLANE}
    v_mul_u32_u24 v{vIMG}, 2688, v{vIMG}
    v_and_b32 v{vT1}, 3, v{vLANE}
    v_lshl_add_u32 v{vIMG}, v{vT1}, 4, v{vIMG}
    s_mul_i32 s{sIMG}, s{sW}, {7 * 16 * 2688}
    s_mul_i32 s{T2}, s{sIDX}, 56
    s_add_u32 s{sIMG}, s{sIMG}, s{T2}
    s_mul_i32 s{sXS}, s{sTT}, {32 * 896}
    """)
    hx, himg = {}, {}
    def xslot(c):
        return [0, 1, 2, 0, 1, 2, 1][c]

    def xbase(c):
        return [(sLW, 0), (sXRB, 0), (sXRB, 4096)][xslot(c)]

    def duty_dma():
        for i in range(7):
            k(f's_add_u32 m0, s{sLW}, {F_DUTY + i * 1024}')
            k(f'buffer_load_dwordx4 v{vDS}, s[68:71], s{sSRC} offen lds')
            k(f's_add_u32 s{sSRC}, s{sSRC}, s{sPIT}')

    def xdma(c):
        b, o = xbase(c)
        for i in range(4):
            k(f's_add_u32 m0, s{b}, {o + i * 1024}')
            k(f's_add_u32 s{sXT}, s{sXS}, {i * 8 * 896 + c * 128}')
            k(f'buffer_load_dwordx4 v{vXO}, s[20:23], s{sXT} offen lds')
        hx[c] = k.vm_mark()

    def img_dma(p):
        for i in range(7):
            k(f's_add_u32 m0, s{sLW}, {p * SLOT + i * 1024}')
            k(f's_add_u32 s{sXT}, s{sIMG}, {i * 16 * 2688 + p * 896}')
            k(f'buffer_load_dwordx4 v{vIMG}, s[64:67], s{sXT} offen lds')
        himg[p] = k.vm_mark()
    k(f"""
    s_lshl_b32 s{sXRB}, s{sW}, 13
    s_add_u32 s{sXRB}, s{sXRB}, {F_XR}
    """)
    if CODEPF:
        k(f"""
        s_getpc_b64 s[{sTS}:{sTS + 1}]
        s_lshr_b32 s{T0}, s2, 3
        s_lshl_b32 s{T0}, s{T0}, 2
        s_add_u32 s{T0}, s{T0}, s{sW}
        s_lshl_b32 s{T0}, s{T0}, 9
        v_min_u32 v{vT1}, 3, v{vLANE}
        v_lshlrev_b32 v{vT1}, 7, v{vT1}
        v_add_u32 v{vT1}, s{T0}, v{vT1}
        v_min_u32 v{vT1}, {CODEPF}, v{vT1}
        global_load_dword v{vDUM}, v{vT1}, s[{sTS}:{sTS + 1}]
        """)
    if WARM:
        k(f"""
        s_lshr_b32 s{T0}, s2, 3
        s_lshl_b32 s{T0}, s{T0}, 2
        s_add_u32 s{T0}, s{T0}, s{sW}
        v_lshlrev_b32 v{vT1}, 7, v{vLANE}
        s_mul_i32 s{T2}, s{T0}, {74 * 128}
        buffer_load_dword v{vDUM}, v{vT1}, s[64:67], s{T2} offen
        v_min_u32 v{vT2}, 9, v{vLANE}
        v_lshlrev_b32 v{vT2}, 7, v{vT2}
        s_add_u32 s{T2}, s{T2}, 8192
        buffer_load_dword v{vDUM}, v{vT2}, s[64:67], s{T2} offen
        v_min_u32 v{vT2}, 13, v{vLANE}
        v_lshlrev_b32 v{vT2}, 7, v{vT2}
        s_lshr_b32 s{T2}, s{sRB}, 1
        s_mul_i32 s{T2}, s{T2}, {256 * 896}
        s_mul_i32 s{T0}, s{T0}, 1792
        s_add_u32 s{T2}, s{T2}, s{T0}
        buffer_load_dword v{vDUM}, v{vT2}, s[20:23], s{T2} offen
        """)
    set_layer(k, 0)
    if PROPOS == 0:
        emit(k, [x.replace(f'v{vTA},', f'v{vT3},').replace(f'v{vTA}', f'v{vT3}') for x in SCHED['PRO']()])
    if DUTYPOS == 0:
        duty_dma()
    xdma(0)
    xdma(1)
    xdma(2)
    k.wait_vm(h_zero)
    signal(k)
    img_dma(1)
    if DUTYPOS == 1:
        duty_dma()
    ts(k, 'F.issued')
    k(f"""
    v_lshlrev_b32 v{vT1}, 3, v{vHH}
    v_bfe_u32 v{vT2}, v{vLANE}, 2, 2
    v_add_u32 v{vT1}, v{vT1}, v{vT2}
    v_and_b32 v{vT2}, 1, v{vLANE}
    v_lshlrev_b32 v{vT2}, 4, v{vT2}
    v_bfe_u32 v{vT3}, v{vLANE}, 1, 1
    v_lshl_or_b32 v{vT2}, v{vT3}, 3, v{vT2}
    v_bfe_u32 v{vT3}, v{vLANE}, 4, 1
    v_lshl_add_u32 v{vTR}, v{vT1}, 6, v{vT2}
    v_lshl_add_u32 v{vTR}, v{vT3}, 5, v{vTR}
    v_add_u32 v{vTR2}, {2 * SLOT}, v{vTR}
    v_lshl_add_u32 v{vDT}, v{vT1}, 7, v{vT2}
    v_mad_u32_u24 v{vDT}, v{vT3}, s{sA1}, v{vDT}
    s_add_u32 s{T0}, s{sWOFF}, {F_DUTY}
    v_add_u32 v{vDT}, s{T0}, v{vDT}
    v_add_u32 v{vOQ}, s{sLW}, v{vTR}
    v_add_u32 v{vOQ2}, s{sLW}, v{vTR2}
    v_mov_b32 v{vS1}, 0
    v_mov_b32 v{vS2}, 0
    v_mov_b32 v{vCSK}, 0
    v_mov_b32 v{vCSV}, 0
    v_mov_b32 v{vCSQ}, 0
    v_cmp_le_u32 s[{sPAD}:{sPAD + 1}], 28, v{vN}
    s_sub_u32 s{T0}, s{sXRB}, s{sLW}
    """)
    for i in range(4):
        k(f"""
        v_add_u32 v{vT1}, {2 * i}, v{vHH}
        v_and_b32 v{vT2}, 7, v{vN}
        v_xor_b32 v{vT1}, v{vT1}, v{vT2}
        v_lshlrev_b32 v{vT1}, 4, v{vT1}
        v_lshl_add_u32 v{XA + i}, v{vN}, 7, v{vT1}
        v_add_u32 v{XA + i}, s{sLW}, v{XA + i}
        v_add_u32 v{XA + 4 + i}, s{T0}, v{XA + i}
        """)
    k(f's_or_b64 s[{sHP}:{sHP + 1}], s[{sHI}:{sHI + 1}], s[{sPAD}:{sPAD + 1}]')
    emit(k, setup2_salu())

    k(f"""
    s_movk_i32 s{sSA}, 2048
    s_cmp_eq_u32 s{sKIND}, 2
    s_cselect_b32 s{sSA}, 1792, s{sSA}
    s_cselect_b32 s{sSB}, 256, 0
    s_mov_b32 s{sZM}, 0
    s_cselect_b32 s{sZM + 1}, -1, 0
    s_add_u32 s{T0}, s{sDST}, 4096
    s_cmp_eq_u32 s{sKIND}, 2
    s_cselect_b32 s{sD8}, s{T0}, {OOBS}
    s_cmp_eq_u32 s{sKIND}, 0
    s_cselect_b32 s{sCSD}, s{sCSD}, {OOBS}
    s_cmp_eq_u32 s{sKIND}, 3
    s_cselect_b32 s{sDST}, {OOBS}, s{sDST}
    """)

    def x_rd(c):
        k.wait_vm(hx[c])
        for i in range(4):
            a, o = (XA + i, 0) if xslot(c) == 0 else (XA + 4 + i, 4096 * (xslot(c) - 1))
            k(f'ds_read_b128 {v4(X + 16 * c + 4 * i)}, v{a} offset:{o}')

    def x_st(c):
        emit(k, stats_ops(X + 16 * c, 16, vS1, vS2, vONES))

    def own_quarter(p, acc, buf):
        k.wait_vm(himg[p])
        base = vOQ if p < 2 else vOQ2
        for i in range(7):
            off = (p * SLOT if p < 2 else 0) + i * 1024
            k(f'ds_read_b64_tr_b16 {v2(buf + 4 * i)}, v{base} offset:{off}')
            k(f'ds_read_b64_tr_b16 {v2(buf + 4 * i + 2)}, v{base} offset:{off + 256}')
        for i in range(28):
            k(f'v_dot2_f32_bf16 v{acc}, v{buf + i}, v{vONES}, v{acc}')
        k(f"""
        v_mov_b32 v{vT0}, v{acc}
        v_permlane32_swap_b32 v{acc}, v{vT0}
        v_add_f32 v{acc}, v{acc}, v{vT0}
        s_mul_i32 s{T0}, s{sW}, 384
        s_add_u32 s{T0}, s{T0}, {F_CSX}
        v_lshlrev_b32 v{vT3}, 2, v{vN}
        v_add_u32 v{vT2}, s{T0}, v{vT3}
        ds_write_b32 v{vT2}, v{acc} offset:{128 * p}
        """)
    for c in range(3):
        x_rd(c)
    k.wait_lg()
    for c in range(3, 6):
        xdma(c)
    img_dma(2)
    ts(k, 'F.iss2')
    for c in range(3):
        x_st(c)
    own_quarter(1, vCSK, WB)
    x_rd(3)
    x_rd(4)
    k.wait_lg()
    xdma(6)
    if DUTYPOS == 2:
        duty_dma()
    ts(k, 'F.iss3')
    x_rd(5)
    for c in range(3, 6):
        x_st(c)
    own_quarter(2, vCSV, WB)
    x_rd(6)
    x_st(6)
    emit(k, ln_math(vS1, vS2, vT0, vT1, vM, vR) + mb_fill())
    k(f'v_lshlrev_b32 v{vT3}, 2, v{vN}')
    k(f'v_add_u32 v{vS1}, {F_CSX}, v{vT3}')
    gather = lines(f"""
    s_lshl_b32 s{T0}, s{sW}, 8
    s_add_u32 s{T0}, s{T0}, {F_SCR}
    v_add_u32 v{vT1}, s{T0}, v{vT3}
    ds_write_b32 v{vT1}, v{vR}
    v_lshlrev_b32 v{vT1}, 4, v{vHH}
    v_add_u32 v{vT1}, s{T0}, v{vT1}
    """) + [f'ds_read_b128 {v4(RT + 4 * g)}, v{vT1} offset:{32 * g}' for g in range(4)]
    ts(k, 'F.pre')
    k.barrier()
    ts(k, 'F.barA')
    pidx = {'Q': 0, 'K': 1, 'V': 2}

    def gemm(seq, CFR):
        def wread(n):
            p, ks = seq[n]
            b = WB + 4 * (n % NB)
            base, off = (vTR2, ks * 1024) if p == 'V' else (vTR, pidx[p] * SLOT + ks * 1024)
            return [f'ds_read_b64_tr_b16 {v2(b)}, v{base} offset:{off}',
                    f'ds_read_b64_tr_b16 {v2(b + 2)}, v{base} offset:{off + 256}']
        M = []
        for n, (p, ks) in enumerate(seq):
            b = v4(WB + 4 * (n % NB))
            x = v4(X + 4 * ks)
            a = {'Q': AQ, 'K': AK, 'V': AV}[p]
            c = '0' if ks == 0 else v16(a)
            m = f'{MF} {v16(a)}, {x}, {b}, {c}' if p == 'V' else f'{MF} {v16(a)}, {b}, {x}, {c}'
            M.append(dict(pre=wread(n + PF) if n + PF < len(seq) else [], m=m, need=[b]))
        for p, cf in CFR:
            a = {'Q': AQ, 'K': AK, 'V': AV}[p]
            M.append(dict(m=f'{MF} {v16(a)}, {v4(MB)}, {v4(cf)}, {v16(a)}' if p == 'V' else f'{MF} {v16(a)}, {v4(cf)}, {v4(MB)}, {v16(a)}'))
        for n in range(PF):
            emit(k, wread(n))
        return M

    def cs_frag(p, cf, t):
        fl = [f'ds_read_b32 v{t + w}, v{vS1} offset:{w * 384 + p * 128}' for w in range(4)]
        fl += ['s_nop 0'] * 6
        fl += [f'v_add_f32 v{t}, v{t}, v{t + 1}', f'v_add_f32 v{t + 2}, v{t + 2}, v{t + 3}', f'v_add_f32 v{t}, v{t}, v{t + 2}',
               f'v_cndmask_b32 v{t}, v{t}, 0, s[{sHP}:{sHP + 1}]']
        fl += split3(t, cf, cf + 1, vT0, vT2)
        fl += [f'v_mov_b32 v{cf + 2}, 0', f'v_mov_b32 v{cf + 3}, 0',
               ('call', lambda k: cs_store(k, cf))]
        return fl

    def cs_store(k, cf):
        k(f'ds_write_b128 v{vS2}, {v4(cf)}')
        k(f'v_add_u32 v{vS2}, 1024, v{vS2}')
    k(f'v_add_u32 v{vS2}, {SCR_CSQ + 1024}, v{vL16}')
    M = gemm([(p, ks) for ks in range(28) for p in 'KV'], [('K', QF), ('V', QF + 4)])
    fl = F(gather + cs_frag(1, QF, KF) + cs_frag(2, QF + 4, KF), earliest=1, deadline=54)
    late = []
    for i in range(7):
        late.append([f's_add_u32 m0, s{sLW}, {i * 1024}', f's_add_u32 s{sXT}, s{sIMG}, {i * 16 * 2688}',
                     f'buffer_load_dwordx4 v{vIMG}, s[64:67], s{sXT} offen lds'])
    late[-1].append(('call', lambda k: himg.__setitem__(0, k.vm_mark())))
    for j, c in enumerate(late):
        n = 1 + 5 * j
        M[n]['pre'] = M[n]['pre'] + c
    fl += F(lines(f"""
    s_lshl_b32 s{T0}, s{sIDX}, 6
    s_add_u32 s{T0}, s{T0}, s{sTT}
    s_lshl_b32 s{T4}, s{T0}, 2
    s_add_u32 s{T4}, s{T4}, {F_KV}
    s_lshl_b32 s{T5}, s{T0}, 12
    s_add_u32 s{T5}, s{T5}, s{sKV}
    """), earliest=2)
    flush(k, weave(k, M, fl, free=6))
    ts(k, 'F.kv')
    for r in range(16):
        k(f'v_mul_f32 v{AK + r}, v{vR}, v{AK + r}')
    for q in range(8):
        k(f'v_cvt_pk_bf16_f32 v{KF + q}, v{AK + 2 * q}, v{AK + 2 * q + 1}')
    k(f'v_cndmask_b32 v{KF + 6}, v{KF + 6}, 0, s[{sHI}:{sHI + 1}]')
    k(f'v_cndmask_b32 v{KF + 7}, v{KF + 7}, 0, s[{sHI}:{sHI + 1}]')
    for i in range(2):
        k(f'buffer_store_dwordx4 {v4(KF + 4 * i)}, v{vL16}, s[8:11], s{T5} offen offset:{1024 * i} sc1')
    for r in range(16):
        k(f'v_mul_f32 v{AV + r}, v{RT + r}, v{AV + r}')
    for q in range(8):
        k(f'v_cvt_pk_bf16_f32 v{VF + q}, v{AV + 2 * q}, v{AV + 2 * q + 1}')
        k(f'v_cndmask_b32 v{VF + q}, v{VF + q}, v{vONES}, s[{sN28}:{sN28 + 1}]')
    for i in range(2, 4):
        k(f'buffer_store_dwordx4 {v4(KF + 4 * i)}, v{vL16}, s[8:11], s{T5} offen offset:{1024 * i} sc1')
    hkv = k.vm_mark()
    for i in range(4):
        k(f'ds_write_b128 v{vKVA}, {v4(KF + 4 * i)} offset:{8 * 4096 + 1024 * i}')
    own_quarter(0, vCSQ, AK)
    set_flag(k, T4, '1', always_sc1=True, h=hkv)
    if PROPOS == 1:
        emit(k, SCHED['PRO']())
    ts(k, 'F.kvpub')
    k.barrier()
    k(f"""
    v_and_b32 v{vXO}, 15, v{vLANE}
    v_lshlrev_b32 v{vXO}, 4, v{vXO}
    buffer_load_dword v{vCSK}, v{vXO}, s[16:19], 0 offen sc1
    """)
    DB = AK
    for i in range(8):
        k(f'ds_read_b64_tr_b16 {v2(DB + 4 * i)}, v{vDT}')
        k(f'ds_read_b64_tr_b16 {v2(DB + 4 * i + 2)}, v{vDT} offset:512')
        k(f's_{"add" if i % 2 == 0 else "sub"}_u32 s{T0}, s{sSA}, s{sSB}')
        k(f'v_add_u32 v{vDT}, s{T0}, v{vDT}')
    k(f'v_mov_b32 v{vT1}, 0')
    dst = []
    for i in range(8):
        if i & 1:
            k(f'v_cndmask_b32 v{DB + 4 * i + 2}, v{DB + 4 * i + 2}, 0, s[{sZM}:{sZM + 1}]')
            k(f'v_cndmask_b32 v{DB + 4 * i + 3}, v{DB + 4 * i + 3}, 0, s[{sZM}:{sZM + 1}]')
        dst.append(([f's_add_u32 s{sDST}, s{sDST}, 4096'] if i == 4 else []) +
                   [f'buffer_store_dwordx4 {v4(DB + 4 * i)}, v{vL16}, s[8:11], s{sD8 if i == 7 else sDST} offen offset:{(i % 4) * 1024} sc1'])
    emit(k, dst[0] + dst[1])
    for i in range(28):
        k(f'v_dot2_f32_bf16 v{vT1}, v{DB + i}, v{vONES}, v{vT1}')
    k(f"""
    v_mov_b32 v{vT0}, v{vT1}
    v_permlane32_swap_b32 v{vT1}, v{vT0}
    v_add_f32 v{vT1}, v{vT1}, v{vT0}
    v_lshlrev_b32 v{vT3}, 2, v{vN}
    buffer_store_dword v{vT1}, v{vT3}, s[8:11], s{sCSD} offen sc1
    """)
    ts(k, 'F.duty')
    SH = RT + 8
    share = lines(f"""
    s_cmp_ge_u32 s{sRB}, 7
    s_cselect_b32 s{T0}, 1, 0
    s_cmp_ge_u32 s{sRB}, 14
    s_cselect_b32 s{T0}, 2, s{T0}
    s_mul_i32 s{T1}, s{T0}, 7
    s_sub_u32 s{T1}, s{sRB}, s{T1}
    s_mul_i32 s{T0}, s{T0}, {SLOT}
    s_lshl_b32 s{T1}, s{T1}, 10
    s_add_u32 s{T0}, s{T0}, s{T1}
    v_add_u32 v{vT1}, s{T0}, v{vOQ}
    ds_read_b64_tr_b16 {v2(SH)}, v{vT1}
    ds_read_b64_tr_b16 {v2(SH + 2)}, v{vT1} offset:256
    s_mul_i32 s{T2}, s{sIDX}, {84 * 1024}
    s_add_u32 s{T2}, s{T2}, s{sLW}
    s_add_u32 s{T2}, s{T2}, {WQKV_P}
    s_add_u32 s{T3}, s{T2}, s{T0}
    s_min_u32 s{T1}, s{sRB}, 4
    s_lshl_b32 s{T1}, s{T1}, 10
    s_add_u32 s{T1}, s{T1}, {2 * SLOT + 2048}
    v_add_u32 v{vT1}, s{T1}, v{vOQ}
    ds_read_b64_tr_b16 {v2(SH + 4)}, v{vT1}
    ds_read_b64_tr_b16 {v2(SH + 6)}, v{vT1} offset:256
    s_add_u32 s{T2}, s{T2}, s{T1}
    s_cmp_gt_u32 s{sRB}, 4
    s_cselect_b32 s{T2}, {OOBS}, s{T2}
    """) + ['s_nop 0'] * 2
    share += [f'v_cndmask_b32 v{SH + q}, v{SH + q}, 0, s[{sPAD}:{sPAD + 1}]' for q in range(8)]
    share += [f'buffer_store_dwordx4 {v4(SH)}, v{vL16}, s[8:11], s{T3} offen sc1',
              f'buffer_store_dwordx4 {v4(SH + 4)}, v{vL16}, s[8:11], s{T2} offen sc1']
    k(f'v_add_u32 v{vS2}, {SCR_CSQ}, v{vL16}')
    M = gemm([('Q', ks) for ks in range(28)], [('Q', RT)])
    for i in range(2, 8):
        M[3 * (i - 2) + 1]['pre'] = M[3 * (i - 2) + 1]['pre'] + dst[i]
    fl = F(cs_frag(0, RT, RT + 4), earliest=1, deadline=26) + F(share, earliest=1)
    flush(k, weave(k, M, fl, free=6))
    k(f'v_mov_b32 v{vFL}, v{vCSK}')
    emit(k, setup2_valu())
    k(f'v_mul_f32 v{vT0}, {f32bits(28 ** -0.5 * LOG2E)}, v{vR}')
    for r in range(16):
        k(f'v_mul_f32 v{AQ + r}, v{vT0}, v{AQ + r}')
    for q in range(8):
        k(f'v_cvt_pk_bf16_f32 v{QF + q}, v{AQ + 2 * q}, v{AQ + 2 * q + 1}')
    k(f"""
    v_mov_b32 v{vT1}, 0x3f80
    v_cndmask_b32 v{QF + 6}, v{QF + 6}, v{vT1}, s[{sHI}:{sHI + 1}]
    v_cndmask_b32 v{QF + 7}, v{QF + 7}, 0, s[{sHI}:{sHI + 1}]
    """)
    ts(k, 'F.q')
    global_check(k, pre=True)
    ts(k, 'F.chk')
    k.barrier()
    k(f's_cmp_lg_u32 s{sW}, 0')
    k.skip_begin('s_cbranch_scc1')
    k(f"""
    s_lshl_b32 s{T0}, s2, 7
    s_add_u32 s{T0}, s{T0}, {F_PK}
    v_mov_b32 v{vFL}, 1
    s_mov_b64 exec, 1
    buffer_store_dword v{vFL}, v{vZERO}, s[8:11], s{T0} offen sc1
    s_mov_b64 exec, -1
    """)
    k.skip_end()
    k(f's_cmp_eq_u32 s{sFAST}, 0')
    k('s_cbranch_scc1 SLOW_entry')


CSL = 112


def cs13_build():
    c = CSL
    out = [f'v_add_f32 v{c}, v{c}, v{c + 1}', f'v_add_f32 v{c + 2}, v{c + 2}, v{c + 3}', f'v_add_f32 v{c}, v{c}, v{c + 2}']
    out += split3(c, c + 4, c + 5, vT1, vT2)
    out += [f'v_mov_b32 v{c + i}, 0' for i in range(6, 12)]
    out += lines(f"""
    s_lshl_b32 s{sT0}, s{sW}, 10
    s_add_u32 s{sT0}, s{sT0}, {SCR_CS13}
    v_lshlrev_b32 v{vT0}, 4, v{vN}
    v_lshl_add_u32 v{vT0}, v{vHH}, 12, v{vT0}
    v_add_u32 v{vT0}, s{sT0}, v{vT0}
    ds_write_b128 v{vT0}, {v4(c + 4)}
    ds_write_b128 v{vT0}, {v4(c + 8)} offset:512
    s_waitcnt lgkmcnt(0)
    """)
    return out


SCHED = {}


def sched_a(v='a'):
    w2 = pf_w2()
    none = lambda: []
    SCHED.update({
        'PRO': lambda: t_X() + t_O(),
        'P3_pre': none,
        'P3_mm': lambda: [L1(t_H())] + [L0(g) for g in w2[:4]],
        'P3_idle': lambda: ['s_barrier'] + [L1(t_H())],
        'P5_idle': none,
        'P4_pre': none, 'P4_p1': none,
        'P4_mid': lambda: [[L0(g)] for g in w2[4:]] + [[L0(touch(2, sSADR))]],
        'G_pre': lambda: t_O(), 'G_q': none,
    })
    if v in 'ef':
        ch = (load_chunks([a4(4 * i) for i in range(28)], sBW2, sDM) + load_chunks([a4(112 + 4 * i) for i in range(28)], sBW2 + 1, sDM))
        n0 = 16 if v == 'e' else 24
        SCHED.update({
            'P3_mm': lambda: [L1(t_H())] + [L0(flat(ch[i:i + 2])) for i in range(0, n0, 2)],
            'P4_mid': lambda: [[L0(c)] for c in ch[n0:]] + [[L0(touch(2, sSADR))]],
        })
    if v in 'bc':
        n3 = 7 if v == 'b' else 10
        SCHED.update({
            'P3_idle': lambda: ['s_barrier'] + [L1(t_H())] + idle_q() + idle_touch(W13_P + 3 * SLOT, 7 * SLOT, n3),
            'P5_idle': lambda: idle_q() + idle_touch(WQKV_P, 84 * 1024, 11) + idle_touch(WO_P, 28 * 1024, 4),
        })
    if v == 'd':
        SCHED.update({
            'P3_idle': lambda: ['s_barrier'] + [L1(t_H())] + idle_q() + [L0(idle_touch(W2_P, 98 * 1024, 7, 4)), L1(idle_touch(W13_P + 3 * SLOT, 7 * SLOT, 7))],
            'P5_idle': lambda: idle_q() + idle_touch(WQKV_P, 84 * 1024, 11) + idle_touch(WO_P, 28 * 1024, 4) + idle_touch(W13_P, 7 * SLOT, 7),
        })


def layer_switch(k):
    k(f's_mov_b32 s{sL}, 1')
    if TS_ON:
        k(f'v_accvgpr_write_b32 a255, v{vTS}')
        k(f'v_mov_b32 v{vTS}, 0')
    set_layer(k, 1)
    phase_G(k)


def phases(k):
    k.lg_done = k.lg_seq
    k.pend = {}
    attention(k)
    phase_P3(k)
    phase_P4(k)
    phase_P5(k, 'MAIN_fin')


def body(k, sfx):
    global LAYER
    if sfx == '_s':
        LAYER = None
        k.label('SLOW_entry', pad=False)
        set_layer(k, 0)
        k.label('ATT' + sfx)
        phases(k)
        layer_switch(k)
        k('s_branch ATT' + sfx)
    else:
        LAYER = 0
        phases(k)
        LAYER = 1
        layer_switch(k)
        phases(k)


def gen_main(k, name):
    global MODE
    kstart(k, name)
    k.ignore.add(('v', vDUM))
    end = 'MAIN_end'
    MODE = 'fast'
    setup(k, end)
    ts(k, 'start')
    front(k)
    body(k, '_f')
    k.label('MAIN_fin', pad=False)
    rowmajor_addr(k)
    k(f"""
    buffer_store_dwordx4 {v4(SK_XO)}, v{vT0}, s[12:15], s{sT0} offen
    buffer_store_dwordx4 {v4(SK_XO + 4)}, v{vT0}, s[12:15], s{sT0} offen offset:32
    """)
    ts(k, 'P5.pub')
    k.label('MAIN_tail', pad=False)
    if TS_ON:
        k(f"""
        v_writelane_b32 v{vTS}, s{sFAST}, 63
        s_lshl_b32 s{sT0}, s2, 2
        s_add_u32 s{sT0}, s{sT0}, s{sW}
        s_lshl_b32 s{sT0}, s{sT0}, 9
        s_add_u32 s{sT0}, s{sT0}, {TS}
        v_lshlrev_b32 v{vT0}, 2, v{vLANE}
        buffer_store_dword a255, v{vT0}, s[8:11], s{sT0} offen
        buffer_store_dword v{vTS}, v{vT0}, s[8:11], s{sT0} offen offset:256
        """)
    k.drained()
    k.label(end, pad=False)
    k('s_endpgm')
    MODE = 'slow'
    k.drained()
    body(k, '_s')


HEADER = """; Persistent single-launch implementation (generated by a Python script written for this task).
"""


def main():
    global TS_ON, FORCE_SLOW, FORCE_FALLBACK
    TS_ON = '-ts' in sys.argv
    FORCE_SLOW = '-slow' in sys.argv
    FORCE_FALLBACK = '-fb' in sys.argv
    global WARM
    WARM = '-nowarm' not in sys.argv
    global CODEPF
    if '-nocode' in sys.argv:
        CODEPF = 0
    global PROPOS
    PROPOS = int([a[2:] for a in sys.argv if a.startswith('-p')][0]) if any(a.startswith('-p') for a in sys.argv) else 1
    global GNQ1
    GNQ1 = int([a[2:] for a in sys.argv if a.startswith('-q')][0]) if any(a.startswith('-q') for a in sys.argv) else 6
    global DUTYPOS
    DUTYPOS = int([a[2:] for a in sys.argv if a.startswith('-d')][0]) if any(a.startswith('-d') for a in sys.argv) else 2
    sched_a([a[2:] for a in sys.argv if a.startswith('-s') and len(a) == 3][0] if any(a.startswith('-s') and len(a) == 3 for a in sys.argv) else 'a')
    k = K()
    final = '-final' in sys.argv
    kn = 'interleave_layers__sliding_block__glu_gated_swiglu__prompt_kernel' if final else 'main_kernel'
    gen_main(k, kn)
    if final:
        head = HEADER + f'; @launch grid=(256,1,1) block=(256,1,1) lds={LDS_BYTES}\n'
    else:
        head = f'; @launch kernel=main_kernel grid=(256,1,1) block=(256,1,1) lds={LDS_BYTES}\n'
    head += '.amdgcn_target "amdgcn-amd-amdhsa--gfx950"\n.text\n'
    open(sys.argv[1], 'w').write(head + k.text() + kd(kn, 512, 102, 256))
    print('nops inserted', k.nops_inserted, 'lines', len(k.lines))
    if TS_ON:
        open(sys.argv[1] + '.names', 'w').write('\n'.join(_ts_names))


if __name__ == '__main__':
    main()
```

```python
from common5 import *

sW, sRB, sIDX, sTT, sL = 3, 4, 5, 6, 7
sP2 = 24
sBW13, sLW, sBWQ, sLWQ, sBW2, sBWO = 25, 26, 27, 28, 29, 31
sTW13, sTWQ, sTW2, sTWO = 33, 34, 35, 36
sHFL, sHPL, sHB = 33, 34, 35
sKV, sOF, sX1, sST1, sHF, sX2, sST2 = 37, 38, 39, 40, 41, 42, 43
sL1, sFAST, sACT, sSPIN = 44, 45, 46, 47
sT0, sT1, sT2, sT3, sT4, sT5 = 48, 49, 50, 51, 52, 53
sFT, sTT3, sFTo, sTTo = 54, 55, 56, 57
sTS = 58
sE, sHOFF, sCNT, sDM = 60, 61, 62, 63
sMASK = 64
sHI, sN28 = 96, 98
sOADR, sXADR = 100, 101
sSADR, sDS = 1, 0
Ctx.sL = sL
vDUM = 0
vL16, vLANE, vN, vHH, vSTO, vSTI, vL16b, vONES = 1, 2, 3, 4, 5, 6, 7, 8
vF14, vFH, vZERO, vKVA, vTS, vL2S, vL4S, vSCR = 9, 10, 11, 12, 13, 14, 15, 16
vKE, vFL, vTA, vM, vR, vT0, vT1, vT2, vT3, vNEG, vMX, vAD = 17, 18, 19, 20, 21, 22, 23, 24, 25, 26, 27, 28
MB = 28

TS_ON = False
FORCE_SLOW = False
FORCE_FALLBACK = False
_ts_names = []
XDEPTH = 10
WARM = True
P4FREE = 6
HPLAIN = False
CODEPF = 47 * 1024
PROPOS = 1
GNQ1 = 6
LAYER = None
DUTYPOS = 0
F_PK = FLAGS + 65536
MODE = 'fast'


def ts(k, name):
    if not TS_ON:
        return
    if name in _ts_names:
        i = _ts_names.index(name)
    else:
        i = len(_ts_names)
        _ts_names.append(name)
    assert i < 62
    k(f's_memrealtime s[{sTS}:{sTS + 1}]')
    k(f'v_writelane_b32 v{vTS}, s{sTS}, {i}')


def wait_flags(k, voff, soff, sexp, vFL=vFL):
    Lp, Ld = k.newlabel('poll'), k.newlabel('polled')
    k(f's_mov_b32 s{sSPIN}, 0')
    k.label(Lp, pad=False)
    k(f"""
    buffer_load_dword v{vFL}, v{voff}, s[8:11], s{soff} offen sc1
    s_add_u32 s{sSPIN}, s{sSPIN}, 1
    s_cmp_gt_u32 s{sSPIN}, {SPIN_MAX}
    s_cbranch_scc1 {Ld}
    s_waitcnt vmcnt(0)
    v_cmp_gt_u32 vcc, {sexp}, v{vFL}
    s_nop 1
    s_cbranch_vccnz {Lp}
    """)
    k.label(Ld, pad=False)
    k('s_waitcnt vmcnt(0)')


def publish(k, stores):
    for s_ in stores:
        k(s_ + ('' if MODE == 'fast' else ' sc1'))


def set_flag(k, soff, val, always_sc1=False, h=None):
    k(f'v_mov_b32 v{vFL}, {val}')
    if h is None:
        k('s_waitcnt vmcnt(0)')
    else:
        k.wait_vm(h)
    pol = ' sc1' if (always_sc1 or MODE != 'fast') else ''
    k('s_mov_b64 exec, 1')
    k(f'buffer_store_dword v{vFL}, v{vZERO}, s[8:11], s{soff} offen{pol}')
    k('s_mov_b64 exec, -1')


def dma_chunks(n, ssrc, src_off, slds, lds_off):
    out = []
    for i in range(n):
        c = []
        if i % 4 == 0:
            c += [f's_add_u32 m0, s{slds}, {lds_off + i * 1024}', f's_add_u32 s{sP2}, s{ssrc}, {src_off + i * 1024}']
        c.append(f'buffer_load_dwordx4 v{vL16}, s[8:11], s{sP2} offen offset:{(i % 4) * 1024} lds')
        out.append(c)
    return out


def load_chunks(dsts, ssrc, tmp, src_off=0, pol=''):
    out = []
    for i, d in enumerate(dsts):
        c = []
        if i % 4 == 0:
            c.append(f's_add_u32 s{tmp}, s{ssrc}, {src_off + i * 1024}')
        c.append(f'buffer_load_dwordx4 {d}, v{vL16}, s[8:11], s{tmp} offen offset:{(i % 4) * 1024}{pol}')
        out.append(c)
    return out


def touch(n, sbase, off=0):
    return [f'v_min_u32 v{vTA}, {n - 1}, v{vLANE}',
            f'v_lshlrev_b32 v{vTA}, 7, v{vTA}',
            f's_add_u32 s{sDS}, s{sbase}, {off}',
            f'buffer_load_dword v{vDUM}, v{vTA}, s[8:11], s{sDS} offen sc1']


def flat(chs):
    return [x for c in chs for x in c]


W13_SLOT = [0, 1, 2, 3, 4, 0, 1]


def pf_wqkv():
    return dma_chunks(21, sBWQ, 0, sLWQ, 0)


def pf_w13(i):
    return dma_chunks(7, sBW13, i * SLOT, sLW, W13_SLOT[i] * SLOT)


def pf_w2():
    ch = (load_chunks([a4(4 * i) for i in range(28)], sBW2, sDM) +
          load_chunks([a4(112 + 4 * i) for i in range(28)], sBW2 + 1, sDM))
    return [flat(ch[i:i + 4]) for i in range(0, 56, 4)]


def t_w13(i):
    return touch(28, sTW13, i * SLOT)


def t_wqkv():
    return touch(64, sTWQ, 0) + touch(20, sTWQ, 8192)


def t_w2():
    return touch(64, sTW2, 0) + touch(34, sTW2, 8192)


def t_wo():
    return touch(28, sTWO, 0)


def t_O():
    return touch(16, sOADR)


def t_X():
    return touch(16, sXADR) + touch(2, sSADR)


def t_H():
    return touch(56, sHOFF)


def idle_q():
    return lines(f"""
    s_and_b32 s{sT5}, s{sRB}, 1
    s_lshl_b32 s{sT5}, s{sT5}, 1
    s_add_u32 s{sT5}, s{sT5}, s{sIDX}
    s_sub_u32 s{sT5}, s{sT5}, 14
    s_lshl_b32 s{sT5}, s{sT5}, 2
    s_add_u32 s{sT5}, s{sT5}, s{sW}
    v_lshlrev_b32 v{vTA}, 7, v{vLANE}
    """)


def idle_touch(base, per_wave, n, first=0):
    out = [f's_mul_i32 s{sT4}, s{sT5}, {per_wave}', f's_add_u32 s{sT4}, s{sT4}, {base + first * 8192}']
    for i in range(n):
        out += [f'buffer_load_dword v{vDUM}, v{vTA}, s[8:11], s{sT4} offen',
                f's_add_u32 s{sT4}, s{sT4}, 8192']
    return out


def L0(ls):
    if LAYER is not None:
        return ('seq', list(ls) if LAYER == 0 else [])
    return ('L0', list(ls))


def L1(ls):
    if LAYER is not None:
        return ('seq', list(ls) if LAYER == 1 else [])

    def fn(k):
        k(f's_cmp_eq_u32 s{sL}, 0')
        k.skip_begin('s_cbranch_scc1')
        for x in ls:
            k(x)
        k.skip_end()
    return ('call', fn)


def res_addr(k, dst, base):
    k(f"""
    s_mul_i32 s{dst}, s{sTT3}, 28
    s_lshl_b32 s{sT1}, s{sFT}, 1
    s_add_u32 s{dst}, s{dst}, s{sT1}
    s_lshl_b32 s{dst}, s{dst}, 10
    s_add_u32 s{dst}, s{dst}, {base}
    """)


def st_addr(k, dst, base):
    k(f"""
    s_mul_i32 s{dst}, s{sTT3}, 14
    s_add_u32 s{dst}, s{dst}, s{sFT}
    s_lshl_b32 s{dst}, s{dst}, 8
    s_add_u32 s{dst}, s{dst}, {base}
    """)


def setup(k, end_label):
    k('s_cmp_ge_u32 s2, 256')
    k(f's_cbranch_scc1 {end_label}')
    k(f"""
    s_load_dwordx16 s[72:87], s[0:1], 0
    s_load_dwordx2 s[16:17], s[0:1], 64
    s_load_dwordx2 s[8:9], s[0:1], 72
    v_lshrrev_b32 v{vT0}, 6, v0
    v_and_b32 v{vLANE}, 63, v0
    v_readfirstlane_b32 s{sW}, v{vT0}
    v_lshlrev_b32 v{vL16}, 4, v{vLANE}
    v_and_b32 v{vN}, 31, v{vLANE}
    v_lshrrev_b32 v{vHH}, 5, v{vLANE}
    s_and_b32 s{sT0}, s2, 7
    s_lshr_b32 s{sT1}, s2, 3
    s_lshr_b32 s{sT2}, s{sT1}, 4
    s_lshl_b32 s{sRB}, s{sT0}, 1
    s_add_u32 s{sRB}, s{sRB}, s{sT2}
    s_and_b32 s{sIDX}, s{sT1}, 15
    s_lshl_b32 s{sTT}, s{sRB}, 2
    s_add_u32 s{sTT}, s{sTT}, s{sW}
    s_mov_b32 s10, {WS_BYTES}
    s_mov_b32 s11, 0x00020000
    s_mov_b32 s14, {S * D * 2}
    s_mov_b32 s15, 0x00020000
    s_mov_b32 s18, 256
    s_mov_b32 s19, 0x00020000
    s_mov_b32 s22, {S * D * 2}
    s_mov_b32 s23, 0x00020000
    s_mov_b32 s{sL}, 0
    s_mov_b32 s{sHI}, 0
    s_mov_b32 s{sHI + 1}, -1
    s_lshl_b32 s{sT1}, s{sW}, 12
    s_add_u32 s{sT1}, s{sT1}, {KVB}
    v_add_u32 v{vKVA}, s{sT1}, v{vL16}
    v_mov_b32 v{vZERO}, 0
    v_mov_b32 v{vTS}, 0
    v_mov_b32 v{vONES}, {ONES_BF16}
    v_cmp_eq_u32 s[{sN28}:{sN28 + 1}], 28, v{vN}
    s_cmp_ge_u32 s{sIDX}, 7
    s_cselect_b32 s{sT0}, 1, 0
    s_mul_i32 s{sT1}, s{sT0}, 7
    s_sub_u32 s{sT1}, s{sIDX}, s{sT1}
    s_cmp_lt_u32 s{sIDX}, 14
    s_cselect_b32 s{sACT}, 1, 0
    s_cselect_b32 s{sT1}, s{sT1}, 0
    s_lshl_b32 s{sFT}, s{sT1}, 1
    s_and_b32 s{sT2}, s{sW}, 1
    s_add_u32 s{sFT}, s{sFT}, s{sT2}
    s_xor_b32 s{sFTo}, s{sFT}, 1
    s_lshl_b32 s{sTT3}, s{sRB}, 2
    s_lshl_b32 s{sT0}, s{sT0}, 1
    s_add_u32 s{sTT3}, s{sTT3}, s{sT0}
    s_lshr_b32 s{sT2}, s{sW}, 1
    s_add_u32 s{sTT3}, s{sTT3}, s{sT2}
    s_xor_b32 s{sTTo}, s{sTT3}, 1
    s_mul_i32 s{sLW}, s{sW}, 7168
    s_waitcnt lgkmcnt(0)
    s_mov_b32 s20, s72
    s_mov_b32 s21, s73
    s_mov_b32 s12, s86
    s_mov_b32 s13, s87
    """)


def setup2_salu():
    return lines(f"""
    s_mov_b32 s{sFAST}, 0
    s_mul_i32 s{sBW13}, s{sIDX}, {7 * SLOT}
    s_add_u32 s{sBW13}, s{sBW13}, {W13_P}
    s_add_u32 s{sBW13}, s{sBW13}, s{sLW}
    s_mul_i32 s{sLWQ}, s{sW}, {21 * 1024}
    s_mul_i32 s{sBWQ}, s{sIDX}, {84 * 1024}
    s_add_u32 s{sBWQ}, s{sBWQ}, {WQKV_P}
    s_add_u32 s{sBWQ}, s{sBWQ}, s{sLWQ}
    s_mul_i32 s{sP2}, s{sW}, {28 * 1024}
    s_add_u32 s{sP2}, s{sP2}, {W2_P}
    s_mul_i32 s{sBW2}, s{sFT}, {112 * 1024}
    s_add_u32 s{sBW2}, s{sBW2}, s{sP2}
    s_mul_i32 s{sBW2 + 1}, s{sFTo}, {112 * 1024}
    s_add_u32 s{sBW2 + 1}, s{sBW2 + 1}, s{sP2}
    s_lshl_b32 s{sP2}, s{sW}, 13
    s_add_u32 s{sP2}, s{sP2}, {WO_P}
    s_lshl_b32 s{sBWO}, s{sFT}, 15
    s_add_u32 s{sBWO}, s{sBWO}, s{sP2}
    s_lshl_b32 s{sBWO + 1}, s{sFTo}, 15
    s_add_u32 s{sBWO + 1}, s{sBWO + 1}, s{sP2}
    """)


def setup2_valu():
    out = lines(f"""
    v_lshlrev_b32 v{vSTO}, 3, v{vN}
    v_mul_u32_u24 v{vSTI}, 1792, v{vHH}
    v_add_u32 v{vSTI}, v{vSTI}, v{vSTO}
    v_lshl_or_b32 v{vSTO}, v{vHH}, 2, v{vSTO}
    v_add_u32 v{vL16b}, {2 * SLOT}, v{vL16}
    v_min_u32 v{vF14}, 13, v{vLANE}
    v_lshlrev_b32 v{vF14}, 2, v{vF14}
    v_add_u32 v{vL2S}, {2 * SLOT}, v{vL16}
    v_add_u32 v{vL4S}, {4 * SLOT}, v{vL16}
    v_add_u32 v{vSCR}, {SCR}, v{vL16}
    v_mov_b32 v{vNEG}, {f32bits(-1e30)}
    v_and_b32 v{vFH}, 3, v{vLANE}
    v_lshlrev_b32 v{vFH}, 2, v{vFH}
    v_bfe_u32 v{vT0}, v{vLANE}, 2, 1
    v_lshl_or_b32 v{vFH}, v{vT0}, 7, v{vFH}
    s_lshl_b32 s{sT1}, s{sW}, 4
    v_add_u32 v{vFH}, s{sT1}, v{vFH}
    v_lshlrev_b32 v{vT0}, 2, v{vHH}
    v_sub_u32 v{vT0}, v{vN}, v{vT0}
    """)
    for r in range(16):
        c = 8 * (r >> 2) + (r & 3)
        out.append(f'v_cmp_ge_i32 s[{sMASK + 2 * r}:{sMASK + 2 * r + 1}], v{vT0}, {c}')
    return out


def signal(k):
    k(f"""
    s_getreg_b32 s{sE}, hwreg(HW_REG_XCC_ID, 0, 4)
    s_mul_i32 s{sCNT}, s{sE}, s{sE}
    s_lshl_b32 s{sCNT}, s{sCNT}, 16
    s_lshl_b32 s{sE}, s{sE}, 8
    s_or_b32 s{sE}, s{sE}, s{sCNT}
    s_or_b32 s{sE}, s{sE}, 1
    v_mov_b32 v{vFL}, s{sE}
    s_lshl_b32 s{sCNT}, s{sRB}, 4
    s_cmp_eq_u32 s{sW}, 0
    s_cselect_b32 s{sCNT}, s{sCNT}, 4096
    s_mov_b64 exec, 1
    buffer_atomic_add v{vFL}, v{vZERO}, s[16:19], s{sCNT} offen sc1
    s_mov_b64 exec, -1
    """)


def global_check(k, pre=False):
    Lp, Ld, Lg = k.newlabel('gpoll'), k.newlabel('gdone'), k.newlabel('ggood')
    k(f"""
    v_and_b32 v{vT1}, 15, v{vLANE}
    v_lshlrev_b32 v{vT1}, 4, v{vT1}
    s_mov_b32 s{sSPIN}, 0
    """)
    if pre:
        k(f"""
        v_and_b32 v{vT0}, 0xff, v{vFL}
        v_cmp_gt_u32 vcc, 16, v{vT0}
        s_nop 1
        s_cbranch_vccz {Lg}
        """)
    k.label(Lp, pad=False)
    k(f"""
    buffer_load_dword v{vFL}, v{vT1}, s[16:19], 0 offen sc1
    s_add_u32 s{sSPIN}, s{sSPIN}, 1
    s_cmp_gt_u32 s{sSPIN}, {SPIN_MAX}
    s_cbranch_scc1 {Ld}
    s_waitcnt vmcnt(0)
    v_and_b32 v{vT0}, 0xff, v{vFL}
    v_cmp_gt_u32 vcc, 16, v{vT0}
    s_nop 1
    s_cbranch_vccz {Lg}
    s_sleep 24
    s_branch {Lp}
    """)
    k.label(Lg, pad=False)
    k(f"""
    s_getreg_b32 s{sT0}, hwreg(HW_REG_XCC_ID, 0, 4)
    s_mul_i32 s{sT1}, s{sT0}, s{sT0}
    s_lshl_b32 s{sT1}, s{sT1}, 20
    s_lshl_b32 s{sT0}, s{sT0}, 12
    s_or_b32 s{sT0}, s{sT0}, s{sT1}
    s_or_b32 s{sT0}, s{sT0}, 16
    v_readlane_b32 s{sT1}, v{vFL}, s{sRB}
    s_nop 3
    s_cmp_eq_u32 s{sT0}, s{sT1}
    s_cselect_b32 s{sFAST}, {0 if FORCE_SLOW else 1}, 0
    """)
    k.label(Ld, pad=False)
    k('s_waitcnt vmcnt(0)')


def set_layer(k, l):
    fast = MODE == 'fast'
    k(f"""
    s_mov_b32 s{sL1}, {l + 1}
    s_mov_b32 s{sX1}, {XF[1] if fast else XF[2 * l + 1]}
    s_mov_b32 s{sX2}, {XF[1] if fast else XF[2]}
    s_mov_b32 s{sST1}, {ST[1] if fast else ST[2 * l + 1]}
    s_mov_b32 s{sST2}, {ST[2]}
    s_mov_b32 s{sKV}, {KV[l]}
    s_mov_b32 s{sOF}, {OF[0] if fast else OF[l]}
    s_mov_b32 s{sHF}, {HF[0] if fast else HF[l]}
    s_lshl_b32 s{sOADR}, s{sIDX}, 6
    s_add_u32 s{sOADR}, s{sOADR}, s{sTT}
    s_lshl_b32 s{sOADR}, s{sOADR}, 11
    s_add_u32 s{sOADR}, s{sOADR}, s{sOF}
    s_mul_i32 s{sHOFF}, s{sTT}, 112
    s_mul_i32 s{sT5}, s{sIDX}, 7
    s_add_u32 s{sHOFF}, s{sHOFF}, s{sT5}
    s_lshl_b32 s{sHOFF}, s{sHOFF}, 10
    s_add_u32 s{sHOFF}, s{sHOFF}, s{sHF}
    """)
    res_addr(k, sXADR, f's{sX1}')
    st_addr(k, sSADR, f's{sST1}')


def stats_loads(sbase, stt, dst):
    out = [f's_mul_i32 s{sT0}, s{stt}, {14 * 256}', f's_add_u32 s{sT0}, s{sT0}, s{sbase}']
    out += [f'buffer_load_dwordx2 {v2(dst + 2 * i)}, v{vSTI}, s[8:11], s{sT0} offen offset:{256 * i} sc1' for i in range(7)]
    return out


def stats_math(src):
    out = []
    for i in range(1, 7):
        out.append(f'v_add_f32 v{src}, v{src}, v{src + 2 * i}')
        out.append(f'v_add_f32 v{src + 1}, v{src + 1}, v{src + 2 * i + 1}')
    return out + ln_math(src, src + 1, vT0, vT1, vM, vR)


def mb_fill():
    return [f'v_mov_b32 v{MB + i}, v{vM}' for i in range(4)]


def halo(k, poll):
    k(f"""
    s_lshl_b32 s{sT2}, s{sRB}, 2
    s_lshl_b32 s{sT3}, s{sW}, 1
    s_add_u32 s{sT2}, s{sT2}, s{sT3}
    s_sub_i32 s{sT2}, s{sT2}, 8
    s_lshl_b32 s{sT5}, s{sW}, 13
    s_add_u32 s{sT5}, s{sT5}, {KVB}
    s_cmp_lt_i32 s{sT2}, 0
    """)
    Lfill, Ljoin = k.newlabel('A_fill'), k.newlabel('A_join')
    k(f's_cbranch_scc1 {Lfill}')
    st = (k.vm_seq, k.vm_done, k.lg_seq, k.lg_done, dict(k.pend))
    k(f"""
    s_lshl_b32 s{sT0}, s{sIDX}, 6
    s_add_u32 s{sT0}, s{sT0}, s{sT2}
    s_lshl_b32 s{sT4}, s{sT0}, 2
    s_add_u32 s{sT4}, s{sT4}, {F_KV}
    s_lshl_b32 s{sE}, s{sT0}, 12
    s_add_u32 s{sE}, s{sE}, s{sKV}
    """)
    if poll:
        k(f'v_and_b32 v{vT0}, 1, v{vLANE}')
        k(f'v_lshlrev_b32 v{vT0}, 2, v{vT0}')
        wait_flags(k, vT0, sT4, f's{sL1}')
    emit(k, flat(dma_chunks(8, sE, 0, sT5, 0)))
    k(f's_branch {Ljoin}')
    k.label(Lfill, pad=False)
    z = 248
    k(f"""
    v_mov_b32 v{z}, 0
    v_mov_b32 v{z + 1}, 0
    v_mov_b32 v{z + 2}, 0
    v_mov_b32 v{z + 3}, 0
    v_mov_b32 v{z + 4}, 0
    v_mov_b32 v{z + 5}, 0
    v_mov_b32 v{z + 7}, 0
    v_mov_b32 v{vT1}, 0xf14a
    v_cndmask_b32 v{z + 6}, 0, v{vT1}, s[{sHI}:{sHI + 1}]
    v_add_u32 v{vT0}, s{sT5}, v{vL16}
    """)
    for t in range(2):
        k(f'ds_write_b128 v{vT0}, {v4(z)} offset:{4096 * t}')
        k(f'ds_write_b128 v{vT0}, {v4(z + 4)} offset:{4096 * t + 1024}')
        k(f'ds_write_b128 v{vT0}, {v4(z)} offset:{4096 * t + 2048}')
        k(f'ds_write_b128 v{vT0}, {v4(z)} offset:{4096 * t + 3072}')
    k('s_waitcnt lgkmcnt(0)')
    k.label(Ljoin, pad=False)
    k.vm_seq, k.vm_done, k.lg_seq, k.lg_done, k.pend = st[0], st[1], st[2], st[3], dict(st[4])


QF, KF, VF = 232, 216, 224
WO_R = 128
SA, PA, OA, NM, KB, VB, OS = 32, 48, 64, 80, 96, 104, 112


def att_tile_body(k, last, mem):
    k(f'{MF} {v16(SA)}, {v4(KB)}, {v4(QF)}, {v16(NM)}')
    k(f'{MF} {v16(SA)}, {v4(KB + 4)}, {v4(QF + 4)}, {v16(SA)}')
    k(f'{MF} {v16(OA)}, {v4(VB)}, {v4(PA)}, {v16(OA)}')
    k(f'{MF} {v16(OA)}, {v4(VB + 4)}, {v4(PA + 4)}, {v16(OA)}')
    k(f'ds_read_b128 {v4(VB)}, v{vAD} offset:2048')
    k(f'ds_read_b128 {v4(VB + 4)}, v{vAD} offset:3072')
    k(f'v_subrev_u32 v{vAD}, 4096, v{vAD}')
    if not last:
        k(f'ds_read_b128 {v4(KB)}, v{vAD}')
        k(f'ds_read_b128 {v4(KB + 4)}, v{vAD} offset:1024')
    emit(k, mem)
    if last:
        for r in range(16):
            k(f'v_cndmask_b32 v{SA + r}, v{SA + r}, v{vNEG}, s[{sMASK + 2 * r}:{sMASK + 2 * r + 1}]')
    for q in range(8):
        k(f'v_exp_f32 v{SA + 2 * q}, v{SA + 2 * q}')
        k(f'v_exp_f32 v{SA + 2 * q + 1}, v{SA + 2 * q + 1}')
        if q:
            k(f'v_cvt_pk_bf16_f32 v{PA + q - 1}, v{SA + 2 * q - 2}, v{SA + 2 * q - 1}')
    k(f'v_cvt_pk_bf16_f32 v{PA + 7}, v{SA + 14}, v{SA + 15}')


def loop_dma():
    out = []
    for i in range(3):
        out += [f's_add_u32 m0, s{sDM}, {W13_SLOT[i] * SLOT}',
                f's_add_u32 s{sP2}, s{sDS}, {i * SLOT}',
                f'buffer_load_dwordx4 v{vL16}, s[8:11], s{sP2} offen lds']
    out += [f's_add_u32 s{sDM}, s{sDM}, 1024', f's_add_u32 s{sDS}, s{sDS}, 1024']
    return out


def loop_dma0():
    out = [f's_min_u32 m0, s{sDM}, {80 * 1024}', f's_add_u32 s{sP2}, s{sDS}, m0']
    out += [f'buffer_load_dwordx4 v{vL16}, s[8:11], s{sP2} offen offset:{i * 1024} lds' for i in range(4)]
    out.append(f's_add_u32 s{sDM}, s{sDM}, 4096')
    return out


def attention(k):
    ts(k, 'ATT.start')
    k(f'{MF} {v16(SA)}, {v4(KF)}, {v4(QF)}, 0')
    k(f'{MF} {v16(SA)}, {v4(KF + 4)}, {v4(QF + 4)}, {v16(SA)}')
    k(f"""
    v_add_u32 v{vAD}, {7 * 4096}, v{vKVA}
    ds_read_b128 {v4(KB)}, v{vAD}
    ds_read_b128 {v4(KB + 4)}, v{vAD} offset:1024
    s_mul_i32 s{sT0}, s{sW}, s{sW}
    s_mul_i32 s{sDM}, s{sW}, 30
    s_lshl_b32 s{sT0}, s{sT0}, 1
    s_sub_u32 s{sDM}, s{sDM}, s{sT0}
    s_lshl_b32 s{sDM}, s{sDM}, 10
    s_sub_u32 s{sDS}, s{sBW13}, s{sLW}
    """)
    wo = load_chunks([v4(WO_R + 4 * i) for i in range(8)], sBWO, sT2) + load_chunks([v4(WO_R + 32 + 4 * i) for i in range(8)], sBWO + 1, sT2)
    for q in range(8):
        k(f'v_mov_b32 v{VB + q}, v{VF + q}')
    for r in range(16):
        k(f'v_mov_b32 v{OA + r}, 0')
    for r in range(16):
        k(f'v_cndmask_b32 v{SA + r}, v{vNEG}, v{SA + r}, s[{sMASK + 2 * r}:{sMASK + 2 * r + 1}]')
    k(f'v_max_f32 v{vMX}, v{SA}, v{SA + 1}')
    for r in range(2, 16, 2):
        k(f'v_max3_f32 v{vMX}, v{SA + r}, v{SA + r + 1}, v{vMX}')
    k(f"""
    v_mov_b32 v{vT1}, v{vMX}
    v_permlane32_swap_b32 v{vMX}, v{vT1}
    v_max_f32 v{vMX}, v{vMX}, v{vT1}
    """)
    for r in range(16):
        k(f'v_sub_f32 v{SA + r}, v{SA + r}, v{vMX}')
    for r in range(16):
        k(f'v_sub_f32 v{NM + r}, 0, v{vMX}')
    for r in range(16):
        k(f'v_exp_f32 v{SA + r}, v{SA + r}')
        if r % 4 == 3:
            emit_item(k, L1(flat(wo[r - 3:r + 1])))
    for r in parse_reg(f'v[{WO_R}:{WO_R + 63}]'):
        k.pend.pop(r, None)
    for q in range(8):
        k(f'v_cvt_pk_bf16_f32 v{PA + q}, v{SA + 2 * q}, v{SA + 2 * q + 1}')
    ts(k, 'ATT.diag')
    halo(k, True)
    LA, LAe, LB = k.newlabel('att1'), k.newlabel('att1e'), k.newlabel('att2')
    k(f's_mov_b32 s{sCNT}, s{sW}')
    k('s_waitcnt lgkmcnt(0)')
    k(f's_cmp_eq_u32 s{sCNT}, 0')
    k(f's_cbranch_scc1 {LAe}')
    k.label(LA, pad=False)
    k('s_nop 1')
    st = k.vm_seq
    att_tile_body(k, False, [])
    k.vm_seq = st
    k(f"""
    s_sub_u32 s{sCNT}, s{sCNT}, 1
    s_cmp_lg_u32 s{sCNT}, 0
    s_waitcnt lgkmcnt(0)
    s_cbranch_scc1 {LA}
    """)
    k.label(LAe, pad=False)
    ts(k, 'ATT.st1')
    Lw = k.newlabel('wready')
    if LAYER is None:
        k(f's_cmp_lg_u32 s{sL}, 0')
        k(f's_cbranch_scc1 {Lw}')
    elif LAYER == 1:
        k(f's_branch {Lw}')
    st = (k.vm_seq, k.vm_done, dict(k.pend))
    k(f"""
    s_mul_i32 s{sT0}, s{sIDX}, 7
    s_add_u32 s{sT1}, s{sT0}, 6
    s_and_b32 s{sT0}, s{sT0}, -4
    s_or_b32 s{sT1}, s{sT1}, 3
    v_add_u32 v{vT0}, s{sT0}, v{vLANE}
    v_min_u32 v{vT0}, s{sT1}, v{vT0}
    s_lshr_b32 s{sT2}, s{sFT}, 1
    s_lshl_b32 s{sT0}, s{sT2}, 3
    s_add_u32 s{sT0}, s{sT0}, 112
    v_and_b32 v{vT1}, 7, v{vLANE}
    v_add_u32 v{vT1}, s{sT0}, v{vT1}
    v_cmp_le_u32 vcc, 16, v{vLANE}
    s_lshl_b32 s{sT0}, s{sT2}, 1
    s_add_u32 s{sT0}, s{sT0}, 168
    v_cndmask_b32 v{vT0}, v{vT0}, v{vT1}, vcc
    v_and_b32 v{vT1}, 1, v{vLANE}
    v_add_u32 v{vT1}, s{sT0}, v{vT1}
    v_cmp_le_u32 vcc, 24, v{vLANE}
    v_bfe_u32 v{vT2}, v{vLANE}, 1, 3
    v_and_b32 v{vT3}, 1, v{vLANE}
    v_cndmask_b32 v{vT0}, v{vT0}, v{vT1}, vcc
    v_lshl_add_u32 v{vT2}, v{vT3}, 7, v{vT2}
    s_lshl_b32 s{sT0}, s{sIDX}, 3
    v_add_u32 v{vT2}, s{sT0}, v{vT2}
    v_cndmask_b32 v{vT0}, v{vT0}, v{vT2}, s[{sHI}:{sHI + 1}]
    v_lshlrev_b32 v{vT0}, 7, v{vT0}
    s_mov_b32 s{sT0}, {F_PK}
    """)
    wait_flags(k, vT0, sT0, '1')
    k.vm_seq, k.vm_done, k.pend = st
    k.label(Lw, pad=False)
    k('s_waitcnt vmcnt(0)')
    ts(k, 'ATT.halo')
    k('s_barrier')
    k(f"""
    ds_read_b128 {v4(KB)}, v{vAD}
    ds_read_b128 {v4(KB + 4)}, v{vAD} offset:1024
    s_sub_u32 s{sCNT}, 7, s{sW}
    """)
    emit_item(k, L0(([x.replace(f's{sDS},', f's{sT3},').replace(f's{sDS} ', f's{sT3} ') for x in SCHED['PRO']()] if PROPOS == 2 else []) + flat(wo) + lines(f"""
    v_lshlrev_b32 v{vT0}, 2, v{vN}
    v_lshl_add_u32 v{vT0}, v{vHH}, 9, v{vT0}
    s_mul_i32 s{sT0}, s{sIDX}, 7
    s_add_u32 s{sT0}, s{sT0}, s{sW}
    s_lshl_b32 s{sT0}, s{sT0}, 7
    s_add_u32 s{sT0}, s{sT0}, {CSP_13}
    """) + flat([[f's_add_u32 s{sT1}, s{sT0}, {q * 112 * 128}',
                 f'buffer_load_dword v{CSL + q}, v{vT0}, s[8:11], s{sT1} offen'] for q in range(4)])))
    k('s_waitcnt lgkmcnt(0)')
    k.label(LB, pad=False)
    k('s_nop 1')
    st = k.vm_seq
    att_tile_body(k, False, loop_dma0())
    k.vm_seq = st
    k(f"""
    s_sub_u32 s{sCNT}, s{sCNT}, 1
    s_cmp_lg_u32 s{sCNT}, 0
    s_waitcnt lgkmcnt(0)
    s_cbranch_scc1 {LB}
    """)
    k('s_nop 1')
    att_tile_body(k, True, [])
    k(f'{MF} {v16(OA)}, {v4(VB)}, {v4(PA)}, {v16(OA)}')
    k(f'{MF} {v16(OA)}, {v4(VB + 4)}, {v4(PA + 4)}, {v16(OA)}')
    k(f"""
    s_lshl_b32 s{sT4}, s{sTT}, 7
    s_lshl_b32 s{sT1}, s{sIDX}, 2
    s_add_u32 s{sT4}, s{sT4}, s{sT1}
    s_add_u32 s{sT4}, s{sT4}, {F_O}
    s_mov_b32 s{sT0}, {f32bits(2.0 ** 64)}
    """)
    Lok = k.newlabel('att_ok')
    k(f"""
    v_mov_b32 v{vT0}, v{OA + 12}
    v_mov_b32 v{vT1}, v{OA + 12}
    v_permlane32_swap_b32 v{vT0}, v{vT1}
    v_cmp_nge_f32 vcc, s{sT0}, v{vT1}
    s_nop 1
    """)
    k(f's_cbranch_vccz {Lok}' if not FORCE_FALLBACK else 's_nop 0')
    fallback(k)
    k.label(Lok)
    k(f'v_rcp_f32 v{vT1}, v{vT1}')
    for r in range(16):
        k(f'v_mul_f32 v{OA + r}, v{vT1}, v{OA + r}')
    for q in range(8):
        k(f'v_cvt_pk_bf16_f32 v{OA + q}, v{OA + 2 * q}, v{OA + 2 * q + 1}')
    ts(k, 'ATT.st2')
    publish(k, [f'buffer_store_dwordx4 {v4(OA)}, v{vL16}, s[8:11], s{sOADR} offen',
                f'buffer_store_dwordx4 {v4(OA + 4)}, v{vL16}, s[8:11], s{sOADR} offen offset:1024'])
    set_flag(k, sT4, f's{sL1}')
    ts(k, 'ATT.pub')


def fallback(k):
    def s_tile(c):
        k(f"""
        ds_read_b128 {v4(KB)}, v{vAD}
        ds_read_b128 {v4(KB + 4)}, v{vAD} offset:1024
        ds_read_b128 {v4(VB)}, v{vAD} offset:2048
        ds_read_b128 {v4(VB + 4)}, v{vAD} offset:3072
        """)
        k(f'{MF} {v16(SA)}, {v4(KB)}, {v4(QF)}, {c}')
        k(f'{MF} {v16(SA)}, {v4(KB + 4)}, {v4(QF + 4)}, {v16(SA)}')
        for cntv, a, b in ((0, SA, None), (8, None, SA)):
            k(f's_cmp_lg_u32 s{sCNT}, {cntv}')
            k.skip_begin('s_cbranch_scc1')
            for r in range(16):
                m = f's[{sMASK + 2 * r}:{sMASK + 2 * r + 1}]'
                if cntv == 0:
                    k(f'v_cndmask_b32 v{SA + r}, v{SA + r}, v{vNEG}, {m}')
                else:
                    k(f'v_cndmask_b32 v{SA + r}, v{vNEG}, v{SA + r}, {m}')
            k.skip_end()
    La, Lb = k.newlabel('fb1'), k.newlabel('fb2')
    k(f"""
    s_nop 7
    s_nop 7
    v_mov_b32 v{vAD}, v{vKVA}
    v_mov_b32 v{vMX}, v{vNEG}
    s_mov_b32 s{sCNT}, 0
    """)
    k.label(La)
    s_tile('0')
    for r in range(0, 16, 2):
        k(f'v_max3_f32 v{vMX}, v{SA + r}, v{SA + r + 1}, v{vMX}')
    k(f"""
    v_add_u32 v{vAD}, 4096, v{vAD}
    s_add_u32 s{sCNT}, s{sCNT}, 1
    s_cmp_lt_u32 s{sCNT}, 9
    s_waitcnt lgkmcnt(0)
    s_cbranch_scc1 {La}
    v_mov_b32 v{vT1}, v{vMX}
    v_permlane32_swap_b32 v{vMX}, v{vT1}
    v_max_f32 v{vMX}, v{vMX}, v{vT1}
    v_mov_b32 v{vAD}, v{vKVA}
    s_mov_b32 s{sCNT}, 0
    """)
    for r in range(16):
        k(f'v_mov_b32 v{OA + r}, 0')
    k.label(Lb)
    s_tile('0')
    for r in range(16):
        k(f'v_sub_f32 v{SA + r}, v{SA + r}, v{vMX}')
    for r in range(16):
        k(f'v_exp_f32 v{SA + r}, v{SA + r}')
    for q in range(8):
        k(f'v_cvt_pk_bf16_f32 v{PA + q}, v{SA + 2 * q}, v{SA + 2 * q + 1}')
    k(f'{MF} {v16(OA)}, {v4(VB)}, {v4(PA)}, {v16(OA)}')
    k(f'{MF} {v16(OA)}, {v4(VB + 4)}, {v4(PA + 4)}, {v16(OA)}')
    k(f"""
    v_add_u32 v{vAD}, 4096, v{vAD}
    s_add_u32 s{sCNT}, s{sCNT}, 1
    s_cmp_lt_u32 s{sCNT}, 9
    s_waitcnt lgkmcnt(0)
    s_cbranch_scc1 {Lb}
    v_mov_b32 v{vT0}, v{OA + 12}
    v_mov_b32 v{vT1}, v{OA + 12}
    v_permlane32_swap_b32 v{vT0}, v{vT1}
    """)


SK_ACC = [32, 48, 64, 80]
SK_XO = 96
RED = 3 * SLOT


def red_writes():
    out = {}
    for q in range(1, 4):
        o = lines(f"""
        s_xor_b32 s{sT0}, s{sW}, {q}
        s_mul_i32 s{sT0}, s{sT0}, 12288
        s_add_u32 s{sT0}, s{sT0}, {RED + (q - 1) * 4096}
        v_add_u32 v{vT0 + q - 1}, s{sT0}, v{vL16}
        """)
        for g in range(4):
            o.append(f'ds_write_b128 v{vT0 + q - 1}, {v4(SK_ACC[q] + 4 * g)} offset:{1024 * g}')
        out[q] = o
    return out


XR = 200


def red_setup():
    return lines(f"""
    s_mul_i32 s{sT0}, s{sW}, 12288
    s_add_u32 s{sT0}, s{sT0}, {RED}
    v_add_u32 v{vT3}, s{sT0}, v{vL16}
    """)


def red_finish(k):
    ACC = SK_ACC
    k.barrier()
    for g in range(4):
        for q in range(1, 4):
            k(f'ds_read_b128 {v4(ACC[q] + 4 * g)}, v{vT3} offset:{(q - 1) * 4096 + 1024 * g}')


def red_sum(k, g):
    ACC = SK_ACC
    k.wait_reg(v4(ACC[3] + 4 * g))
    for r in (4 * g, 4 * g + 2):
        k(f'v_pk_add_f32 {v2(ACC[1] + r)}, {v2(ACC[1] + r)}, {v2(ACC[2] + r)}')
        k(f'v_pk_add_f32 {v2(ACC[0] + r)}, {v2(ACC[0] + r)}, {v2(ACC[3] + r)}')
    for r in (4 * g, 4 * g + 2):
        k(f'v_pk_add_f32 {v2(ACC[0] + r)}, {v2(ACC[0] + r)}, {v2(ACC[1] + r)}')


def unpack_res(xo, dst):
    out = []
    for q in range(8):
        out.append(f'v_lshlrev_b32 v{dst + 2 * q}, 16, v{xo + q}')
        out.append(f'v_and_b32 v{dst + 2 * q + 1}, 0xffff0000, v{xo + q}')
    return out


def flag_addr(dst, fbase):
    return lines(f"""
    s_lshl_b32 s{dst}, s{sTT3}, 7
    s_lshl_b32 s{sT1}, s{sFT}, 2
    s_add_u32 s{dst}, s{dst}, s{sT1}
    s_add_u32 s{dst}, s{dst}, {fbase}
    """)


def res_epilogue(k, xo, sflag, val, scale, xr, Lfin):
    acc = SK_ACC[0]
    for g in range(4):
        red_sum(k, g)
        if scale is not None:
            for r in (4 * g, 4 * g + 2):
                k(f'v_pk_fma_f32 {v2(acc + r)}, {v2(acc + r)}, {v2(scale)}, {v2(xr + r)}')
        for q in (2 * g, 2 * g + 1):
            k(f'v_cvt_pk_bf16_f32 v{xo + q}, v{acc + 2 * q}, v{acc + 2 * q + 1}')
        if g == 1 and Lfin is None:
            publish(k, [f'buffer_store_dwordx4 {v4(xo)}, v{vL16}, s[8:11], s{sXADR} offen'])
    if Lfin:
        if LAYER == 1:
            k(f's_branch {Lfin}')
            return
        if LAYER is None:
            k(f's_cmp_eq_u32 s{sL}, 1')
            k(f's_cbranch_scc1 {Lfin}')
        publish(k, [f'buffer_store_dwordx4 {v4(xo)}, v{vL16}, s[8:11], s{sXADR} offen'])
    publish(k, [f'buffer_store_dwordx4 {v4(xo + 4)}, v{vL16}, s[8:11], s{sXADR} offen offset:1024'])
    k(f'v_mov_b32 v{vT0}, 0')
    k(f'v_mov_b32 v{vT1}, 0')
    emit(k, stats_ops(xo, 8, vT0, vT1, vONES))
    k(f"""
    v_permlane32_swap_b32 v{vT0}, v{vT1}
    v_add_f32 v{vT0}, v{vT0}, v{vT1}
    """)
    publish(k, [f'buffer_store_dword v{vT0}, v{vSTO}, s[8:11], s{sSADR} offen'])
    set_flag(k, sflag, val)


def rowmajor_addr(k):
    k(f"""
    v_mul_u32_u24 v{vT0}, 896, v{vN}
    v_lshl_add_u32 v{vT0}, v{vHH}, 4, v{vT0}
    s_mul_i32 s{sT0}, s{sTT3}, {32 * 896}
    s_lshl_b32 s{sT1}, s{sFT}, 6
    s_add_u32 s{sT0}, s{sT0}, s{sT1}
    """)


def phase_P3(k):
    ACC, XO = SK_ACC, SK_XO
    O_R = 192
    Lskip, Lj = k.newlabel('p3_skip'), k.newlabel('p3_join')
    k(f's_cmp_eq_u32 s{sACT}, 0')
    k(f's_cbranch_scc1 {Lskip}')
    La, Lb = k.newlabel('p3_l1'), k.newlabel('p3_res')
    if LAYER is None:
        k(f's_cmp_lg_u32 s{sL}, 0')
        k(f's_cbranch_scc1 {La}')
    if LAYER != 1:
        rowmajor_addr(k)
        k(f"""
        buffer_load_dwordx4 {v4(XO)}, v{vT0}, s[20:23], s{sT0} offen
        buffer_load_dwordx4 {v4(XO + 4)}, v{vT0}, s[20:23], s{sT0} offen offset:32
        """)
    if LAYER is None:
        k(f's_branch {Lb}')
        k.label(La, pad=False)
        k.vm_seq -= 2
        for r in parse_reg(f'v[{XO}:{XO + 7}]'):
            k.pend.pop(r, None)
    if LAYER != 0:
        res_addr(k, sT0, f's{sX2}')
        k(f"""
        buffer_load_dwordx4 {v4(XO)}, v{vL16}, s[8:11], s{sT0} offen sc1
        buffer_load_dwordx4 {v4(XO + 4)}, v{vL16}, s[8:11], s{sT0} offen offset:1024 sc1
        """)
    k.label(Lb, pad=False)
    k(f"""
    s_and_b32 s{sT4}, s{sTT3}, -2
    s_lshl_b32 s{sT4}, s{sT4}, 7
    s_add_u32 s{sT4}, s{sT4}, {F_O}
    s_lshl_b32 s{sT1}, s{sW}, 19
    s_add_u32 s{sT1}, s{sT1}, s{sOF}
    s_lshl_b32 s{sT2}, s{sTT3}, 11
    s_add_u32 s{sT2}, s{sT2}, s{sT1}
    s_lshl_b32 s{sT3}, s{sTTo}, 11
    s_add_u32 s{sT3}, s{sT3}, s{sT1}
    """)
    emit(k, SCHED['P3_pre']())
    emit(k, red_setup() + flag_addr(sE, F_X1))
    k('s_barrier')
    emit(k, unpack_res(XO, ACC[0]))
    wait_flags(k, vFH, sT4, f's{sL1}')
    ts(k, 'P3.ready')
    for q in (1, 0):
        for i in range(8):
            if i and i % 2 == 0:
                k(f's_add_u32 s{sT2 + q}, s{sT2 + q}, {64 * 2048}')
            k(f'buffer_load_dwordx4 {v4(O_R + 32 * q + 4 * i)}, v{vL16}, s[8:11], s{sT2 + q} offen offset:{(i % 2) * 1024} sc1')

    def mf(qa, qb, ks):
        a = ACC[qa + 2 * qb]
        c = '0' if (ks == 0 and qa + qb) else v16(a)
        return dict(m=f'{MF} {v16(a)}, {v4(WO_R + 32 * qa + 4 * ks)}, {v4(O_R + 32 * qb + 4 * ks)}, {c}')
    rw = red_writes()
    M = [mf(qa, 1, ks) for ks in range(8) for qa in range(2)] + [mf(1, 0, ks) for ks in range(8)] + [mf(0, 0, ks) for ks in range(8)]
    fl = F(SCHED['P3_mm'](), earliest=2) + F(rw[2] + rw[3], earliest=18) + F(rw[1], earliest=26)
    flush(k, weave(k, M, fl, free=6, pairwait=False))
    ts(k, 'P3.mfma')
    red_finish(k)
    res_epilogue(k, XO, sE, f's{sL1}', None, None, None)
    ts(k, 'P3.pub')
    k(f's_branch {Lj}')
    k.label(Lskip, pad=False)
    emit(k, SCHED['P3_idle']())
    k.label(Lj, pad=False)
    k.drained()


P5_XO = 232
P5_ORDER = ([ks for ks in range(28) if ks % 7 < 4] + [ks for ks in range(28) if ks % 7 in (4, 5)] +
            [ks for ks in range(28) if ks % 7 == 6])
P5_SLOTS = [96 + 8 * i for i in range(6)] + [160 + 8 * i for i in range(8)]
HDEPTH = 6


def p5_reg(pos, q):
    return v4(P5_SLOTS[pos % len(P5_SLOTS)] + 4 * q)


def p5_hload(pos):
    ks = P5_ORDER[pos]
    out = []
    for q in (1, 0):
        out += [f's_add_u32 s{sT0}, s{sHB + q}, {ks * 1024}',
                f'buffer_load_dwordx4 {p5_reg(pos, q)}, v{vL16}, s[8:11], s{sT0} offen sc1']
    return out


def lvl(n):
    if LAYER is not None:
        return str(3 * LAYER + n)
    return f's{[None, sE, sCNT, sDS][n]}'


def p5_poll():
    return [f'buffer_load_dword v{vTA}, v{vFH}, s[8:11], s{sHPL} offen sc1']


def p5_check(n):
    def fn(k):
        k(f'v_cmp_gt_u32 vcc, {lvl(n)}, v{vTA}')
        k('s_nop 1')
        Lok = k.newlabel('hok')
        k(f's_cbranch_vccz {Lok}')
        st = (k.vm_seq, k.vm_done, dict(k.pend), k.pos, list(k.hist))
        wait_flags(k, vFH, sHPL, lvl(n), vFL=vTA)
        k.vm_seq, k.vm_done, k.pend, k.pos, k.hist = st
        k.label(Lok, pad=False)
    return ('call', fn)


def phase_P5(k, Lfin, epi6, hs):
    ACC, XO = SK_ACC, P5_XO
    STT, XRF = 144, 240
    Lskip, Ljoin = k.newlabel('p5_skip'), k.newlabel('p5_join')
    k(f's_cmp_eq_u32 s{sACT}, 0')
    k(f's_cbranch_scc1 {Lskip}')
    st0 = (k.vm_seq, k.vm_done, k.lg_seq, k.lg_done, dict(k.pend), k.pos, list(k.hist))

    def mf(pos, qa, qb):
        a = ACC[qa + 2 * qb]
        c = '0' if pos == 0 else v16(a)
        return f'{MF} {v16(a)}, {a4(112 * qa + 4 * P5_ORDER[pos])}, {p5_reg(pos, qb)}, {c}'
    TAIL = 5
    M = []
    for pos in range(28):
        nxt = pos + HDEPTH
        pre = []
        if nxt == 16:
            pre.append(p5_check(2))
        if nxt == 24:
            pre.append(p5_check(3))
        if nxt < 28:
            pre += p5_hload(nxt)
        if nxt in (12, 20):
            pre += p5_poll()
        M.append(dict(pre=pre, m=mf(pos, 0, 1), w=1))
        M.append(dict(m=mf(pos, 1, 1)))
        M.append(dict(m=mf(pos, 1, 0), w=1))
        if pos < 28 - TAIL:
            M.append(dict(m=mf(pos, 0, 0)))
    n0 = len(M)
    M += [dict(m=mf(pos, 0, 0)) for pos in range(28 - TAIL, 28)]
    rw = red_writes()
    wq = pf_wqkv()
    wqg = [L0(flat(wq[i:i + 4])) for i in range(0, 21, 4)]
    first_free = 4 * (28 - HDEPTH)
    fl = F(epi6, earliest=0)
    fl.append((26, None, ('call', lambda k: set_flag(k, sHFL, lvl(3), h=hs[6]))))
    fl.append((27, None, ('call', lambda k: res_addr(k, sT2, f's{sX1}'))))
    fl += F([f'buffer_load_dwordx4 {v4(XO)}, v{vL16}, s[8:11], s{sT2} offen sc1',
             f'buffer_load_dwordx4 {v4(XO + 4)}, v{vL16}, s[8:11], s{sT2} offen offset:1024 sc1'], earliest=27)
    sl = [x.replace(f's{sT0}', f's{sT3}') for x in stats_loads(sST1, sTT3, STT)]
    fl += F(sl, earliest=29)
    fl += F(stats_math(STT) + [f'v_mul_f32 v{MB}, v{vR}, v{vR}', f'v_mul_f32 v{MB + 1}, v{vR}, v{vR}'] +
            unpack_res(XO, XRF), earliest=52)
    fl.append((52, None, ('call', lambda k: emit(k, [x.replace(f's{sT0}', f's{sT3}') for x in red_setup()] + flag_addr(sT5, F_XIN)))))
    fl.append((first_free - 2, first_free, 's_barrier'))
    for i, g in enumerate(wqg):
        fl += F([g], earliest=first_free + 2 * i)
    fl += F(rw[2] + rw[3] + rw[1], earliest=n0)
    flush(k, weave(k, M, fl, free=6, pairwait=False))
    ts(k, 'P5.mfma')
    red_finish(k)
    res_epilogue(k, XO, sT5, '1', MB, XRF, Lfin)
    if LAYER != 1:
        ts(k, 'P5.pub')
        k(f's_branch {Ljoin}')
    k.label(Lskip, pad=False)
    k.vm_seq, k.vm_done, k.lg_seq, k.lg_done, k.pend, k.pos, k.hist = st0[0], st0[1], st0[2], st0[3], dict(st0[4]), st0[5], list(st0[6])
    emit(k, epi6)
    set_flag(k, sHFL, lvl(3))
    if LAYER == 1:
        k('s_branch MAIN_tail')
        return
    if LAYER is None:
        k(f's_cmp_eq_u32 s{sL}, 1')
        k('s_cbranch_scc1 MAIN_tail')
    k('s_barrier')
    emit(k, flat(pf_wqkv()))
    k.label(Ljoin, pad=False)
    k('s_waitcnt vmcnt(0) lgkmcnt(0)')
    k.drained()
    k('s_barrier')


def phase_P4(k, Lfin):
    XB = 32
    ACC = [144, 160, 176]
    WB, NB, PF = 192, 8, 6
    ET = 224
    k(f"""
    s_lshl_b32 s{sT4}, s{sTT}, 7
    s_add_u32 s{sT4}, s{sT4}, {F_X1}
    s_mul_i32 s{sT3}, s{sTT}, {28 * 1024}
    s_add_u32 s{sT3}, s{sT3}, s{sX1}
    """)
    k('s_waitcnt vmcnt(0)')
    if LAYER is None:
        k(f's_cmp_lg_u32 s{sL}, 0')
        k.skip_begin('s_cbranch_scc1')
        emit(k, cs13_build())
        k.skip_end()
    elif LAYER == 0:
        emit(k, cs13_build())
    k('s_barrier')
    emit(k, SCHED['P4_pre']())
    acc_of = [0, 1, 2, 0, 1, 2, 0]
    seq = [(i, ks) for ks in range(29) for i in range(2)] + [(i, ks) for i in range(2, 7) for ks in range(29)]
    start = {i: 58 + 29 * (i - 2) for i in range(2, 7)}
    endi = {0: 56, 1: 57}
    endi.update({i: start[i] + 28 for i in range(2, 7)})

    def wread(n):
        i, ks = seq[n]
        if ks == 28:
            return f'ds_read_b128 {v4(WB + 4 * (n % NB))}, v{vSCR} offset:{1024 + 1024 * i}'
        s = W13_SLOT[i]
        base = {0: vL16, 1: vL16, 2: vL2S, 3: vL2S, 4: vL4S}[s]
        off = (s % 2) * SLOT + ks * 1024 if s < 4 else ks * 1024
        return f'ds_read_b128 {v4(WB + 4 * (n % NB))}, v{base} offset:{off}'

    def mf(n):
        i, ks = seq[n]
        a = v16(ACC[acc_of[i]])
        b = v4(MB) if ks == 28 else v4(XB + 4 * ks)
        return f'{MF} {a}, {v4(WB + 4 * (n % NB))}, {b}, {"0" if ks == 0 else a}'
    for n in range(PF):
        k(wread(n))
    wait_flags(k, vF14, sT4, f's{sL1}')
    ts(k, 'P4.ready')
    xl = load_chunks([v4(XB + 4 * i) for i in range(28)], sT3, sT2, pol=' sc1')
    for i in range(4):
        emit(k, xl[i])
    emit(k, stats_loads(sST1, sTT, ET))
    for i in range(4, XDEPTH):
        emit(k, xl[i])

    def epi(i):
        a = ACC[acc_of[i]]
        out = []
        e0 = ET + 8 * (i % 2)
        for r in range(8):
            out.append(f'v_mul_f32 v{e0 + r}, v{vKE}, v{a + r}')
        for r in range(8):
            out.append(f'v_exp_f32 v{e0 + r}, v{e0 + r}')
            out.append(f'v_mul_f32 v{a + r}, v{a + r}, v{a + 8 + r}')
        for r in range(8):
            out.append(f'v_add_f32 v{e0 + r}, 1.0, v{e0 + r}')
        for r in range(8):
            out.append(f'v_rcp_f32 v{e0 + r}, v{e0 + r}')
            if r:
                out.append(f'v_mul_f32 v{a + r - 1}, v{a + r - 1}, v{e0 + r - 1}')
        out.append(f'v_mul_f32 v{a + 7}, v{a + 7}, v{e0 + 7}')
        o = 240 + 4 * (i % 2)
        for q in range(4):
            out.append(f'v_cvt_pk_bf16_f32 v{o + q}, v{a + 2 * q}, v{a + 2 * q + 1}')

        def st(k):
            if i == 4:
                k(f's_add_u32 s{sHOFF}, s{sHOFF}, 4096')
            st_ = f'buffer_store_dwordx4 {v4(o)}, v{vL16}, s[8:11], s{sHOFF} offen offset:{(i % 4) * 1024}'
            if MODE == 'fast' and LAYER is not None:
                k(st_ + (' sc1' if (LAYER == 0 and not HPLAIN) else ''))
            elif MODE == 'fast':
                La, Lb = k.newlabel('h0'), k.newlabel('h1')
                k(f's_cmp_eq_u32 s{sL}, 0')
                k(f's_cbranch_scc1 {La}')
                k(st_)
                k(f's_branch {Lb}')
                k.label(La, pad=False)
                k.vm_seq -= 1
                k.pos -= 2
                k(st_ + ' sc1')
                k.label(Lb, pad=False)
            else:
                publish(k, [st_])
            hs[i] = k.vm_mark()
        out.append(('call', st))
        return out
    hs, hd = {}, {}

    def mark(name):
        def fn(k):
            hd[name] = k.vm_mark()
        return ('call', fn)

    def bar(name, tsn):
        def fn(k):
            k.wait_vm(hd[name])
            k.barrier()
            ts(k, tsn)
        return ('call', fn)
    b1, b2 = start[3] - PF, start[5] - PF
    M = []
    for n in range(len(seq)):
        pre = []
        if n == b1:
            pre.append(bar('t34', 'P4.b1'))
        if n == b2:
            pre.append(bar('t56', 'P4.b2'))
        if n + PF < len(seq):
            pre.append(wread(n + PF))
        i, ks = seq[n]
        if n < 58 and i == 0 and ks + XDEPTH < 28:
            pre += xl[ks + XDEPTH]
        M.append(dict(pre=pre, m=mf(n), need=[v4(WB + 4 * (n % NB))], w=1 if (n < 56 and i == 0) else 0))
    nx = 2 * (28 - XDEPTH)
    fl = F(stats_math(ET) + mb_fill() + [f'v_mul_f32 v{vKE}, {f32bits(-LOG2E)}, v{vR}'], earliest=6, deadline=54)
    fl += F(lines(f"""
    s_lshl_b32 s{sHFL}, s{sTT}, 7
    s_lshl_b32 s{sT1}, s{sIDX}, 2
    s_add_u32 s{sHFL}, s{sHFL}, s{sT1}
    s_add_u32 s{sHFL}, s{sHFL}, {F_H}
    s_and_b32 s{sHPL}, s{sTT3}, -2
    s_lshl_b32 s{sHPL}, s{sHPL}, 7
    s_add_u32 s{sHPL}, s{sHPL}, {F_H}
    s_mul_i32 s{sT1}, s{sW}, {28 * 1024}
    s_add_u32 s{sT1}, s{sT1}, s{sHF}
    s_mul_i32 s{sHB}, s{sTT3}, {112 * 1024}
    s_add_u32 s{sHB}, s{sHB}, s{sT1}
    s_mul_i32 s{sHB + 1}, s{sTTo}, {112 * 1024}
    s_add_u32 s{sHB + 1}, s{sHB + 1}, s{sT1}
    """), earliest=6)
    fl.append((6, None, ('call', lambda k: (res_addr(k, sXADR, f's{sX2}'), st_addr(k, sSADR, f's{sST2}')))))
    c34 = pf_w13(3) + pf_w13(4)
    for j, c in enumerate(c34):
        fl += F(c, earliest=nx + (j * 3) // 2, deadline=b1 - 8)
    fl.append((0, b1 - 8, mark('t34')))
    fl += F(flat(SCHED['P4_p1']()), earliest=58)

    def interleave(ep, mem, e0, dl):
        out = []
        step = max(1, len(ep) // (len(mem) + 1)) if mem else 10 ** 9
        mem = list(mem)
        for j, x in enumerate(ep):
            out.append(x)
            if mem and j % step == step - 1:
                out += mem.pop(0)
        for m in mem:
            out += m
        return F(out, earliest=e0, deadline=dl)
    S4 = SCHED['P4_mid']()
    n4 = len(S4)
    fl += interleave(epi(0), [], endi[0] + 3, start[3])
    fl += interleave(epi(1), [], endi[1] + 3, start[4])
    c56 = pf_w13(5) + pf_w13(6) + [[mark('t56')]]
    fl += interleave(epi(2), c56, max(endi[2] + 3, b1 + 1), b2 - 10)
    fl += interleave(epi(3), S4[:n4 // 2], endi[3] + 3, start[5] + 8)
    if LAYER is None:
        fl += F(lines(f"""
        s_mul_i32 s{sE}, s{sL}, 3
        s_add_u32 s{sCNT}, s{sE}, 2
        s_add_u32 s{sE}, s{sE}, 1
        """), earliest=0)
    fl += interleave(epi(4)[:30], S4[n4 // 2:], endi[4] + 3, start[6])
    fl.append((start[5] + 16, start[6], ('call', lambda k: set_flag(k, sHFL, lvl(1), h=hs[3]))))
    fl += F(epi(4)[30:], earliest=0, deadline=start[6] + 4)
    fl += interleave(epi(5), [], endi[5] + 3, len(seq) - 8)
    M[start[6] + 8]['pre'] += p5_poll()
    for p in range(HDEPTH):
        n = start[6] + 18 + 2 * p
        M[n]['pre'] = M[n]['pre'] + ([p5_check(1)] if p == 0 else []) + p5_hload(p)
    rest = weave(k, M, fl, free=P4FREE)
    flush(k, rest)
    if LAYER is None:
        k(f's_add_u32 s{sDS}, s{sE}, 2')
    set_flag(k, sHFL, lvl(2), h=hs[5])
    ts(k, 'P4.mfma')
    phase_P5(k, Lfin, epi(6), hs)


def phase_G(k):
    A_X, A_Q, A_K, A_V, WB, RT = 32, 144, 160, 176, 192, 240
    NB, PF = 6, 4
    NQ1 = GNQ1
    k(f"""
    s_lshl_b32 s{sT4}, s{sTT}, 7
    s_add_u32 s{sT4}, s{sT4}, {F_XIN}
    s_mul_i32 s{sT3}, s{sTT}, {28 * 1024}
    s_add_u32 s{sT3}, s{sT3}, s{sX2}
    """)
    seq = []
    for ks in range(29):
        seq += [('K', ks), ('V', ks)]
        if ks < NQ1:
            seq.append(('Q', ks))
    n1 = len(seq)
    seq += [('Q', ks) for ks in range(NQ1, 29)]
    pidx = {'Q': 0, 'K': 1, 'V': 2}

    def wread(n):
        p, ks = seq[n]
        b = v4(WB + 4 * (n % NB))
        if ks == 28:
            return f'ds_read_b128 {b}, v{vSCR} offset:{9216 + 1024 * pidx[p]}'
        if p == 'V':
            return f'ds_read_b128 {b}, v{vL16b} offset:{ks * 1024}'
        return f'ds_read_b128 {b}, v{vL16} offset:{(pidx[p] * 28 + ks) * 1024}'

    def mf(n):
        p, ks = seq[n]
        b = v4(WB + 4 * (n % NB))
        x = v4(MB) if ks == 28 else v4(A_X + 4 * ks)
        a = {'Q': A_Q, 'K': A_K, 'V': A_V}[p]
        c = '0' if ks == 0 else v16(a)
        if p == 'V':
            return f'{MF} {v16(a)}, {x}, {b}, {c}'
        return f'{MF} {v16(a)}, {b}, {x}, {c}'
    for n in range(PF):
        k(wread(n))
    emit(k, SCHED['G_pre']())
    ts(k, 'G.start')
    wait_flags(k, vF14, sT4, '1')
    ts(k, 'G.ready')
    xl = load_chunks([v4(A_X + 4 * i) for i in range(28)], sT3, sT2, pol=' sc1')
    STT = 216
    for i in range(4):
        emit(k, xl[i])
    emit(k, stats_loads(sST2, sTT, STT))
    for i in range(4, XDEPTH):
        emit(k, xl[i])
    M = []
    for n in range(len(seq)):
        pre = [wread(n + PF)] if n + PF < len(seq) else []
        p, ks = seq[n]
        if p == 'K' and ks + XDEPTH < 28:
            pre = pre + xl[ks + XDEPTH]
        M.append(dict(pre=pre, m=mf(n), need=[v4(WB + 4 * (n % NB))], w=1 if p == 'K' else 0))
    gather = lines(f"""
    s_lshl_b32 s{sT0}, s{sW}, 8
    s_add_u32 s{sT0}, s{sT0}, {SCR}
    v_lshlrev_b32 v{vT0}, 2, v{vN}
    v_add_u32 v{vT0}, s{sT0}, v{vT0}
    ds_write_b32 v{vT0}, v{vR}
    v_lshlrev_b32 v{vT1}, 4, v{vHH}
    v_add_u32 v{vT1}, s{sT0}, v{vT1}
    """) + [f'ds_read_b128 {v4(RT + 4 * g)}, v{vT1} offset:{32 * g}' for g in range(4)]
    fl = F(stats_math(STT) + mb_fill() + gather, earliest=8, deadline=n1 - 6)
    fl += F(lines(f"""
    s_lshl_b32 s{sT0}, s{sIDX}, 6
    s_add_u32 s{sT0}, s{sT0}, s{sTT}
    s_lshl_b32 s{sT4}, s{sT0}, 2
    s_add_u32 s{sT4}, s{sT4}, {F_KV}
    s_lshl_b32 s{sT5}, s{sT0}, 12
    s_add_u32 s{sT5}, s{sT5}, s{sKV}
    """), earliest=8)
    ep = []
    for r in range(16):
        ep.append(f'v_mul_f32 v{A_K + r}, v{vR}, v{A_K + r}')
    for q in range(8):
        ep.append(f'v_cvt_pk_bf16_f32 v{KF + q}, v{A_K + 2 * q}, v{A_K + 2 * q + 1}')
    for i in range(2):
        ep.append(f'buffer_store_dwordx4 {v4(KF + 4 * i)}, v{vL16}, s[8:11], s{sT5} offen offset:{1024 * i} sc1')
    for r in range(16):
        ep.append(f'v_mul_f32 v{A_V + r}, v{RT + r}, v{A_V + r}')
    for q in range(8):
        ep.append(f'v_cvt_pk_bf16_f32 v{VF + q}, v{A_V + 2 * q}, v{A_V + 2 * q + 1}')
        ep.append(f'v_cndmask_b32 v{VF + q}, v{VF + q}, v{vONES}, s[{sN28}:{sN28 + 1}]')
    for i in range(2, 4):
        ep.append(f'buffer_store_dwordx4 {v4(KF + 4 * i)}, v{vL16}, s[8:11], s{sT5} offen offset:{1024 * i} sc1')
    hk = {}
    ep.append(('call', lambda k: hk.__setitem__('h', k.vm_mark())))
    for i in range(4):
        ep.append(f'ds_write_b128 v{vKVA}, {v4(KF + 4 * i)} offset:{8 * 4096 + 1024 * i}')
    ep += SCHED['G_q']()
    fl += F(ep, earliest=n1 + 1)
    fl.append((len(seq) - 2, None, ('call', lambda k: set_flag(k, sT4, '2', always_sc1=True, h=hk['h']))))
    flush(k, weave(k, M, fl, free=6))
    ts(k, 'G.mfma')
    k(f'v_mul_f32 v{vT0}, {f32bits(28 ** -0.5 * LOG2E)}, v{vR}')
    for r in range(16):
        k(f'v_mul_f32 v{A_Q + r}, v{vT0}, v{A_Q + r}')
    for q in range(8):
        k(f'v_cvt_pk_bf16_f32 v{QF + q}, v{A_Q + 2 * q}, v{A_Q + 2 * q + 1}')
    k(f'v_mov_b32 v{vT1}, 0x3f80')
    k(f'v_cndmask_b32 v{QF + 6}, v{QF + 6}, v{vT1}, s[{sHI}:{sHI + 1}]')
    ts(k, 'G.pub')
    k.barrier()


F_DUTY = 3 * SLOT
F_SCR = SCR
F_CSX = LDS_BYTES - 1536
F_XR = F_DUTY + 29184
OOBS = 0x20000000


def front(k):
    T0, T1, T2, T3, T4, T5 = sT0, sT1, sT2, sT3, sT4, sT5
    sKIND, sDST, sCSD, sA1, sWOFF, sPIT, sSRC, sXRB = 88, 89, 90, 91, 92, 93, 94, 95
    sPAD, sHP, sXT, sIMG, sXS, sZM, sSA, sSB, sD8 = 72, 74, 77, 78, 79, 80, 82, 83, 84
    vTR, vTR2, vXO, vDT, vS1, vS2, vCSK, vCSV, vCSQ, vIMG, vOQ, vOQ2, vDS = 5, 6, 7, 9, 10, 14, 15, 16, 17, 19, 26, 27, 144
    X, AQ, AK, AV, WB, RT = 32, 144, 160, 176, 192, 240
    NB, PF = 6, 4
    XA = 240
    k(f"""
    v_and_b32 v{vT0}, 3, v{vLANE}
    v_lshrrev_b32 v{vT1}, 2, v{vLANE}
    s_lshl_b32 s{T0}, s{sRB}, 2
    v_add_u32 v{vT2}, s{T0}, v{vT0}
    v_lshlrev_b32 v{vT3}, 7, v{vT2}
    s_lshl_b32 s{T1}, s{sIDX}, 2
    s_add_u32 s{T1}, s{T1}, {F_O}
    v_add_u32 v{vT3}, s{T1}, v{vT3}                  ; F_O
    v_and_b32 v5, 1, v{vT1}
    v_lshl_add_u32 v{vT3}, v5, 14, v{vT3}            ; kind 1: F_H = F_O + 16384
    s_and_b32 s{T0}, s{sTT3}, -2
    s_and_b32 s{T1}, s{sFT}, -2
    v_lshrrev_b32 v6, 1, v{vT0}
    v_add_u32 v6, s{T0}, v6                          ; tt3
    v_and_b32 v7, 1, v{vT0}
    v_add_u32 v7, s{T1}, v7                          ; ft
    v_lshlrev_b32 v6, 7, v6
    v_lshl_add_u32 v6, v7, 2, v6
    v_add_u32 v6, {F_XIN}, v6
    v_lshl_add_u32 v6, v5, 14, v6
    v_cmp_le_u32 vcc, 2, v{vT1}
    s_lshl_b32 s{T0}, s{sIDX}, 8
    s_add_u32 s{T0}, s{T0}, {F_KV}
    v_cndmask_b32 v{vT3}, v{vT3}, v6, vcc
    v_lshlrev_b32 v6, 2, v{vT2}
    v_add_u32 v6, s{T0}, v6
    v_cmp_le_u32 vcc, 4, v{vT1}
    s_lshl_b32 s{T0}, s2, 7
    s_add_u32 s{T0}, s{T0}, {F_PK}
    v_cndmask_b32 v{vT3}, v{vT3}, v6, vcc
    v_mov_b32 v6, s{T0}
    v_cmp_le_u32 vcc, 5, v{vT1}
    s_cmp_eq_u32 s{sW}, 0
    s_cselect_b32 s{T0}, 0, {OOBS}
    v_cndmask_b32 v{vT3}, v{vT3}, v6, vcc
    s_mov_b64 exec, 0x1fffff
    buffer_store_dword v{vZERO}, v{vT3}, s[8:11], s{T0} offen sc1
    s_mov_b64 exec, -1
    """)
    h_zero = k.vm_mark()
    assert F_H - F_O == 16384 and F_X1 - F_XIN == 16384
    k(f"""
    s_mov_b32 s64, s74
    s_mov_b32 s65, s75
    s_mov_b32 s66, {448 * 1344 * 2}
    s_mov_b32 s67, 0x00020000
    s_mov_b32 s71, 0x00020000
    """)
    Lw2, Lwo, Lnone, Ldec = 'F_w2', 'F_wo', 'F_none', 'F_dec'
    k(f"""
    s_lshr_b32 s{T4}, s{sW}, 1
    s_and_b32 s{T5}, s{sW}, 1
    s_cmp_ge_u32 s2, 182
    s_cbranch_scc1 {Lnone}
    s_cmp_ge_u32 s2, 168
    s_cbranch_scc1 {Lwo}
    s_cmp_ge_u32 s2, 112
    s_cbranch_scc1 {Lw2}
    s_lshr_b32 s{T0}, s2, 2
    s_and_b32 s{T1}, s2, 3
    s_cmp_eq_u32 s{T4}, 1
    s_cselect_b32 s68, s82, s80
    s_cselect_b32 s69, s83, s81
    s_mov_b32 s70, {448 * 1792 * 2}
    s_mov_b32 s{sKIND}, 0
    s_mov_b32 s{sPIT}, 3584
    s_mul_i32 s{sSRC}, s{T1}, 112
    s_mul_i32 s{T2}, s{T5}, 56
    s_add_u32 s{sSRC}, s{sSRC}, s{T2}
    s_mul_i32 s{sSRC}, s{sSRC}, 3584
    s_lshl_b32 s{T2}, s{T0}, 7
    s_add_u32 s{sSRC}, s{sSRC}, s{T2}
    s_lshl_b32 s{T2}, s{T0}, 2
    s_add_u32 s{T2}, s{T2}, s{sW}
    s_mul_i32 s{sDST}, s{T2}, 28
    s_mul_i32 s{T0}, s{T1}, 7
    s_add_u32 s{sDST}, s{sDST}, s{T0}
    s_lshl_b32 s{sDST}, s{sDST}, 10
    s_add_u32 s{sDST}, s{sDST}, {W13_P}
    s_mul_i32 s{sCSD}, s{T1}, 112
    s_add_u32 s{sCSD}, s{sCSD}, s{T2}
    s_lshl_b32 s{sCSD}, s{sCSD}, 7
    s_add_u32 s{sCSD}, s{sCSD}, {CSP_13}
    s_mov_b32 s{sA1}, 14336
    s_lshl_b32 s{sWOFF}, s{sW}, 5
    s_branch {Ldec}
    """)
    k.label(Lw2, pad=False)
    k(f"""
    s_sub_u32 s{T0}, s2, 112
    s_and_b32 s{T1}, s{T0}, 7
    s_lshr_b32 s{T0}, s{T0}, 3
    s_mov_b32 s68, s84
    s_mov_b32 s69, s85
    s_mov_b32 s70, {1792 * 448 * 2}
    s_mov_b32 s{sKIND}, 1
    s_mov_b32 s{sPIT}, 896
    s_mul_i32 s{sSRC}, s{T1}, 224
    s_mul_i32 s{T2}, s{sW}, 56
    s_add_u32 s{sSRC}, s{sSRC}, s{T2}
    s_mul_i32 s{sSRC}, s{sSRC}, 896
    s_lshl_b32 s{T2}, s{T0}, 7
    s_add_u32 s{sSRC}, s{sSRC}, s{T2}
    s_lshl_b32 s{T2}, s{T0}, 1
    s_add_u32 s{T2}, s{T2}, s{T5}
    s_mul_i32 s{sDST}, s{T2}, 112
    s_mul_i32 s{T0}, s{T1}, 14
    s_add_u32 s{sDST}, s{sDST}, s{T0}
    s_mul_i32 s{T0}, s{T4}, 7
    s_add_u32 s{sDST}, s{sDST}, s{T0}
    s_lshl_b32 s{sDST}, s{sDST}, 10
    s_add_u32 s{sDST}, s{sDST}, {W2_P}
    s_mov_b32 s{sCSD}, 0
    s_mov_b32 s{sA1}, 32
    s_mul_i32 s{sWOFF}, s{T4}, {112 * 128}
    s_lshl_b32 s{T0}, s{T5}, 6
    s_add_u32 s{sWOFF}, s{sWOFF}, s{T0}
    s_branch {Ldec}
    """)
    k.label(Lwo, pad=False)
    k(f"""
    s_sub_u32 s{T0}, s2, 168
    s_and_b32 s{T1}, s{T0}, 1
    s_lshr_b32 s{T0}, s{T0}, 1
    s_mov_b32 s68, s76
    s_mov_b32 s69, s77
    s_mov_b32 s70, {448 * 448 * 2}
    s_mov_b32 s{sKIND}, 2
    s_mov_b32 s{sPIT}, 896
    s_mul_i32 s{sSRC}, s{T1}, 224
    s_mul_i32 s{T2}, s{sW}, 56
    s_add_u32 s{sSRC}, s{sSRC}, s{T2}
    s_mul_i32 s{sSRC}, s{sSRC}, 896
    s_lshl_b32 s{T2}, s{T0}, 7
    s_add_u32 s{sSRC}, s{sSRC}, s{T2}
    s_lshl_b32 s{T2}, s{T0}, 1
    s_add_u32 s{T2}, s{T2}, s{T5}
    s_lshl_b32 s{sDST}, s{T2}, 5
    s_lshl_b32 s{T0}, s{T1}, 4
    s_add_u32 s{sDST}, s{sDST}, s{T0}
    s_lshl_b32 s{T0}, s{T4}, 3
    s_add_u32 s{sDST}, s{sDST}, s{T0}
    s_lshl_b32 s{sDST}, s{sDST}, 10
    s_add_u32 s{sDST}, s{sDST}, {WO_P}
    s_mov_b32 s{sCSD}, 0
    s_mov_b32 s{sA1}, 32
    s_mul_i32 s{sWOFF}, s{T4}, {112 * 128}
    s_lshl_b32 s{T0}, s{T5}, 6
    s_add_u32 s{sWOFF}, s{sWOFF}, s{T0}
    s_branch {Ldec}
    """)
    k.label(Lnone, pad=False)
    k(f"""
    s_mov_b32 s68, s76
    s_mov_b32 s69, s77
    s_mov_b32 s70, 0
    s_mov_b32 s{sKIND}, 3
    s_mov_b32 s{sPIT}, 0
    s_mov_b32 s{sSRC}, 0
    s_mov_b32 s{sDST}, 0
    s_mov_b32 s{sCSD}, 0
    s_mov_b32 s{sA1}, 0
    s_mov_b32 s{sWOFF}, 0
    """)
    k.label(Ldec, pad=False)
    k(f"""
    v_lshrrev_b32 v{vT1}, 3, v{vLANE}
    v_mul_lo_u32 v{vDS}, v{vT1}, s{sPIT}
    v_and_b32 v{vT2}, 7, v{vLANE}
    v_lshl_add_u32 v{vDS}, v{vT2}, 4, v{vDS}
    s_lshl_b32 s{sPIT}, s{sPIT}, 3
    v_xor_b32 v{vT2}, v{vT2}, v{vT1}
    v_mul_u32_u24 v{vXO}, 896, v{vT1}
    v_lshl_add_u32 v{vXO}, v{vT2}, 4, v{vXO}
    v_lshrrev_b32 v{vIMG}, 2, v{vLANE}
    v_mul_u32_u24 v{vIMG}, 2688, v{vIMG}
    v_and_b32 v{vT1}, 3, v{vLANE}
    v_lshl_add_u32 v{vIMG}, v{vT1}, 4, v{vIMG}
    s_mul_i32 s{sIMG}, s{sW}, {7 * 16 * 2688}
    s_mul_i32 s{T2}, s{sIDX}, 56
    s_add_u32 s{sIMG}, s{sIMG}, s{T2}
    s_mul_i32 s{sXS}, s{sTT}, {32 * 896}
    """)
    hx, himg = {}, {}
    def xslot(c):
        return [0, 1, 2, 0, 1, 2, 1][c]

    def xbase(c):
        return [(sLW, 0), (sXRB, 0), (sXRB, 4096)][xslot(c)]

    def duty_dma():
        for i in range(7):
            k(f's_add_u32 m0, s{sLW}, {F_DUTY + i * 1024}')
            k(f'buffer_load_dwordx4 v{vDS}, s[68:71], s{sSRC} offen lds')
            k(f's_add_u32 s{sSRC}, s{sSRC}, s{sPIT}')

    def xdma(c):
        b, o = xbase(c)
        for i in range(4):
            k(f's_add_u32 m0, s{b}, {o + i * 1024}')
            k(f's_add_u32 s{sXT}, s{sXS}, {i * 8 * 896 + c * 128}')
            k(f'buffer_load_dwordx4 v{vXO}, s[20:23], s{sXT} offen lds')
        hx[c] = k.vm_mark()

    def img_dma(p):
        for i in range(7):
            k(f's_add_u32 m0, s{sLW}, {p * SLOT + i * 1024}')
            k(f's_add_u32 s{sXT}, s{sIMG}, {i * 16 * 2688 + p * 896}')
            k(f'buffer_load_dwordx4 v{vIMG}, s[64:67], s{sXT} offen lds')
        himg[p] = k.vm_mark()
    k(f"""
    s_lshl_b32 s{sXRB}, s{sW}, 13
    s_add_u32 s{sXRB}, s{sXRB}, {F_XR}
    """)
    if CODEPF:
        k(f"""
        s_getpc_b64 s[{sTS}:{sTS + 1}]
        s_lshr_b32 s{T0}, s2, 3
        s_lshl_b32 s{T0}, s{T0}, 2
        s_add_u32 s{T0}, s{T0}, s{sW}
        s_lshl_b32 s{T0}, s{T0}, 9
        v_min_u32 v{vT1}, 3, v{vLANE}
        v_lshlrev_b32 v{vT1}, 7, v{vT1}
        v_add_u32 v{vT1}, s{T0}, v{vT1}
        v_min_u32 v{vT1}, {CODEPF}, v{vT1}
        global_load_dword v{vDUM}, v{vT1}, s[{sTS}:{sTS + 1}]
        """)
    if WARM:
        k(f"""
        s_lshr_b32 s{T0}, s2, 3
        s_lshl_b32 s{T0}, s{T0}, 2
        s_add_u32 s{T0}, s{T0}, s{sW}
        v_lshlrev_b32 v{vT1}, 7, v{vLANE}
        s_mul_i32 s{T2}, s{T0}, {74 * 128}
        buffer_load_dword v{vDUM}, v{vT1}, s[64:67], s{T2} offen
        v_min_u32 v{vT2}, 9, v{vLANE}
        v_lshlrev_b32 v{vT2}, 7, v{vT2}
        s_add_u32 s{T2}, s{T2}, 8192
        buffer_load_dword v{vDUM}, v{vT2}, s[64:67], s{T2} offen
        v_min_u32 v{vT2}, 13, v{vLANE}
        v_lshlrev_b32 v{vT2}, 7, v{vT2}
        s_lshr_b32 s{T2}, s{sRB}, 1
        s_mul_i32 s{T2}, s{T2}, {256 * 896}
        s_mul_i32 s{T0}, s{T0}, 1792
        s_add_u32 s{T2}, s{T2}, s{T0}
        buffer_load_dword v{vDUM}, v{vT2}, s[20:23], s{T2} offen
        """)
    set_layer(k, 0)
    if PROPOS == 0:
        emit(k, [x.replace(f'v{vTA},', f'v{vT3},').replace(f'v{vTA}', f'v{vT3}') for x in SCHED['PRO']()])
    if DUTYPOS == 0:
        duty_dma()
    xdma(0)
    xdma(1)
    xdma(2)
    img_dma(1)
    k.wait_vm(h_zero)
    signal(k)
    if DUTYPOS == 1:
        duty_dma()
    ts(k, 'F.issued')
    k(f"""
    v_lshlrev_b32 v{vT1}, 3, v{vHH}
    v_bfe_u32 v{vT2}, v{vLANE}, 2, 2
    v_add_u32 v{vT1}, v{vT1}, v{vT2}
    v_and_b32 v{vT2}, 1, v{vLANE}
    v_lshlrev_b32 v{vT2}, 4, v{vT2}
    v_bfe_u32 v{vT3}, v{vLANE}, 1, 1
    v_lshl_or_b32 v{vT2}, v{vT3}, 3, v{vT2}
    v_bfe_u32 v{vT3}, v{vLANE}, 4, 1
    v_lshl_add_u32 v{vTR}, v{vT1}, 6, v{vT2}
    v_lshl_add_u32 v{vTR}, v{vT3}, 5, v{vTR}
    v_add_u32 v{vTR2}, {2 * SLOT}, v{vTR}
    v_lshl_add_u32 v{vDT}, v{vT1}, 7, v{vT2}
    v_mad_u32_u24 v{vDT}, v{vT3}, s{sA1}, v{vDT}
    s_add_u32 s{T0}, s{sWOFF}, {F_DUTY}
    v_add_u32 v{vDT}, s{T0}, v{vDT}
    v_add_u32 v{vOQ}, s{sLW}, v{vTR}
    v_add_u32 v{vOQ2}, s{sLW}, v{vTR2}
    v_mov_b32 v{vS1}, 0
    v_mov_b32 v{vS2}, 0
    v_mov_b32 v{vCSK}, 0
    v_mov_b32 v{vCSV}, 0
    v_mov_b32 v{vCSQ}, 0
    v_cmp_le_u32 s[{sPAD}:{sPAD + 1}], 28, v{vN}
    s_sub_u32 s{T0}, s{sXRB}, s{sLW}
    """)
    for i in range(4):
        k(f"""
        v_add_u32 v{vT1}, {2 * i}, v{vHH}
        v_and_b32 v{vT2}, 7, v{vN}
        v_xor_b32 v{vT1}, v{vT1}, v{vT2}
        v_lshlrev_b32 v{vT1}, 4, v{vT1}
        v_lshl_add_u32 v{XA + i}, v{vN}, 7, v{vT1}
        v_add_u32 v{XA + i}, s{sLW}, v{XA + i}
        v_add_u32 v{XA + 4 + i}, s{T0}, v{XA + i}
        """)
    k(f's_or_b64 s[{sHP}:{sHP + 1}], s[{sHI}:{sHI + 1}], s[{sPAD}:{sPAD + 1}]')
    emit(k, setup2_salu())

    k(f"""
    s_movk_i32 s{sSA}, 2048
    s_cmp_eq_u32 s{sKIND}, 2
    s_cselect_b32 s{sSA}, 1792, s{sSA}
    s_cselect_b32 s{sSB}, 256, 0
    s_mov_b32 s{sZM}, 0
    s_cselect_b32 s{sZM + 1}, -1, 0
    s_add_u32 s{T0}, s{sDST}, 4096
    s_cmp_eq_u32 s{sKIND}, 2
    s_cselect_b32 s{sD8}, s{T0}, {OOBS}
    s_cmp_eq_u32 s{sKIND}, 0
    s_cselect_b32 s{sCSD}, s{sCSD}, {OOBS}
    s_cmp_eq_u32 s{sKIND}, 3
    s_cselect_b32 s{sDST}, {OOBS}, s{sDST}
    """)

    def x_rd(c):
        k.wait_vm(hx[c])
        for i in range(4):
            a, o = (XA + i, 0) if xslot(c) == 0 else (XA + 4 + i, 4096 * (xslot(c) - 1))
            k(f'ds_read_b128 {v4(X + 16 * c + 4 * i)}, v{a} offset:{o}')

    def x_st(c):
        emit(k, stats_ops(X + 16 * c, 16, vS1, vS2, vONES))

    def own_quarter(p, acc, buf):
        k.wait_vm(himg[p])
        base = vOQ if p < 2 else vOQ2
        for i in range(7):
            off = (p * SLOT if p < 2 else 0) + i * 1024
            k(f'ds_read_b64_tr_b16 {v2(buf + 4 * i)}, v{base} offset:{off}')
            k(f'ds_read_b64_tr_b16 {v2(buf + 4 * i + 2)}, v{base} offset:{off + 256}')
        for i in range(28):
            k(f'v_dot2_f32_bf16 v{acc}, v{buf + i}, v{vONES}, v{acc}')
        k(f"""
        v_mov_b32 v{vT0}, v{acc}
        v_permlane32_swap_b32 v{acc}, v{vT0}
        v_add_f32 v{acc}, v{acc}, v{vT0}
        s_mul_i32 s{T0}, s{sW}, 384
        s_add_u32 s{T0}, s{T0}, {F_CSX}
        v_lshlrev_b32 v{vT3}, 2, v{vN}
        v_add_u32 v{vT2}, s{T0}, v{vT3}
        ds_write_b32 v{vT2}, v{acc} offset:{128 * p}
        """)
    for c in range(3):
        x_rd(c)
    k.wait_lg()
    for c in range(3, 6):
        xdma(c)
    img_dma(2)
    ts(k, 'F.iss2')
    for c in range(3):
        x_st(c)
    own_quarter(1, vCSK, WB)
    x_rd(3)
    x_rd(4)
    k.wait_lg()
    xdma(6)
    if DUTYPOS == 2:
        duty_dma()
    ts(k, 'F.iss3')
    x_rd(5)
    for c in range(3, 6):
        x_st(c)
    own_quarter(2, vCSV, WB)
    x_rd(6)
    x_st(6)
    emit(k, ln_math(vS1, vS2, vT0, vT1, vM, vR) + mb_fill())
    k(f'v_lshlrev_b32 v{vT3}, 2, v{vN}')
    k(f'v_add_u32 v{vS1}, {F_CSX}, v{vT3}')
    gather = lines(f"""
    s_lshl_b32 s{T0}, s{sW}, 8
    s_add_u32 s{T0}, s{T0}, {F_SCR}
    v_add_u32 v{vT1}, s{T0}, v{vT3}
    ds_write_b32 v{vT1}, v{vR}
    v_lshlrev_b32 v{vT1}, 4, v{vHH}
    v_add_u32 v{vT1}, s{T0}, v{vT1}
    """) + [f'ds_read_b128 {v4(RT + 4 * g)}, v{vT1} offset:{32 * g}' for g in range(4)]
    ts(k, 'F.pre')
    k.barrier()
    ts(k, 'F.barA')
    pidx = {'Q': 0, 'K': 1, 'V': 2}

    def gemm(seq, CFR):
        def wread(n):
            p, ks = seq[n]
            b = WB + 4 * (n % NB)
            base, off = (vTR2, ks * 1024) if p == 'V' else (vTR, pidx[p] * SLOT + ks * 1024)
            return [f'ds_read_b64_tr_b16 {v2(b)}, v{base} offset:{off}',
                    f'ds_read_b64_tr_b16 {v2(b + 2)}, v{base} offset:{off + 256}']
        M = []
        for n, (p, ks) in enumerate(seq):
            b = v4(WB + 4 * (n % NB))
            x = v4(X + 4 * ks)
            a = {'Q': AQ, 'K': AK, 'V': AV}[p]
            c = '0' if ks == 0 else v16(a)
            m = f'{MF} {v16(a)}, {x}, {b}, {c}' if p == 'V' else f'{MF} {v16(a)}, {b}, {x}, {c}'
            M.append(dict(pre=wread(n + PF) if n + PF < len(seq) else [], m=m, need=[b]))
        for p, cf in CFR:
            a = {'Q': AQ, 'K': AK, 'V': AV}[p]
            M.append(dict(m=f'{MF} {v16(a)}, {v4(MB)}, {v4(cf)}, {v16(a)}' if p == 'V' else f'{MF} {v16(a)}, {v4(cf)}, {v4(MB)}, {v16(a)}'))
        for n in range(PF):
            emit(k, wread(n))
        return M

    def cs_frag(p, cf, t):
        fl = [f'ds_read_b32 v{t + w}, v{vS1} offset:{w * 384 + p * 128}' for w in range(4)]
        fl += ['s_nop 0'] * 6
        fl += [f'v_add_f32 v{t}, v{t}, v{t + 1}', f'v_add_f32 v{t + 2}, v{t + 2}, v{t + 3}', f'v_add_f32 v{t}, v{t}, v{t + 2}',
               f'v_cndmask_b32 v{t}, v{t}, 0, s[{sHP}:{sHP + 1}]']
        fl += split3(t, cf, cf + 1, vT0, vT2)
        fl += [f'v_mov_b32 v{cf + 2}, 0', f'v_mov_b32 v{cf + 3}, 0',
               ('call', lambda k: cs_store(k, cf))]
        return fl

    def cs_store(k, cf):
        k(f'ds_write_b128 v{vS2}, {v4(cf)}')
        k(f'v_add_u32 v{vS2}, 1024, v{vS2}')
    k(f'v_add_u32 v{vS2}, {SCR_CSQ + 1024}, v{vL16}')
    M = gemm([(p, ks) for ks in range(28) for p in 'KV'], [('K', QF), ('V', QF + 4)])
    fl = F(gather + cs_frag(1, QF, KF) + cs_frag(2, QF + 4, KF), earliest=1, deadline=54)
    late = []
    for i in range(7):
        late.append([f's_add_u32 m0, s{sLW}, {i * 1024}', f's_add_u32 s{sXT}, s{sIMG}, {i * 16 * 2688}',
                     f'buffer_load_dwordx4 v{vIMG}, s[64:67], s{sXT} offen lds'])
    late[-1].append(('call', lambda k: himg.__setitem__(0, k.vm_mark())))
    for j, c in enumerate(late):
        n = 1 + 5 * j
        M[n]['pre'] = M[n]['pre'] + c
    fl += F(lines(f"""
    s_lshl_b32 s{T0}, s{sIDX}, 6
    s_add_u32 s{T0}, s{T0}, s{sTT}
    s_lshl_b32 s{T4}, s{T0}, 2
    s_add_u32 s{T4}, s{T4}, {F_KV}
    s_lshl_b32 s{T5}, s{T0}, 12
    s_add_u32 s{T5}, s{T5}, s{sKV}
    """), earliest=2)
    flush(k, weave(k, M, fl, free=6))
    ts(k, 'F.kv')
    for r in range(16):
        k(f'v_mul_f32 v{AK + r}, v{vR}, v{AK + r}')
    for q in range(8):
        k(f'v_cvt_pk_bf16_f32 v{KF + q}, v{AK + 2 * q}, v{AK + 2 * q + 1}')
    k(f'v_cndmask_b32 v{KF + 6}, v{KF + 6}, 0, s[{sHI}:{sHI + 1}]')
    k(f'v_cndmask_b32 v{KF + 7}, v{KF + 7}, 0, s[{sHI}:{sHI + 1}]')
    for i in range(2):
        k(f'buffer_store_dwordx4 {v4(KF + 4 * i)}, v{vL16}, s[8:11], s{T5} offen offset:{1024 * i} sc1')
    for r in range(16):
        k(f'v_mul_f32 v{AV + r}, v{RT + r}, v{AV + r}')
    for q in range(8):
        k(f'v_cvt_pk_bf16_f32 v{VF + q}, v{AV + 2 * q}, v{AV + 2 * q + 1}')
        k(f'v_cndmask_b32 v{VF + q}, v{VF + q}, v{vONES}, s[{sN28}:{sN28 + 1}]')
    for i in range(2, 4):
        k(f'buffer_store_dwordx4 {v4(KF + 4 * i)}, v{vL16}, s[8:11], s{T5} offen offset:{1024 * i} sc1')
    hkv = k.vm_mark()
    for i in range(4):
        k(f'ds_write_b128 v{vKVA}, {v4(KF + 4 * i)} offset:{8 * 4096 + 1024 * i}')
    own_quarter(0, vCSQ, AK)
    set_flag(k, T4, '1', always_sc1=True, h=hkv)
    if PROPOS == 1:
        emit(k, SCHED['PRO']())
    ts(k, 'F.kvpub')
    k.barrier()
    k(f"""
    v_and_b32 v{vXO}, 15, v{vLANE}
    v_lshlrev_b32 v{vXO}, 4, v{vXO}
    buffer_load_dword v{vCSK}, v{vXO}, s[16:19], 0 offen sc1
    """)
    DB = AK
    for i in range(8):
        k(f'ds_read_b64_tr_b16 {v2(DB + 4 * i)}, v{vDT}')
        k(f'ds_read_b64_tr_b16 {v2(DB + 4 * i + 2)}, v{vDT} offset:512')
        k(f's_{"add" if i % 2 == 0 else "sub"}_u32 s{T0}, s{sSA}, s{sSB}')
        k(f'v_add_u32 v{vDT}, s{T0}, v{vDT}')
    k(f'v_mov_b32 v{vT1}, 0')
    dst = []
    for i in range(8):
        if i & 1:
            k(f'v_cndmask_b32 v{DB + 4 * i + 2}, v{DB + 4 * i + 2}, 0, s[{sZM}:{sZM + 1}]')
            k(f'v_cndmask_b32 v{DB + 4 * i + 3}, v{DB + 4 * i + 3}, 0, s[{sZM}:{sZM + 1}]')
        dst.append(([f's_add_u32 s{sDST}, s{sDST}, 4096'] if i == 4 else []) +
                   [f'buffer_store_dwordx4 {v4(DB + 4 * i)}, v{vL16}, s[8:11], s{sD8 if i == 7 else sDST} offen offset:{(i % 4) * 1024} sc1'])
    emit(k, dst[0] + dst[1])
    for i in range(28):
        k(f'v_dot2_f32_bf16 v{vT1}, v{DB + i}, v{vONES}, v{vT1}')
    k(f"""
    v_mov_b32 v{vT0}, v{vT1}
    v_permlane32_swap_b32 v{vT1}, v{vT0}
    v_add_f32 v{vT1}, v{vT1}, v{vT0}
    v_lshlrev_b32 v{vT3}, 2, v{vN}
    buffer_store_dword v{vT1}, v{vT3}, s[8:11], s{sCSD} offen sc1
    """)
    ts(k, 'F.duty')
    SH = RT + 8
    share = lines(f"""
    s_cmp_ge_u32 s{sRB}, 7
    s_cselect_b32 s{T0}, 1, 0
    s_cmp_ge_u32 s{sRB}, 14
    s_cselect_b32 s{T0}, 2, s{T0}
    s_mul_i32 s{T1}, s{T0}, 7
    s_sub_u32 s{T1}, s{sRB}, s{T1}
    s_mul_i32 s{T0}, s{T0}, {SLOT}
    s_lshl_b32 s{T1}, s{T1}, 10
    s_add_u32 s{T0}, s{T0}, s{T1}
    v_add_u32 v{vT1}, s{T0}, v{vOQ}
    ds_read_b64_tr_b16 {v2(SH)}, v{vT1}
    ds_read_b64_tr_b16 {v2(SH + 2)}, v{vT1} offset:256
    s_mul_i32 s{T2}, s{sIDX}, {84 * 1024}
    s_add_u32 s{T2}, s{T2}, s{sLW}
    s_add_u32 s{T2}, s{T2}, {WQKV_P}
    s_add_u32 s{T3}, s{T2}, s{T0}
    s_min_u32 s{T1}, s{sRB}, 4
    s_lshl_b32 s{T1}, s{T1}, 10
    s_add_u32 s{T1}, s{T1}, {2 * SLOT + 2048}
    v_add_u32 v{vT1}, s{T1}, v{vOQ}
    ds_read_b64_tr_b16 {v2(SH + 4)}, v{vT1}
    ds_read_b64_tr_b16 {v2(SH + 6)}, v{vT1} offset:256
    s_add_u32 s{T2}, s{T2}, s{T1}
    s_cmp_gt_u32 s{sRB}, 4
    s_cselect_b32 s{T2}, {OOBS}, s{T2}
    """) + ['s_nop 0'] * 2
    share += [f'v_cndmask_b32 v{SH + q}, v{SH + q}, 0, s[{sPAD}:{sPAD + 1}]' for q in range(8)]
    share += [f'buffer_store_dwordx4 {v4(SH)}, v{vL16}, s[8:11], s{T3} offen sc1',
              f'buffer_store_dwordx4 {v4(SH + 4)}, v{vL16}, s[8:11], s{T2} offen sc1']
    k(f'v_add_u32 v{vS2}, {SCR_CSQ}, v{vL16}')
    M = gemm([('Q', ks) for ks in range(28)], [('Q', RT)])
    for i in range(2, 8):
        M[3 * (i - 2) + 1]['pre'] = M[3 * (i - 2) + 1]['pre'] + dst[i]
    fl = F(cs_frag(0, RT, RT + 4), earliest=1, deadline=26) + F(share, earliest=1)
    flush(k, weave(k, M, fl, free=6))
    k(f'v_mov_b32 v{vFL}, v{vCSK}')
    emit(k, setup2_valu())
    k(f'v_mul_f32 v{vT0}, {f32bits(28 ** -0.5 * LOG2E)}, v{vR}')
    for r in range(16):
        k(f'v_mul_f32 v{AQ + r}, v{vT0}, v{AQ + r}')
    for q in range(8):
        k(f'v_cvt_pk_bf16_f32 v{QF + q}, v{AQ + 2 * q}, v{AQ + 2 * q + 1}')
    k(f"""
    v_mov_b32 v{vT1}, 0x3f80
    v_cndmask_b32 v{QF + 6}, v{QF + 6}, v{vT1}, s[{sHI}:{sHI + 1}]
    v_cndmask_b32 v{QF + 7}, v{QF + 7}, 0, s[{sHI}:{sHI + 1}]
    """)
    ts(k, 'F.q')
    global_check(k, pre=True)
    ts(k, 'F.chk')
    k.barrier()
    k(f's_cmp_lg_u32 s{sW}, 0')
    k.skip_begin('s_cbranch_scc1')
    k(f"""
    s_lshl_b32 s{T0}, s2, 7
    s_add_u32 s{T0}, s{T0}, {F_PK}
    v_mov_b32 v{vFL}, 1
    s_mov_b64 exec, 1
    buffer_store_dword v{vFL}, v{vZERO}, s[8:11], s{T0} offen sc1
    s_mov_b64 exec, -1
    """)
    k.skip_end()
    k(f's_cmp_eq_u32 s{sFAST}, 0')
    k('s_cbranch_scc1 SLOW_entry')


CSL = 112


def cs13_build():
    c = CSL
    out = [f'v_add_f32 v{c}, v{c}, v{c + 1}', f'v_add_f32 v{c + 2}, v{c + 2}, v{c + 3}', f'v_add_f32 v{c}, v{c}, v{c + 2}']
    out += split3(c, c + 4, c + 5, vT1, vT2)
    out += [f'v_mov_b32 v{c + i}, 0' for i in range(6, 12)]
    out += lines(f"""
    s_lshl_b32 s{sT0}, s{sW}, 10
    s_add_u32 s{sT0}, s{sT0}, {SCR_CS13}
    v_lshlrev_b32 v{vT0}, 4, v{vN}
    v_lshl_add_u32 v{vT0}, v{vHH}, 12, v{vT0}
    v_add_u32 v{vT0}, s{sT0}, v{vT0}
    ds_write_b128 v{vT0}, {v4(c + 4)}
    ds_write_b128 v{vT0}, {v4(c + 8)} offset:512
    s_waitcnt lgkmcnt(0)
    """)
    return out


SCHED = {}


def sched_a(v='a'):
    w2 = pf_w2()
    none = lambda: []
    SCHED.update({
        'PRO': lambda: t_X() + t_O(),
        'P3_pre': none,
        'P3_mm': lambda: [L1(t_H())] + [L0(g) for g in w2[:4]],
        'P3_idle': lambda: ['s_barrier'] + [L1(t_H())],
        'P5_idle': none,
        'P4_pre': none, 'P4_p1': none,
        'P4_mid': lambda: [[L0(g)] for g in w2[4:]] + [[L0(touch(2, sSADR))]],
        'G_pre': lambda: t_O(), 'G_q': none,
    })
    if v in 'ef':
        ch = (load_chunks([a4(4 * i) for i in range(28)], sBW2, sDM) + load_chunks([a4(112 + 4 * i) for i in range(28)], sBW2 + 1, sDM))
        n0 = 16 if v == 'e' else 24
        SCHED.update({
            'P3_mm': lambda: [L1(t_H())] + [L0(flat(ch[i:i + 2])) for i in range(0, n0, 2)],
            'P4_mid': lambda: [[L0(c)] for c in ch[n0:]] + [[L0(touch(2, sSADR))]],
        })
    if v == 'x':
        SCHED.update({'P3_mm': lambda: [L1(t_H())], 'P4_mid': lambda: [[L0(touch(2, sSADR))]]})
    if v == 'y':
        global HPLAIN
        HPLAIN = True
        ch = (load_chunks([a4(4 * i) for i in range(28)], sBW2, sDM) + load_chunks([a4(112 + 4 * i) for i in range(28)], sBW2 + 1, sDM))
        SCHED.update({
            'P3_mm': lambda: [L0(flat(ch[i:i + 2])) for i in range(0, 16, 2)] + [L1(t_H())],
            'P3_idle': lambda: ['s_barrier'] + [L1(t_H())],
            'P4_p1': lambda: [[L0(t_H())]],
            'P4_mid': lambda: [[L0(c)] for c in ch[16:]] + [[L0(touch(2, sSADR))]],
        })
    if v in 'bc':
        n3 = 7 if v == 'b' else 10
        SCHED.update({
            'P3_idle': lambda: ['s_barrier'] + [L1(t_H())] + idle_q() + idle_touch(W13_P + 3 * SLOT, 7 * SLOT, n3),
            'P5_idle': lambda: idle_q() + idle_touch(WQKV_P, 84 * 1024, 11) + idle_touch(WO_P, 28 * 1024, 4),
        })
    if v == 'd':
        SCHED.update({
            'P3_idle': lambda: ['s_barrier'] + [L1(t_H())] + idle_q() + [L0(idle_touch(W2_P, 98 * 1024, 7, 4)), L1(idle_touch(W13_P + 3 * SLOT, 7 * SLOT, 7))],
            'P5_idle': lambda: idle_q() + idle_touch(WQKV_P, 84 * 1024, 11) + idle_touch(WO_P, 28 * 1024, 4) + idle_touch(W13_P, 7 * SLOT, 7),
        })


def layer_switch(k):
    k(f's_mov_b32 s{sL}, 1')
    if TS_ON:
        k(f'v_accvgpr_write_b32 a255, v{vTS}')
        k(f'v_mov_b32 v{vTS}, 0')
    set_layer(k, 1)
    phase_G(k)


def phases(k):
    k.lg_done = k.lg_seq
    k.pend = {}
    attention(k)
    phase_P3(k)
    phase_P4(k, 'MAIN_fin')


def body(k, sfx):
    global LAYER
    if sfx == '_s':
        LAYER = None
        k.label('SLOW_entry', pad=False)
        set_layer(k, 0)
        k.label('ATT' + sfx)
        phases(k)
        layer_switch(k)
        k('s_branch ATT' + sfx)
    else:
        LAYER = 0
        phases(k)
        LAYER = 1
        layer_switch(k)
        phases(k)


def gen_main(k, name):
    global MODE
    kstart(k, name)
    k.ignore.add(('v', vDUM))
    end = 'MAIN_end'
    MODE = 'fast'
    setup(k, end)
    ts(k, 'start')
    front(k)
    body(k, '_f')
    k.label('MAIN_fin', pad=False)
    rowmajor_addr(k)
    k(f"""
    buffer_store_dwordx4 {v4(P5_XO)}, v{vT0}, s[12:15], s{sT0} offen
    buffer_store_dwordx4 {v4(P5_XO + 4)}, v{vT0}, s[12:15], s{sT0} offen offset:32
    """)
    ts(k, 'P5.pub')
    k.label('MAIN_tail', pad=False)
    if TS_ON:
        k(f"""
        v_writelane_b32 v{vTS}, s{sFAST}, 63
        s_lshl_b32 s{sT0}, s2, 2
        s_add_u32 s{sT0}, s{sT0}, s{sW}
        s_lshl_b32 s{sT0}, s{sT0}, 9
        s_add_u32 s{sT0}, s{sT0}, {TS}
        v_lshlrev_b32 v{vT0}, 2, v{vLANE}
        buffer_store_dword a255, v{vT0}, s[8:11], s{sT0} offen
        buffer_store_dword v{vTS}, v{vT0}, s[8:11], s{sT0} offen offset:256
        """)
    k.drained()
    k.label(end, pad=False)
    k('s_endpgm')
    MODE = 'slow'
    k.drained()
    body(k, '_s')


HEADER = """; Persistent single-launch implementation (generated by a Python script written for this task).
"""


def main():
    global TS_ON, FORCE_SLOW, FORCE_FALLBACK
    TS_ON = '-ts' in sys.argv
    FORCE_SLOW = '-slow' in sys.argv
    FORCE_FALLBACK = '-fb' in sys.argv
    global WARM
    WARM = '-nowarm' not in sys.argv
    global XDEPTH, P4FREE
    for a in sys.argv:
        if a.startswith('-x'):
            XDEPTH = int(a[2:])
        if a.startswith('-f') and a[2:].isdigit():
            P4FREE = int(a[2:])
    global CODEPF
    if '-nocode' in sys.argv:
        CODEPF = 0
    global PROPOS
    PROPOS = int([a[2:] for a in sys.argv if a.startswith('-p')][0]) if any(a.startswith('-p') for a in sys.argv) else 1
    global GNQ1
    GNQ1 = int([a[2:] for a in sys.argv if a.startswith('-q')][0]) if any(a.startswith('-q') for a in sys.argv) else 6
    global DUTYPOS
    DUTYPOS = int([a[2:] for a in sys.argv if a.startswith('-d')][0]) if any(a.startswith('-d') for a in sys.argv) else 2
    sched_a([a[2:] for a in sys.argv if a.startswith('-s') and len(a) == 3][0] if any(a.startswith('-s') and len(a) == 3 for a in sys.argv) else 'a')
    k = K()
    final = '-final' in sys.argv
    kn = 'interleave_layers__sliding_block__glu_gated_swiglu__prompt_kernel' if final else 'main_kernel'
    gen_main(k, kn)
    if final:
        head = HEADER + f'; @launch grid=(256,1,1) block=(256,1,1) lds={LDS_BYTES}\n'
    else:
        head = f'; @launch kernel=main_kernel grid=(256,1,1) block=(256,1,1) lds={LDS_BYTES}\n'
    head += '.amdgcn_target "amdgcn-amd-amdhsa--gfx950"\n.text\n'
    open(sys.argv[1], 'w').write(head + k.text() + kd(kn, 512, 102, 256))
    print('nops inserted', k.nops_inserted, 'lines', len(k.lines))
    if TS_ON:
        open(sys.argv[1] + '.names', 'w').write('\n'.join(_ts_names))


if __name__ == '__main__':
    main()
```

```python
from common5 import *

sW, sRB, sIDX, sTT, sL = 3, 4, 5, 6, 7
sP2 = 24
sBW13, sLW, sBWQ, sLWQ, sBW2, sBWO = 25, 26, 27, 28, 29, 31
sTW13, sTWQ, sTW2, sTWO = 33, 34, 35, 36
sHFL, sHPL, sHB = 33, 34, 35
sKV, sOF, sX1, sST1, sHF, sX2, sST2 = 37, 38, 39, 40, 41, 42, 43
sL1, sFAST, sACT, sSPIN = 44, 45, 46, 47
sT0, sT1, sT2, sT3, sT4, sT5 = 48, 49, 50, 51, 52, 53
sFT, sTT3, sFTo, sTTo = 54, 55, 56, 57
sTS = 58
sE, sHOFF, sCNT, sDM = 60, 61, 62, 63
sMASK = 64
sHI, sN28 = 96, 98
sOADR, sXADR = 100, 101
sSADR, sDS = 1, 0
Ctx.sL = sL
vDUM = 0
vL16, vLANE, vN, vHH, vSTO, vSTI, vL16b, vONES = 1, 2, 3, 4, 5, 6, 7, 8
vF14, vFH, vZERO, vKVA, vTS, vL2S, vL4S, vSCR = 9, 10, 11, 12, 13, 14, 15, 16
vKE, vFL, vTA, vM, vR, vT0, vT1, vT2, vT3, vNEG, vMX, vAD = 17, 18, 19, 20, 21, 22, 23, 24, 25, 26, 27, 28
MB = 28

TS_ON = False
FORCE_SLOW = False
FORCE_FALLBACK = False
_ts_names = []
XDEPTH = 10
WARM = True
P4FREE = 6
HPLAIN = False
CODEPF = 47 * 1024
PROPOS = 1
GNQ1 = 6
LAYER = None
DUTYPOS = 0
F_PK = FLAGS + 65536
MODE = 'fast'


def ts(k, name):
    if not TS_ON:
        return
    if name in _ts_names:
        i = _ts_names.index(name)
    else:
        i = len(_ts_names)
        _ts_names.append(name)
    assert i < 62
    k(f's_memrealtime s[{sTS}:{sTS + 1}]')
    k(f'v_writelane_b32 v{vTS}, s{sTS}, {i}')


def wait_flags(k, voff, soff, sexp, vFL=vFL):
    Lp, Ld = k.newlabel('poll'), k.newlabel('polled')
    k(f's_mov_b32 s{sSPIN}, 0')
    k.label(Lp, pad=False)
    k(f"""
    buffer_load_dword v{vFL}, v{voff}, s[8:11], s{soff} offen sc1
    s_add_u32 s{sSPIN}, s{sSPIN}, 1
    s_cmp_gt_u32 s{sSPIN}, {SPIN_MAX}
    s_cbranch_scc1 {Ld}
    s_waitcnt vmcnt(0)
    v_cmp_gt_u32 vcc, {sexp}, v{vFL}
    s_nop 1
    s_cbranch_vccnz {Lp}
    """)
    k.label(Ld, pad=False)
    k('s_waitcnt vmcnt(0)')


def publish(k, stores):
    for s_ in stores:
        k(s_ + ('' if MODE == 'fast' else ' sc1'))


def set_flag(k, soff, val, always_sc1=False, h=None):
    k(f'v_mov_b32 v{vFL}, {val}')
    if h is None:
        k('s_waitcnt vmcnt(0)')
    else:
        k.wait_vm(h)
    pol = ' sc1' if (always_sc1 or MODE != 'fast') else ''
    k('s_mov_b64 exec, 1')
    k(f'buffer_store_dword v{vFL}, v{vZERO}, s[8:11], s{soff} offen{pol}')
    k('s_mov_b64 exec, -1')


def dma_chunks(n, ssrc, src_off, slds, lds_off):
    out = []
    for i in range(n):
        c = []
        if i % 4 == 0:
            c += [f's_add_u32 m0, s{slds}, {lds_off + i * 1024}', f's_add_u32 s{sP2}, s{ssrc}, {src_off + i * 1024}']
        c.append(f'buffer_load_dwordx4 v{vL16}, s[8:11], s{sP2} offen offset:{(i % 4) * 1024} lds')
        out.append(c)
    return out


def load_chunks(dsts, ssrc, tmp, src_off=0, pol=''):
    out = []
    for i, d in enumerate(dsts):
        c = []
        if i % 4 == 0:
            c.append(f's_add_u32 s{tmp}, s{ssrc}, {src_off + i * 1024}')
        c.append(f'buffer_load_dwordx4 {d}, v{vL16}, s[8:11], s{tmp} offen offset:{(i % 4) * 1024}{pol}')
        out.append(c)
    return out


def touch(n, sbase, off=0):
    return [f'v_min_u32 v{vTA}, {n - 1}, v{vLANE}',
            f'v_lshlrev_b32 v{vTA}, 7, v{vTA}',
            f's_add_u32 s{sDS}, s{sbase}, {off}',
            f'buffer_load_dword v{vDUM}, v{vTA}, s[8:11], s{sDS} offen sc1']


def flat(chs):
    return [x for c in chs for x in c]


W13_SLOT = [0, 1, 2, 3, 4, 0, 1]


def pf_wqkv():
    return dma_chunks(21, sBWQ, 0, sLWQ, 0)


def pf_w13(i):
    return dma_chunks(7, sBW13, i * SLOT, sLW, W13_SLOT[i] * SLOT)


def pf_w2():
    ch = (load_chunks([a4(4 * i) for i in range(28)], sBW2, sDM) +
          load_chunks([a4(112 + 4 * i) for i in range(28)], sBW2 + 1, sDM))
    return [flat(ch[i:i + 4]) for i in range(0, 56, 4)]


def t_w13(i):
    return touch(28, sTW13, i * SLOT)


def t_wqkv():
    return touch(64, sTWQ, 0) + touch(20, sTWQ, 8192)


def t_w2():
    return touch(64, sTW2, 0) + touch(34, sTW2, 8192)


def t_wo():
    return touch(28, sTWO, 0)


def t_O():
    return touch(16, sOADR)


def t_X():
    return touch(16, sXADR) + touch(2, sSADR)


def t_H():
    return touch(56, sHOFF)


def idle_q():
    return lines(f"""
    s_and_b32 s{sT5}, s{sRB}, 1
    s_lshl_b32 s{sT5}, s{sT5}, 1
    s_add_u32 s{sT5}, s{sT5}, s{sIDX}
    s_sub_u32 s{sT5}, s{sT5}, 14
    s_lshl_b32 s{sT5}, s{sT5}, 2
    s_add_u32 s{sT5}, s{sT5}, s{sW}
    v_lshlrev_b32 v{vTA}, 7, v{vLANE}
    """)


def idle_touch(base, per_wave, n, first=0):
    out = [f's_mul_i32 s{sT4}, s{sT5}, {per_wave}', f's_add_u32 s{sT4}, s{sT4}, {base + first * 8192}']
    for i in range(n):
        out += [f'buffer_load_dword v{vDUM}, v{vTA}, s[8:11], s{sT4} offen',
                f's_add_u32 s{sT4}, s{sT4}, 8192']
    return out


def L0(ls):
    if LAYER is not None:
        return ('seq', list(ls) if LAYER == 0 else [])
    return ('L0', list(ls))


def L1(ls):
    if LAYER is not None:
        return ('seq', list(ls) if LAYER == 1 else [])

    def fn(k):
        k(f's_cmp_eq_u32 s{sL}, 0')
        k.skip_begin('s_cbranch_scc1')
        for x in ls:
            k(x)
        k.skip_end()
    return ('call', fn)


def res_addr(k, dst, base):
    k(f"""
    s_mul_i32 s{dst}, s{sTT3}, 28
    s_lshl_b32 s{sT1}, s{sFT}, 1
    s_add_u32 s{dst}, s{dst}, s{sT1}
    s_lshl_b32 s{dst}, s{dst}, 10
    s_add_u32 s{dst}, s{dst}, {base}
    """)


def st_addr(k, dst, base):
    k(f"""
    s_mul_i32 s{dst}, s{sTT3}, 14
    s_add_u32 s{dst}, s{dst}, s{sFT}
    s_lshl_b32 s{dst}, s{dst}, 8
    s_add_u32 s{dst}, s{dst}, {base}
    """)


def setup(k, end_label):
    k('s_cmp_ge_u32 s2, 256')
    k(f's_cbranch_scc1 {end_label}')
    k(f"""
    s_load_dwordx16 s[72:87], s[0:1], 0
    s_load_dwordx2 s[16:17], s[0:1], 64
    s_load_dwordx2 s[8:9], s[0:1], 72
    v_lshrrev_b32 v{vT0}, 6, v0
    v_and_b32 v{vLANE}, 63, v0
    v_readfirstlane_b32 s{sW}, v{vT0}
    v_lshlrev_b32 v{vL16}, 4, v{vLANE}
    v_and_b32 v{vN}, 31, v{vLANE}
    v_lshrrev_b32 v{vHH}, 5, v{vLANE}
    s_and_b32 s{sT0}, s2, 7
    s_lshr_b32 s{sT1}, s2, 3
    s_lshr_b32 s{sT2}, s{sT1}, 4
    s_lshl_b32 s{sRB}, s{sT0}, 1
    s_add_u32 s{sRB}, s{sRB}, s{sT2}
    s_and_b32 s{sIDX}, s{sT1}, 15
    s_lshl_b32 s{sTT}, s{sRB}, 2
    s_add_u32 s{sTT}, s{sTT}, s{sW}
    s_mov_b32 s10, {WS_BYTES}
    s_mov_b32 s11, 0x00020000
    s_mov_b32 s14, {S * D * 2}
    s_mov_b32 s15, 0x00020000
    s_mov_b32 s18, 256
    s_mov_b32 s19, 0x00020000
    s_mov_b32 s22, {S * D * 2}
    s_mov_b32 s23, 0x00020000
    s_mov_b32 s{sL}, 0
    s_mov_b32 s{sHI}, 0
    s_mov_b32 s{sHI + 1}, -1
    s_lshl_b32 s{sT1}, s{sW}, 12
    s_add_u32 s{sT1}, s{sT1}, {KVB}
    v_add_u32 v{vKVA}, s{sT1}, v{vL16}
    v_mov_b32 v{vZERO}, 0
    v_mov_b32 v{vTS}, 0
    v_mov_b32 v{vONES}, {ONES_BF16}
    v_cmp_eq_u32 s[{sN28}:{sN28 + 1}], 28, v{vN}
    s_cmp_ge_u32 s{sIDX}, 7
    s_cselect_b32 s{sT0}, 1, 0
    s_mul_i32 s{sT1}, s{sT0}, 7
    s_sub_u32 s{sT1}, s{sIDX}, s{sT1}
    s_cmp_lt_u32 s{sIDX}, 14
    s_cselect_b32 s{sACT}, 1, 0
    s_cselect_b32 s{sT1}, s{sT1}, 0
    s_lshl_b32 s{sFT}, s{sT1}, 1
    s_and_b32 s{sT2}, s{sW}, 1
    s_add_u32 s{sFT}, s{sFT}, s{sT2}
    s_xor_b32 s{sFTo}, s{sFT}, 1
    s_lshl_b32 s{sTT3}, s{sRB}, 2
    s_lshl_b32 s{sT0}, s{sT0}, 1
    s_add_u32 s{sTT3}, s{sTT3}, s{sT0}
    s_lshr_b32 s{sT2}, s{sW}, 1
    s_add_u32 s{sTT3}, s{sTT3}, s{sT2}
    s_xor_b32 s{sTTo}, s{sTT3}, 1
    s_mul_i32 s{sLW}, s{sW}, 7168
    s_waitcnt lgkmcnt(0)
    s_mov_b32 s20, s72
    s_mov_b32 s21, s73
    s_mov_b32 s12, s86
    s_mov_b32 s13, s87
    """)


def setup2_salu():
    return lines(f"""
    s_mov_b32 s{sFAST}, 0
    s_mul_i32 s{sBW13}, s{sIDX}, {7 * SLOT}
    s_add_u32 s{sBW13}, s{sBW13}, {W13_P}
    s_add_u32 s{sBW13}, s{sBW13}, s{sLW}
    s_mul_i32 s{sLWQ}, s{sW}, {21 * 1024}
    s_mul_i32 s{sBWQ}, s{sIDX}, {84 * 1024}
    s_add_u32 s{sBWQ}, s{sBWQ}, {WQKV_P}
    s_add_u32 s{sBWQ}, s{sBWQ}, s{sLWQ}
    s_mul_i32 s{sP2}, s{sW}, {28 * 1024}
    s_add_u32 s{sP2}, s{sP2}, {W2_P}
    s_mul_i32 s{sBW2}, s{sFT}, {112 * 1024}
    s_add_u32 s{sBW2}, s{sBW2}, s{sP2}
    s_mul_i32 s{sBW2 + 1}, s{sFTo}, {112 * 1024}
    s_add_u32 s{sBW2 + 1}, s{sBW2 + 1}, s{sP2}
    s_lshl_b32 s{sP2}, s{sW}, 13
    s_add_u32 s{sP2}, s{sP2}, {WO_P}
    s_lshl_b32 s{sBWO}, s{sFT}, 15
    s_add_u32 s{sBWO}, s{sBWO}, s{sP2}
    s_lshl_b32 s{sBWO + 1}, s{sFTo}, 15
    s_add_u32 s{sBWO + 1}, s{sBWO + 1}, s{sP2}
    """)


def setup2_valu():
    out = lines(f"""
    v_lshlrev_b32 v{vSTO}, 3, v{vN}
    v_mul_u32_u24 v{vSTI}, 1792, v{vHH}
    v_add_u32 v{vSTI}, v{vSTI}, v{vSTO}
    v_lshl_or_b32 v{vSTO}, v{vHH}, 2, v{vSTO}
    v_add_u32 v{vL16b}, {2 * SLOT}, v{vL16}
    v_min_u32 v{vF14}, 13, v{vLANE}
    v_lshlrev_b32 v{vF14}, 2, v{vF14}
    v_add_u32 v{vL2S}, {2 * SLOT}, v{vL16}
    v_add_u32 v{vL4S}, {4 * SLOT}, v{vL16}
    v_add_u32 v{vSCR}, {SCR}, v{vL16}
    v_mov_b32 v{vNEG}, {f32bits(-1e30)}
    v_and_b32 v{vFH}, 3, v{vLANE}
    v_lshlrev_b32 v{vFH}, 2, v{vFH}
    v_bfe_u32 v{vT0}, v{vLANE}, 2, 1
    v_lshl_or_b32 v{vFH}, v{vT0}, 7, v{vFH}
    s_lshl_b32 s{sT1}, s{sW}, 4
    v_add_u32 v{vFH}, s{sT1}, v{vFH}
    v_lshlrev_b32 v{vT0}, 2, v{vHH}
    v_sub_u32 v{vT0}, v{vN}, v{vT0}
    """)
    for r in range(16):
        c = 8 * (r >> 2) + (r & 3)
        out.append(f'v_cmp_ge_i32 s[{sMASK + 2 * r}:{sMASK + 2 * r + 1}], v{vT0}, {c}')
    return out


def signal(k):
    k(f"""
    s_getreg_b32 s{sE}, hwreg(HW_REG_XCC_ID, 0, 4)
    s_mul_i32 s{sCNT}, s{sE}, s{sE}
    s_lshl_b32 s{sCNT}, s{sCNT}, 16
    s_lshl_b32 s{sE}, s{sE}, 8
    s_or_b32 s{sE}, s{sE}, s{sCNT}
    s_or_b32 s{sE}, s{sE}, 1
    v_mov_b32 v{vFL}, s{sE}
    s_lshl_b32 s{sCNT}, s{sRB}, 4
    s_cmp_eq_u32 s{sW}, 0
    s_cselect_b32 s{sCNT}, s{sCNT}, 4096
    s_mov_b64 exec, 1
    buffer_atomic_add v{vFL}, v{vZERO}, s[16:19], s{sCNT} offen sc1
    s_mov_b64 exec, -1
    """)


def global_check(k, pre=False):
    Lp, Ld, Lg = k.newlabel('gpoll'), k.newlabel('gdone'), k.newlabel('ggood')
    k(f"""
    v_and_b32 v{vT1}, 15, v{vLANE}
    v_lshlrev_b32 v{vT1}, 4, v{vT1}
    s_mov_b32 s{sSPIN}, 0
    """)
    if pre:
        k(f"""
        v_and_b32 v{vT0}, 0xff, v{vFL}
        v_cmp_gt_u32 vcc, 16, v{vT0}
        s_nop 1
        s_cbranch_vccz {Lg}
        """)
    k.label(Lp, pad=False)
    k(f"""
    buffer_load_dword v{vFL}, v{vT1}, s[16:19], 0 offen sc1
    s_add_u32 s{sSPIN}, s{sSPIN}, 1
    s_cmp_gt_u32 s{sSPIN}, {SPIN_MAX}
    s_cbranch_scc1 {Ld}
    s_waitcnt vmcnt(0)
    v_and_b32 v{vT0}, 0xff, v{vFL}
    v_cmp_gt_u32 vcc, 16, v{vT0}
    s_nop 1
    s_cbranch_vccz {Lg}
    s_sleep 24
    s_branch {Lp}
    """)
    k.label(Lg, pad=False)
    k(f"""
    s_getreg_b32 s{sT0}, hwreg(HW_REG_XCC_ID, 0, 4)
    s_mul_i32 s{sT1}, s{sT0}, s{sT0}
    s_lshl_b32 s{sT1}, s{sT1}, 20
    s_lshl_b32 s{sT0}, s{sT0}, 12
    s_or_b32 s{sT0}, s{sT0}, s{sT1}
    s_or_b32 s{sT0}, s{sT0}, 16
    v_readlane_b32 s{sT1}, v{vFL}, s{sRB}
    s_nop 3
    s_cmp_eq_u32 s{sT0}, s{sT1}
    s_cselect_b32 s{sFAST}, {0 if FORCE_SLOW else 1}, 0
    """)
    k.label(Ld, pad=False)
    k('s_waitcnt vmcnt(0)')


def set_layer(k, l):
    fast = MODE == 'fast'
    k(f"""
    s_mov_b32 s{sL1}, {l + 1}
    s_mov_b32 s{sX1}, {XF[1] if fast else XF[2 * l + 1]}
    s_mov_b32 s{sX2}, {XF[1] if fast else XF[2]}
    s_mov_b32 s{sST1}, {ST[1] if fast else ST[2 * l + 1]}
    s_mov_b32 s{sST2}, {ST[2]}
    s_mov_b32 s{sKV}, {KV[l]}
    s_mov_b32 s{sOF}, {OF[0] if fast else OF[l]}
    s_mov_b32 s{sHF}, {HF[0] if fast else HF[l]}
    s_lshl_b32 s{sOADR}, s{sIDX}, 6
    s_add_u32 s{sOADR}, s{sOADR}, s{sTT}
    s_lshl_b32 s{sOADR}, s{sOADR}, 11
    s_add_u32 s{sOADR}, s{sOADR}, s{sOF}
    s_mul_i32 s{sHOFF}, s{sTT}, 112
    s_mul_i32 s{sT5}, s{sIDX}, 7
    s_add_u32 s{sHOFF}, s{sHOFF}, s{sT5}
    s_lshl_b32 s{sHOFF}, s{sHOFF}, 10
    s_add_u32 s{sHOFF}, s{sHOFF}, s{sHF}
    """)
    res_addr(k, sXADR, f's{sX1}')
    st_addr(k, sSADR, f's{sST1}')


def stats_loads(sbase, stt, dst):
    out = [f's_mul_i32 s{sT0}, s{stt}, {14 * 256}', f's_add_u32 s{sT0}, s{sT0}, s{sbase}']
    out += [f'buffer_load_dwordx2 {v2(dst + 2 * i)}, v{vSTI}, s[8:11], s{sT0} offen offset:{256 * i} sc1' for i in range(7)]
    return out


def stats_math(src):
    out = []
    for i in range(1, 7):
        out.append(f'v_add_f32 v{src}, v{src}, v{src + 2 * i}')
        out.append(f'v_add_f32 v{src + 1}, v{src + 1}, v{src + 2 * i + 1}')
    return out + ln_math(src, src + 1, vT0, vT1, vM, vR)


def mb_fill():
    return [f'v_mov_b32 v{MB + i}, v{vM}' for i in range(4)]


def halo(k, poll):
    k(f"""
    s_lshl_b32 s{sT2}, s{sRB}, 2
    s_lshl_b32 s{sT3}, s{sW}, 1
    s_add_u32 s{sT2}, s{sT2}, s{sT3}
    s_sub_i32 s{sT2}, s{sT2}, 8
    s_lshl_b32 s{sT5}, s{sW}, 13
    s_add_u32 s{sT5}, s{sT5}, {KVB}
    s_cmp_lt_i32 s{sT2}, 0
    """)
    Lfill, Ljoin = k.newlabel('A_fill'), k.newlabel('A_join')
    k(f's_cbranch_scc1 {Lfill}')
    st = (k.vm_seq, k.vm_done, k.lg_seq, k.lg_done, dict(k.pend))
    k(f"""
    s_lshl_b32 s{sT0}, s{sIDX}, 6
    s_add_u32 s{sT0}, s{sT0}, s{sT2}
    s_lshl_b32 s{sT4}, s{sT0}, 2
    s_add_u32 s{sT4}, s{sT4}, {F_KV}
    s_lshl_b32 s{sE}, s{sT0}, 12
    s_add_u32 s{sE}, s{sE}, s{sKV}
    """)
    if poll:
        k(f'v_and_b32 v{vT0}, 1, v{vLANE}')
        k(f'v_lshlrev_b32 v{vT0}, 2, v{vT0}')
        wait_flags(k, vT0, sT4, f's{sL1}')
    emit(k, flat(dma_chunks(8, sE, 0, sT5, 0)))
    k(f's_branch {Ljoin}')
    k.label(Lfill, pad=False)
    z = 248
    k(f"""
    v_mov_b32 v{z}, 0
    v_mov_b32 v{z + 1}, 0
    v_mov_b32 v{z + 2}, 0
    v_mov_b32 v{z + 3}, 0
    v_mov_b32 v{z + 4}, 0
    v_mov_b32 v{z + 5}, 0
    v_mov_b32 v{z + 7}, 0
    v_mov_b32 v{vT1}, 0xf14a
    v_cndmask_b32 v{z + 6}, 0, v{vT1}, s[{sHI}:{sHI + 1}]
    v_add_u32 v{vT0}, s{sT5}, v{vL16}
    """)
    for t in range(2):
        k(f'ds_write_b128 v{vT0}, {v4(z)} offset:{4096 * t}')
        k(f'ds_write_b128 v{vT0}, {v4(z + 4)} offset:{4096 * t + 1024}')
        k(f'ds_write_b128 v{vT0}, {v4(z)} offset:{4096 * t + 2048}')
        k(f'ds_write_b128 v{vT0}, {v4(z)} offset:{4096 * t + 3072}')
    k('s_waitcnt lgkmcnt(0)')
    k.label(Ljoin, pad=False)
    k.vm_seq, k.vm_done, k.lg_seq, k.lg_done, k.pend = st[0], st[1], st[2], st[3], dict(st[4])


QF, KF, VF = 232, 216, 224
WO_R = 128
SA, PA, OA, NM, KB, VB, OS = 32, 48, 64, 80, 96, 104, 112


def att_tile_body(k, last, mem):
    k(f'{MF} {v16(SA)}, {v4(KB)}, {v4(QF)}, {v16(NM)}')
    k(f'{MF} {v16(SA)}, {v4(KB + 4)}, {v4(QF + 4)}, {v16(SA)}')
    k(f'{MF} {v16(OA)}, {v4(VB)}, {v4(PA)}, {v16(OA)}')
    k(f'{MF} {v16(OA)}, {v4(VB + 4)}, {v4(PA + 4)}, {v16(OA)}')
    k(f'ds_read_b128 {v4(VB)}, v{vAD} offset:2048')
    k(f'ds_read_b128 {v4(VB + 4)}, v{vAD} offset:3072')
    k(f'v_subrev_u32 v{vAD}, 4096, v{vAD}')
    if not last:
        k(f'ds_read_b128 {v4(KB)}, v{vAD}')
        k(f'ds_read_b128 {v4(KB + 4)}, v{vAD} offset:1024')
    emit(k, mem)
    if last:
        for r in range(16):
            k(f'v_cndmask_b32 v{SA + r}, v{SA + r}, v{vNEG}, s[{sMASK + 2 * r}:{sMASK + 2 * r + 1}]')
    for q in range(8):
        k(f'v_exp_f32 v{SA + 2 * q}, v{SA + 2 * q}')
        k(f'v_exp_f32 v{SA + 2 * q + 1}, v{SA + 2 * q + 1}')
        if q:
            k(f'v_cvt_pk_bf16_f32 v{PA + q - 1}, v{SA + 2 * q - 2}, v{SA + 2 * q - 1}')
    k(f'v_cvt_pk_bf16_f32 v{PA + 7}, v{SA + 14}, v{SA + 15}')


def loop_dma():
    out = []
    for i in range(3):
        out += [f's_add_u32 m0, s{sDM}, {W13_SLOT[i] * SLOT}',
                f's_add_u32 s{sP2}, s{sDS}, {i * SLOT}',
                f'buffer_load_dwordx4 v{vL16}, s[8:11], s{sP2} offen lds']
    out += [f's_add_u32 s{sDM}, s{sDM}, 1024', f's_add_u32 s{sDS}, s{sDS}, 1024']
    return out


def loop_dma0():
    out = [f's_min_u32 m0, s{sDM}, {80 * 1024}', f's_add_u32 s{sP2}, s{sDS}, m0']
    out += [f'buffer_load_dwordx4 v{vL16}, s[8:11], s{sP2} offen offset:{i * 1024} lds' for i in range(4)]
    out.append(f's_add_u32 s{sDM}, s{sDM}, 4096')
    return out


def attention(k):
    ts(k, 'ATT.start')
    k(f'{MF} {v16(SA)}, {v4(KF)}, {v4(QF)}, 0')
    k(f'{MF} {v16(SA)}, {v4(KF + 4)}, {v4(QF + 4)}, {v16(SA)}')
    k(f"""
    v_add_u32 v{vAD}, {7 * 4096}, v{vKVA}
    ds_read_b128 {v4(KB)}, v{vAD}
    ds_read_b128 {v4(KB + 4)}, v{vAD} offset:1024
    s_mul_i32 s{sT0}, s{sW}, s{sW}
    s_mul_i32 s{sDM}, s{sW}, 30
    s_lshl_b32 s{sT0}, s{sT0}, 1
    s_sub_u32 s{sDM}, s{sDM}, s{sT0}
    s_lshl_b32 s{sDM}, s{sDM}, 10
    s_sub_u32 s{sDS}, s{sBW13}, s{sLW}
    """)
    wo = load_chunks([v4(WO_R + 4 * i) for i in range(8)], sBWO, sT2) + load_chunks([v4(WO_R + 32 + 4 * i) for i in range(8)], sBWO + 1, sT2)
    for q in range(8):
        k(f'v_mov_b32 v{VB + q}, v{VF + q}')
    for r in range(16):
        k(f'v_mov_b32 v{OA + r}, 0')
    for r in range(16):
        k(f'v_cndmask_b32 v{SA + r}, v{vNEG}, v{SA + r}, s[{sMASK + 2 * r}:{sMASK + 2 * r + 1}]')
    k(f'v_max_f32 v{vMX}, v{SA}, v{SA + 1}')
    for r in range(2, 16, 2):
        k(f'v_max3_f32 v{vMX}, v{SA + r}, v{SA + r + 1}, v{vMX}')
    k(f"""
    v_mov_b32 v{vT1}, v{vMX}
    v_permlane32_swap_b32 v{vMX}, v{vT1}
    v_max_f32 v{vMX}, v{vMX}, v{vT1}
    """)
    for r in range(16):
        k(f'v_sub_f32 v{SA + r}, v{SA + r}, v{vMX}')
    for r in range(16):
        k(f'v_sub_f32 v{NM + r}, 0, v{vMX}')
    for r in range(16):
        k(f'v_exp_f32 v{SA + r}, v{SA + r}')
        if r % 4 == 3:
            emit_item(k, L1(flat(wo[r - 3:r + 1])))
    for r in parse_reg(f'v[{WO_R}:{WO_R + 63}]'):
        k.pend.pop(r, None)
    for q in range(8):
        k(f'v_cvt_pk_bf16_f32 v{PA + q}, v{SA + 2 * q}, v{SA + 2 * q + 1}')
    ts(k, 'ATT.diag')
    halo(k, True)
    LA, LAe, LB = k.newlabel('att1'), k.newlabel('att1e'), k.newlabel('att2')
    k(f's_mov_b32 s{sCNT}, s{sW}')
    k('s_waitcnt lgkmcnt(0)')
    k(f's_cmp_eq_u32 s{sCNT}, 0')
    k(f's_cbranch_scc1 {LAe}')
    k.label(LA, pad=False)
    k('s_nop 1')
    st = k.vm_seq
    att_tile_body(k, False, [])
    k.vm_seq = st
    k(f"""
    s_sub_u32 s{sCNT}, s{sCNT}, 1
    s_cmp_lg_u32 s{sCNT}, 0
    s_waitcnt lgkmcnt(0)
    s_cbranch_scc1 {LA}
    """)
    k.label(LAe, pad=False)
    ts(k, 'ATT.st1')
    Lw = k.newlabel('wready')
    if LAYER is None:
        k(f's_cmp_lg_u32 s{sL}, 0')
        k(f's_cbranch_scc1 {Lw}')
    elif LAYER == 1:
        k(f's_branch {Lw}')
    st = (k.vm_seq, k.vm_done, dict(k.pend))
    k(f"""
    s_mul_i32 s{sT0}, s{sIDX}, 7
    s_add_u32 s{sT1}, s{sT0}, 6
    s_and_b32 s{sT0}, s{sT0}, -4
    s_or_b32 s{sT1}, s{sT1}, 3
    v_add_u32 v{vT0}, s{sT0}, v{vLANE}
    v_min_u32 v{vT0}, s{sT1}, v{vT0}
    s_lshr_b32 s{sT2}, s{sFT}, 1
    s_lshl_b32 s{sT0}, s{sT2}, 3
    s_add_u32 s{sT0}, s{sT0}, 112
    v_and_b32 v{vT1}, 7, v{vLANE}
    v_add_u32 v{vT1}, s{sT0}, v{vT1}
    v_cmp_le_u32 vcc, 16, v{vLANE}
    s_lshl_b32 s{sT0}, s{sT2}, 1
    s_add_u32 s{sT0}, s{sT0}, 168
    v_cndmask_b32 v{vT0}, v{vT0}, v{vT1}, vcc
    v_and_b32 v{vT1}, 1, v{vLANE}
    v_add_u32 v{vT1}, s{sT0}, v{vT1}
    v_cmp_le_u32 vcc, 24, v{vLANE}
    v_bfe_u32 v{vT2}, v{vLANE}, 1, 3
    v_and_b32 v{vT3}, 1, v{vLANE}
    v_cndmask_b32 v{vT0}, v{vT0}, v{vT1}, vcc
    v_lshl_add_u32 v{vT2}, v{vT3}, 7, v{vT2}
    s_lshl_b32 s{sT0}, s{sIDX}, 3
    v_add_u32 v{vT2}, s{sT0}, v{vT2}
    v_cndmask_b32 v{vT0}, v{vT0}, v{vT2}, s[{sHI}:{sHI + 1}]
    v_lshlrev_b32 v{vT0}, 7, v{vT0}
    s_mov_b32 s{sT0}, {F_PK}
    """)
    wait_flags(k, vT0, sT0, '1')
    k.vm_seq, k.vm_done, k.pend = st
    k.label(Lw, pad=False)
    k('s_waitcnt vmcnt(0)')
    ts(k, 'ATT.halo')
    k('s_barrier')
    k(f"""
    ds_read_b128 {v4(KB)}, v{vAD}
    ds_read_b128 {v4(KB + 4)}, v{vAD} offset:1024
    s_sub_u32 s{sCNT}, 7, s{sW}
    """)
    emit_item(k, L0(([x.replace(f's{sDS},', f's{sT3},').replace(f's{sDS} ', f's{sT3} ') for x in SCHED['PRO']()] if PROPOS == 2 else []) + flat(wo) + lines(f"""
    v_lshlrev_b32 v{vT0}, 2, v{vN}
    v_lshl_add_u32 v{vT0}, v{vHH}, 9, v{vT0}
    s_mul_i32 s{sT0}, s{sIDX}, 7
    s_add_u32 s{sT0}, s{sT0}, s{sW}
    s_lshl_b32 s{sT0}, s{sT0}, 7
    s_add_u32 s{sT0}, s{sT0}, {CSP_13}
    """) + flat([[f's_add_u32 s{sT1}, s{sT0}, {q * 112 * 128}',
                 f'buffer_load_dword v{CSL + q}, v{vT0}, s[8:11], s{sT1} offen'] for q in range(4)])))
    k('s_waitcnt lgkmcnt(0)')
    k.label(LB, pad=False)
    k('s_nop 1')
    st = k.vm_seq
    att_tile_body(k, False, loop_dma0())
    k.vm_seq = st
    k(f"""
    s_sub_u32 s{sCNT}, s{sCNT}, 1
    s_cmp_lg_u32 s{sCNT}, 0
    s_waitcnt lgkmcnt(0)
    s_cbranch_scc1 {LB}
    """)
    k('s_nop 1')
    att_tile_body(k, True, [])
    k(f'{MF} {v16(OA)}, {v4(VB)}, {v4(PA)}, {v16(OA)}')
    k(f'{MF} {v16(OA)}, {v4(VB + 4)}, {v4(PA + 4)}, {v16(OA)}')
    k(f"""
    s_lshl_b32 s{sT4}, s{sTT}, 7
    s_lshl_b32 s{sT1}, s{sIDX}, 2
    s_add_u32 s{sT4}, s{sT4}, s{sT1}
    s_add_u32 s{sT4}, s{sT4}, {F_O}
    s_mov_b32 s{sT0}, {f32bits(2.0 ** 64)}
    """)
    Lok = k.newlabel('att_ok')
    k(f"""
    v_mov_b32 v{vT0}, v{OA + 12}
    v_mov_b32 v{vT1}, v{OA + 12}
    v_permlane32_swap_b32 v{vT0}, v{vT1}
    v_cmp_nge_f32 vcc, s{sT0}, v{vT1}
    s_nop 1
    """)
    k(f's_cbranch_vccz {Lok}' if not FORCE_FALLBACK else 's_nop 0')
    fallback(k)
    k.label(Lok)
    k(f'v_rcp_f32 v{vT1}, v{vT1}')
    for r in range(16):
        k(f'v_mul_f32 v{OA + r}, v{vT1}, v{OA + r}')
    for q in range(8):
        k(f'v_cvt_pk_bf16_f32 v{OA + q}, v{OA + 2 * q}, v{OA + 2 * q + 1}')
    ts(k, 'ATT.st2')
    publish(k, [f'buffer_store_dwordx4 {v4(OA)}, v{vL16}, s[8:11], s{sOADR} offen',
                f'buffer_store_dwordx4 {v4(OA + 4)}, v{vL16}, s[8:11], s{sOADR} offen offset:1024'])
    set_flag(k, sT4, f's{sL1}')
    ts(k, 'ATT.pub')


def fallback(k):
    def s_tile(c):
        k(f"""
        ds_read_b128 {v4(KB)}, v{vAD}
        ds_read_b128 {v4(KB + 4)}, v{vAD} offset:1024
        ds_read_b128 {v4(VB)}, v{vAD} offset:2048
        ds_read_b128 {v4(VB + 4)}, v{vAD} offset:3072
        """)
        k(f'{MF} {v16(SA)}, {v4(KB)}, {v4(QF)}, {c}')
        k(f'{MF} {v16(SA)}, {v4(KB + 4)}, {v4(QF + 4)}, {v16(SA)}')
        for cntv, a, b in ((0, SA, None), (8, None, SA)):
            k(f's_cmp_lg_u32 s{sCNT}, {cntv}')
            k.skip_begin('s_cbranch_scc1')
            for r in range(16):
                m = f's[{sMASK + 2 * r}:{sMASK + 2 * r + 1}]'
                if cntv == 0:
                    k(f'v_cndmask_b32 v{SA + r}, v{SA + r}, v{vNEG}, {m}')
                else:
                    k(f'v_cndmask_b32 v{SA + r}, v{vNEG}, v{SA + r}, {m}')
            k.skip_end()
    La, Lb = k.newlabel('fb1'), k.newlabel('fb2')
    k(f"""
    s_nop 7
    s_nop 7
    v_mov_b32 v{vAD}, v{vKVA}
    v_mov_b32 v{vMX}, v{vNEG}
    s_mov_b32 s{sCNT}, 0
    """)
    k.label(La)
    s_tile('0')
    for r in range(0, 16, 2):
        k(f'v_max3_f32 v{vMX}, v{SA + r}, v{SA + r + 1}, v{vMX}')
    k(f"""
    v_add_u32 v{vAD}, 4096, v{vAD}
    s_add_u32 s{sCNT}, s{sCNT}, 1
    s_cmp_lt_u32 s{sCNT}, 9
    s_waitcnt lgkmcnt(0)
    s_cbranch_scc1 {La}
    v_mov_b32 v{vT1}, v{vMX}
    v_permlane32_swap_b32 v{vMX}, v{vT1}
    v_max_f32 v{vMX}, v{vMX}, v{vT1}
    v_mov_b32 v{vAD}, v{vKVA}
    s_mov_b32 s{sCNT}, 0
    """)
    for r in range(16):
        k(f'v_mov_b32 v{OA + r}, 0')
    k.label(Lb)
    s_tile('0')
    for r in range(16):
        k(f'v_sub_f32 v{SA + r}, v{SA + r}, v{vMX}')
    for r in range(16):
        k(f'v_exp_f32 v{SA + r}, v{SA + r}')
    for q in range(8):
        k(f'v_cvt_pk_bf16_f32 v{PA + q}, v{SA + 2 * q}, v{SA + 2 * q + 1}')
    k(f'{MF} {v16(OA)}, {v4(VB)}, {v4(PA)}, {v16(OA)}')
    k(f'{MF} {v16(OA)}, {v4(VB + 4)}, {v4(PA + 4)}, {v16(OA)}')
    k(f"""
    v_add_u32 v{vAD}, 4096, v{vAD}
    s_add_u32 s{sCNT}, s{sCNT}, 1
    s_cmp_lt_u32 s{sCNT}, 9
    s_waitcnt lgkmcnt(0)
    s_cbranch_scc1 {Lb}
    v_mov_b32 v{vT0}, v{OA + 12}
    v_mov_b32 v{vT1}, v{OA + 12}
    v_permlane32_swap_b32 v{vT0}, v{vT1}
    """)


SK_ACC = [32, 48, 64, 80]
SK_XO = 96
RED = 3 * SLOT


def red_writes():
    out = {}
    for q in range(1, 4):
        o = lines(f"""
        s_xor_b32 s{sT0}, s{sW}, {q}
        s_mul_i32 s{sT0}, s{sT0}, 12288
        s_add_u32 s{sT0}, s{sT0}, {RED + (q - 1) * 4096}
        v_add_u32 v{vT0 + q - 1}, s{sT0}, v{vL16}
        """)
        for g in range(4):
            o.append(f'ds_write_b128 v{vT0 + q - 1}, {v4(SK_ACC[q] + 4 * g)} offset:{1024 * g}')
        out[q] = o
    return out


XR = 200


def red_setup():
    return lines(f"""
    s_mul_i32 s{sT0}, s{sW}, 12288
    s_add_u32 s{sT0}, s{sT0}, {RED}
    v_add_u32 v{vT3}, s{sT0}, v{vL16}
    """)


def red_finish(k):
    ACC = SK_ACC
    k.barrier()
    for g in range(4):
        for q in range(1, 4):
            k(f'ds_read_b128 {v4(ACC[q] + 4 * g)}, v{vT3} offset:{(q - 1) * 4096 + 1024 * g}')


def red_sum(k, g):
    ACC = SK_ACC
    k.wait_reg(v4(ACC[3] + 4 * g))
    for r in (4 * g, 4 * g + 2):
        k(f'v_pk_add_f32 {v2(ACC[1] + r)}, {v2(ACC[1] + r)}, {v2(ACC[2] + r)}')
        k(f'v_pk_add_f32 {v2(ACC[0] + r)}, {v2(ACC[0] + r)}, {v2(ACC[3] + r)}')
    for r in (4 * g, 4 * g + 2):
        k(f'v_pk_add_f32 {v2(ACC[0] + r)}, {v2(ACC[0] + r)}, {v2(ACC[1] + r)}')


def unpack_res(xo, dst):
    out = []
    for q in range(8):
        out.append(f'v_lshlrev_b32 v{dst + 2 * q}, 16, v{xo + q}')
        out.append(f'v_and_b32 v{dst + 2 * q + 1}, 0xffff0000, v{xo + q}')
    return out


def flag_addr(dst, fbase):
    return lines(f"""
    s_lshl_b32 s{dst}, s{sTT3}, 7
    s_lshl_b32 s{sT1}, s{sFT}, 2
    s_add_u32 s{dst}, s{dst}, s{sT1}
    s_add_u32 s{dst}, s{dst}, {fbase}
    """)


def res_epilogue(k, xo, sflag, val, scale, xr, Lfin):
    acc = SK_ACC[0]
    for g in range(4):
        red_sum(k, g)
        if scale is not None:
            for r in (4 * g, 4 * g + 2):
                k(f'v_pk_fma_f32 {v2(acc + r)}, {v2(acc + r)}, {v2(scale)}, {v2(xr + r)}')
        for q in (2 * g, 2 * g + 1):
            k(f'v_cvt_pk_bf16_f32 v{xo + q}, v{acc + 2 * q}, v{acc + 2 * q + 1}')
        if g == 1 and Lfin is None:
            publish(k, [f'buffer_store_dwordx4 {v4(xo)}, v{vL16}, s[8:11], s{sXADR} offen'])
    if Lfin:
        if LAYER == 1:
            k(f's_branch {Lfin}')
            return
        if LAYER is None:
            k(f's_cmp_eq_u32 s{sL}, 1')
            k(f's_cbranch_scc1 {Lfin}')
        publish(k, [f'buffer_store_dwordx4 {v4(xo)}, v{vL16}, s[8:11], s{sXADR} offen'])
    publish(k, [f'buffer_store_dwordx4 {v4(xo + 4)}, v{vL16}, s[8:11], s{sXADR} offen offset:1024'])
    k(f'v_mov_b32 v{vT0}, 0')
    k(f'v_mov_b32 v{vT1}, 0')
    emit(k, stats_ops(xo, 8, vT0, vT1, vONES))
    k(f"""
    v_permlane32_swap_b32 v{vT0}, v{vT1}
    v_add_f32 v{vT0}, v{vT0}, v{vT1}
    """)
    publish(k, [f'buffer_store_dword v{vT0}, v{vSTO}, s[8:11], s{sSADR} offen'])
    set_flag(k, sflag, val)


def rowmajor_addr(k):
    k(f"""
    v_mul_u32_u24 v{vT0}, 896, v{vN}
    v_lshl_add_u32 v{vT0}, v{vHH}, 4, v{vT0}
    s_mul_i32 s{sT0}, s{sTT3}, {32 * 896}
    s_lshl_b32 s{sT1}, s{sFT}, 6
    s_add_u32 s{sT0}, s{sT0}, s{sT1}
    """)


def phase_P3(k):
    ACC, XO = SK_ACC, SK_XO
    O_R = 192
    Lskip, Lj = k.newlabel('p3_skip'), k.newlabel('p3_join')
    k(f's_cmp_eq_u32 s{sACT}, 0')
    k(f's_cbranch_scc1 {Lskip}')
    La, Lb = k.newlabel('p3_l1'), k.newlabel('p3_res')
    if LAYER is None:
        k(f's_cmp_lg_u32 s{sL}, 0')
        k(f's_cbranch_scc1 {La}')
    if LAYER != 1:
        rowmajor_addr(k)
        k(f"""
        buffer_load_dwordx4 {v4(XO)}, v{vT0}, s[20:23], s{sT0} offen
        buffer_load_dwordx4 {v4(XO + 4)}, v{vT0}, s[20:23], s{sT0} offen offset:32
        """)
    if LAYER is None:
        k(f's_branch {Lb}')
        k.label(La, pad=False)
        k.vm_seq -= 2
        for r in parse_reg(f'v[{XO}:{XO + 7}]'):
            k.pend.pop(r, None)
    if LAYER != 0:
        res_addr(k, sT0, f's{sX2}')
        k(f"""
        buffer_load_dwordx4 {v4(XO)}, v{vL16}, s[8:11], s{sT0} offen sc1
        buffer_load_dwordx4 {v4(XO + 4)}, v{vL16}, s[8:11], s{sT0} offen offset:1024 sc1
        """)
    k.label(Lb, pad=False)
    k(f"""
    s_and_b32 s{sT4}, s{sTT3}, -2
    s_lshl_b32 s{sT4}, s{sT4}, 7
    s_add_u32 s{sT4}, s{sT4}, {F_O}
    s_lshl_b32 s{sT1}, s{sW}, 19
    s_add_u32 s{sT1}, s{sT1}, s{sOF}
    s_lshl_b32 s{sT2}, s{sTT3}, 11
    s_add_u32 s{sT2}, s{sT2}, s{sT1}
    s_lshl_b32 s{sT3}, s{sTTo}, 11
    s_add_u32 s{sT3}, s{sT3}, s{sT1}
    """)
    emit(k, SCHED['P3_pre']())
    emit(k, red_setup() + flag_addr(sE, F_X1))
    k('s_barrier')
    emit(k, unpack_res(XO, ACC[0]))
    wait_flags(k, vFH, sT4, f's{sL1}')
    ts(k, 'P3.ready')
    for q in (1, 0):
        for i in range(8):
            if i and i % 2 == 0:
                k(f's_add_u32 s{sT2 + q}, s{sT2 + q}, {64 * 2048}')
            k(f'buffer_load_dwordx4 {v4(O_R + 32 * q + 4 * i)}, v{vL16}, s[8:11], s{sT2 + q} offen offset:{(i % 2) * 1024} sc1')

    def mf(qa, qb, ks):
        a = ACC[qa + 2 * qb]
        c = '0' if (ks == 0 and qa + qb) else v16(a)
        return dict(m=f'{MF} {v16(a)}, {v4(WO_R + 32 * qa + 4 * ks)}, {v4(O_R + 32 * qb + 4 * ks)}, {c}')
    rw = red_writes()
    M = [mf(qa, 1, ks) for ks in range(8) for qa in range(2)] + [mf(1, 0, ks) for ks in range(8)] + [mf(0, 0, ks) for ks in range(8)]
    fl = F(SCHED['P3_mm'](), earliest=2) + F(rw[2] + rw[3], earliest=18) + F(rw[1], earliest=26)
    flush(k, weave(k, M, fl, free=6, pairwait=False))
    ts(k, 'P3.mfma')
    red_finish(k)
    res_epilogue(k, XO, sE, f's{sL1}', None, None, None)
    ts(k, 'P3.pub')
    k(f's_branch {Lj}')
    k.label(Lskip, pad=False)
    emit(k, SCHED['P3_idle']())
    k.label(Lj, pad=False)
    k.drained()


P5_XO = 232
P5_ORDER = ([ks for ks in range(28) if ks % 7 < 4] + [ks for ks in range(28) if ks % 7 in (4, 5)] +
            [ks for ks in range(28) if ks % 7 == 6])
P5_SLOTS = [96 + 8 * i for i in range(6)] + [160 + 8 * i for i in range(8)]
HDEPTH = 6


def p5_reg(pos, q):
    return v4(P5_SLOTS[pos % len(P5_SLOTS)] + 4 * q)


def p5_hload(pos):
    ks = P5_ORDER[pos]
    out = []
    for q in (1, 0):
        out += [f's_add_u32 s{sT0}, s{sHB + q}, {ks * 1024}',
                f'buffer_load_dwordx4 {p5_reg(pos, q)}, v{vL16}, s[8:11], s{sT0} offen sc1']
    return out


def lvl(n):
    if LAYER is not None:
        return str(3 * LAYER + n)
    return f's{[None, sE, sCNT, sDS][n]}'


def p5_poll():
    return [f'buffer_load_dword v{vTA}, v{vFH}, s[8:11], s{sHPL} offen sc1']


def p5_check(n):
    def fn(k):
        k(f'v_cmp_gt_u32 vcc, {lvl(n)}, v{vTA}')
        k('s_nop 1')
        Lok = k.newlabel('hok')
        k(f's_cbranch_vccz {Lok}')
        st = (k.vm_seq, k.vm_done, dict(k.pend), k.pos, list(k.hist))
        wait_flags(k, vFH, sHPL, lvl(n), vFL=vTA)
        k.vm_seq, k.vm_done, k.pend, k.pos, k.hist = st
        k.label(Lok, pad=False)
    return ('call', fn)


def phase_P5(k, Lfin, epi6, hs):
    ACC, XO = SK_ACC, P5_XO
    STT, XRF = 144, 240
    Lskip, Ljoin = k.newlabel('p5_skip'), k.newlabel('p5_join')
    k(f's_cmp_eq_u32 s{sACT}, 0')
    k(f's_cbranch_scc1 {Lskip}')
    st0 = (k.vm_seq, k.vm_done, k.lg_seq, k.lg_done, dict(k.pend), k.pos, list(k.hist))

    def mf(pos, qa, qb):
        a = ACC[qa + 2 * qb]
        c = '0' if pos == 0 else v16(a)
        return f'{MF} {v16(a)}, {a4(112 * qa + 4 * P5_ORDER[pos])}, {p5_reg(pos, qb)}, {c}'
    TAIL = 5
    M = []
    for pos in range(28):
        nxt = pos + HDEPTH
        pre = []
        if nxt == 16:
            pre.append(p5_check(2))
        if nxt == 24:
            pre.append(p5_check(3))
        if nxt < 28:
            pre += p5_hload(nxt)
        if nxt in (12, 20):
            pre += p5_poll()
        M.append(dict(pre=pre, m=mf(pos, 0, 1), w=1))
        M.append(dict(m=mf(pos, 1, 1)))
        M.append(dict(m=mf(pos, 1, 0), w=1))
        if pos < 28 - TAIL:
            M.append(dict(m=mf(pos, 0, 0)))
    n0 = len(M)
    M += [dict(m=mf(pos, 0, 0)) for pos in range(28 - TAIL, 28)]
    rw = red_writes()
    wq = pf_wqkv()
    wqg = [L0(flat(wq[i:i + 4])) for i in range(0, 21, 4)]
    first_free = 4 * (28 - HDEPTH)
    fl = F(epi6, earliest=0)
    fl.append((26, None, ('call', lambda k: set_flag(k, sHFL, lvl(3), h=hs[6]))))
    fl.append((27, None, ('call', lambda k: res_addr(k, sT2, f's{sX1}'))))
    fl += F([f'buffer_load_dwordx4 {v4(XO)}, v{vL16}, s[8:11], s{sT2} offen sc1',
             f'buffer_load_dwordx4 {v4(XO + 4)}, v{vL16}, s[8:11], s{sT2} offen offset:1024 sc1'], earliest=27)
    sl = [x.replace(f's{sT0}', f's{sT3}') for x in stats_loads(sST1, sTT3, STT)]
    fl += F(sl, earliest=29)
    fl += F(stats_math(STT) + [f'v_mul_f32 v{MB}, v{vR}, v{vR}', f'v_mul_f32 v{MB + 1}, v{vR}, v{vR}'] +
            unpack_res(XO, XRF), earliest=52)
    fl.append((52, None, ('call', lambda k: emit(k, [x.replace(f's{sT0}', f's{sT3}') for x in red_setup()] + flag_addr(sT5, F_XIN)))))
    fl.append((first_free - 2, first_free, 's_barrier'))
    for i, g in enumerate(wqg):
        fl += F([g], earliest=first_free + 2 * i)
    fl += F(rw[2] + rw[3] + rw[1], earliest=n0)
    flush(k, weave(k, M, fl, free=6, pairwait=False))
    ts(k, 'P5.mfma')
    red_finish(k)
    res_epilogue(k, XO, sT5, '1', MB, XRF, Lfin)
    if LAYER != 1:
        ts(k, 'P5.pub')
        k(f's_branch {Ljoin}')
    k.label(Lskip, pad=False)
    k.vm_seq, k.vm_done, k.lg_seq, k.lg_done, k.pend, k.pos, k.hist = st0[0], st0[1], st0[2], st0[3], dict(st0[4]), st0[5], list(st0[6])
    emit(k, epi6)
    set_flag(k, sHFL, lvl(3))
    if LAYER == 1:
        k('s_branch MAIN_tail')
        return
    if LAYER is None:
        k(f's_cmp_eq_u32 s{sL}, 1')
        k('s_cbranch_scc1 MAIN_tail')
    k('s_barrier')
    emit(k, flat(pf_wqkv()))
    k.label(Ljoin, pad=False)
    k('s_waitcnt vmcnt(0) lgkmcnt(0)')
    k.drained()
    k('s_barrier')


def phase_P4(k, Lfin):
    XB = 32
    ACC = [144, 160, 176]
    WB, NB, PF = 192, 8, 6
    ET = 224
    k(f"""
    s_lshl_b32 s{sT4}, s{sTT}, 7
    s_add_u32 s{sT4}, s{sT4}, {F_X1}
    s_mul_i32 s{sT3}, s{sTT}, {28 * 1024}
    s_add_u32 s{sT3}, s{sT3}, s{sX1}
    """)
    k('s_waitcnt vmcnt(0)')
    if LAYER is None:
        k(f's_cmp_lg_u32 s{sL}, 0')
        k.skip_begin('s_cbranch_scc1')
        emit(k, cs13_build())
        k.skip_end()
    elif LAYER == 0:
        emit(k, cs13_build())
    k('s_barrier')
    emit(k, SCHED['P4_pre']())
    acc_of = [0, 1, 2, 0, 1, 2, 0]
    seq = [(i, ks) for ks in range(29) for i in range(2)] + [(i, ks) for i in range(2, 7) for ks in range(29)]
    start = {i: 58 + 29 * (i - 2) for i in range(2, 7)}
    endi = {0: 56, 1: 57}
    endi.update({i: start[i] + 28 for i in range(2, 7)})

    def wread(n):
        i, ks = seq[n]
        if ks == 28:
            return f'ds_read_b128 {v4(WB + 4 * (n % NB))}, v{vSCR} offset:{1024 + 1024 * i}'
        s = W13_SLOT[i]
        base = {0: vL16, 1: vL16, 2: vL2S, 3: vL2S, 4: vL4S}[s]
        off = (s % 2) * SLOT + ks * 1024 if s < 4 else ks * 1024
        return f'ds_read_b128 {v4(WB + 4 * (n % NB))}, v{base} offset:{off}'

    def mf(n):
        i, ks = seq[n]
        a = v16(ACC[acc_of[i]])
        b = v4(MB) if ks == 28 else v4(XB + 4 * ks)
        return f'{MF} {a}, {v4(WB + 4 * (n % NB))}, {b}, {"0" if ks == 0 else a}'
    for n in range(PF):
        k(wread(n))
    wait_flags(k, vF14, sT4, f's{sL1}')
    ts(k, 'P4.ready')
    xl = load_chunks([v4(XB + 4 * i) for i in range(28)], sT3, sT2, pol=' sc1')
    for i in range(4):
        emit(k, xl[i])
    emit(k, stats_loads(sST1, sTT, ET))
    for i in range(4, XDEPTH):
        emit(k, xl[i])

    def epi(i):
        a = ACC[acc_of[i]]
        out = []
        e0 = ET + 8 * (i % 2)
        for r in range(8):
            out.append(f'v_mul_f32 v{e0 + r}, v{vKE}, v{a + r}')
        for r in range(8):
            out.append(f'v_exp_f32 v{e0 + r}, v{e0 + r}')
            out.append(f'v_mul_f32 v{a + r}, v{a + r}, v{a + 8 + r}')
        for r in range(8):
            out.append(f'v_add_f32 v{e0 + r}, 1.0, v{e0 + r}')
        for r in range(8):
            out.append(f'v_rcp_f32 v{e0 + r}, v{e0 + r}')
            if r:
                out.append(f'v_mul_f32 v{a + r - 1}, v{a + r - 1}, v{e0 + r - 1}')
        out.append(f'v_mul_f32 v{a + 7}, v{a + 7}, v{e0 + 7}')
        o = 240 + 4 * (i % 2)
        for q in range(4):
            out.append(f'v_cvt_pk_bf16_f32 v{o + q}, v{a + 2 * q}, v{a + 2 * q + 1}')

        def st(k):
            if i == 4:
                k(f's_add_u32 s{sHOFF}, s{sHOFF}, 4096')
            st_ = f'buffer_store_dwordx4 {v4(o)}, v{vL16}, s[8:11], s{sHOFF} offen offset:{(i % 4) * 1024}'
            if MODE == 'fast' and LAYER is not None:
                k(st_ + (' sc1' if (LAYER == 0 and not HPLAIN) else ''))
            elif MODE == 'fast':
                La, Lb = k.newlabel('h0'), k.newlabel('h1')
                k(f's_cmp_eq_u32 s{sL}, 0')
                k(f's_cbranch_scc1 {La}')
                k(st_)
                k(f's_branch {Lb}')
                k.label(La, pad=False)
                k.vm_seq -= 1
                k.pos -= 2
                k(st_ + ' sc1')
                k.label(Lb, pad=False)
            else:
                publish(k, [st_])
            hs[i] = k.vm_mark()
        out.append(('call', st))
        return out
    hs, hd = {}, {}

    def mark(name):
        def fn(k):
            hd[name] = k.vm_mark()
        return ('call', fn)

    def bar(name, tsn):
        def fn(k):
            k.wait_vm(hd[name])
            k.barrier()
            ts(k, tsn)
        return ('call', fn)
    b1, b2 = start[3] - PF, start[5] - PF
    M = []
    for n in range(len(seq)):
        pre = []
        if n == b1:
            pre.append(bar('t34', 'P4.b1'))
        if n == b2:
            pre.append(bar('t56', 'P4.b2'))
        if n + PF < len(seq):
            pre.append(wread(n + PF))
        i, ks = seq[n]
        if n < 58 and i == 0 and ks + XDEPTH < 28:
            pre += xl[ks + XDEPTH]
        M.append(dict(pre=pre, m=mf(n), need=[v4(WB + 4 * (n % NB))], w=1 if (n < 56 and i == 0) else 0))
    nx = 2 * (28 - XDEPTH)
    fl = F(stats_math(ET) + mb_fill() + [f'v_mul_f32 v{vKE}, {f32bits(-LOG2E)}, v{vR}'], earliest=6, deadline=54)
    fl += F(lines(f"""
    s_lshl_b32 s{sHFL}, s{sTT}, 7
    s_lshl_b32 s{sT1}, s{sIDX}, 2
    s_add_u32 s{sHFL}, s{sHFL}, s{sT1}
    s_add_u32 s{sHFL}, s{sHFL}, {F_H}
    s_and_b32 s{sHPL}, s{sTT3}, -2
    s_lshl_b32 s{sHPL}, s{sHPL}, 7
    s_add_u32 s{sHPL}, s{sHPL}, {F_H}
    s_mul_i32 s{sT1}, s{sW}, {28 * 1024}
    s_add_u32 s{sT1}, s{sT1}, s{sHF}
    s_mul_i32 s{sHB}, s{sTT3}, {112 * 1024}
    s_add_u32 s{sHB}, s{sHB}, s{sT1}
    s_mul_i32 s{sHB + 1}, s{sTTo}, {112 * 1024}
    s_add_u32 s{sHB + 1}, s{sHB + 1}, s{sT1}
    """), earliest=6)
    fl.append((6, None, ('call', lambda k: (res_addr(k, sXADR, f's{sX2}'), st_addr(k, sSADR, f's{sST2}')))))
    c34 = pf_w13(3) + pf_w13(4)
    for j, c in enumerate(c34):
        fl += F(c, earliest=nx + (j * 3) // 2, deadline=b1 - 8)
    fl.append((0, b1 - 8, mark('t34')))
    fl += F(flat(SCHED['P4_p1']()), earliest=58)

    def interleave(ep, mem, e0, dl):
        out = []
        step = max(1, len(ep) // (len(mem) + 1)) if mem else 10 ** 9
        mem = list(mem)
        for j, x in enumerate(ep):
            out.append(x)
            if mem and j % step == step - 1:
                out += mem.pop(0)
        for m in mem:
            out += m
        return F(out, earliest=e0, deadline=dl)
    S4 = SCHED['P4_mid']()
    n4 = len(S4)
    fl += interleave(epi(0), [], endi[0] + 3, start[3])
    fl += interleave(epi(1), [], endi[1] + 3, start[4])
    c56 = pf_w13(5) + pf_w13(6) + [[mark('t56')]]
    fl += interleave(epi(2), c56, max(endi[2] + 3, b1 + 1), b2 - 10)
    fl += interleave(epi(3), S4[:n4 // 2], endi[3] + 3, start[5] + 8)
    if LAYER is None:
        fl += F(lines(f"""
        s_mul_i32 s{sE}, s{sL}, 3
        s_add_u32 s{sCNT}, s{sE}, 2
        s_add_u32 s{sE}, s{sE}, 1
        """), earliest=0)
    fl += interleave(epi(4)[:30], S4[n4 // 2:], endi[4] + 3, start[6])
    fl.append((start[5] + 16, start[6], ('call', lambda k: set_flag(k, sHFL, lvl(1), h=hs[3]))))
    fl += F(epi(4)[30:], earliest=0, deadline=start[6] + 4)
    fl += interleave(epi(5), [], endi[5] + 3, len(seq) - 8)
    M[start[6] + 8]['pre'] += p5_poll()
    for p in range(HDEPTH):
        n = start[6] + 18 + 2 * p
        M[n]['pre'] = M[n]['pre'] + ([p5_check(1)] if p == 0 else []) + p5_hload(p)
    rest = weave(k, M, fl, free=P4FREE)
    flush(k, rest)
    if LAYER is None:
        k(f's_add_u32 s{sDS}, s{sE}, 2')
    set_flag(k, sHFL, lvl(2), h=hs[5])
    ts(k, 'P4.mfma')
    phase_P5(k, Lfin, epi(6), hs)


def phase_G(k):
    A_X, A_Q, A_K, A_V, WB, RT = 32, 144, 160, 176, 192, 240
    NB, PF = 6, 4
    NQ1 = GNQ1
    k(f"""
    s_lshl_b32 s{sT4}, s{sTT}, 7
    s_add_u32 s{sT4}, s{sT4}, {F_XIN}
    s_mul_i32 s{sT3}, s{sTT}, {28 * 1024}
    s_add_u32 s{sT3}, s{sT3}, s{sX2}
    """)
    seq = []
    for ks in range(29):
        seq += [('K', ks), ('V', ks)]
        if ks < NQ1:
            seq.append(('Q', ks))
    n1 = len(seq)
    seq += [('Q', ks) for ks in range(NQ1, 29)]
    pidx = {'Q': 0, 'K': 1, 'V': 2}

    def wread(n):
        p, ks = seq[n]
        b = v4(WB + 4 * (n % NB))
        if ks == 28:
            return f'ds_read_b128 {b}, v{vSCR} offset:{9216 + 1024 * pidx[p]}'
        if p == 'V':
            return f'ds_read_b128 {b}, v{vL16b} offset:{ks * 1024}'
        return f'ds_read_b128 {b}, v{vL16} offset:{(pidx[p] * 28 + ks) * 1024}'

    def mf(n):
        p, ks = seq[n]
        b = v4(WB + 4 * (n % NB))
        x = v4(MB) if ks == 28 else v4(A_X + 4 * ks)
        a = {'Q': A_Q, 'K': A_K, 'V': A_V}[p]
        c = '0' if ks == 0 else v16(a)
        if p == 'V':
            return f'{MF} {v16(a)}, {x}, {b}, {c}'
        return f'{MF} {v16(a)}, {b}, {x}, {c}'
    for n in range(PF):
        k(wread(n))
    emit(k, SCHED['G_pre']())
    ts(k, 'G.start')
    wait_flags(k, vF14, sT4, '1')
    ts(k, 'G.ready')
    xl = load_chunks([v4(A_X + 4 * i) for i in range(28)], sT3, sT2, pol=' sc1')
    STT = 216
    for i in range(4):
        emit(k, xl[i])
    emit(k, stats_loads(sST2, sTT, STT))
    for i in range(4, XDEPTH):
        emit(k, xl[i])
    M = []
    for n in range(len(seq)):
        pre = [wread(n + PF)] if n + PF < len(seq) else []
        p, ks = seq[n]
        if p == 'K' and ks + XDEPTH < 28:
            pre = pre + xl[ks + XDEPTH]
        M.append(dict(pre=pre, m=mf(n), need=[v4(WB + 4 * (n % NB))], w=1 if p == 'K' else 0))
    gather = lines(f"""
    s_lshl_b32 s{sT0}, s{sW}, 8
    s_add_u32 s{sT0}, s{sT0}, {SCR}
    v_lshlrev_b32 v{vT0}, 2, v{vN}
    v_add_u32 v{vT0}, s{sT0}, v{vT0}
    ds_write_b32 v{vT0}, v{vR}
    v_lshlrev_b32 v{vT1}, 4, v{vHH}
    v_add_u32 v{vT1}, s{sT0}, v{vT1}
    """) + [f'ds_read_b128 {v4(RT + 4 * g)}, v{vT1} offset:{32 * g}' for g in range(4)]
    fl = F(stats_math(STT) + mb_fill() + gather, earliest=8, deadline=n1 - 6)
    fl += F(lines(f"""
    s_lshl_b32 s{sT0}, s{sIDX}, 6
    s_add_u32 s{sT0}, s{sT0}, s{sTT}
    s_lshl_b32 s{sT4}, s{sT0}, 2
    s_add_u32 s{sT4}, s{sT4}, {F_KV}
    s_lshl_b32 s{sT5}, s{sT0}, 12
    s_add_u32 s{sT5}, s{sT5}, s{sKV}
    """), earliest=8)
    ep = []
    for r in range(16):
        ep.append(f'v_mul_f32 v{A_K + r}, v{vR}, v{A_K + r}')
    for q in range(8):
        ep.append(f'v_cvt_pk_bf16_f32 v{KF + q}, v{A_K + 2 * q}, v{A_K + 2 * q + 1}')
    for i in range(2):
        ep.append(f'buffer_store_dwordx4 {v4(KF + 4 * i)}, v{vL16}, s[8:11], s{sT5} offen offset:{1024 * i} sc1')
    for r in range(16):
        ep.append(f'v_mul_f32 v{A_V + r}, v{RT + r}, v{A_V + r}')
    for q in range(8):
        ep.append(f'v_cvt_pk_bf16_f32 v{VF + q}, v{A_V + 2 * q}, v{A_V + 2 * q + 1}')
        ep.append(f'v_cndmask_b32 v{VF + q}, v{VF + q}, v{vONES}, s[{sN28}:{sN28 + 1}]')
    for i in range(2, 4):
        ep.append(f'buffer_store_dwordx4 {v4(KF + 4 * i)}, v{vL16}, s[8:11], s{sT5} offen offset:{1024 * i} sc1')
    hk = {}
    ep.append(('call', lambda k: hk.__setitem__('h', k.vm_mark())))
    for i in range(4):
        ep.append(f'ds_write_b128 v{vKVA}, {v4(KF + 4 * i)} offset:{8 * 4096 + 1024 * i}')
    ep += SCHED['G_q']()
    fl += F(ep, earliest=n1 + 1)
    fl.append((len(seq) - 2, None, ('call', lambda k: set_flag(k, sT4, '2', always_sc1=True, h=hk['h']))))
    flush(k, weave(k, M, fl, free=6))
    ts(k, 'G.mfma')
    k(f'v_mul_f32 v{vT0}, {f32bits(28 ** -0.5 * LOG2E)}, v{vR}')
    for r in range(16):
        k(f'v_mul_f32 v{A_Q + r}, v{vT0}, v{A_Q + r}')
    for q in range(8):
        k(f'v_cvt_pk_bf16_f32 v{QF + q}, v{A_Q + 2 * q}, v{A_Q + 2 * q + 1}')
    k(f'v_mov_b32 v{vT1}, 0x3f80')
    k(f'v_cndmask_b32 v{QF + 6}, v{QF + 6}, v{vT1}, s[{sHI}:{sHI + 1}]')
    ts(k, 'G.pub')
    k.barrier()


F_DUTY = 3 * SLOT
F_SCR = SCR
F_CSX = LDS_BYTES - 1536
F_XR = F_DUTY + 29184
OOBS = 0x20000000


def _exper():
    if '-nodutyslow' in sys.argv:
        return f's_bitcmp1_b32 0xAA54, s{sIDX}\n    s_cbranch_scc1 F_none'
    if '-noduty' in sys.argv:
        return 's_branch F_none'
    return ''


def front(k):
    EXPER = _exper()
    T0, T1, T2, T3, T4, T5 = sT0, sT1, sT2, sT3, sT4, sT5
    sKIND, sDST, sCSD, sA1, sWOFF, sPIT, sSRC, sXRB = 88, 89, 90, 91, 92, 93, 94, 95
    sPAD, sHP, sXT, sIMG, sXS, sZM, sSA, sSB, sD8 = 72, 74, 77, 78, 79, 80, 82, 83, 84
    vTR, vTR2, vXO, vDT, vS1, vS2, vCSK, vCSV, vCSQ, vIMG, vOQ, vOQ2, vDS = 5, 6, 7, 9, 10, 14, 15, 16, 17, 19, 26, 27, 144
    X, AQ, AK, AV, WB, RT = 32, 144, 160, 176, 192, 240
    NB, PF = 6, 4
    XA = 240
    k(f"""
    v_and_b32 v{vT0}, 3, v{vLANE}
    v_lshrrev_b32 v{vT1}, 2, v{vLANE}
    s_lshl_b32 s{T0}, s{sRB}, 2
    v_add_u32 v{vT2}, s{T0}, v{vT0}
    v_lshlrev_b32 v{vT3}, 7, v{vT2}
    s_lshl_b32 s{T1}, s{sIDX}, 2
    s_add_u32 s{T1}, s{T1}, {F_O}
    v_add_u32 v{vT3}, s{T1}, v{vT3}                  ; F_O
    v_and_b32 v5, 1, v{vT1}
    v_lshl_add_u32 v{vT3}, v5, 14, v{vT3}            ; kind 1: F_H = F_O + 16384
    s_and_b32 s{T0}, s{sTT3}, -2
    s_and_b32 s{T1}, s{sFT}, -2
    v_lshrrev_b32 v6, 1, v{vT0}
    v_add_u32 v6, s{T0}, v6                          ; tt3
    v_and_b32 v7, 1, v{vT0}
    v_add_u32 v7, s{T1}, v7                          ; ft
    v_lshlrev_b32 v6, 7, v6
    v_lshl_add_u32 v6, v7, 2, v6
    v_add_u32 v6, {F_XIN}, v6
    v_lshl_add_u32 v6, v5, 14, v6
    v_cmp_le_u32 vcc, 2, v{vT1}
    s_lshl_b32 s{T0}, s{sIDX}, 8
    s_add_u32 s{T0}, s{T0}, {F_KV}
    v_cndmask_b32 v{vT3}, v{vT3}, v6, vcc
    v_lshlrev_b32 v6, 2, v{vT2}
    v_add_u32 v6, s{T0}, v6
    v_cmp_le_u32 vcc, 4, v{vT1}
    s_lshl_b32 s{T0}, s2, 7
    s_add_u32 s{T0}, s{T0}, {F_PK}
    v_cndmask_b32 v{vT3}, v{vT3}, v6, vcc
    v_mov_b32 v6, s{T0}
    v_cmp_le_u32 vcc, 5, v{vT1}
    s_cmp_eq_u32 s{sW}, 0
    s_cselect_b32 s{T0}, 0, {OOBS}
    v_cndmask_b32 v{vT3}, v{vT3}, v6, vcc
    s_mov_b64 exec, 0x1fffff
    buffer_store_dword v{vZERO}, v{vT3}, s[8:11], s{T0} offen sc1
    s_mov_b64 exec, -1
    """)
    h_zero = k.vm_mark()
    assert F_H - F_O == 16384 and F_X1 - F_XIN == 16384
    k(f"""
    s_mov_b32 s64, s74
    s_mov_b32 s65, s75
    s_mov_b32 s66, {448 * 1344 * 2}
    s_mov_b32 s67, 0x00020000
    s_mov_b32 s71, 0x00020000
    """)
    Lw2, Lwo, Lnone, Ldec = 'F_w2', 'F_wo', 'F_none', 'F_dec'
    k(f"""
    s_lshr_b32 s{T4}, s{sW}, 1
    s_and_b32 s{T5}, s{sW}, 1
    s_cmp_ge_u32 s2, 182
    s_cbranch_scc1 {Lnone}
    {EXPER}
    s_cmp_ge_u32 s2, 168
    s_cbranch_scc1 {Lwo}
    s_cmp_ge_u32 s2, 112
    s_cbranch_scc1 {Lw2}
    s_lshr_b32 s{T0}, s2, 2
    s_and_b32 s{T1}, s2, 3
    s_cmp_eq_u32 s{T4}, 1
    s_cselect_b32 s68, s82, s80
    s_cselect_b32 s69, s83, s81
    s_mov_b32 s70, {448 * 1792 * 2}
    s_mov_b32 s{sKIND}, 0
    s_mov_b32 s{sPIT}, 3584
    s_mul_i32 s{sSRC}, s{T1}, 112
    s_mul_i32 s{T2}, s{T5}, 56
    s_add_u32 s{sSRC}, s{sSRC}, s{T2}
    s_mul_i32 s{sSRC}, s{sSRC}, 3584
    s_lshl_b32 s{T2}, s{T0}, 7
    s_add_u32 s{sSRC}, s{sSRC}, s{T2}
    s_lshl_b32 s{T2}, s{T0}, 2
    s_add_u32 s{T2}, s{T2}, s{sW}
    s_mul_i32 s{sDST}, s{T2}, 28
    s_mul_i32 s{T0}, s{T1}, 7
    s_add_u32 s{sDST}, s{sDST}, s{T0}
    s_lshl_b32 s{sDST}, s{sDST}, 10
    s_add_u32 s{sDST}, s{sDST}, {W13_P}
    s_mul_i32 s{sCSD}, s{T1}, 112
    s_add_u32 s{sCSD}, s{sCSD}, s{T2}
    s_lshl_b32 s{sCSD}, s{sCSD}, 7
    s_add_u32 s{sCSD}, s{sCSD}, {CSP_13}
    s_mov_b32 s{sA1}, 14336
    s_lshl_b32 s{sWOFF}, s{sW}, 5
    s_branch {Ldec}
    """)
    k.label(Lw2, pad=False)
    k(f"""
    s_sub_u32 s{T0}, s2, 112
    s_and_b32 s{T1}, s{T0}, 7
    s_lshr_b32 s{T0}, s{T0}, 3
    s_mov_b32 s68, s84
    s_mov_b32 s69, s85
    s_mov_b32 s70, {1792 * 448 * 2}
    s_mov_b32 s{sKIND}, 1
    s_mov_b32 s{sPIT}, 896
    s_mul_i32 s{sSRC}, s{T1}, 224
    s_mul_i32 s{T2}, s{sW}, 56
    s_add_u32 s{sSRC}, s{sSRC}, s{T2}
    s_mul_i32 s{sSRC}, s{sSRC}, 896
    s_lshl_b32 s{T2}, s{T0}, 7
    s_add_u32 s{sSRC}, s{sSRC}, s{T2}
    s_lshl_b32 s{T2}, s{T0}, 1
    s_add_u32 s{T2}, s{T2}, s{T5}
    s_mul_i32 s{sDST}, s{T2}, 112
    s_mul_i32 s{T0}, s{T1}, 14
    s_add_u32 s{sDST}, s{sDST}, s{T0}
    s_mul_i32 s{T0}, s{T4}, 7
    s_add_u32 s{sDST}, s{sDST}, s{T0}
    s_lshl_b32 s{sDST}, s{sDST}, 10
    s_add_u32 s{sDST}, s{sDST}, {W2_P}
    s_mov_b32 s{sCSD}, 0
    s_mov_b32 s{sA1}, 32
    s_mul_i32 s{sWOFF}, s{T4}, {112 * 128}
    s_lshl_b32 s{T0}, s{T5}, 6
    s_add_u32 s{sWOFF}, s{sWOFF}, s{T0}
    s_branch {Ldec}
    """)
    k.label(Lwo, pad=False)
    k(f"""
    s_sub_u32 s{T0}, s2, 168
    s_and_b32 s{T1}, s{T0}, 1
    s_lshr_b32 s{T0}, s{T0}, 1
    s_mov_b32 s68, s76
    s_mov_b32 s69, s77
    s_mov_b32 s70, {448 * 448 * 2}
    s_mov_b32 s{sKIND}, 2
    s_mov_b32 s{sPIT}, 896
    s_mul_i32 s{sSRC}, s{T1}, 224
    s_mul_i32 s{T2}, s{sW}, 56
    s_add_u32 s{sSRC}, s{sSRC}, s{T2}
    s_mul_i32 s{sSRC}, s{sSRC}, 896
    s_lshl_b32 s{T2}, s{T0}, 7
    s_add_u32 s{sSRC}, s{sSRC}, s{T2}
    s_lshl_b32 s{T2}, s{T0}, 1
    s_add_u32 s{T2}, s{T2}, s{T5}
    s_lshl_b32 s{sDST}, s{T2}, 5
    s_lshl_b32 s{T0}, s{T1}, 4
    s_add_u32 s{sDST}, s{sDST}, s{T0}
    s_lshl_b32 s{T0}, s{T4}, 3
    s_add_u32 s{sDST}, s{sDST}, s{T0}
    s_lshl_b32 s{sDST}, s{sDST}, 10
    s_add_u32 s{sDST}, s{sDST}, {WO_P}
    s_mov_b32 s{sCSD}, 0
    s_mov_b32 s{sA1}, 32
    s_mul_i32 s{sWOFF}, s{T4}, {112 * 128}
    s_lshl_b32 s{T0}, s{T5}, 6
    s_add_u32 s{sWOFF}, s{sWOFF}, s{T0}
    s_branch {Ldec}
    """)
    k.label(Lnone, pad=False)
    k(f"""
    s_mov_b32 s68, s76
    s_mov_b32 s69, s77
    s_mov_b32 s70, 0
    s_mov_b32 s{sKIND}, 3
    s_mov_b32 s{sPIT}, 0
    s_mov_b32 s{sSRC}, 0
    s_mov_b32 s{sDST}, 0
    s_mov_b32 s{sCSD}, 0
    s_mov_b32 s{sA1}, 0
    s_mov_b32 s{sWOFF}, 0
    """)
    k.label(Ldec, pad=False)
    k(f"""
    v_lshrrev_b32 v{vT1}, 3, v{vLANE}
    v_mul_lo_u32 v{vDS}, v{vT1}, s{sPIT}
    v_and_b32 v{vT2}, 7, v{vLANE}
    v_lshl_add_u32 v{vDS}, v{vT2}, 4, v{vDS}
    s_lshl_b32 s{sPIT}, s{sPIT}, 3
    v_xor_b32 v{vT2}, v{vT2}, v{vT1}
    v_mul_u32_u24 v{vXO}, 896, v{vT1}
    v_lshl_add_u32 v{vXO}, v{vT2}, 4, v{vXO}
    v_lshrrev_b32 v{vIMG}, 2, v{vLANE}
    v_mul_u32_u24 v{vIMG}, 2688, v{vIMG}
    v_and_b32 v{vT1}, 3, v{vLANE}
    v_lshl_add_u32 v{vIMG}, v{vT1}, 4, v{vIMG}
    s_mul_i32 s{sIMG}, s{sW}, {7 * 16 * 2688}
    s_mul_i32 s{T2}, s{sIDX}, 56
    s_add_u32 s{sIMG}, s{sIMG}, s{T2}
    s_mul_i32 s{sXS}, s{sTT}, {32 * 896}
    """)
    hx, himg = {}, {}
    def xslot(c):
        return [0, 1, 2, 0, 1, 2, 1][c]

    def xbase(c):
        return [(sLW, 0), (sXRB, 0), (sXRB, 4096)][xslot(c)]

    def duty_dma():
        for i in range(7):
            k(f's_add_u32 m0, s{sLW}, {F_DUTY + i * 1024}')
            k(f'buffer_load_dwordx4 v{vDS}, s[68:71], s{sSRC} offen lds')
            k(f's_add_u32 s{sSRC}, s{sSRC}, s{sPIT}')

    def xdma(c):
        b, o = xbase(c)
        for i in range(4):
            k(f's_add_u32 m0, s{b}, {o + i * 1024}')
            k(f's_add_u32 s{sXT}, s{sXS}, {i * 8 * 896 + c * 128}')
            k(f'buffer_load_dwordx4 v{vXO}, s[20:23], s{sXT} offen lds')
        hx[c] = k.vm_mark()

    def img_dma(p):
        for i in range(7):
            k(f's_add_u32 m0, s{sLW}, {p * SLOT + i * 1024}')
            k(f's_add_u32 s{sXT}, s{sIMG}, {i * 16 * 2688 + p * 896}')
            k(f'buffer_load_dwordx4 v{vIMG}, s[64:67], s{sXT} offen lds')
        himg[p] = k.vm_mark()
    k(f"""
    s_lshl_b32 s{sXRB}, s{sW}, 13
    s_add_u32 s{sXRB}, s{sXRB}, {F_XR}
    """)
    if CODEPF:
        k(f"""
        s_getpc_b64 s[{sTS}:{sTS + 1}]
        s_lshr_b32 s{T0}, s2, 3
        s_lshl_b32 s{T0}, s{T0}, 2
        s_add_u32 s{T0}, s{T0}, s{sW}
        s_lshl_b32 s{T0}, s{T0}, 9
        v_min_u32 v{vT1}, 3, v{vLANE}
        v_lshlrev_b32 v{vT1}, 7, v{vT1}
        v_add_u32 v{vT1}, s{T0}, v{vT1}
        v_min_u32 v{vT1}, {CODEPF}, v{vT1}
        global_load_dword v{vDUM}, v{vT1}, s[{sTS}:{sTS + 1}]
        """)
    if WARM:
        k(f"""
        s_lshr_b32 s{T0}, s2, 3
        s_lshl_b32 s{T0}, s{T0}, 2
        s_add_u32 s{T0}, s{T0}, s{sW}
        v_lshlrev_b32 v{vT1}, 7, v{vLANE}
        s_mul_i32 s{T2}, s{T0}, {74 * 128}
        buffer_load_dword v{vDUM}, v{vT1}, s[64:67], s{T2} offen
        v_min_u32 v{vT2}, 9, v{vLANE}
        v_lshlrev_b32 v{vT2}, 7, v{vT2}
        s_add_u32 s{T2}, s{T2}, 8192
        buffer_load_dword v{vDUM}, v{vT2}, s[64:67], s{T2} offen
        v_min_u32 v{vT2}, 13, v{vLANE}
        v_lshlrev_b32 v{vT2}, 7, v{vT2}
        s_lshr_b32 s{T2}, s{sRB}, 1
        s_mul_i32 s{T2}, s{T2}, {256 * 896}
        s_mul_i32 s{T0}, s{T0}, 1792
        s_add_u32 s{T2}, s{T2}, s{T0}
        buffer_load_dword v{vDUM}, v{vT2}, s[20:23], s{T2} offen
        """)
    set_layer(k, 0)
    if PROPOS == 0:
        emit(k, [x.replace(f'v{vTA},', f'v{vT3},').replace(f'v{vTA}', f'v{vT3}') for x in SCHED['PRO']()])
    if DUTYPOS == 0:
        duty_dma()
    xdma(0)
    xdma(1)
    xdma(2)
    img_dma(1)
    k.wait_vm(h_zero)
    signal(k)
    if DUTYPOS == 1:
        duty_dma()
    ts(k, 'F.issued')
    k(f"""
    v_lshlrev_b32 v{vT1}, 3, v{vHH}
    v_bfe_u32 v{vT2}, v{vLANE}, 2, 2
    v_add_u32 v{vT1}, v{vT1}, v{vT2}
    v_and_b32 v{vT2}, 1, v{vLANE}
    v_lshlrev_b32 v{vT2}, 4, v{vT2}
    v_bfe_u32 v{vT3}, v{vLANE}, 1, 1
    v_lshl_or_b32 v{vT2}, v{vT3}, 3, v{vT2}
    v_bfe_u32 v{vT3}, v{vLANE}, 4, 1
    v_lshl_add_u32 v{vTR}, v{vT1}, 6, v{vT2}
    v_lshl_add_u32 v{vTR}, v{vT3}, 5, v{vTR}
    v_add_u32 v{vTR2}, {2 * SLOT}, v{vTR}
    v_lshl_add_u32 v{vDT}, v{vT1}, 7, v{vT2}
    v_mad_u32_u24 v{vDT}, v{vT3}, s{sA1}, v{vDT}
    s_add_u32 s{T0}, s{sWOFF}, {F_DUTY}
    v_add_u32 v{vDT}, s{T0}, v{vDT}
    v_add_u32 v{vOQ}, s{sLW}, v{vTR}
    v_add_u32 v{vOQ2}, s{sLW}, v{vTR2}
    v_mov_b32 v{vS1}, 0
    v_mov_b32 v{vS2}, 0
    v_mov_b32 v{vCSK}, 0
    v_mov_b32 v{vCSV}, 0
    v_mov_b32 v{vCSQ}, 0
    v_cmp_le_u32 s[{sPAD}:{sPAD + 1}], 28, v{vN}
    s_sub_u32 s{T0}, s{sXRB}, s{sLW}
    """)
    for i in range(4):
        k(f"""
        v_add_u32 v{vT1}, {2 * i}, v{vHH}
        v_and_b32 v{vT2}, 7, v{vN}
        v_xor_b32 v{vT1}, v{vT1}, v{vT2}
        v_lshlrev_b32 v{vT1}, 4, v{vT1}
        v_lshl_add_u32 v{XA + i}, v{vN}, 7, v{vT1}
        v_add_u32 v{XA + i}, s{sLW}, v{XA + i}
        v_add_u32 v{XA + 4 + i}, s{T0}, v{XA + i}
        """)
    k(f's_or_b64 s[{sHP}:{sHP + 1}], s[{sHI}:{sHI + 1}], s[{sPAD}:{sPAD + 1}]')
    emit(k, setup2_salu())

    k(f"""
    s_movk_i32 s{sSA}, 2048
    s_cmp_eq_u32 s{sKIND}, 2
    s_cselect_b32 s{sSA}, 1792, s{sSA}
    s_cselect_b32 s{sSB}, 256, 0
    s_mov_b32 s{sZM}, 0
    s_cselect_b32 s{sZM + 1}, -1, 0
    s_add_u32 s{T0}, s{sDST}, 4096
    s_cmp_eq_u32 s{sKIND}, 2
    s_cselect_b32 s{sD8}, s{T0}, {OOBS}
    s_cmp_eq_u32 s{sKIND}, 0
    s_cselect_b32 s{sCSD}, s{sCSD}, {OOBS}
    s_cmp_eq_u32 s{sKIND}, 3
    s_cselect_b32 s{sDST}, {OOBS}, s{sDST}
    """)

    def x_rd(c):
        k.wait_vm(hx[c])
        for i in range(4):
            a, o = (XA + i, 0) if xslot(c) == 0 else (XA + 4 + i, 4096 * (xslot(c) - 1))
            k(f'ds_read_b128 {v4(X + 16 * c + 4 * i)}, v{a} offset:{o}')

    def x_st(c):
        emit(k, stats_ops(X + 16 * c, 16, vS1, vS2, vONES))

    def own_quarter(p, acc, buf):
        k.wait_vm(himg[p])
        base = vOQ if p < 2 else vOQ2
        for i in range(7):
            off = (p * SLOT if p < 2 else 0) + i * 1024
            k(f'ds_read_b64_tr_b16 {v2(buf + 4 * i)}, v{base} offset:{off}')
            k(f'ds_read_b64_tr_b16 {v2(buf + 4 * i + 2)}, v{base} offset:{off + 256}')
        for i in range(28):
            k(f'v_dot2_f32_bf16 v{acc}, v{buf + i}, v{vONES}, v{acc}')
        k(f"""
        v_mov_b32 v{vT0}, v{acc}
        v_permlane32_swap_b32 v{acc}, v{vT0}
        v_add_f32 v{acc}, v{acc}, v{vT0}
        s_mul_i32 s{T0}, s{sW}, 384
        s_add_u32 s{T0}, s{T0}, {F_CSX}
        v_lshlrev_b32 v{vT3}, 2, v{vN}
        v_add_u32 v{vT2}, s{T0}, v{vT3}
        ds_write_b32 v{vT2}, v{acc} offset:{128 * p}
        """)
    for c in range(3):
        x_rd(c)
    k.wait_lg()
    for c in range(3, 6):
        xdma(c)
    img_dma(2)
    ts(k, 'F.iss2')
    for c in range(3):
        x_st(c)
    own_quarter(1, vCSK, WB)
    x_rd(3)
    x_rd(4)
    k.wait_lg()
    xdma(6)
    if DUTYPOS == 2:
        duty_dma()
    ts(k, 'F.iss3')
    x_rd(5)
    for c in range(3, 6):
        x_st(c)
    own_quarter(2, vCSV, WB)
    x_rd(6)
    x_st(6)
    emit(k, ln_math(vS1, vS2, vT0, vT1, vM, vR) + mb_fill())
    k(f'v_lshlrev_b32 v{vT3}, 2, v{vN}')
    k(f'v_add_u32 v{vS1}, {F_CSX}, v{vT3}')
    gather = lines(f"""
    s_lshl_b32 s{T0}, s{sW}, 8
    s_add_u32 s{T0}, s{T0}, {F_SCR}
    v_add_u32 v{vT1}, s{T0}, v{vT3}
    ds_write_b32 v{vT1}, v{vR}
    v_lshlrev_b32 v{vT1}, 4, v{vHH}
    v_add_u32 v{vT1}, s{T0}, v{vT1}
    """) + [f'ds_read_b128 {v4(RT + 4 * g)}, v{vT1} offset:{32 * g}' for g in range(4)]
    ts(k, 'F.pre')
    k.barrier()
    ts(k, 'F.barA')
    pidx = {'Q': 0, 'K': 1, 'V': 2}

    def gemm(seq, CFR):
        def wread(n):
            p, ks = seq[n]
            b = WB + 4 * (n % NB)
            base, off = (vTR2, ks * 1024) if p == 'V' else (vTR, pidx[p] * SLOT + ks * 1024)
            return [f'ds_read_b64_tr_b16 {v2(b)}, v{base} offset:{off}',
                    f'ds_read_b64_tr_b16 {v2(b + 2)}, v{base} offset:{off + 256}']
        M = []
        for n, (p, ks) in enumerate(seq):
            b = v4(WB + 4 * (n % NB))
            x = v4(X + 4 * ks)
            a = {'Q': AQ, 'K': AK, 'V': AV}[p]
            c = '0' if ks == 0 else v16(a)
            m = f'{MF} {v16(a)}, {x}, {b}, {c}' if p == 'V' else f'{MF} {v16(a)}, {b}, {x}, {c}'
            M.append(dict(pre=wread(n + PF) if n + PF < len(seq) else [], m=m, need=[b]))
        for p, cf in CFR:
            a = {'Q': AQ, 'K': AK, 'V': AV}[p]
            M.append(dict(m=f'{MF} {v16(a)}, {v4(MB)}, {v4(cf)}, {v16(a)}' if p == 'V' else f'{MF} {v16(a)}, {v4(cf)}, {v4(MB)}, {v16(a)}'))
        for n in range(PF):
            emit(k, wread(n))
        return M

    def cs_frag(p, cf, t):
        fl = [f'ds_read_b32 v{t + w}, v{vS1} offset:{w * 384 + p * 128}' for w in range(4)]
        fl += ['s_nop 0'] * 6
        fl += [f'v_add_f32 v{t}, v{t}, v{t + 1}', f'v_add_f32 v{t + 2}, v{t + 2}, v{t + 3}', f'v_add_f32 v{t}, v{t}, v{t + 2}',
               f'v_cndmask_b32 v{t}, v{t}, 0, s[{sHP}:{sHP + 1}]']
        fl += split3(t, cf, cf + 1, vT0, vT2)
        fl += [f'v_mov_b32 v{cf + 2}, 0', f'v_mov_b32 v{cf + 3}, 0',
               ('call', lambda k: cs_store(k, cf))]
        return fl

    def cs_store(k, cf):
        k(f'ds_write_b128 v{vS2}, {v4(cf)}')
        k(f'v_add_u32 v{vS2}, 1024, v{vS2}')
    k(f'v_add_u32 v{vS2}, {SCR_CSQ + 1024}, v{vL16}')
    M = gemm([(p, ks) for ks in range(28) for p in 'KV'], [('K', QF), ('V', QF + 4)])
    fl = F(gather + cs_frag(1, QF, KF) + cs_frag(2, QF + 4, KF), earliest=1, deadline=54)
    late = []
    for i in range(7):
        late.append([f's_add_u32 m0, s{sLW}, {i * 1024}', f's_add_u32 s{sXT}, s{sIMG}, {i * 16 * 2688}',
                     f'buffer_load_dwordx4 v{vIMG}, s[64:67], s{sXT} offen lds'])
    late[-1].append(('call', lambda k: himg.__setitem__(0, k.vm_mark())))
    for j, c in enumerate(late):
        n = 1 + 5 * j
        M[n]['pre'] = M[n]['pre'] + c
    fl += F(lines(f"""
    s_lshl_b32 s{T0}, s{sIDX}, 6
    s_add_u32 s{T0}, s{T0}, s{sTT}
    s_lshl_b32 s{T4}, s{T0}, 2
    s_add_u32 s{T4}, s{T4}, {F_KV}
    s_lshl_b32 s{T5}, s{T0}, 12
    s_add_u32 s{T5}, s{T5}, s{sKV}
    """), earliest=2)
    flush(k, weave(k, M, fl, free=6))
    ts(k, 'F.kv')
    for r in range(16):
        k(f'v_mul_f32 v{AK + r}, v{vR}, v{AK + r}')
    for q in range(8):
        k(f'v_cvt_pk_bf16_f32 v{KF + q}, v{AK + 2 * q}, v{AK + 2 * q + 1}')
    k(f'v_cndmask_b32 v{KF + 6}, v{KF + 6}, 0, s[{sHI}:{sHI + 1}]')
    k(f'v_cndmask_b32 v{KF + 7}, v{KF + 7}, 0, s[{sHI}:{sHI + 1}]')
    for i in range(2):
        k(f'buffer_store_dwordx4 {v4(KF + 4 * i)}, v{vL16}, s[8:11], s{T5} offen offset:{1024 * i} sc1')
    for r in range(16):
        k(f'v_mul_f32 v{AV + r}, v{RT + r}, v{AV + r}')
    for q in range(8):
        k(f'v_cvt_pk_bf16_f32 v{VF + q}, v{AV + 2 * q}, v{AV + 2 * q + 1}')
        k(f'v_cndmask_b32 v{VF + q}, v{VF + q}, v{vONES}, s[{sN28}:{sN28 + 1}]')
    for i in range(2, 4):
        k(f'buffer_store_dwordx4 {v4(KF + 4 * i)}, v{vL16}, s[8:11], s{T5} offen offset:{1024 * i} sc1')
    hkv = k.vm_mark()
    for i in range(4):
        k(f'ds_write_b128 v{vKVA}, {v4(KF + 4 * i)} offset:{8 * 4096 + 1024 * i}')
    own_quarter(0, vCSQ, AK)
    set_flag(k, T4, '1', always_sc1=True, h=hkv)
    if PROPOS == 1:
        emit(k, SCHED['PRO']())
    ts(k, 'F.kvpub')
    k.barrier()
    k(f"""
    v_and_b32 v{vXO}, 15, v{vLANE}
    v_lshlrev_b32 v{vXO}, 4, v{vXO}
    buffer_load_dword v{vCSK}, v{vXO}, s[16:19], 0 offen sc1
    """)
    DB = AK
    for i in range(8):
        k(f'ds_read_b64_tr_b16 {v2(DB + 4 * i)}, v{vDT}')
        k(f'ds_read_b64_tr_b16 {v2(DB + 4 * i + 2)}, v{vDT} offset:512')
        k(f's_{"add" if i % 2 == 0 else "sub"}_u32 s{T0}, s{sSA}, s{sSB}')
        k(f'v_add_u32 v{vDT}, s{T0}, v{vDT}')
    k(f'v_mov_b32 v{vT1}, 0')
    dst = []
    for i in range(8):
        if i & 1:
            k(f'v_cndmask_b32 v{DB + 4 * i + 2}, v{DB + 4 * i + 2}, 0, s[{sZM}:{sZM + 1}]')
            k(f'v_cndmask_b32 v{DB + 4 * i + 3}, v{DB + 4 * i + 3}, 0, s[{sZM}:{sZM + 1}]')
        dst.append(([f's_add_u32 s{sDST}, s{sDST}, 4096'] if i == 4 else []) +
                   [f'buffer_store_dwordx4 {v4(DB + 4 * i)}, v{vL16}, s[8:11], s{sD8 if i == 7 else sDST} offen offset:{(i % 4) * 1024} sc1'])
    emit(k, dst[0] + dst[1])
    for i in range(28):
        k(f'v_dot2_f32_bf16 v{vT1}, v{DB + i}, v{vONES}, v{vT1}')
    k(f"""
    v_mov_b32 v{vT0}, v{vT1}
    v_permlane32_swap_b32 v{vT1}, v{vT0}
    v_add_f32 v{vT1}, v{vT1}, v{vT0}
    v_lshlrev_b32 v{vT3}, 2, v{vN}
    buffer_store_dword v{vT1}, v{vT3}, s[8:11], s{sCSD} offen sc1
    """)
    ts(k, 'F.duty')
    SH = RT + 8
    share = lines(f"""
    s_cmp_ge_u32 s{sRB}, 7
    s_cselect_b32 s{T0}, 1, 0
    s_cmp_ge_u32 s{sRB}, 14
    s_cselect_b32 s{T0}, 2, s{T0}
    s_mul_i32 s{T1}, s{T0}, 7
    s_sub_u32 s{T1}, s{sRB}, s{T1}
    s_mul_i32 s{T0}, s{T0}, {SLOT}
    s_lshl_b32 s{T1}, s{T1}, 10
    s_add_u32 s{T0}, s{T0}, s{T1}
    v_add_u32 v{vT1}, s{T0}, v{vOQ}
    ds_read_b64_tr_b16 {v2(SH)}, v{vT1}
    ds_read_b64_tr_b16 {v2(SH + 2)}, v{vT1} offset:256
    s_mul_i32 s{T2}, s{sIDX}, {84 * 1024}
    s_add_u32 s{T2}, s{T2}, s{sLW}
    s_add_u32 s{T2}, s{T2}, {WQKV_P}
    s_add_u32 s{T3}, s{T2}, s{T0}
    s_min_u32 s{T1}, s{sRB}, 4
    s_lshl_b32 s{T1}, s{T1}, 10
    s_add_u32 s{T1}, s{T1}, {2 * SLOT + 2048}
    v_add_u32 v{vT1}, s{T1}, v{vOQ}
    ds_read_b64_tr_b16 {v2(SH + 4)}, v{vT1}
    ds_read_b64_tr_b16 {v2(SH + 6)}, v{vT1} offset:256
    s_add_u32 s{T2}, s{T2}, s{T1}
    s_cmp_gt_u32 s{sRB}, 4
    s_cselect_b32 s{T2}, {OOBS}, s{T2}
    """) + ['s_nop 0'] * 2
    share += [f'v_cndmask_b32 v{SH + q}, v{SH + q}, 0, s[{sPAD}:{sPAD + 1}]' for q in range(8)]
    share += [f'buffer_store_dwordx4 {v4(SH)}, v{vL16}, s[8:11], s{T3} offen sc1',
              f'buffer_store_dwordx4 {v4(SH + 4)}, v{vL16}, s[8:11], s{T2} offen sc1']
    k(f'v_add_u32 v{vS2}, {SCR_CSQ}, v{vL16}')
    M = gemm([('Q', ks) for ks in range(28)], [('Q', RT)])
    for i in range(2, 8):
        M[3 * (i - 2) + 1]['pre'] = M[3 * (i - 2) + 1]['pre'] + dst[i]
    fl = F(cs_frag(0, RT, RT + 4), earliest=1, deadline=26) + F(share, earliest=1)
    flush(k, weave(k, M, fl, free=6))
    k(f'v_mov_b32 v{vFL}, v{vCSK}')
    emit(k, setup2_valu())
    k(f'v_mul_f32 v{vT0}, {f32bits(28 ** -0.5 * LOG2E)}, v{vR}')
    for r in range(16):
        k(f'v_mul_f32 v{AQ + r}, v{vT0}, v{AQ + r}')
    for q in range(8):
        k(f'v_cvt_pk_bf16_f32 v{QF + q}, v{AQ + 2 * q}, v{AQ + 2 * q + 1}')
    k(f"""
    v_mov_b32 v{vT1}, 0x3f80
    v_cndmask_b32 v{QF + 6}, v{QF + 6}, v{vT1}, s[{sHI}:{sHI + 1}]
    v_cndmask_b32 v{QF + 7}, v{QF + 7}, 0, s[{sHI}:{sHI + 1}]
    """)
    ts(k, 'F.q')
    global_check(k, pre=True)
    ts(k, 'F.chk')
    k.barrier()
    k(f's_cmp_lg_u32 s{sW}, 0')
    k.skip_begin('s_cbranch_scc1')
    k(f"""
    s_lshl_b32 s{T0}, s2, 7
    s_add_u32 s{T0}, s{T0}, {F_PK}
    v_mov_b32 v{vFL}, 1
    s_mov_b64 exec, 1
    buffer_store_dword v{vFL}, v{vZERO}, s[8:11], s{T0} offen sc1
    s_mov_b64 exec, -1
    """)
    k.skip_end()
    k(f's_cmp_eq_u32 s{sFAST}, 0')
    k('s_cbranch_scc1 SLOW_entry')


CSL = 112


def cs13_build():
    c = CSL
    out = [f'v_add_f32 v{c}, v{c}, v{c + 1}', f'v_add_f32 v{c + 2}, v{c + 2}, v{c + 3}', f'v_add_f32 v{c}, v{c}, v{c + 2}']
    out += split3(c, c + 4, c + 5, vT1, vT2)
    out += [f'v_mov_b32 v{c + i}, 0' for i in range(6, 12)]
    out += lines(f"""
    s_lshl_b32 s{sT0}, s{sW}, 10
    s_add_u32 s{sT0}, s{sT0}, {SCR_CS13}
    v_lshlrev_b32 v{vT0}, 4, v{vN}
    v_lshl_add_u32 v{vT0}, v{vHH}, 12, v{vT0}
    v_add_u32 v{vT0}, s{sT0}, v{vT0}
    ds_write_b128 v{vT0}, {v4(c + 4)}
    ds_write_b128 v{vT0}, {v4(c + 8)} offset:512
    s_waitcnt lgkmcnt(0)
    """)
    return out


SCHED = {}


def sched_a(v='a'):
    w2 = pf_w2()
    none = lambda: []
    SCHED.update({
        'PRO': lambda: t_X() + t_O(),
        'P3_pre': none,
        'P3_mm': lambda: [L1(t_H())] + [L0(g) for g in w2[:4]],
        'P3_idle': lambda: ['s_barrier'] + [L1(t_H())],
        'P5_idle': none,
        'P4_pre': none, 'P4_p1': none,
        'P4_mid': lambda: [[L0(g)] for g in w2[4:]] + [[L0(touch(2, sSADR))]],
        'G_pre': lambda: t_O(), 'G_q': none,
    })
    if v in 'ef':
        ch = (load_chunks([a4(4 * i) for i in range(28)], sBW2, sDM) + load_chunks([a4(112 + 4 * i) for i in range(28)], sBW2 + 1, sDM))
        n0 = 16 if v == 'e' else 24
        SCHED.update({
            'P3_mm': lambda: [L1(t_H())] + [L0(flat(ch[i:i + 2])) for i in range(0, n0, 2)],
            'P4_mid': lambda: [[L0(c)] for c in ch[n0:]] + [[L0(touch(2, sSADR))]],
        })
    if v == 'x':
        SCHED.update({'P3_mm': lambda: [L1(t_H())], 'P4_mid': lambda: [[L0(touch(2, sSADR))]]})
    if v == 'y':
        global HPLAIN
        HPLAIN = True
        ch = (load_chunks([a4(4 * i) for i in range(28)], sBW2, sDM) + load_chunks([a4(112 + 4 * i) for i in range(28)], sBW2 + 1, sDM))
        SCHED.update({
            'P3_mm': lambda: [L0(flat(ch[i:i + 2])) for i in range(0, 16, 2)] + [L1(t_H())],
            'P3_idle': lambda: ['s_barrier'] + [L1(t_H())],
            'P4_p1': lambda: [[L0(t_H())]],
            'P4_mid': lambda: [[L0(c)] for c in ch[16:]] + [[L0(touch(2, sSADR))]],
        })
    if v in 'bc':
        n3 = 7 if v == 'b' else 10
        SCHED.update({
            'P3_idle': lambda: ['s_barrier'] + [L1(t_H())] + idle_q() + idle_touch(W13_P + 3 * SLOT, 7 * SLOT, n3),
            'P5_idle': lambda: idle_q() + idle_touch(WQKV_P, 84 * 1024, 11) + idle_touch(WO_P, 28 * 1024, 4),
        })
    if v == 'd':
        SCHED.update({
            'P3_idle': lambda: ['s_barrier'] + [L1(t_H())] + idle_q() + [L0(idle_touch(W2_P, 98 * 1024, 7, 4)), L1(idle_touch(W13_P + 3 * SLOT, 7 * SLOT, 7))],
            'P5_idle': lambda: idle_q() + idle_touch(WQKV_P, 84 * 1024, 11) + idle_touch(WO_P, 28 * 1024, 4) + idle_touch(W13_P, 7 * SLOT, 7),
        })


def layer_switch(k):
    k(f's_mov_b32 s{sL}, 1')
    if TS_ON:
        k(f'v_accvgpr_write_b32 a255, v{vTS}')
        k(f'v_mov_b32 v{vTS}, 0')
    set_layer(k, 1)
    phase_G(k)


def phases(k):
    k.lg_done = k.lg_seq
    k.pend = {}
    attention(k)
    phase_P3(k)
    phase_P4(k, 'MAIN_fin')


def body(k, sfx):
    global LAYER
    if sfx == '_s':
        LAYER = None
        k.label('SLOW_entry', pad=False)
        set_layer(k, 0)
        k.label('ATT' + sfx)
        phases(k)
        layer_switch(k)
        k('s_branch ATT' + sfx)
    else:
        LAYER = 0
        phases(k)
        LAYER = 1
        layer_switch(k)
        phases(k)


def gen_main(k, name):
    global MODE
    kstart(k, name)
    k.ignore.add(('v', vDUM))
    end = 'MAIN_end'
    MODE = 'fast'
    setup(k, end)
    ts(k, 'start')
    front(k)
    body(k, '_f')
    k.label('MAIN_fin', pad=False)
    rowmajor_addr(k)
    k(f"""
    buffer_store_dwordx4 {v4(P5_XO)}, v{vT0}, s[12:15], s{sT0} offen
    buffer_store_dwordx4 {v4(P5_XO + 4)}, v{vT0}, s[12:15], s{sT0} offen offset:32
    """)
    ts(k, 'P5.pub')
    k.label('MAIN_tail', pad=False)
    if TS_ON:
        k(f"""
        v_writelane_b32 v{vTS}, s{sFAST}, 63
        s_lshl_b32 s{sT0}, s2, 2
        s_add_u32 s{sT0}, s{sT0}, s{sW}
        s_lshl_b32 s{sT0}, s{sT0}, 9
        s_add_u32 s{sT0}, s{sT0}, {TS}
        v_lshlrev_b32 v{vT0}, 2, v{vLANE}
        buffer_store_dword a255, v{vT0}, s[8:11], s{sT0} offen
        buffer_store_dword v{vTS}, v{vT0}, s[8:11], s{sT0} offen offset:256
        """)
    k.drained()
    k.label(end, pad=False)
    k('s_endpgm')
    MODE = 'slow'
    k.drained()
    body(k, '_s')


HEADER = """; Persistent single-launch implementation (generated by a Python script written for this task).
"""


def main():
    global TS_ON, FORCE_SLOW, FORCE_FALLBACK
    TS_ON = '-ts' in sys.argv
    FORCE_SLOW = '-slow' in sys.argv
    FORCE_FALLBACK = '-fb' in sys.argv
    global WARM
    WARM = '-nowarm' not in sys.argv
    global XDEPTH, P4FREE
    for a in sys.argv:
        if a.startswith('-x'):
            XDEPTH = int(a[2:])
        if a.startswith('-f') and a[2:].isdigit():
            P4FREE = int(a[2:])
    global CODEPF
    if '-nocode' in sys.argv:
        CODEPF = 0
    global PROPOS
    PROPOS = int([a[2:] for a in sys.argv if a.startswith('-p')][0]) if any(a.startswith('-p') for a in sys.argv) else 1
    global GNQ1
    GNQ1 = int([a[2:] for a in sys.argv if a.startswith('-q')][0]) if any(a.startswith('-q') for a in sys.argv) else 6
    global DUTYPOS
    DUTYPOS = int([a[2:] for a in sys.argv if a.startswith('-d')][0]) if any(a.startswith('-d') for a in sys.argv) else 2
    sched_a([a[2:] for a in sys.argv if a.startswith('-s') and len(a) == 3][0] if any(a.startswith('-s') and len(a) == 3 for a in sys.argv) else 'a')
    k = K()
    final = '-final' in sys.argv
    kn = 'interleave_layers__sliding_block__glu_gated_swiglu__prompt_kernel' if final else 'main_kernel'
    gen_main(k, kn)
    if final:
        head = HEADER + f'; @launch grid=(256,1,1) block=(256,1,1) lds={LDS_BYTES}\n'
    else:
        head = f'; @launch kernel=main_kernel grid=(256,1,1) block=(256,1,1) lds={LDS_BYTES}\n'
    head += '.amdgcn_target "amdgcn-amd-amdhsa--gfx950"\n.text\n'
    open(sys.argv[1], 'w').write(head + k.text() + kd(kn, 512, 102, 256))
    print('nops inserted', k.nops_inserted, 'lines', len(k.lines))
    if TS_ON:
        open(sys.argv[1] + '.names', 'w').write('\n'.join(_ts_names))


if __name__ == '__main__':
    main()
```

```python
from common5 import *

sW, sRB, sIDX, sTT, sL = 3, 4, 5, 6, 7
sP2 = 24
sBW13, sLW, sBWQ, sLWQ, sBW2, sBWO = 25, 26, 27, 28, 29, 31
sTW13, sTWQ, sTW2, sTWO = 33, 34, 35, 36
sHFL, sHPL, sHB = 33, 34, 35
sKV, sOF, sX1, sST1, sHF, sX2, sST2 = 37, 38, 39, 40, 41, 42, 43
sL1, sFAST, sACT, sSPIN = 44, 45, 46, 47
sT0, sT1, sT2, sT3, sT4, sT5 = 48, 49, 50, 51, 52, 53
sFT, sTT3, sFTo, sTTo = 54, 55, 56, 57
sTS = 58
sE, sHOFF, sCNT, sDM = 60, 61, 62, 63
sMASK = 64
sHI, sN28 = 96, 98
sOADR, sXADR = 100, 101
sSADR, sDS = 1, 0
Ctx.sL = sL
vDUM = 0
vL16, vLANE, vN, vHH, vSTO, vSTI, vL16b, vONES = 1, 2, 3, 4, 5, 6, 7, 8
vF14, vFH, vZERO, vKVA, vTS, vL2S, vL4S, vSCR = 9, 10, 11, 12, 13, 14, 15, 16
vKE, vFL, vTA, vM, vR, vT0, vT1, vT2, vT3, vNEG, vMX, vAD = 17, 18, 19, 20, 21, 22, 23, 24, 25, 26, 27, 28
MB = 28

TS_ON = False
FORCE_SLOW = False
FORCE_FALLBACK = False
_ts_names = []
XDEPTH = 10
WARM = True
P4FREE = 6
HPLAIN = False
CODEPF = 47 * 1024
PROPOS = 1
GNQ1 = 6
LAYER = None
DUTYPOS = 0
F_PK = FLAGS + 65536
MODE = 'fast'


def ts(k, name):
    if not TS_ON:
        return
    if name in _ts_names:
        i = _ts_names.index(name)
    else:
        i = len(_ts_names)
        _ts_names.append(name)
    assert i < 62
    k(f's_memrealtime s[{sTS}:{sTS + 1}]')
    k(f'v_writelane_b32 v{vTS}, s{sTS}, {i}')


def wait_flags(k, voff, soff, sexp, vFL=vFL):
    Lp, Ld = k.newlabel('poll'), k.newlabel('polled')
    k(f's_mov_b32 s{sSPIN}, 0')
    k.label(Lp, pad=False)
    k(f"""
    buffer_load_dword v{vFL}, v{voff}, s[8:11], s{soff} offen sc1
    s_add_u32 s{sSPIN}, s{sSPIN}, 1
    s_cmp_gt_u32 s{sSPIN}, {SPIN_MAX}
    s_cbranch_scc1 {Ld}
    s_waitcnt vmcnt(0)
    v_cmp_gt_u32 vcc, {sexp}, v{vFL}
    s_nop 1
    s_cbranch_vccnz {Lp}
    """)
    k.label(Ld, pad=False)
    k('s_waitcnt vmcnt(0)')


def publish(k, stores):
    for s_ in stores:
        k(s_ + ('' if MODE == 'fast' else ' sc1'))


def set_flag(k, soff, val, always_sc1=False, h=None):
    k(f'v_mov_b32 v{vFL}, {val}')
    if h is None:
        k('s_waitcnt vmcnt(0)')
    else:
        k.wait_vm(h)
    pol = ' sc1' if (always_sc1 or MODE != 'fast') else ''
    k('s_mov_b64 exec, 1')
    k(f'buffer_store_dword v{vFL}, v{vZERO}, s[8:11], s{soff} offen{pol}')
    k('s_mov_b64 exec, -1')


def dma_chunks(n, ssrc, src_off, slds, lds_off):
    out = []
    for i in range(n):
        c = []
        if i % 4 == 0:
            c += [f's_add_u32 m0, s{slds}, {lds_off + i * 1024}', f's_add_u32 s{sP2}, s{ssrc}, {src_off + i * 1024}']
        c.append(f'buffer_load_dwordx4 v{vL16}, s[8:11], s{sP2} offen offset:{(i % 4) * 1024} lds')
        out.append(c)
    return out


def load_chunks(dsts, ssrc, tmp, src_off=0, pol=''):
    out = []
    for i, d in enumerate(dsts):
        c = []
        if i % 4 == 0:
            c.append(f's_add_u32 s{tmp}, s{ssrc}, {src_off + i * 1024}')
        c.append(f'buffer_load_dwordx4 {d}, v{vL16}, s[8:11], s{tmp} offen offset:{(i % 4) * 1024}{pol}')
        out.append(c)
    return out


def touch(n, sbase, off=0):
    return [f'v_min_u32 v{vTA}, {n - 1}, v{vLANE}',
            f'v_lshlrev_b32 v{vTA}, 7, v{vTA}',
            f's_add_u32 s{sDS}, s{sbase}, {off}',
            f'buffer_load_dword v{vDUM}, v{vTA}, s[8:11], s{sDS} offen sc1']


def flat(chs):
    return [x for c in chs for x in c]


W13_SLOT = [0, 1, 2, 3, 4, 0, 1]


def pf_wqkv():
    return dma_chunks(21, sBWQ, 0, sLWQ, 0)


def pf_w13(i):
    return dma_chunks(7, sBW13, i * SLOT, sLW, W13_SLOT[i] * SLOT)


def pf_w2():
    ch = (load_chunks([a4(4 * i) for i in range(28)], sBW2, sDM) +
          load_chunks([a4(112 + 4 * i) for i in range(28)], sBW2 + 1, sDM))
    return [flat(ch[i:i + 4]) for i in range(0, 56, 4)]


def t_w13(i):
    return touch(28, sTW13, i * SLOT)


def t_wqkv():
    return touch(64, sTWQ, 0) + touch(20, sTWQ, 8192)


def t_w2():
    return touch(64, sTW2, 0) + touch(34, sTW2, 8192)


def t_wo():
    return touch(28, sTWO, 0)


def t_O():
    return touch(16, sOADR)


def t_X():
    return touch(16, sXADR) + touch(2, sSADR)


def t_H():
    return touch(56, sHOFF)


def idle_q():
    return lines(f"""
    s_and_b32 s{sT5}, s{sRB}, 1
    s_lshl_b32 s{sT5}, s{sT5}, 1
    s_add_u32 s{sT5}, s{sT5}, s{sIDX}
    s_sub_u32 s{sT5}, s{sT5}, 14
    s_lshl_b32 s{sT5}, s{sT5}, 2
    s_add_u32 s{sT5}, s{sT5}, s{sW}
    v_lshlrev_b32 v{vTA}, 7, v{vLANE}
    """)


def idle_touch(base, per_wave, n, first=0):
    out = [f's_mul_i32 s{sT4}, s{sT5}, {per_wave}', f's_add_u32 s{sT4}, s{sT4}, {base + first * 8192}']
    for i in range(n):
        out += [f'buffer_load_dword v{vDUM}, v{vTA}, s[8:11], s{sT4} offen',
                f's_add_u32 s{sT4}, s{sT4}, 8192']
    return out


def L0(ls):
    if LAYER is not None:
        return ('seq', list(ls) if LAYER == 0 else [])
    return ('L0', list(ls))


def L1(ls):
    if LAYER is not None:
        return ('seq', list(ls) if LAYER == 1 else [])

    def fn(k):
        k(f's_cmp_eq_u32 s{sL}, 0')
        k.skip_begin('s_cbranch_scc1')
        for x in ls:
            k(x)
        k.skip_end()
    return ('call', fn)


def res_addr(k, dst, base):
    k(f"""
    s_mul_i32 s{dst}, s{sTT3}, 28
    s_lshl_b32 s{sT1}, s{sFT}, 1
    s_add_u32 s{dst}, s{dst}, s{sT1}
    s_lshl_b32 s{dst}, s{dst}, 10
    s_add_u32 s{dst}, s{dst}, {base}
    """)


def st_addr(k, dst, base):
    k(f"""
    s_mul_i32 s{dst}, s{sTT3}, 14
    s_add_u32 s{dst}, s{dst}, s{sFT}
    s_lshl_b32 s{dst}, s{dst}, 8
    s_add_u32 s{dst}, s{dst}, {base}
    """)


def setup(k, end_label):
    k('s_cmp_ge_u32 s2, 256')
    k(f's_cbranch_scc1 {end_label}')
    k(f"""
    s_load_dwordx16 s[72:87], s[0:1], 0
    s_load_dwordx2 s[16:17], s[0:1], 64
    s_load_dwordx2 s[8:9], s[0:1], 72
    v_lshrrev_b32 v{vT0}, 6, v0
    v_and_b32 v{vLANE}, 63, v0
    v_readfirstlane_b32 s{sW}, v{vT0}
    v_lshlrev_b32 v{vL16}, 4, v{vLANE}
    v_and_b32 v{vN}, 31, v{vLANE}
    v_lshrrev_b32 v{vHH}, 5, v{vLANE}
    s_and_b32 s{sT0}, s2, 7
    s_lshr_b32 s{sT1}, s2, 3
    s_lshr_b32 s{sT2}, s{sT1}, 4
    s_lshl_b32 s{sRB}, s{sT0}, 1
    s_add_u32 s{sRB}, s{sRB}, s{sT2}
    s_and_b32 s{sIDX}, s{sT1}, 15
    s_lshl_b32 s{sTT}, s{sRB}, 2
    s_add_u32 s{sTT}, s{sTT}, s{sW}
    s_mov_b32 s10, {WS_BYTES}
    s_mov_b32 s11, 0x00020000
    s_mov_b32 s14, {S * D * 2}
    s_mov_b32 s15, 0x00020000
    s_mov_b32 s18, 256
    s_mov_b32 s19, 0x00020000
    s_mov_b32 s22, {S * D * 2}
    s_mov_b32 s23, 0x00020000
    s_mov_b32 s{sL}, 0
    s_mov_b32 s{sHI}, 0
    s_mov_b32 s{sHI + 1}, -1
    s_lshl_b32 s{sT1}, s{sW}, 12
    s_add_u32 s{sT1}, s{sT1}, {KVB}
    v_add_u32 v{vKVA}, s{sT1}, v{vL16}
    v_mov_b32 v{vZERO}, 0
    v_mov_b32 v{vTS}, 0
    v_mov_b32 v{vONES}, {ONES_BF16}
    v_cmp_eq_u32 s[{sN28}:{sN28 + 1}], 28, v{vN}
    s_cmp_ge_u32 s{sIDX}, 7
    s_cselect_b32 s{sT0}, 1, 0
    s_mul_i32 s{sT1}, s{sT0}, 7
    s_sub_u32 s{sT1}, s{sIDX}, s{sT1}
    s_cmp_lt_u32 s{sIDX}, 14
    s_cselect_b32 s{sACT}, 1, 0
    s_cselect_b32 s{sT1}, s{sT1}, 0
    s_lshl_b32 s{sFT}, s{sT1}, 1
    s_and_b32 s{sT2}, s{sW}, 1
    s_add_u32 s{sFT}, s{sFT}, s{sT2}
    s_xor_b32 s{sFTo}, s{sFT}, 1
    s_lshl_b32 s{sTT3}, s{sRB}, 2
    s_lshl_b32 s{sT0}, s{sT0}, 1
    s_add_u32 s{sTT3}, s{sTT3}, s{sT0}
    s_lshr_b32 s{sT2}, s{sW}, 1
    s_add_u32 s{sTT3}, s{sTT3}, s{sT2}
    s_xor_b32 s{sTTo}, s{sTT3}, 1
    s_mul_i32 s{sLW}, s{sW}, 7168
    s_waitcnt lgkmcnt(0)
    s_mov_b32 s20, s72
    s_mov_b32 s21, s73
    s_mov_b32 s12, s86
    s_mov_b32 s13, s87
    """)


def setup2_salu():
    return lines(f"""
    s_mov_b32 s{sFAST}, 0
    s_mul_i32 s{sBW13}, s{sIDX}, {7 * SLOT}
    s_add_u32 s{sBW13}, s{sBW13}, {W13_P}
    s_add_u32 s{sBW13}, s{sBW13}, s{sLW}
    s_mul_i32 s{sLWQ}, s{sW}, {21 * 1024}
    s_mul_i32 s{sBWQ}, s{sIDX}, {84 * 1024}
    s_add_u32 s{sBWQ}, s{sBWQ}, {WQKV_P}
    s_add_u32 s{sBWQ}, s{sBWQ}, s{sLWQ}
    s_mul_i32 s{sP2}, s{sW}, {28 * 1024}
    s_add_u32 s{sP2}, s{sP2}, {W2_P}
    s_mul_i32 s{sBW2}, s{sFT}, {112 * 1024}
    s_add_u32 s{sBW2}, s{sBW2}, s{sP2}
    s_mul_i32 s{sBW2 + 1}, s{sFTo}, {112 * 1024}
    s_add_u32 s{sBW2 + 1}, s{sBW2 + 1}, s{sP2}
    s_lshl_b32 s{sP2}, s{sW}, 13
    s_add_u32 s{sP2}, s{sP2}, {WO_P}
    s_lshl_b32 s{sBWO}, s{sFT}, 15
    s_add_u32 s{sBWO}, s{sBWO}, s{sP2}
    s_lshl_b32 s{sBWO + 1}, s{sFTo}, 15
    s_add_u32 s{sBWO + 1}, s{sBWO + 1}, s{sP2}
    """)


def setup2_valu():
    out = lines(f"""
    v_lshlrev_b32 v{vSTO}, 3, v{vN}
    v_mul_u32_u24 v{vSTI}, 1792, v{vHH}
    v_add_u32 v{vSTI}, v{vSTI}, v{vSTO}
    v_lshl_or_b32 v{vSTO}, v{vHH}, 2, v{vSTO}
    v_add_u32 v{vL16b}, {2 * SLOT}, v{vL16}
    v_min_u32 v{vF14}, 13, v{vLANE}
    v_lshlrev_b32 v{vF14}, 2, v{vF14}
    v_add_u32 v{vL2S}, {2 * SLOT}, v{vL16}
    v_add_u32 v{vL4S}, {4 * SLOT}, v{vL16}
    v_add_u32 v{vSCR}, {SCR}, v{vL16}
    v_mov_b32 v{vNEG}, {f32bits(-1e30)}
    v_and_b32 v{vFH}, 3, v{vLANE}
    v_lshlrev_b32 v{vFH}, 2, v{vFH}
    v_bfe_u32 v{vT0}, v{vLANE}, 2, 1
    v_lshl_or_b32 v{vFH}, v{vT0}, 7, v{vFH}
    s_lshl_b32 s{sT1}, s{sW}, 4
    v_add_u32 v{vFH}, s{sT1}, v{vFH}
    v_lshlrev_b32 v{vT0}, 2, v{vHH}
    v_sub_u32 v{vT0}, v{vN}, v{vT0}
    """)
    for r in range(16):
        c = 8 * (r >> 2) + (r & 3)
        out.append(f'v_cmp_ge_i32 s[{sMASK + 2 * r}:{sMASK + 2 * r + 1}], v{vT0}, {c}')
    return out


def signal(k):
    k(f"""
    s_getreg_b32 s{sE}, hwreg(HW_REG_XCC_ID, 0, 4)
    s_mul_i32 s{sCNT}, s{sE}, s{sE}
    s_lshl_b32 s{sCNT}, s{sCNT}, 16
    s_lshl_b32 s{sE}, s{sE}, 8
    s_or_b32 s{sE}, s{sE}, s{sCNT}
    s_or_b32 s{sE}, s{sE}, 1
    v_mov_b32 v{vFL}, s{sE}
    s_lshl_b32 s{sCNT}, s{sRB}, 4
    s_cmp_eq_u32 s{sW}, 0
    s_cselect_b32 s{sCNT}, s{sCNT}, 4096
    s_mov_b64 exec, 1
    buffer_atomic_add v{vFL}, v{vZERO}, s[16:19], s{sCNT} offen sc1
    s_mov_b64 exec, -1
    """)


def global_check(k, pre=False):
    Lp, Ld, Lg = k.newlabel('gpoll'), k.newlabel('gdone'), k.newlabel('ggood')
    k(f"""
    v_and_b32 v{vT1}, 15, v{vLANE}
    v_lshlrev_b32 v{vT1}, 4, v{vT1}
    s_mov_b32 s{sSPIN}, 0
    """)
    if pre:
        k(f"""
        v_and_b32 v{vT0}, 0xff, v{vFL}
        v_cmp_gt_u32 vcc, 16, v{vT0}
        s_nop 1
        s_cbranch_vccz {Lg}
        """)
    k.label(Lp, pad=False)
    k(f"""
    buffer_load_dword v{vFL}, v{vT1}, s[16:19], 0 offen sc1
    s_add_u32 s{sSPIN}, s{sSPIN}, 1
    s_cmp_gt_u32 s{sSPIN}, {SPIN_MAX}
    s_cbranch_scc1 {Ld}
    s_waitcnt vmcnt(0)
    v_and_b32 v{vT0}, 0xff, v{vFL}
    v_cmp_gt_u32 vcc, 16, v{vT0}
    s_nop 1
    s_cbranch_vccz {Lg}
    s_sleep 24
    s_branch {Lp}
    """)
    k.label(Lg, pad=False)
    k(f"""
    s_getreg_b32 s{sT0}, hwreg(HW_REG_XCC_ID, 0, 4)
    s_mul_i32 s{sT1}, s{sT0}, s{sT0}
    s_lshl_b32 s{sT1}, s{sT1}, 20
    s_lshl_b32 s{sT0}, s{sT0}, 12
    s_or_b32 s{sT0}, s{sT0}, s{sT1}
    s_or_b32 s{sT0}, s{sT0}, 16
    v_readlane_b32 s{sT1}, v{vFL}, s{sRB}
    s_nop 3
    s_cmp_eq_u32 s{sT0}, s{sT1}
    s_cselect_b32 s{sFAST}, {0 if FORCE_SLOW else 1}, 0
    """)
    k.label(Ld, pad=False)
    k('s_waitcnt vmcnt(0)')


def set_layer(k, l):
    fast = MODE == 'fast'
    k(f"""
    s_mov_b32 s{sL1}, {l + 1}
    s_mov_b32 s{sX1}, {XF[1] if fast else XF[2 * l + 1]}
    s_mov_b32 s{sX2}, {XF[1] if fast else XF[2]}
    s_mov_b32 s{sST1}, {ST[1] if fast else ST[2 * l + 1]}
    s_mov_b32 s{sST2}, {ST[2]}
    s_mov_b32 s{sKV}, {KV[l]}
    s_mov_b32 s{sOF}, {OF[0] if fast else OF[l]}
    s_mov_b32 s{sHF}, {HF[0] if fast else HF[l]}
    s_lshl_b32 s{sOADR}, s{sIDX}, 6
    s_add_u32 s{sOADR}, s{sOADR}, s{sTT}
    s_lshl_b32 s{sOADR}, s{sOADR}, 11
    s_add_u32 s{sOADR}, s{sOADR}, s{sOF}
    s_mul_i32 s{sHOFF}, s{sTT}, 112
    s_mul_i32 s{sT5}, s{sIDX}, 7
    s_add_u32 s{sHOFF}, s{sHOFF}, s{sT5}
    s_lshl_b32 s{sHOFF}, s{sHOFF}, 10
    s_add_u32 s{sHOFF}, s{sHOFF}, s{sHF}
    """)
    res_addr(k, sXADR, f's{sX1}')
    st_addr(k, sSADR, f's{sST1}')


def stats_loads(sbase, stt, dst):
    out = [f's_mul_i32 s{sT0}, s{stt}, {14 * 256}', f's_add_u32 s{sT0}, s{sT0}, s{sbase}']
    out += [f'buffer_load_dwordx2 {v2(dst + 2 * i)}, v{vSTI}, s[8:11], s{sT0} offen offset:{256 * i} sc1' for i in range(7)]
    return out


def stats_math(src):
    out = []
    for i in range(1, 7):
        out.append(f'v_add_f32 v{src}, v{src}, v{src + 2 * i}')
        out.append(f'v_add_f32 v{src + 1}, v{src + 1}, v{src + 2 * i + 1}')
    return out + ln_math(src, src + 1, vT0, vT1, vM, vR)


def mb_fill():
    return [f'v_mov_b32 v{MB + i}, v{vM}' for i in range(4)]


def halo(k, poll):
    k(f"""
    s_lshl_b32 s{sT2}, s{sRB}, 2
    s_lshl_b32 s{sT3}, s{sW}, 1
    s_add_u32 s{sT2}, s{sT2}, s{sT3}
    s_sub_i32 s{sT2}, s{sT2}, 8
    s_lshl_b32 s{sT5}, s{sW}, 13
    s_add_u32 s{sT5}, s{sT5}, {KVB}
    s_cmp_lt_i32 s{sT2}, 0
    """)
    Lfill, Ljoin = k.newlabel('A_fill'), k.newlabel('A_join')
    k(f's_cbranch_scc1 {Lfill}')
    st = (k.vm_seq, k.vm_done, k.lg_seq, k.lg_done, dict(k.pend))
    k(f"""
    s_lshl_b32 s{sT0}, s{sIDX}, 6
    s_add_u32 s{sT0}, s{sT0}, s{sT2}
    s_lshl_b32 s{sT4}, s{sT0}, 2
    s_add_u32 s{sT4}, s{sT4}, {F_KV}
    s_lshl_b32 s{sE}, s{sT0}, 12
    s_add_u32 s{sE}, s{sE}, s{sKV}
    """)
    if poll:
        k(f'v_and_b32 v{vT0}, 1, v{vLANE}')
        k(f'v_lshlrev_b32 v{vT0}, 2, v{vT0}')
        wait_flags(k, vT0, sT4, f's{sL1}')
    emit(k, flat(dma_chunks(8, sE, 0, sT5, 0)))
    k(f's_branch {Ljoin}')
    k.label(Lfill, pad=False)
    z = 248
    k(f"""
    v_mov_b32 v{z}, 0
    v_mov_b32 v{z + 1}, 0
    v_mov_b32 v{z + 2}, 0
    v_mov_b32 v{z + 3}, 0
    v_mov_b32 v{z + 4}, 0
    v_mov_b32 v{z + 5}, 0
    v_mov_b32 v{z + 7}, 0
    v_mov_b32 v{vT1}, 0xf14a
    v_cndmask_b32 v{z + 6}, 0, v{vT1}, s[{sHI}:{sHI + 1}]
    v_add_u32 v{vT0}, s{sT5}, v{vL16}
    """)
    for t in range(2):
        k(f'ds_write_b128 v{vT0}, {v4(z)} offset:{4096 * t}')
        k(f'ds_write_b128 v{vT0}, {v4(z + 4)} offset:{4096 * t + 1024}')
        k(f'ds_write_b128 v{vT0}, {v4(z)} offset:{4096 * t + 2048}')
        k(f'ds_write_b128 v{vT0}, {v4(z)} offset:{4096 * t + 3072}')
    k('s_waitcnt lgkmcnt(0)')
    k.label(Ljoin, pad=False)
    k.vm_seq, k.vm_done, k.lg_seq, k.lg_done, k.pend = st[0], st[1], st[2], st[3], dict(st[4])


QF, KF, VF = 232, 216, 224
WO_R = 128
SA, PA, OA, NM, KB, VB, OS = 32, 48, 64, 80, 96, 104, 112


def att_tile_body(k, last, mem):
    k(f'{MF} {v16(SA)}, {v4(KB)}, {v4(QF)}, {v16(NM)}')
    k(f'{MF} {v16(SA)}, {v4(KB + 4)}, {v4(QF + 4)}, {v16(SA)}')
    k(f'{MF} {v16(OA)}, {v4(VB)}, {v4(PA)}, {v16(OA)}')
    k(f'{MF} {v16(OA)}, {v4(VB + 4)}, {v4(PA + 4)}, {v16(OA)}')
    k(f'ds_read_b128 {v4(VB)}, v{vAD} offset:2048')
    k(f'ds_read_b128 {v4(VB + 4)}, v{vAD} offset:3072')
    k(f'v_subrev_u32 v{vAD}, 4096, v{vAD}')
    if not last:
        k(f'ds_read_b128 {v4(KB)}, v{vAD}')
        k(f'ds_read_b128 {v4(KB + 4)}, v{vAD} offset:1024')
    emit(k, mem)
    if last:
        for r in range(16):
            k(f'v_cndmask_b32 v{SA + r}, v{SA + r}, v{vNEG}, s[{sMASK + 2 * r}:{sMASK + 2 * r + 1}]')
    for q in range(8):
        k(f'v_exp_f32 v{SA + 2 * q}, v{SA + 2 * q}')
        k(f'v_exp_f32 v{SA + 2 * q + 1}, v{SA + 2 * q + 1}')
        if q:
            k(f'v_cvt_pk_bf16_f32 v{PA + q - 1}, v{SA + 2 * q - 2}, v{SA + 2 * q - 1}')
    k(f'v_cvt_pk_bf16_f32 v{PA + 7}, v{SA + 14}, v{SA + 15}')


def loop_dma():
    out = []
    for i in range(3):
        out += [f's_add_u32 m0, s{sDM}, {W13_SLOT[i] * SLOT}',
                f's_add_u32 s{sP2}, s{sDS}, {i * SLOT}',
                f'buffer_load_dwordx4 v{vL16}, s[8:11], s{sP2} offen lds']
    out += [f's_add_u32 s{sDM}, s{sDM}, 1024', f's_add_u32 s{sDS}, s{sDS}, 1024']
    return out


def loop_dma0():
    out = [f's_min_u32 m0, s{sDM}, {80 * 1024}', f's_add_u32 s{sP2}, s{sDS}, m0']
    out += [f'buffer_load_dwordx4 v{vL16}, s[8:11], s{sP2} offen offset:{i * 1024} lds' for i in range(4)]
    out.append(f's_add_u32 s{sDM}, s{sDM}, 4096')
    return out


def attention(k):
    ts(k, 'ATT.start')
    k(f'{MF} {v16(SA)}, {v4(KF)}, {v4(QF)}, 0')
    k(f'{MF} {v16(SA)}, {v4(KF + 4)}, {v4(QF + 4)}, {v16(SA)}')
    k(f"""
    v_add_u32 v{vAD}, {7 * 4096}, v{vKVA}
    ds_read_b128 {v4(KB)}, v{vAD}
    ds_read_b128 {v4(KB + 4)}, v{vAD} offset:1024
    s_mul_i32 s{sT0}, s{sW}, s{sW}
    s_mul_i32 s{sDM}, s{sW}, 30
    s_lshl_b32 s{sT0}, s{sT0}, 1
    s_sub_u32 s{sDM}, s{sDM}, s{sT0}
    s_lshl_b32 s{sDM}, s{sDM}, 10
    s_sub_u32 s{sDS}, s{sBW13}, s{sLW}
    """)
    wo = load_chunks([v4(WO_R + 4 * i) for i in range(8)], sBWO, sT2) + load_chunks([v4(WO_R + 32 + 4 * i) for i in range(8)], sBWO + 1, sT2)
    for q in range(8):
        k(f'v_mov_b32 v{VB + q}, v{VF + q}')
    for r in range(16):
        k(f'v_mov_b32 v{OA + r}, 0')
    for r in range(16):
        k(f'v_cndmask_b32 v{SA + r}, v{vNEG}, v{SA + r}, s[{sMASK + 2 * r}:{sMASK + 2 * r + 1}]')
    k(f'v_max_f32 v{vMX}, v{SA}, v{SA + 1}')
    for r in range(2, 16, 2):
        k(f'v_max3_f32 v{vMX}, v{SA + r}, v{SA + r + 1}, v{vMX}')
    k(f"""
    v_mov_b32 v{vT1}, v{vMX}
    v_permlane32_swap_b32 v{vMX}, v{vT1}
    v_max_f32 v{vMX}, v{vMX}, v{vT1}
    """)
    for r in range(16):
        k(f'v_sub_f32 v{SA + r}, v{SA + r}, v{vMX}')
    for r in range(16):
        k(f'v_sub_f32 v{NM + r}, 0, v{vMX}')
    for r in range(16):
        k(f'v_exp_f32 v{SA + r}, v{SA + r}')
        if r % 4 == 3:
            emit_item(k, L1(flat(wo[r - 3:r + 1])))
    for r in parse_reg(f'v[{WO_R}:{WO_R + 63}]'):
        k.pend.pop(r, None)
    for q in range(8):
        k(f'v_cvt_pk_bf16_f32 v{PA + q}, v{SA + 2 * q}, v{SA + 2 * q + 1}')
    ts(k, 'ATT.diag')
    halo(k, True)
    LA, LAe, LB = k.newlabel('att1'), k.newlabel('att1e'), k.newlabel('att2')
    k(f's_mov_b32 s{sCNT}, s{sW}')
    k('s_waitcnt lgkmcnt(0)')
    k(f's_cmp_eq_u32 s{sCNT}, 0')
    k(f's_cbranch_scc1 {LAe}')
    k.label(LA, pad=False)
    k('s_nop 1')
    st = k.vm_seq
    att_tile_body(k, False, [])
    k.vm_seq = st
    k(f"""
    s_sub_u32 s{sCNT}, s{sCNT}, 1
    s_cmp_lg_u32 s{sCNT}, 0
    s_waitcnt lgkmcnt(0)
    s_cbranch_scc1 {LA}
    """)
    k.label(LAe, pad=False)
    ts(k, 'ATT.st1')
    Lw = k.newlabel('wready')
    if LAYER is None:
        k(f's_cmp_lg_u32 s{sL}, 0')
        k(f's_cbranch_scc1 {Lw}')
    elif LAYER == 1:
        k(f's_branch {Lw}')
    st = (k.vm_seq, k.vm_done, dict(k.pend))
    k(f"""
    s_mul_i32 s{sT0}, s{sIDX}, 7
    s_add_u32 s{sT1}, s{sT0}, 6
    s_and_b32 s{sT0}, s{sT0}, -4
    s_or_b32 s{sT1}, s{sT1}, 3
    v_add_u32 v{vT0}, s{sT0}, v{vLANE}
    v_min_u32 v{vT0}, s{sT1}, v{vT0}
    s_lshr_b32 s{sT2}, s{sFT}, 1
    s_lshl_b32 s{sT0}, s{sT2}, 3
    s_add_u32 s{sT0}, s{sT0}, 112
    v_and_b32 v{vT1}, 7, v{vLANE}
    v_add_u32 v{vT1}, s{sT0}, v{vT1}
    v_cmp_le_u32 vcc, 16, v{vLANE}
    s_lshl_b32 s{sT0}, s{sT2}, 1
    s_add_u32 s{sT0}, s{sT0}, 168
    v_cndmask_b32 v{vT0}, v{vT0}, v{vT1}, vcc
    v_and_b32 v{vT1}, 1, v{vLANE}
    v_add_u32 v{vT1}, s{sT0}, v{vT1}
    v_cmp_le_u32 vcc, 24, v{vLANE}
    v_bfe_u32 v{vT2}, v{vLANE}, 1, 3
    v_and_b32 v{vT3}, 1, v{vLANE}
    v_cndmask_b32 v{vT0}, v{vT0}, v{vT1}, vcc
    v_lshl_add_u32 v{vT2}, v{vT3}, 7, v{vT2}
    s_lshl_b32 s{sT0}, s{sIDX}, 3
    v_add_u32 v{vT2}, s{sT0}, v{vT2}
    v_cndmask_b32 v{vT0}, v{vT0}, v{vT2}, s[{sHI}:{sHI + 1}]
    v_lshlrev_b32 v{vT0}, 7, v{vT0}
    s_mov_b32 s{sT0}, {F_PK}
    """)
    wait_flags(k, vT0, sT0, '1')
    k.vm_seq, k.vm_done, k.pend = st
    k.label(Lw, pad=False)
    k('s_waitcnt vmcnt(0)')
    ts(k, 'ATT.halo')
    k('s_barrier')
    k(f"""
    ds_read_b128 {v4(KB)}, v{vAD}
    ds_read_b128 {v4(KB + 4)}, v{vAD} offset:1024
    s_sub_u32 s{sCNT}, 7, s{sW}
    """)
    emit_item(k, L0(([x.replace(f's{sDS},', f's{sT3},').replace(f's{sDS} ', f's{sT3} ') for x in SCHED['PRO']()] if PROPOS == 2 else []) + flat(wo) + lines(f"""
    v_lshlrev_b32 v{vT0}, 2, v{vN}
    v_lshl_add_u32 v{vT0}, v{vHH}, 9, v{vT0}
    s_mul_i32 s{sT0}, s{sIDX}, 7
    s_add_u32 s{sT0}, s{sT0}, s{sW}
    s_lshl_b32 s{sT0}, s{sT0}, 7
    s_add_u32 s{sT0}, s{sT0}, {CSP_13}
    """) + flat([[f's_add_u32 s{sT1}, s{sT0}, {q * 112 * 128}',
                 f'buffer_load_dword v{CSL + q}, v{vT0}, s[8:11], s{sT1} offen'] for q in range(4)])))
    k('s_waitcnt lgkmcnt(0)')
    k.label(LB, pad=False)
    k('s_nop 1')
    st = k.vm_seq
    att_tile_body(k, False, loop_dma0())
    k.vm_seq = st
    k(f"""
    s_sub_u32 s{sCNT}, s{sCNT}, 1
    s_cmp_lg_u32 s{sCNT}, 0
    s_waitcnt lgkmcnt(0)
    s_cbranch_scc1 {LB}
    """)
    k('s_nop 1')
    att_tile_body(k, True, [])
    k(f'{MF} {v16(OA)}, {v4(VB)}, {v4(PA)}, {v16(OA)}')
    k(f'{MF} {v16(OA)}, {v4(VB + 4)}, {v4(PA + 4)}, {v16(OA)}')
    k(f"""
    s_lshl_b32 s{sT4}, s{sTT}, 7
    s_lshl_b32 s{sT1}, s{sIDX}, 2
    s_add_u32 s{sT4}, s{sT4}, s{sT1}
    s_add_u32 s{sT4}, s{sT4}, {F_O}
    s_mov_b32 s{sT0}, {f32bits(2.0 ** 64)}
    """)
    Lok = k.newlabel('att_ok')
    k(f"""
    v_mov_b32 v{vT0}, v{OA + 12}
    v_mov_b32 v{vT1}, v{OA + 12}
    v_permlane32_swap_b32 v{vT0}, v{vT1}
    v_cmp_nge_f32 vcc, s{sT0}, v{vT1}
    s_nop 1
    """)
    k(f's_cbranch_vccz {Lok}' if not FORCE_FALLBACK else 's_nop 0')
    fallback(k)
    k.label(Lok)
    k(f'v_rcp_f32 v{vT1}, v{vT1}')
    for r in range(16):
        k(f'v_mul_f32 v{OA + r}, v{vT1}, v{OA + r}')
    for q in range(8):
        k(f'v_cvt_pk_bf16_f32 v{OA + q}, v{OA + 2 * q}, v{OA + 2 * q + 1}')
    ts(k, 'ATT.st2')
    publish(k, [f'buffer_store_dwordx4 {v4(OA)}, v{vL16}, s[8:11], s{sOADR} offen',
                f'buffer_store_dwordx4 {v4(OA + 4)}, v{vL16}, s[8:11], s{sOADR} offen offset:1024'])
    set_flag(k, sT4, f's{sL1}')
    ts(k, 'ATT.pub')


def fallback(k):
    def s_tile(c):
        k(f"""
        ds_read_b128 {v4(KB)}, v{vAD}
        ds_read_b128 {v4(KB + 4)}, v{vAD} offset:1024
        ds_read_b128 {v4(VB)}, v{vAD} offset:2048
        ds_read_b128 {v4(VB + 4)}, v{vAD} offset:3072
        """)
        k(f'{MF} {v16(SA)}, {v4(KB)}, {v4(QF)}, {c}')
        k(f'{MF} {v16(SA)}, {v4(KB + 4)}, {v4(QF + 4)}, {v16(SA)}')
        for cntv, a, b in ((0, SA, None), (8, None, SA)):
            k(f's_cmp_lg_u32 s{sCNT}, {cntv}')
            k.skip_begin('s_cbranch_scc1')
            for r in range(16):
                m = f's[{sMASK + 2 * r}:{sMASK + 2 * r + 1}]'
                if cntv == 0:
                    k(f'v_cndmask_b32 v{SA + r}, v{SA + r}, v{vNEG}, {m}')
                else:
                    k(f'v_cndmask_b32 v{SA + r}, v{vNEG}, v{SA + r}, {m}')
            k.skip_end()
    La, Lb = k.newlabel('fb1'), k.newlabel('fb2')
    k(f"""
    s_nop 7
    s_nop 7
    v_mov_b32 v{vAD}, v{vKVA}
    v_mov_b32 v{vMX}, v{vNEG}
    s_mov_b32 s{sCNT}, 0
    """)
    k.label(La)
    s_tile('0')
    for r in range(0, 16, 2):
        k(f'v_max3_f32 v{vMX}, v{SA + r}, v{SA + r + 1}, v{vMX}')
    k(f"""
    v_add_u32 v{vAD}, 4096, v{vAD}
    s_add_u32 s{sCNT}, s{sCNT}, 1
    s_cmp_lt_u32 s{sCNT}, 9
    s_waitcnt lgkmcnt(0)
    s_cbranch_scc1 {La}
    v_mov_b32 v{vT1}, v{vMX}
    v_permlane32_swap_b32 v{vMX}, v{vT1}
    v_max_f32 v{vMX}, v{vMX}, v{vT1}
    v_mov_b32 v{vAD}, v{vKVA}
    s_mov_b32 s{sCNT}, 0
    """)
    for r in range(16):
        k(f'v_mov_b32 v{OA + r}, 0')
    k.label(Lb)
    s_tile('0')
    for r in range(16):
        k(f'v_sub_f32 v{SA + r}, v{SA + r}, v{vMX}')
    for r in range(16):
        k(f'v_exp_f32 v{SA + r}, v{SA + r}')
    for q in range(8):
        k(f'v_cvt_pk_bf16_f32 v{PA + q}, v{SA + 2 * q}, v{SA + 2 * q + 1}')
    k(f'{MF} {v16(OA)}, {v4(VB)}, {v4(PA)}, {v16(OA)}')
    k(f'{MF} {v16(OA)}, {v4(VB + 4)}, {v4(PA + 4)}, {v16(OA)}')
    k(f"""
    v_add_u32 v{vAD}, 4096, v{vAD}
    s_add_u32 s{sCNT}, s{sCNT}, 1
    s_cmp_lt_u32 s{sCNT}, 9
    s_waitcnt lgkmcnt(0)
    s_cbranch_scc1 {Lb}
    v_mov_b32 v{vT0}, v{OA + 12}
    v_mov_b32 v{vT1}, v{OA + 12}
    v_permlane32_swap_b32 v{vT0}, v{vT1}
    """)


SK_ACC = [32, 48, 64, 80]
SK_XO = 96
RED = 3 * SLOT


def red_writes():
    out = {}
    for q in range(1, 4):
        o = lines(f"""
        s_xor_b32 s{sT0}, s{sW}, {q}
        s_mul_i32 s{sT0}, s{sT0}, 12288
        s_add_u32 s{sT0}, s{sT0}, {RED + (q - 1) * 4096}
        v_add_u32 v{vT0 + q - 1}, s{sT0}, v{vL16}
        """)
        for g in range(4):
            o.append(f'ds_write_b128 v{vT0 + q - 1}, {v4(SK_ACC[q] + 4 * g)} offset:{1024 * g}')
        out[q] = o
    return out


XR = 200


def red_setup():
    return lines(f"""
    s_mul_i32 s{sT0}, s{sW}, 12288
    s_add_u32 s{sT0}, s{sT0}, {RED}
    v_add_u32 v{vT3}, s{sT0}, v{vL16}
    """)


def red_finish(k):
    ACC = SK_ACC
    k.barrier()
    for g in range(4):
        for q in range(1, 4):
            k(f'ds_read_b128 {v4(ACC[q] + 4 * g)}, v{vT3} offset:{(q - 1) * 4096 + 1024 * g}')


def red_sum(k, g):
    ACC = SK_ACC
    k.wait_reg(v4(ACC[3] + 4 * g))
    for r in (4 * g, 4 * g + 2):
        k(f'v_pk_add_f32 {v2(ACC[1] + r)}, {v2(ACC[1] + r)}, {v2(ACC[2] + r)}')
        k(f'v_pk_add_f32 {v2(ACC[0] + r)}, {v2(ACC[0] + r)}, {v2(ACC[3] + r)}')
    for r in (4 * g, 4 * g + 2):
        k(f'v_pk_add_f32 {v2(ACC[0] + r)}, {v2(ACC[0] + r)}, {v2(ACC[1] + r)}')


def unpack_res(xo, dst):
    out = []
    for q in range(8):
        out.append(f'v_lshlrev_b32 v{dst + 2 * q}, 16, v{xo + q}')
        out.append(f'v_and_b32 v{dst + 2 * q + 1}, 0xffff0000, v{xo + q}')
    return out


def flag_addr(dst, fbase):
    return lines(f"""
    s_lshl_b32 s{dst}, s{sTT3}, 7
    s_lshl_b32 s{sT1}, s{sFT}, 2
    s_add_u32 s{dst}, s{dst}, s{sT1}
    s_add_u32 s{dst}, s{dst}, {fbase}
    """)


def res_epilogue(k, xo, sflag, val, scale, xr, Lfin):
    acc = SK_ACC[0]
    for g in range(4):
        red_sum(k, g)
        if scale is not None:
            for r in (4 * g, 4 * g + 2):
                k(f'v_pk_fma_f32 {v2(acc + r)}, {v2(acc + r)}, {v2(scale)}, {v2(xr + r)}')
        for q in (2 * g, 2 * g + 1):
            k(f'v_cvt_pk_bf16_f32 v{xo + q}, v{acc + 2 * q}, v{acc + 2 * q + 1}')
        if g == 1 and Lfin is None:
            publish(k, [f'buffer_store_dwordx4 {v4(xo)}, v{vL16}, s[8:11], s{sXADR} offen'])
    if Lfin:
        if LAYER == 1:
            k(f's_branch {Lfin}')
            return
        if LAYER is None:
            k(f's_cmp_eq_u32 s{sL}, 1')
            k(f's_cbranch_scc1 {Lfin}')
        publish(k, [f'buffer_store_dwordx4 {v4(xo)}, v{vL16}, s[8:11], s{sXADR} offen'])
    publish(k, [f'buffer_store_dwordx4 {v4(xo + 4)}, v{vL16}, s[8:11], s{sXADR} offen offset:1024'])
    k(f'v_mov_b32 v{vT0}, 0')
    k(f'v_mov_b32 v{vT1}, 0')
    emit(k, stats_ops(xo, 8, vT0, vT1, vONES))
    k(f"""
    v_permlane32_swap_b32 v{vT0}, v{vT1}
    v_add_f32 v{vT0}, v{vT0}, v{vT1}
    """)
    publish(k, [f'buffer_store_dword v{vT0}, v{vSTO}, s[8:11], s{sSADR} offen'])
    set_flag(k, sflag, val)


def rowmajor_addr(k):
    k(f"""
    v_mul_u32_u24 v{vT0}, 896, v{vN}
    v_lshl_add_u32 v{vT0}, v{vHH}, 4, v{vT0}
    s_mul_i32 s{sT0}, s{sTT3}, {32 * 896}
    s_lshl_b32 s{sT1}, s{sFT}, 6
    s_add_u32 s{sT0}, s{sT0}, s{sT1}
    """)


def phase_P3(k):
    ACC, XO = SK_ACC, SK_XO
    O_R = 192
    Lskip, Lj = k.newlabel('p3_skip'), k.newlabel('p3_join')
    k(f's_cmp_eq_u32 s{sACT}, 0')
    k(f's_cbranch_scc1 {Lskip}')
    La, Lb = k.newlabel('p3_l1'), k.newlabel('p3_res')
    if LAYER is None:
        k(f's_cmp_lg_u32 s{sL}, 0')
        k(f's_cbranch_scc1 {La}')
    if LAYER != 1:
        rowmajor_addr(k)
        k(f"""
        buffer_load_dwordx4 {v4(XO)}, v{vT0}, s[20:23], s{sT0} offen
        buffer_load_dwordx4 {v4(XO + 4)}, v{vT0}, s[20:23], s{sT0} offen offset:32
        """)
    if LAYER is None:
        k(f's_branch {Lb}')
        k.label(La, pad=False)
        k.vm_seq -= 2
        for r in parse_reg(f'v[{XO}:{XO + 7}]'):
            k.pend.pop(r, None)
    if LAYER != 0:
        res_addr(k, sT0, f's{sX2}')
        k(f"""
        buffer_load_dwordx4 {v4(XO)}, v{vL16}, s[8:11], s{sT0} offen sc1
        buffer_load_dwordx4 {v4(XO + 4)}, v{vL16}, s[8:11], s{sT0} offen offset:1024 sc1
        """)
    k.label(Lb, pad=False)
    k(f"""
    s_and_b32 s{sT4}, s{sTT3}, -2
    s_lshl_b32 s{sT4}, s{sT4}, 7
    s_add_u32 s{sT4}, s{sT4}, {F_O}
    s_lshl_b32 s{sT1}, s{sW}, 19
    s_add_u32 s{sT1}, s{sT1}, s{sOF}
    s_lshl_b32 s{sT2}, s{sTT3}, 11
    s_add_u32 s{sT2}, s{sT2}, s{sT1}
    s_lshl_b32 s{sT3}, s{sTTo}, 11
    s_add_u32 s{sT3}, s{sT3}, s{sT1}
    """)
    emit(k, SCHED['P3_pre']())
    emit(k, red_setup() + flag_addr(sE, F_X1))
    k('s_barrier')
    emit(k, unpack_res(XO, ACC[0]))
    wait_flags(k, vFH, sT4, f's{sL1}')
    ts(k, 'P3.ready')
    for q in (1, 0):
        for i in range(8):
            if i and i % 2 == 0:
                k(f's_add_u32 s{sT2 + q}, s{sT2 + q}, {64 * 2048}')
            k(f'buffer_load_dwordx4 {v4(O_R + 32 * q + 4 * i)}, v{vL16}, s[8:11], s{sT2 + q} offen offset:{(i % 2) * 1024} sc1')

    def mf(qa, qb, ks):
        a = ACC[qa + 2 * qb]
        c = '0' if (ks == 0 and qa + qb) else v16(a)
        return dict(m=f'{MF} {v16(a)}, {v4(WO_R + 32 * qa + 4 * ks)}, {v4(O_R + 32 * qb + 4 * ks)}, {c}')
    rw = red_writes()
    M = [mf(qa, 1, ks) for ks in range(8) for qa in range(2)] + [mf(1, 0, ks) for ks in range(8)] + [mf(0, 0, ks) for ks in range(8)]
    fl = F(SCHED['P3_mm'](), earliest=2) + F(rw[2] + rw[3], earliest=18) + F(rw[1], earliest=26)
    flush(k, weave(k, M, fl, free=6, pairwait=False))
    ts(k, 'P3.mfma')
    red_finish(k)
    res_epilogue(k, XO, sE, f's{sL1}', None, None, None)
    ts(k, 'P3.pub')
    k(f's_branch {Lj}')
    k.label(Lskip, pad=False)
    emit(k, SCHED['P3_idle']())
    k.label(Lj, pad=False)
    k.drained()


P5_XO = 232
P5_ORDER = ([ks for ks in range(28) if ks % 7 < 4] + [ks for ks in range(28) if ks % 7 in (4, 5)] +
            [ks for ks in range(28) if ks % 7 == 6])
P5_SLOTS = [96 + 8 * i for i in range(6)] + [160 + 8 * i for i in range(8)]
HDEPTH = 6


def p5_reg(pos, q):
    return v4(P5_SLOTS[pos % len(P5_SLOTS)] + 4 * q)


def p5_hload(pos):
    ks = P5_ORDER[pos]
    out = []
    for q in (1, 0):
        out += [f's_add_u32 s{sT0}, s{sHB + q}, {ks * 1024}',
                f'buffer_load_dwordx4 {p5_reg(pos, q)}, v{vL16}, s[8:11], s{sT0} offen sc1']
    return out


def lvl(n):
    if LAYER is not None:
        return str(3 * LAYER + n)
    return f's{[None, sE, sCNT, sDS][n]}'


def p5_poll():
    return [f'buffer_load_dword v{vTA}, v{vFH}, s[8:11], s{sHPL} offen sc1']


def p5_check(n):
    def fn(k):
        k(f'v_cmp_gt_u32 vcc, {lvl(n)}, v{vTA}')
        k('s_nop 1')
        Lok = k.newlabel('hok')
        k(f's_cbranch_vccz {Lok}')
        st = (k.vm_seq, k.vm_done, dict(k.pend), k.pos, list(k.hist))
        wait_flags(k, vFH, sHPL, lvl(n), vFL=vTA)
        k.vm_seq, k.vm_done, k.pend, k.pos, k.hist = st
        k.label(Lok, pad=False)
    return ('call', fn)


def phase_P5(k, Lfin, epi6, hs):
    ACC, XO = SK_ACC, P5_XO
    STT, XRF = 144, 240
    Lskip, Ljoin = k.newlabel('p5_skip'), k.newlabel('p5_join')
    k(f's_cmp_eq_u32 s{sACT}, 0')
    k(f's_cbranch_scc1 {Lskip}')
    st0 = (k.vm_seq, k.vm_done, k.lg_seq, k.lg_done, dict(k.pend), k.pos, list(k.hist))

    def mf(pos, qa, qb):
        a = ACC[qa + 2 * qb]
        c = '0' if pos == 0 else v16(a)
        return f'{MF} {v16(a)}, {a4(112 * qa + 4 * P5_ORDER[pos])}, {p5_reg(pos, qb)}, {c}'
    TAIL = 5
    M = []
    for pos in range(28):
        nxt = pos + HDEPTH
        pre = []
        if nxt == 16:
            pre.append(p5_check(2))
        if nxt == 24:
            pre.append(p5_check(3))
        if nxt < 28:
            pre += p5_hload(nxt)
        if nxt in (12, 20):
            pre += p5_poll()
        M.append(dict(pre=pre, m=mf(pos, 0, 1), w=1))
        M.append(dict(m=mf(pos, 1, 1)))
        M.append(dict(m=mf(pos, 1, 0), w=1))
        if pos < 28 - TAIL:
            M.append(dict(m=mf(pos, 0, 0)))
    n0 = len(M)
    M += [dict(m=mf(pos, 0, 0)) for pos in range(28 - TAIL, 28)]
    rw = red_writes()
    wq = pf_wqkv()
    wqg = [L0(flat(wq[i:i + 4])) for i in range(0, 21, 4)]
    first_free = 4 * (28 - HDEPTH)
    fl = F(epi6, earliest=0)
    fl.append((26, None, ('call', lambda k: set_flag(k, sHFL, lvl(3), h=hs[6]))))
    fl.append((27, None, ('call', lambda k: res_addr(k, sT2, f's{sX1}'))))
    fl += F([f'buffer_load_dwordx4 {v4(XO)}, v{vL16}, s[8:11], s{sT2} offen sc1',
             f'buffer_load_dwordx4 {v4(XO + 4)}, v{vL16}, s[8:11], s{sT2} offen offset:1024 sc1'], earliest=27)
    sl = [x.replace(f's{sT0}', f's{sT3}') for x in stats_loads(sST1, sTT3, STT)]
    fl += F(sl, earliest=29)
    fl += F(stats_math(STT) + [f'v_mul_f32 v{MB}, v{vR}, v{vR}', f'v_mul_f32 v{MB + 1}, v{vR}, v{vR}'] +
            unpack_res(XO, XRF), earliest=52)
    fl.append((52, None, ('call', lambda k: emit(k, [x.replace(f's{sT0}', f's{sT3}') for x in red_setup()] + flag_addr(sT5, F_XIN)))))
    fl.append((first_free - 2, first_free, 's_barrier'))
    for i, g in enumerate(wqg):
        fl += F([g], earliest=first_free + 2 * i)
    fl += F(rw[2] + rw[3] + rw[1], earliest=n0)
    flush(k, weave(k, M, fl, free=6, pairwait=False))
    ts(k, 'P5.mfma')
    red_finish(k)
    res_epilogue(k, XO, sT5, '1', MB, XRF, Lfin)
    if LAYER != 1:
        ts(k, 'P5.pub')
        k(f's_branch {Ljoin}')
    k.label(Lskip, pad=False)
    k.vm_seq, k.vm_done, k.lg_seq, k.lg_done, k.pend, k.pos, k.hist = st0[0], st0[1], st0[2], st0[3], dict(st0[4]), st0[5], list(st0[6])
    emit(k, epi6)
    set_flag(k, sHFL, lvl(3))
    if LAYER == 1:
        k('s_branch MAIN_tail')
        return
    if LAYER is None:
        k(f's_cmp_eq_u32 s{sL}, 1')
        k('s_cbranch_scc1 MAIN_tail')
    k('s_barrier')
    emit(k, flat(pf_wqkv()))
    k.label(Ljoin, pad=False)
    k('s_waitcnt vmcnt(0) lgkmcnt(0)')
    k.drained()
    k('s_barrier')


def phase_P4(k, Lfin):
    XB = 32
    ACC = [144, 160, 176]
    WB, NB, PF = 192, 8, 6
    ET = 224
    k(f"""
    s_lshl_b32 s{sT4}, s{sTT}, 7
    s_add_u32 s{sT4}, s{sT4}, {F_X1}
    s_mul_i32 s{sT3}, s{sTT}, {28 * 1024}
    s_add_u32 s{sT3}, s{sT3}, s{sX1}
    """)
    k('s_waitcnt vmcnt(0)')
    if LAYER is None:
        k(f's_cmp_lg_u32 s{sL}, 0')
        k.skip_begin('s_cbranch_scc1')
        emit(k, cs13_build())
        k.skip_end()
    elif LAYER == 0:
        emit(k, cs13_build())
    k('s_barrier')
    emit(k, SCHED['P4_pre']())
    acc_of = [0, 1, 2, 0, 1, 2, 0]
    seq = [(i, ks) for ks in range(29) for i in range(2)] + [(i, ks) for i in range(2, 7) for ks in range(29)]
    start = {i: 58 + 29 * (i - 2) for i in range(2, 7)}
    endi = {0: 56, 1: 57}
    endi.update({i: start[i] + 28 for i in range(2, 7)})

    def wread(n):
        i, ks = seq[n]
        if ks == 28:
            return f'ds_read_b128 {v4(WB + 4 * (n % NB))}, v{vSCR} offset:{1024 + 1024 * i}'
        s = W13_SLOT[i]
        base = {0: vL16, 1: vL16, 2: vL2S, 3: vL2S, 4: vL4S}[s]
        off = (s % 2) * SLOT + ks * 1024 if s < 4 else ks * 1024
        return f'ds_read_b128 {v4(WB + 4 * (n % NB))}, v{base} offset:{off}'

    def mf(n):
        i, ks = seq[n]
        a = v16(ACC[acc_of[i]])
        b = v4(MB) if ks == 28 else v4(XB + 4 * ks)
        return f'{MF} {a}, {v4(WB + 4 * (n % NB))}, {b}, {"0" if ks == 0 else a}'
    for n in range(PF):
        k(wread(n))
    wait_flags(k, vF14, sT4, f's{sL1}')
    ts(k, 'P4.ready')
    xl = load_chunks([v4(XB + 4 * i) for i in range(28)], sT3, sT2, pol=' sc1')
    for i in range(4):
        emit(k, xl[i])
    emit(k, stats_loads(sST1, sTT, ET))
    for i in range(4, XDEPTH):
        emit(k, xl[i])

    def epi(i):
        a = ACC[acc_of[i]]
        out = []
        e0 = ET + 8 * (i % 2)
        for r in range(8):
            out.append(f'v_mul_f32 v{e0 + r}, v{vKE}, v{a + r}')
        for r in range(8):
            out.append(f'v_exp_f32 v{e0 + r}, v{e0 + r}')
            out.append(f'v_mul_f32 v{a + r}, v{a + r}, v{a + 8 + r}')
        for r in range(8):
            out.append(f'v_add_f32 v{e0 + r}, 1.0, v{e0 + r}')
        for r in range(8):
            out.append(f'v_rcp_f32 v{e0 + r}, v{e0 + r}')
            if r:
                out.append(f'v_mul_f32 v{a + r - 1}, v{a + r - 1}, v{e0 + r - 1}')
        out.append(f'v_mul_f32 v{a + 7}, v{a + 7}, v{e0 + 7}')
        o = 240 + 4 * (i % 2)
        for q in range(4):
            out.append(f'v_cvt_pk_bf16_f32 v{o + q}, v{a + 2 * q}, v{a + 2 * q + 1}')

        def st(k):
            if i == 4:
                k(f's_add_u32 s{sHOFF}, s{sHOFF}, 4096')
            st_ = f'buffer_store_dwordx4 {v4(o)}, v{vL16}, s[8:11], s{sHOFF} offen offset:{(i % 4) * 1024}'
            if MODE == 'fast' and LAYER is not None:
                k(st_ + (' sc1' if (LAYER == 0 and not HPLAIN) else ''))
            elif MODE == 'fast':
                La, Lb = k.newlabel('h0'), k.newlabel('h1')
                k(f's_cmp_eq_u32 s{sL}, 0')
                k(f's_cbranch_scc1 {La}')
                k(st_)
                k(f's_branch {Lb}')
                k.label(La, pad=False)
                k.vm_seq -= 1
                k.pos -= 2
                k(st_ + ' sc1')
                k.label(Lb, pad=False)
            else:
                publish(k, [st_])
            hs[i] = k.vm_mark()
        out.append(('call', st))
        return out
    hs, hd = {}, {}

    def mark(name):
        def fn(k):
            hd[name] = k.vm_mark()
        return ('call', fn)

    def bar(name, tsn):
        def fn(k):
            k.wait_vm(hd[name])
            k.barrier()
            ts(k, tsn)
        return ('call', fn)
    b1, b2 = start[3] - PF, start[5] - PF
    M = []
    for n in range(len(seq)):
        pre = []
        if n == b1:
            pre.append(bar('t34', 'P4.b1'))
        if n == b2:
            pre.append(bar('t56', 'P4.b2'))
        if n + PF < len(seq):
            pre.append(wread(n + PF))
        i, ks = seq[n]
        if n < 58 and i == 0 and ks + XDEPTH < 28:
            pre += xl[ks + XDEPTH]
        M.append(dict(pre=pre, m=mf(n), need=[v4(WB + 4 * (n % NB))], w=1 if (n < 56 and i == 0) else 0))
    nx = 2 * (28 - XDEPTH)
    fl = F(stats_math(ET) + mb_fill() + [f'v_mul_f32 v{vKE}, {f32bits(-LOG2E)}, v{vR}'], earliest=6, deadline=54)
    fl += F(lines(f"""
    s_lshl_b32 s{sHFL}, s{sTT}, 7
    s_lshl_b32 s{sT1}, s{sIDX}, 2
    s_add_u32 s{sHFL}, s{sHFL}, s{sT1}
    s_add_u32 s{sHFL}, s{sHFL}, {F_H}
    s_and_b32 s{sHPL}, s{sTT3}, -2
    s_lshl_b32 s{sHPL}, s{sHPL}, 7
    s_add_u32 s{sHPL}, s{sHPL}, {F_H}
    s_mul_i32 s{sT1}, s{sW}, {28 * 1024}
    s_add_u32 s{sT1}, s{sT1}, s{sHF}
    s_mul_i32 s{sHB}, s{sTT3}, {112 * 1024}
    s_add_u32 s{sHB}, s{sHB}, s{sT1}
    s_mul_i32 s{sHB + 1}, s{sTTo}, {112 * 1024}
    s_add_u32 s{sHB + 1}, s{sHB + 1}, s{sT1}
    """), earliest=6)
    fl.append((6, None, ('call', lambda k: (res_addr(k, sXADR, f's{sX2}'), st_addr(k, sSADR, f's{sST2}')))))
    c34 = pf_w13(3) + pf_w13(4)
    for j, c in enumerate(c34):
        fl += F(c, earliest=nx + (j * 3) // 2, deadline=b1 - 8)
    fl.append((0, b1 - 8, mark('t34')))
    fl += F(flat(SCHED['P4_p1']()), earliest=58)

    def interleave(ep, mem, e0, dl):
        out = []
        step = max(1, len(ep) // (len(mem) + 1)) if mem else 10 ** 9
        mem = list(mem)
        for j, x in enumerate(ep):
            out.append(x)
            if mem and j % step == step - 1:
                out += mem.pop(0)
        for m in mem:
            out += m
        return F(out, earliest=e0, deadline=dl)
    S4 = SCHED['P4_mid']()
    n4 = len(S4)
    fl += interleave(epi(0), [], endi[0] + 3, start[3])
    fl += interleave(epi(1), [], endi[1] + 3, start[4])
    c56 = pf_w13(5) + pf_w13(6) + [[mark('t56')]]
    fl += interleave(epi(2), c56, max(endi[2] + 3, b1 + 1), b2 - 10)
    fl += interleave(epi(3), S4[:n4 // 2], endi[3] + 3, start[5] + 8)
    if LAYER is None:
        fl += F(lines(f"""
        s_mul_i32 s{sE}, s{sL}, 3
        s_add_u32 s{sCNT}, s{sE}, 2
        s_add_u32 s{sE}, s{sE}, 1
        """), earliest=0)
    fl += interleave(epi(4)[:30], S4[n4 // 2:], endi[4] + 3, start[6])
    fl.append((start[5] + 16, start[6], ('call', lambda k: set_flag(k, sHFL, lvl(1), h=hs[3]))))
    fl += F(epi(4)[30:], earliest=0, deadline=start[6] + 4)
    fl += interleave(epi(5), [], endi[5] + 3, len(seq) - 8)
    M[start[6] + 8]['pre'] += p5_poll()
    for p in range(HDEPTH):
        n = start[6] + 18 + 2 * p
        M[n]['pre'] = M[n]['pre'] + ([p5_check(1)] if p == 0 else []) + p5_hload(p)
    rest = weave(k, M, fl, free=P4FREE)
    flush(k, rest)
    if LAYER is None:
        k(f's_add_u32 s{sDS}, s{sE}, 2')
    set_flag(k, sHFL, lvl(2), h=hs[5])
    ts(k, 'P4.mfma')
    phase_P5(k, Lfin, epi(6), hs)


def phase_G(k):
    A_X, A_Q, A_K, A_V, WB, RT = 32, 144, 160, 176, 192, 240
    NB, PF = 6, 4
    NQ1 = GNQ1
    k(f"""
    s_lshl_b32 s{sT4}, s{sTT}, 7
    s_add_u32 s{sT4}, s{sT4}, {F_XIN}
    s_mul_i32 s{sT3}, s{sTT}, {28 * 1024}
    s_add_u32 s{sT3}, s{sT3}, s{sX2}
    """)
    seq = []
    for ks in range(29):
        seq += [('K', ks), ('V', ks)]
        if ks < NQ1:
            seq.append(('Q', ks))
    n1 = len(seq)
    seq += [('Q', ks) for ks in range(NQ1, 29)]
    pidx = {'Q': 0, 'K': 1, 'V': 2}

    def wread(n):
        p, ks = seq[n]
        b = v4(WB + 4 * (n % NB))
        if ks == 28:
            return f'ds_read_b128 {b}, v{vSCR} offset:{9216 + 1024 * pidx[p]}'
        if p == 'V':
            return f'ds_read_b128 {b}, v{vL16b} offset:{ks * 1024}'
        return f'ds_read_b128 {b}, v{vL16} offset:{(pidx[p] * 28 + ks) * 1024}'

    def mf(n):
        p, ks = seq[n]
        b = v4(WB + 4 * (n % NB))
        x = v4(MB) if ks == 28 else v4(A_X + 4 * ks)
        a = {'Q': A_Q, 'K': A_K, 'V': A_V}[p]
        c = '0' if ks == 0 else v16(a)
        if p == 'V':
            return f'{MF} {v16(a)}, {x}, {b}, {c}'
        return f'{MF} {v16(a)}, {b}, {x}, {c}'
    for n in range(PF):
        k(wread(n))
    emit(k, SCHED['G_pre']())
    ts(k, 'G.start')
    wait_flags(k, vF14, sT4, '1')
    ts(k, 'G.ready')
    xl = load_chunks([v4(A_X + 4 * i) for i in range(28)], sT3, sT2, pol=' sc1')
    STT = 216
    for i in range(4):
        emit(k, xl[i])
    emit(k, stats_loads(sST2, sTT, STT))
    for i in range(4, XDEPTH):
        emit(k, xl[i])
    M = []
    for n in range(len(seq)):
        pre = [wread(n + PF)] if n + PF < len(seq) else []
        p, ks = seq[n]
        if p == 'K' and ks + XDEPTH < 28:
            pre = pre + xl[ks + XDEPTH]
        M.append(dict(pre=pre, m=mf(n), need=[v4(WB + 4 * (n % NB))], w=1 if p == 'K' else 0))
    gather = lines(f"""
    s_lshl_b32 s{sT0}, s{sW}, 8
    s_add_u32 s{sT0}, s{sT0}, {SCR}
    v_lshlrev_b32 v{vT0}, 2, v{vN}
    v_add_u32 v{vT0}, s{sT0}, v{vT0}
    ds_write_b32 v{vT0}, v{vR}
    v_lshlrev_b32 v{vT1}, 4, v{vHH}
    v_add_u32 v{vT1}, s{sT0}, v{vT1}
    """) + [f'ds_read_b128 {v4(RT + 4 * g)}, v{vT1} offset:{32 * g}' for g in range(4)]
    fl = F(stats_math(STT) + mb_fill() + gather, earliest=8, deadline=n1 - 6)
    fl += F(lines(f"""
    s_lshl_b32 s{sT0}, s{sIDX}, 6
    s_add_u32 s{sT0}, s{sT0}, s{sTT}
    s_lshl_b32 s{sT4}, s{sT0}, 2
    s_add_u32 s{sT4}, s{sT4}, {F_KV}
    s_lshl_b32 s{sT5}, s{sT0}, 12
    s_add_u32 s{sT5}, s{sT5}, s{sKV}
    """), earliest=8)
    ep = []
    for r in range(16):
        ep.append(f'v_mul_f32 v{A_K + r}, v{vR}, v{A_K + r}')
    for q in range(8):
        ep.append(f'v_cvt_pk_bf16_f32 v{KF + q}, v{A_K + 2 * q}, v{A_K + 2 * q + 1}')
    for i in range(2):
        ep.append(f'buffer_store_dwordx4 {v4(KF + 4 * i)}, v{vL16}, s[8:11], s{sT5} offen offset:{1024 * i} sc1')
    for r in range(16):
        ep.append(f'v_mul_f32 v{A_V + r}, v{RT + r}, v{A_V + r}')
    for q in range(8):
        ep.append(f'v_cvt_pk_bf16_f32 v{VF + q}, v{A_V + 2 * q}, v{A_V + 2 * q + 1}')
        ep.append(f'v_cndmask_b32 v{VF + q}, v{VF + q}, v{vONES}, s[{sN28}:{sN28 + 1}]')
    for i in range(2, 4):
        ep.append(f'buffer_store_dwordx4 {v4(KF + 4 * i)}, v{vL16}, s[8:11], s{sT5} offen offset:{1024 * i} sc1')
    hk = {}
    ep.append(('call', lambda k: hk.__setitem__('h', k.vm_mark())))
    for i in range(4):
        ep.append(f'ds_write_b128 v{vKVA}, {v4(KF + 4 * i)} offset:{8 * 4096 + 1024 * i}')
    ep += SCHED['G_q']()
    fl += F(ep, earliest=n1 + 1)
    fl.append((len(seq) - 2, None, ('call', lambda k: set_flag(k, sT4, '2', always_sc1=True, h=hk['h']))))
    flush(k, weave(k, M, fl, free=6))
    ts(k, 'G.mfma')
    k(f'v_mul_f32 v{vT0}, {f32bits(28 ** -0.5 * LOG2E)}, v{vR}')
    for r in range(16):
        k(f'v_mul_f32 v{A_Q + r}, v{vT0}, v{A_Q + r}')
    for q in range(8):
        k(f'v_cvt_pk_bf16_f32 v{QF + q}, v{A_Q + 2 * q}, v{A_Q + 2 * q + 1}')
    k(f'v_mov_b32 v{vT1}, 0x3f80')
    k(f'v_cndmask_b32 v{QF + 6}, v{QF + 6}, v{vT1}, s[{sHI}:{sHI + 1}]')
    ts(k, 'G.pub')
    k.barrier()


F_DUTY = 3 * SLOT
F_SCR = SCR
F_CSX = LDS_BYTES - 1536
F_XR = F_DUTY + 29184
OOBS = 0x20000000


def _exper():
    if '-nodutyslow' in sys.argv:
        return f's_bitcmp1_b32 0xAA54, s{sIDX}\n    s_cbranch_scc1 F_none'
    if '-noduty' in sys.argv:
        return 's_branch F_none'
    return ''


def front(k):
    EXPER = _exper()
    T0, T1, T2, T3, T4, T5 = sT0, sT1, sT2, sT3, sT4, sT5
    sKIND, sDST, sCSD, sA1, sWOFF, sPIT, sSRC, sXRB = 88, 89, 90, 91, 92, 93, 94, 95
    sPAD, sHP, sXT, sIMG, sXS, sZM, sSA, sSB, sD8 = 72, 74, 77, 78, 79, 80, 82, 83, 84
    vTR, vTR2, vXO, vDT, vS1, vS2, vCSK, vCSV, vCSQ, vIMG, vOQ, vOQ2, vDS = 5, 6, 7, 9, 10, 14, 15, 16, 17, 19, 26, 27, 144
    X, AQ, AK, AV, WB, RT = 32, 144, 160, 176, 192, 240
    NB, PF = 6, 4
    XA = 240
    k(f"""
    v_and_b32 v{vT0}, 3, v{vLANE}
    v_lshrrev_b32 v{vT1}, 2, v{vLANE}
    s_lshl_b32 s{T0}, s{sRB}, 2
    v_add_u32 v{vT2}, s{T0}, v{vT0}
    v_lshlrev_b32 v{vT3}, 7, v{vT2}
    s_lshl_b32 s{T1}, s{sIDX}, 2
    s_add_u32 s{T1}, s{T1}, {F_O}
    v_add_u32 v{vT3}, s{T1}, v{vT3}                  ; F_O
    v_and_b32 v5, 1, v{vT1}
    v_lshl_add_u32 v{vT3}, v5, 14, v{vT3}            ; kind 1: F_H = F_O + 16384
    s_and_b32 s{T0}, s{sTT3}, -2
    s_and_b32 s{T1}, s{sFT}, -2
    v_lshrrev_b32 v6, 1, v{vT0}
    v_add_u32 v6, s{T0}, v6                          ; tt3
    v_and_b32 v7, 1, v{vT0}
    v_add_u32 v7, s{T1}, v7                          ; ft
    v_lshlrev_b32 v6, 7, v6
    v_lshl_add_u32 v6, v7, 2, v6
    v_add_u32 v6, {F_XIN}, v6
    v_lshl_add_u32 v6, v5, 14, v6
    v_cmp_le_u32 vcc, 2, v{vT1}
    s_lshl_b32 s{T0}, s{sIDX}, 8
    s_add_u32 s{T0}, s{T0}, {F_KV}
    v_cndmask_b32 v{vT3}, v{vT3}, v6, vcc
    v_lshlrev_b32 v6, 2, v{vT2}
    v_add_u32 v6, s{T0}, v6
    v_cmp_le_u32 vcc, 4, v{vT1}
    s_lshl_b32 s{T0}, s2, 7
    s_add_u32 s{T0}, s{T0}, {F_PK}
    v_cndmask_b32 v{vT3}, v{vT3}, v6, vcc
    v_mov_b32 v6, s{T0}
    v_cmp_le_u32 vcc, 5, v{vT1}
    s_cmp_eq_u32 s{sW}, 0
    s_cselect_b32 s{T0}, 0, {OOBS}
    v_cndmask_b32 v{vT3}, v{vT3}, v6, vcc
    s_mov_b64 exec, 0x1fffff
    buffer_store_dword v{vZERO}, v{vT3}, s[8:11], s{T0} offen sc1
    s_mov_b64 exec, -1
    """)
    h_zero = k.vm_mark()
    assert F_H - F_O == 16384 and F_X1 - F_XIN == 16384
    k(f"""
    s_mov_b32 s64, s74
    s_mov_b32 s65, s75
    s_mov_b32 s66, {448 * 1344 * 2}
    s_mov_b32 s67, 0x00020000
    s_mov_b32 s71, 0x00020000
    """)
    Lw2, Lwo, Lnone, Ldec = 'F_w2', 'F_wo', 'F_none', 'F_dec'
    k(f"""
    s_lshr_b32 s{T4}, s{sW}, 1
    s_and_b32 s{T5}, s{sW}, 1
    s_cmp_ge_u32 s2, 182
    s_cbranch_scc1 {Lnone}
    {EXPER}
    s_cmp_ge_u32 s2, 168
    s_cbranch_scc1 {Lwo}
    s_cmp_ge_u32 s2, 112
    s_cbranch_scc1 {Lw2}
    s_lshr_b32 s{T0}, s2, 2
    s_and_b32 s{T1}, s2, 3
    s_cmp_eq_u32 s{T4}, 1
    s_cselect_b32 s68, s82, s80
    s_cselect_b32 s69, s83, s81
    s_mov_b32 s70, {448 * 1792 * 2}
    s_mov_b32 s{sKIND}, 0
    s_mov_b32 s{sPIT}, 3584
    s_mul_i32 s{sSRC}, s{T1}, 112
    s_mul_i32 s{T2}, s{T5}, 56
    s_add_u32 s{sSRC}, s{sSRC}, s{T2}
    s_mul_i32 s{sSRC}, s{sSRC}, 3584
    s_lshl_b32 s{T2}, s{T0}, 7
    s_add_u32 s{sSRC}, s{sSRC}, s{T2}
    s_lshl_b32 s{T2}, s{T0}, 2
    s_add_u32 s{T2}, s{T2}, s{sW}
    s_mul_i32 s{sDST}, s{T2}, 28
    s_mul_i32 s{T0}, s{T1}, 7
    s_add_u32 s{sDST}, s{sDST}, s{T0}
    s_lshl_b32 s{sDST}, s{sDST}, 10
    s_add_u32 s{sDST}, s{sDST}, {W13_P}
    s_mul_i32 s{sCSD}, s{T1}, 112
    s_add_u32 s{sCSD}, s{sCSD}, s{T2}
    s_lshl_b32 s{sCSD}, s{sCSD}, 7
    s_add_u32 s{sCSD}, s{sCSD}, {CSP_13}
    s_mov_b32 s{sA1}, 14336
    s_lshl_b32 s{sWOFF}, s{sW}, 5
    s_branch {Ldec}
    """)
    k.label(Lw2, pad=False)
    k(f"""
    s_sub_u32 s{T0}, s2, 112
    s_and_b32 s{T1}, s{T0}, 7
    s_lshr_b32 s{T0}, s{T0}, 3
    s_mov_b32 s68, s84
    s_mov_b32 s69, s85
    s_mov_b32 s70, {1792 * 448 * 2}
    s_mov_b32 s{sKIND}, 1
    s_mov_b32 s{sPIT}, 896
    s_mul_i32 s{sSRC}, s{T1}, 224
    s_mul_i32 s{T2}, s{sW}, 56
    s_add_u32 s{sSRC}, s{sSRC}, s{T2}
    s_mul_i32 s{sSRC}, s{sSRC}, 896
    s_lshl_b32 s{T2}, s{T0}, 7
    s_add_u32 s{sSRC}, s{sSRC}, s{T2}
    s_lshl_b32 s{T2}, s{T0}, 1
    s_add_u32 s{T2}, s{T2}, s{T5}
    s_mul_i32 s{sDST}, s{T2}, 112
    s_mul_i32 s{T0}, s{T1}, 14
    s_add_u32 s{sDST}, s{sDST}, s{T0}
    s_mul_i32 s{T0}, s{T4}, 7
    s_add_u32 s{sDST}, s{sDST}, s{T0}
    s_lshl_b32 s{sDST}, s{sDST}, 10
    s_add_u32 s{sDST}, s{sDST}, {W2_P}
    s_mov_b32 s{sCSD}, 0
    s_mov_b32 s{sA1}, 32
    s_mul_i32 s{sWOFF}, s{T4}, {112 * 128}
    s_lshl_b32 s{T0}, s{T5}, 6
    s_add_u32 s{sWOFF}, s{sWOFF}, s{T0}
    s_branch {Ldec}
    """)
    k.label(Lwo, pad=False)
    k(f"""
    s_sub_u32 s{T0}, s2, 168
    s_and_b32 s{T1}, s{T0}, 1
    s_lshr_b32 s{T0}, s{T0}, 1
    s_mov_b32 s68, s76
    s_mov_b32 s69, s77
    s_mov_b32 s70, {448 * 448 * 2}
    s_mov_b32 s{sKIND}, 2
    s_mov_b32 s{sPIT}, 896
    s_mul_i32 s{sSRC}, s{T1}, 224
    s_mul_i32 s{T2}, s{sW}, 56
    s_add_u32 s{sSRC}, s{sSRC}, s{T2}
    s_mul_i32 s{sSRC}, s{sSRC}, 896
    s_lshl_b32 s{T2}, s{T0}, 7
    s_add_u32 s{sSRC}, s{sSRC}, s{T2}
    s_lshl_b32 s{T2}, s{T0}, 1
    s_add_u32 s{T2}, s{T2}, s{T5}
    s_lshl_b32 s{sDST}, s{T2}, 5
    s_lshl_b32 s{T0}, s{T1}, 4
    s_add_u32 s{sDST}, s{sDST}, s{T0}
    s_lshl_b32 s{T0}, s{T4}, 3
    s_add_u32 s{sDST}, s{sDST}, s{T0}
    s_lshl_b32 s{sDST}, s{sDST}, 10
    s_add_u32 s{sDST}, s{sDST}, {WO_P}
    s_mov_b32 s{sCSD}, 0
    s_mov_b32 s{sA1}, 32
    s_mul_i32 s{sWOFF}, s{T4}, {112 * 128}
    s_lshl_b32 s{T0}, s{T5}, 6
    s_add_u32 s{sWOFF}, s{sWOFF}, s{T0}
    s_branch {Ldec}
    """)
    k.label(Lnone, pad=False)
    k(f"""
    s_mov_b32 s68, s76
    s_mov_b32 s69, s77
    s_mov_b32 s70, 0
    s_mov_b32 s{sKIND}, 3
    s_mov_b32 s{sPIT}, 0
    s_mov_b32 s{sSRC}, 0
    s_mov_b32 s{sDST}, 0
    s_mov_b32 s{sCSD}, 0
    s_mov_b32 s{sA1}, 0
    s_mov_b32 s{sWOFF}, 0
    """)
    k.label(Ldec, pad=False)
    k(f"""
    v_lshrrev_b32 v{vT1}, 3, v{vLANE}
    v_mul_lo_u32 v{vDS}, v{vT1}, s{sPIT}
    v_and_b32 v{vT2}, 7, v{vLANE}
    v_lshl_add_u32 v{vDS}, v{vT2}, 4, v{vDS}
    s_lshl_b32 s{sPIT}, s{sPIT}, 3
    v_xor_b32 v{vT2}, v{vT2}, v{vT1}
    v_mul_u32_u24 v{vXO}, 896, v{vT1}
    v_lshl_add_u32 v{vXO}, v{vT2}, 4, v{vXO}
    v_lshrrev_b32 v{vIMG}, 2, v{vLANE}
    v_mul_u32_u24 v{vIMG}, 2688, v{vIMG}
    v_and_b32 v{vT1}, 3, v{vLANE}
    v_lshl_add_u32 v{vIMG}, v{vT1}, 4, v{vIMG}
    s_mul_i32 s{sIMG}, s{sW}, {7 * 16 * 2688}
    s_mul_i32 s{T2}, s{sIDX}, 56
    s_add_u32 s{sIMG}, s{sIMG}, s{T2}
    s_mul_i32 s{sXS}, s{sTT}, {32 * 896}
    """)
    hx, himg = {}, {}
    def xslot(c):
        return [0, 1, 2, 0, 1, 2, 1][c]

    def xbase(c):
        return [(sLW, 0), (sXRB, 0), (sXRB, 4096)][xslot(c)]

    def duty_dma():
        for i in range(7):
            k(f's_add_u32 m0, s{sLW}, {F_DUTY + i * 1024}')
            k(f'buffer_load_dwordx4 v{vDS}, s[68:71], s{sSRC} offen lds')
            k(f's_add_u32 s{sSRC}, s{sSRC}, s{sPIT}')

    def xdma(c):
        b, o = xbase(c)
        for i in range(4):
            k(f's_add_u32 m0, s{b}, {o + i * 1024}')
            k(f's_add_u32 s{sXT}, s{sXS}, {i * 8 * 896 + c * 128}')
            k(f'buffer_load_dwordx4 v{vXO}, s[20:23], s{sXT} offen lds')
        hx[c] = k.vm_mark()

    def img_dma(p):
        for i in range(7):
            k(f's_add_u32 m0, s{sLW}, {p * SLOT + i * 1024}')
            k(f's_add_u32 s{sXT}, s{sIMG}, {i * 16 * 2688 + p * 896}')
            k(f'buffer_load_dwordx4 v{vIMG}, s[64:67], s{sXT} offen lds')
        himg[p] = k.vm_mark()
    k(f"""
    s_lshl_b32 s{sXRB}, s{sW}, 13
    s_add_u32 s{sXRB}, s{sXRB}, {F_XR}
    """)
    if CODEPF:
        k(f"""
        s_getpc_b64 s[{sTS}:{sTS + 1}]
        s_lshr_b32 s{T0}, s2, 3
        s_lshl_b32 s{T0}, s{T0}, 2
        s_add_u32 s{T0}, s{T0}, s{sW}
        s_lshl_b32 s{T0}, s{T0}, 9
        v_min_u32 v{vT1}, 3, v{vLANE}
        v_lshlrev_b32 v{vT1}, 7, v{vT1}
        v_add_u32 v{vT1}, s{T0}, v{vT1}
        v_min_u32 v{vT1}, {CODEPF}, v{vT1}
        global_load_dword v{vDUM}, v{vT1}, s[{sTS}:{sTS + 1}]
        """)
    if WARM:
        k(f"""
        s_lshr_b32 s{T0}, s2, 3
        s_lshl_b32 s{T0}, s{T0}, 2
        s_add_u32 s{T0}, s{T0}, s{sW}
        v_lshlrev_b32 v{vT1}, 7, v{vLANE}
        s_mul_i32 s{T2}, s{T0}, {74 * 128}
        buffer_load_dword v{vDUM}, v{vT1}, s[64:67], s{T2} offen
        v_min_u32 v{vT2}, 9, v{vLANE}
        v_lshlrev_b32 v{vT2}, 7, v{vT2}
        s_add_u32 s{T2}, s{T2}, 8192
        buffer_load_dword v{vDUM}, v{vT2}, s[64:67], s{T2} offen
        v_min_u32 v{vT2}, 13, v{vLANE}
        v_lshlrev_b32 v{vT2}, 7, v{vT2}
        s_lshr_b32 s{T2}, s{sRB}, 1
        s_mul_i32 s{T2}, s{T2}, {256 * 896}
        s_mul_i32 s{T0}, s{T0}, 1792
        s_add_u32 s{T2}, s{T2}, s{T0}
        buffer_load_dword v{vDUM}, v{vT2}, s[20:23], s{T2} offen
        """)
    set_layer(k, 0)
    if PROPOS == 0:
        emit(k, [x.replace(f'v{vTA},', f'v{vT3},').replace(f'v{vTA}', f'v{vT3}') for x in SCHED['PRO']()])
    if DUTYPOS == 0:
        duty_dma()
    xdma(0)
    xdma(1)
    xdma(2)
    img_dma(1)
    k.wait_vm(h_zero)
    signal(k)
    if DUTYPOS == 1:
        duty_dma()
    ts(k, 'F.issued')
    k(f"""
    v_lshlrev_b32 v{vT1}, 3, v{vHH}
    v_bfe_u32 v{vT2}, v{vLANE}, 2, 2
    v_add_u32 v{vT1}, v{vT1}, v{vT2}
    v_and_b32 v{vT2}, 1, v{vLANE}
    v_lshlrev_b32 v{vT2}, 4, v{vT2}
    v_bfe_u32 v{vT3}, v{vLANE}, 1, 1
    v_lshl_or_b32 v{vT2}, v{vT3}, 3, v{vT2}
    v_bfe_u32 v{vT3}, v{vLANE}, 4, 1
    v_lshl_add_u32 v{vTR}, v{vT1}, 6, v{vT2}
    v_lshl_add_u32 v{vTR}, v{vT3}, 5, v{vTR}
    v_add_u32 v{vTR2}, {2 * SLOT}, v{vTR}
    v_lshl_add_u32 v{vDT}, v{vT1}, 7, v{vT2}
    v_mad_u32_u24 v{vDT}, v{vT3}, s{sA1}, v{vDT}
    s_add_u32 s{T0}, s{sWOFF}, {F_DUTY}
    v_add_u32 v{vDT}, s{T0}, v{vDT}
    v_add_u32 v{vOQ}, s{sLW}, v{vTR}
    v_add_u32 v{vOQ2}, s{sLW}, v{vTR2}
    v_mov_b32 v{vS1}, 0
    v_mov_b32 v{vS2}, 0
    v_mov_b32 v{vCSK}, 0
    v_mov_b32 v{vCSV}, 0
    v_mov_b32 v{vCSQ}, 0
    v_cmp_le_u32 s[{sPAD}:{sPAD + 1}], 28, v{vN}
    s_sub_u32 s{T0}, s{sXRB}, s{sLW}
    """)
    for i in range(4):
        k(f"""
        v_add_u32 v{vT1}, {2 * i}, v{vHH}
        v_and_b32 v{vT2}, 7, v{vN}
        v_xor_b32 v{vT1}, v{vT1}, v{vT2}
        v_lshlrev_b32 v{vT1}, 4, v{vT1}
        v_lshl_add_u32 v{XA + i}, v{vN}, 7, v{vT1}
        v_add_u32 v{XA + i}, s{sLW}, v{XA + i}
        v_add_u32 v{XA + 4 + i}, s{T0}, v{XA + i}
        """)
    k(f's_or_b64 s[{sHP}:{sHP + 1}], s[{sHI}:{sHI + 1}], s[{sPAD}:{sPAD + 1}]')
    emit(k, setup2_salu())

    k(f"""
    s_movk_i32 s{sSA}, 2048
    s_cmp_eq_u32 s{sKIND}, 2
    s_cselect_b32 s{sSA}, 1792, s{sSA}
    s_cselect_b32 s{sSB}, 256, 0
    s_mov_b32 s{sZM}, 0
    s_cselect_b32 s{sZM + 1}, -1, 0
    s_add_u32 s{T0}, s{sDST}, 4096
    s_cmp_eq_u32 s{sKIND}, 2
    s_cselect_b32 s{sD8}, s{T0}, {OOBS}
    s_cmp_eq_u32 s{sKIND}, 0
    s_cselect_b32 s{sCSD}, s{sCSD}, {OOBS}
    s_cmp_eq_u32 s{sKIND}, 3
    s_cselect_b32 s{sDST}, {OOBS}, s{sDST}
    """)

    def x_rd(c):
        k.wait_vm(hx[c])
        for i in range(4):
            a, o = (XA + i, 0) if xslot(c) == 0 else (XA + 4 + i, 4096 * (xslot(c) - 1))
            k(f'ds_read_b128 {v4(X + 16 * c + 4 * i)}, v{a} offset:{o}')

    def x_st(c):
        emit(k, stats_ops(X + 16 * c, 16, vS1, vS2, vONES))

    def own_quarter(p, acc, buf):
        k.wait_vm(himg[p])
        base = vOQ if p < 2 else vOQ2
        for i in range(7):
            off = (p * SLOT if p < 2 else 0) + i * 1024
            k(f'ds_read_b64_tr_b16 {v2(buf + 4 * i)}, v{base} offset:{off}')
            k(f'ds_read_b64_tr_b16 {v2(buf + 4 * i + 2)}, v{base} offset:{off + 256}')
        for i in range(28):
            k(f'v_dot2_f32_bf16 v{acc}, v{buf + i}, v{vONES}, v{acc}')
        k(f"""
        v_mov_b32 v{vT0}, v{acc}
        v_permlane32_swap_b32 v{acc}, v{vT0}
        v_add_f32 v{acc}, v{acc}, v{vT0}
        s_mul_i32 s{T0}, s{sW}, 384
        s_add_u32 s{T0}, s{T0}, {F_CSX}
        v_lshlrev_b32 v{vT3}, 2, v{vN}
        v_add_u32 v{vT2}, s{T0}, v{vT3}
        ds_write_b32 v{vT2}, v{acc} offset:{128 * p}
        """)
    for c in range(3):
        x_rd(c)
    k.wait_lg()
    for c in range(3, 6):
        xdma(c)
    img_dma(2)
    ts(k, 'F.iss2')
    for c in range(3):
        x_st(c)
    own_quarter(1, vCSK, WB)
    x_rd(3)
    x_rd(4)
    k.wait_lg()
    xdma(6)
    if DUTYPOS == 2:
        duty_dma()
    ts(k, 'F.iss3')
    x_rd(5)
    for c in range(3, 6):
        x_st(c)
    own_quarter(2, vCSV, WB)
    x_rd(6)
    x_st(6)
    emit(k, ln_math(vS1, vS2, vT0, vT1, vM, vR) + mb_fill())
    k(f'v_lshlrev_b32 v{vT3}, 2, v{vN}')
    k(f'v_add_u32 v{vS1}, {F_CSX}, v{vT3}')
    gather = lines(f"""
    s_lshl_b32 s{T0}, s{sW}, 8
    s_add_u32 s{T0}, s{T0}, {F_SCR}
    v_add_u32 v{vT1}, s{T0}, v{vT3}
    ds_write_b32 v{vT1}, v{vR}
    v_lshlrev_b32 v{vT1}, 4, v{vHH}
    v_add_u32 v{vT1}, s{T0}, v{vT1}
    """) + [f'ds_read_b128 {v4(RT + 4 * g)}, v{vT1} offset:{32 * g}' for g in range(4)]
    ts(k, 'F.pre')
    k.barrier()
    ts(k, 'F.barA')
    pidx = {'Q': 0, 'K': 1, 'V': 2}

    def gemm(seq, CFR):
        def wread(n):
            p, ks = seq[n]
            b = WB + 4 * (n % NB)
            base, off = (vTR2, ks * 1024) if p == 'V' else (vTR, pidx[p] * SLOT + ks * 1024)
            return [f'ds_read_b64_tr_b16 {v2(b)}, v{base} offset:{off}',
                    f'ds_read_b64_tr_b16 {v2(b + 2)}, v{base} offset:{off + 256}']
        M = []
        for n, (p, ks) in enumerate(seq):
            b = v4(WB + 4 * (n % NB))
            x = v4(X + 4 * ks)
            a = {'Q': AQ, 'K': AK, 'V': AV}[p]
            c = '0' if ks == 0 else v16(a)
            m = f'{MF} {v16(a)}, {x}, {b}, {c}' if p == 'V' else f'{MF} {v16(a)}, {b}, {x}, {c}'
            M.append(dict(pre=wread(n + PF) if n + PF < len(seq) else [], m=m, need=[b]))
        for p, cf in CFR:
            a = {'Q': AQ, 'K': AK, 'V': AV}[p]
            M.append(dict(m=f'{MF} {v16(a)}, {v4(MB)}, {v4(cf)}, {v16(a)}' if p == 'V' else f'{MF} {v16(a)}, {v4(cf)}, {v4(MB)}, {v16(a)}'))
        for n in range(PF):
            emit(k, wread(n))
        return M

    def cs_frag(p, cf, t):
        fl = [f'ds_read_b32 v{t + w}, v{vS1} offset:{w * 384 + p * 128}' for w in range(4)]
        fl += ['s_nop 0'] * 6
        fl += [f'v_add_f32 v{t}, v{t}, v{t + 1}', f'v_add_f32 v{t + 2}, v{t + 2}, v{t + 3}', f'v_add_f32 v{t}, v{t}, v{t + 2}',
               f'v_cndmask_b32 v{t}, v{t}, 0, s[{sHP}:{sHP + 1}]']
        fl += split3(t, cf, cf + 1, vT0, vT2)
        fl += [f'v_mov_b32 v{cf + 2}, 0', f'v_mov_b32 v{cf + 3}, 0',
               ('call', lambda k: cs_store(k, cf))]
        return fl

    def cs_store(k, cf):
        k(f'ds_write_b128 v{vS2}, {v4(cf)}')
        k(f'v_add_u32 v{vS2}, 1024, v{vS2}')
    k(f'v_add_u32 v{vS2}, {SCR_CSQ + 1024}, v{vL16}')
    M = gemm([(p, ks) for ks in range(28) for p in 'KV'], [('K', QF), ('V', QF + 4)])
    fl = F(gather + cs_frag(1, QF, KF) + cs_frag(2, QF + 4, KF), earliest=1, deadline=54)
    late = []
    for i in range(7):
        late.append([f's_add_u32 m0, s{sLW}, {i * 1024}', f's_add_u32 s{sXT}, s{sIMG}, {i * 16 * 2688}',
                     f'buffer_load_dwordx4 v{vIMG}, s[64:67], s{sXT} offen lds'])
    late[-1].append(('call', lambda k: himg.__setitem__(0, k.vm_mark())))
    for j, c in enumerate(late):
        n = 1 + 5 * j
        M[n]['pre'] = M[n]['pre'] + c
    fl += F(lines(f"""
    s_lshl_b32 s{T0}, s{sIDX}, 6
    s_add_u32 s{T0}, s{T0}, s{sTT}
    s_lshl_b32 s{T4}, s{T0}, 2
    s_add_u32 s{T4}, s{T4}, {F_KV}
    s_lshl_b32 s{T5}, s{T0}, 12
    s_add_u32 s{T5}, s{T5}, s{sKV}
    """), earliest=2)
    flush(k, weave(k, M, fl, free=6))
    ts(k, 'F.kv')
    for r in range(16):
        k(f'v_mul_f32 v{AK + r}, v{vR}, v{AK + r}')
    for q in range(8):
        k(f'v_cvt_pk_bf16_f32 v{KF + q}, v{AK + 2 * q}, v{AK + 2 * q + 1}')
    k(f'v_cndmask_b32 v{KF + 6}, v{KF + 6}, 0, s[{sHI}:{sHI + 1}]')
    k(f'v_cndmask_b32 v{KF + 7}, v{KF + 7}, 0, s[{sHI}:{sHI + 1}]')
    for i in range(2):
        k(f'buffer_store_dwordx4 {v4(KF + 4 * i)}, v{vL16}, s[8:11], s{T5} offen offset:{1024 * i} sc1')
    for r in range(16):
        k(f'v_mul_f32 v{AV + r}, v{RT + r}, v{AV + r}')
    for q in range(8):
        k(f'v_cvt_pk_bf16_f32 v{VF + q}, v{AV + 2 * q}, v{AV + 2 * q + 1}')
        k(f'v_cndmask_b32 v{VF + q}, v{VF + q}, v{vONES}, s[{sN28}:{sN28 + 1}]')
    for i in range(2, 4):
        k(f'buffer_store_dwordx4 {v4(KF + 4 * i)}, v{vL16}, s[8:11], s{T5} offen offset:{1024 * i} sc1')
    hkv = k.vm_mark()
    for i in range(4):
        k(f'ds_write_b128 v{vKVA}, {v4(KF + 4 * i)} offset:{8 * 4096 + 1024 * i}')
    own_quarter(0, vCSQ, AK)
    set_flag(k, T4, '1', always_sc1=True, h=hkv)
    if PROPOS == 1:
        emit(k, SCHED['PRO']())
    ts(k, 'F.kvpub')
    k.barrier()
    k(f"""
    v_and_b32 v{vXO}, 15, v{vLANE}
    v_lshlrev_b32 v{vXO}, 4, v{vXO}
    buffer_load_dword v{vCSK}, v{vXO}, s[16:19], 0 offen sc1
    """)
    DB = AK
    for i in range(8):
        k(f'ds_read_b64_tr_b16 {v2(DB + 4 * i)}, v{vDT}')
        k(f'ds_read_b64_tr_b16 {v2(DB + 4 * i + 2)}, v{vDT} offset:512')
        k(f's_{"add" if i % 2 == 0 else "sub"}_u32 s{T0}, s{sSA}, s{sSB}')
        k(f'v_add_u32 v{vDT}, s{T0}, v{vDT}')
    k(f'v_mov_b32 v{vT1}, 0')
    dst = []
    for i in range(8):
        if i & 1:
            k(f'v_cndmask_b32 v{DB + 4 * i + 2}, v{DB + 4 * i + 2}, 0, s[{sZM}:{sZM + 1}]')
            k(f'v_cndmask_b32 v{DB + 4 * i + 3}, v{DB + 4 * i + 3}, 0, s[{sZM}:{sZM + 1}]')
        dst.append(([f's_add_u32 s{sDST}, s{sDST}, 4096'] if i == 4 else []) +
                   [f'buffer_store_dwordx4 {v4(DB + 4 * i)}, v{vL16}, s[8:11], s{sD8 if i == 7 else sDST} offen offset:{(i % 4) * 1024} sc1'])
    emit(k, dst[0] + dst[1])
    for i in range(28):
        k(f'v_dot2_f32_bf16 v{vT1}, v{DB + i}, v{vONES}, v{vT1}')
    k(f"""
    v_mov_b32 v{vT0}, v{vT1}
    v_permlane32_swap_b32 v{vT1}, v{vT0}
    v_add_f32 v{vT1}, v{vT1}, v{vT0}
    v_lshlrev_b32 v{vT3}, 2, v{vN}
    buffer_store_dword v{vT1}, v{vT3}, s[8:11], s{sCSD} offen sc1
    """)
    ts(k, 'F.duty')
    SH = RT + 8
    share = lines(f"""
    s_cmp_ge_u32 s{sRB}, 7
    s_cselect_b32 s{T0}, 1, 0
    s_cmp_ge_u32 s{sRB}, 14
    s_cselect_b32 s{T0}, 2, s{T0}
    s_mul_i32 s{T1}, s{T0}, 7
    s_sub_u32 s{T1}, s{sRB}, s{T1}
    s_mul_i32 s{T0}, s{T0}, {SLOT}
    s_lshl_b32 s{T1}, s{T1}, 10
    s_add_u32 s{T0}, s{T0}, s{T1}
    v_add_u32 v{vT1}, s{T0}, v{vOQ}
    ds_read_b64_tr_b16 {v2(SH)}, v{vT1}
    ds_read_b64_tr_b16 {v2(SH + 2)}, v{vT1} offset:256
    s_mul_i32 s{T2}, s{sIDX}, {84 * 1024}
    s_add_u32 s{T2}, s{T2}, s{sLW}
    s_add_u32 s{T2}, s{T2}, {WQKV_P}
    s_add_u32 s{T3}, s{T2}, s{T0}
    s_min_u32 s{T1}, s{sRB}, 4
    s_lshl_b32 s{T1}, s{T1}, 10
    s_add_u32 s{T1}, s{T1}, {2 * SLOT + 2048}
    v_add_u32 v{vT1}, s{T1}, v{vOQ}
    ds_read_b64_tr_b16 {v2(SH + 4)}, v{vT1}
    ds_read_b64_tr_b16 {v2(SH + 6)}, v{vT1} offset:256
    s_add_u32 s{T2}, s{T2}, s{T1}
    s_cmp_gt_u32 s{sRB}, 4
    s_cselect_b32 s{T2}, {OOBS}, s{T2}
    """) + ['s_nop 0'] * 2
    share += [f'v_cndmask_b32 v{SH + q}, v{SH + q}, 0, s[{sPAD}:{sPAD + 1}]' for q in range(8)]
    share += [f'buffer_store_dwordx4 {v4(SH)}, v{vL16}, s[8:11], s{T3} offen sc1',
              f'buffer_store_dwordx4 {v4(SH + 4)}, v{vL16}, s[8:11], s{T2} offen sc1']
    k(f'v_add_u32 v{vS2}, {SCR_CSQ}, v{vL16}')
    M = gemm([('Q', ks) for ks in range(28)], [('Q', RT)])
    for i in range(2, 8):
        M[3 * (i - 2) + 1]['pre'] = M[3 * (i - 2) + 1]['pre'] + dst[i]
    fl = F(cs_frag(0, RT, RT + 4), earliest=1, deadline=26) + F(share, earliest=1)
    flush(k, weave(k, M, fl, free=6))
    k(f'v_mov_b32 v{vFL}, v{vCSK}')
    emit(k, setup2_valu())
    k(f'v_mul_f32 v{vT0}, {f32bits(28 ** -0.5 * LOG2E)}, v{vR}')
    for r in range(16):
        k(f'v_mul_f32 v{AQ + r}, v{vT0}, v{AQ + r}')
    for q in range(8):
        k(f'v_cvt_pk_bf16_f32 v{QF + q}, v{AQ + 2 * q}, v{AQ + 2 * q + 1}')
    k(f"""
    v_mov_b32 v{vT1}, 0x3f80
    v_cndmask_b32 v{QF + 6}, v{QF + 6}, v{vT1}, s[{sHI}:{sHI + 1}]
    v_cndmask_b32 v{QF + 7}, v{QF + 7}, 0, s[{sHI}:{sHI + 1}]
    """)
    ts(k, 'F.q')
    global_check(k, pre=True)
    ts(k, 'F.chk')
    k.barrier()
    k(f's_cmp_lg_u32 s{sW}, 0')
    k.skip_begin('s_cbranch_scc1')
    k(f"""
    s_lshl_b32 s{T0}, s2, 7
    s_add_u32 s{T0}, s{T0}, {F_PK}
    v_mov_b32 v{vFL}, 1
    s_mov_b64 exec, 1
    buffer_store_dword v{vFL}, v{vZERO}, s[8:11], s{T0} offen sc1
    s_mov_b64 exec, -1
    """)
    k.skip_end()
    k(f's_cmp_eq_u32 s{sFAST}, 0')
    k('s_cbranch_scc1 SLOW_entry')


CSL = 112


def cs13_build():
    c = CSL
    out = [f'v_add_f32 v{c}, v{c}, v{c + 1}', f'v_add_f32 v{c + 2}, v{c + 2}, v{c + 3}', f'v_add_f32 v{c}, v{c}, v{c + 2}']
    out += split3(c, c + 4, c + 5, vT1, vT2)
    out += [f'v_mov_b32 v{c + i}, 0' for i in range(6, 12)]
    out += lines(f"""
    s_lshl_b32 s{sT0}, s{sW}, 10
    s_add_u32 s{sT0}, s{sT0}, {SCR_CS13}
    v_lshlrev_b32 v{vT0}, 4, v{vN}
    v_lshl_add_u32 v{vT0}, v{vHH}, 12, v{vT0}
    v_add_u32 v{vT0}, s{sT0}, v{vT0}
    ds_write_b128 v{vT0}, {v4(c + 4)}
    ds_write_b128 v{vT0}, {v4(c + 8)} offset:512
    s_waitcnt lgkmcnt(0)
    """)
    return out


SCHED = {}


def sched_a(v='a'):
    w2 = pf_w2()
    none = lambda: []
    SCHED.update({
        'PRO': lambda: t_X() + t_O(),
        'P3_pre': none,
        'P3_mm': lambda: [L1(t_H())] + [L0(g) for g in w2[:4]],
        'P3_idle': lambda: ['s_barrier'] + [L1(t_H())],
        'P5_idle': none,
        'P4_pre': none, 'P4_p1': none,
        'P4_mid': lambda: [[L0(g)] for g in w2[4:]] + [[L0(touch(2, sSADR))]],
        'G_pre': lambda: t_O(), 'G_q': none,
    })
    if v in 'ef':
        ch = (load_chunks([a4(4 * i) for i in range(28)], sBW2, sDM) + load_chunks([a4(112 + 4 * i) for i in range(28)], sBW2 + 1, sDM))
        n0 = 16 if v == 'e' else 24
        SCHED.update({
            'P3_mm': lambda: [L1(t_H())] + [L0(flat(ch[i:i + 2])) for i in range(0, n0, 2)],
            'P4_mid': lambda: [[L0(c)] for c in ch[n0:]] + [[L0(touch(2, sSADR))]],
        })
    if v == 'x':
        SCHED.update({'P3_mm': lambda: [L1(t_H())], 'P4_mid': lambda: [[L0(touch(2, sSADR))]]})
    if v == 'y':
        global HPLAIN
        HPLAIN = True
        ch = (load_chunks([a4(4 * i) for i in range(28)], sBW2, sDM) + load_chunks([a4(112 + 4 * i) for i in range(28)], sBW2 + 1, sDM))
        SCHED.update({
            'P3_mm': lambda: [L0(flat(ch[i:i + 2])) for i in range(0, 16, 2)] + [L1(t_H())],
            'P3_idle': lambda: ['s_barrier'] + [L1(t_H())],
            'P4_p1': lambda: [[L0(t_H())]],
            'P4_mid': lambda: [[L0(c)] for c in ch[16:]] + [[L0(touch(2, sSADR))]],
        })
    if v in 'bc':
        n3 = 7 if v == 'b' else 10
        SCHED.update({
            'P3_idle': lambda: ['s_barrier'] + [L1(t_H())] + idle_q() + idle_touch(W13_P + 3 * SLOT, 7 * SLOT, n3),
            'P5_idle': lambda: idle_q() + idle_touch(WQKV_P, 84 * 1024, 11) + idle_touch(WO_P, 28 * 1024, 4),
        })
    if v == 'd':
        SCHED.update({
            'P3_idle': lambda: ['s_barrier'] + [L1(t_H())] + idle_q() + [L0(idle_touch(W2_P, 98 * 1024, 7, 4)), L1(idle_touch(W13_P + 3 * SLOT, 7 * SLOT, 7))],
            'P5_idle': lambda: idle_q() + idle_touch(WQKV_P, 84 * 1024, 11) + idle_touch(WO_P, 28 * 1024, 4) + idle_touch(W13_P, 7 * SLOT, 7),
        })


def layer_switch(k):
    k(f's_mov_b32 s{sL}, 1')
    if TS_ON:
        k(f'v_accvgpr_write_b32 a255, v{vTS}')
        k(f'v_mov_b32 v{vTS}, 0')
    set_layer(k, 1)
    phase_G(k)


def phases(k):
    k.lg_done = k.lg_seq
    k.pend = {}
    attention(k)
    phase_P3(k)
    phase_P4(k, 'MAIN_fin')


def body(k, sfx):
    global LAYER
    if sfx == '_s':
        LAYER = None
        k.label('SLOW_entry', pad=False)
        set_layer(k, 0)
        k.label('ATT' + sfx)
        phases(k)
        layer_switch(k)
        k('s_branch ATT' + sfx)
    else:
        LAYER = 0
        phases(k)
        LAYER = 1
        layer_switch(k)
        phases(k)


def gen_main(k, name):
    global MODE
    kstart(k, name)
    k.ignore.add(('v', vDUM))
    end = 'MAIN_end'
    MODE = 'fast'
    setup(k, end)
    ts(k, 'start')
    front(k)
    body(k, '_f')
    k.label('MAIN_fin', pad=False)
    rowmajor_addr(k)
    k(f"""
    buffer_store_dwordx4 {v4(P5_XO)}, v{vT0}, s[12:15], s{sT0} offen
    buffer_store_dwordx4 {v4(P5_XO + 4)}, v{vT0}, s[12:15], s{sT0} offen offset:32
    """)
    ts(k, 'P5.pub')
    k.label('MAIN_tail', pad=False)
    if TS_ON:
        k(f"""
        v_writelane_b32 v{vTS}, s{sFAST}, 63
        s_lshl_b32 s{sT0}, s2, 2
        s_add_u32 s{sT0}, s{sT0}, s{sW}
        s_lshl_b32 s{sT0}, s{sT0}, 9
        s_add_u32 s{sT0}, s{sT0}, {TS}
        v_lshlrev_b32 v{vT0}, 2, v{vLANE}
        buffer_store_dword a255, v{vT0}, s[8:11], s{sT0} offen
        buffer_store_dword v{vTS}, v{vT0}, s[8:11], s{sT0} offen offset:256
        """)
        if '-gts' in sys.argv:
            want = [(0, 'F.barA'), (0, 'ATT.start'), (0, 'ATT.pub'), (0, 'P4.ready'), (0, 'P4.mfma'), (0, 'P5.pub'),
                    (1, 'ATT.start'), (1, 'ATT.pub'), (1, 'P4.ready'), (1, 'P4.mfma'), (1, 'P5.mfma'), (1, 'P5.pub')]
            slots_ = [1, 2, 3, 5, 6, 7, 9, 10, 11, 13, 14, 15]
            k(f's_lshl_b32 s{sT0}, s{sW}, 8')
            k(f's_or_b32 s{sT0}, s{sT0}, s2')
            k(f's_cmp_lg_u32 s{sT0}, 40')
            k('s_cbranch_scc1 MAIN_end')
            k(f'v_accvgpr_read_b32 v{vT1}, a255')
            k('s_nop 1')
            k(f'v_readlane_b32 s{sT1}, v{vT1}, 0')
            k('s_mov_b64 exec, 1')
            for (l, n), sl in zip(want, slots_):
                k(f'v_readlane_b32 s{sT2}, v{vT1 if l == 0 else vTS}, {_ts_names.index(n)}')
                k('s_nop 3')
                k(f's_sub_u32 s{sT2}, s{sT2}, s{sT1}')
                k(f'v_mov_b32 v{vT2}, s{sT2}')
                k(f'buffer_store_dword v{vT2}, v{vZERO}, s[16:19], 0 offen offset:{4 * sl}')
    k.drained()
    k.label(end, pad=False)
    k('s_endpgm')
    MODE = 'slow'
    k.drained()
    body(k, '_s')


HEADER = """; Persistent single-launch implementation (generated by a Python script written for this task).
"""


def main():
    global TS_ON, FORCE_SLOW, FORCE_FALLBACK
    TS_ON = '-ts' in sys.argv
    FORCE_SLOW = '-slow' in sys.argv
    FORCE_FALLBACK = '-fb' in sys.argv
    global WARM
    WARM = '-nowarm' not in sys.argv
    global XDEPTH, P4FREE
    for a in sys.argv:
        if a.startswith('-x'):
            XDEPTH = int(a[2:])
        if a.startswith('-f') and a[2:].isdigit():
            P4FREE = int(a[2:])
    global CODEPF
    if '-nocode' in sys.argv:
        CODEPF = 0
    global PROPOS
    PROPOS = int([a[2:] for a in sys.argv if a.startswith('-p')][0]) if any(a.startswith('-p') for a in sys.argv) else 1
    global GNQ1
    GNQ1 = int([a[2:] for a in sys.argv if a.startswith('-q')][0]) if any(a.startswith('-q') for a in sys.argv) else 6
    global DUTYPOS
    DUTYPOS = int([a[2:] for a in sys.argv if a.startswith('-d')][0]) if any(a.startswith('-d') for a in sys.argv) else 2
    sched_a([a[2:] for a in sys.argv if a.startswith('-s') and len(a) == 3][0] if any(a.startswith('-s') and len(a) == 3 for a in sys.argv) else 'a')
    k = K()
    final = '-final' in sys.argv
    kn = 'interleave_layers__sliding_block__glu_gated_swiglu__prompt_kernel' if final else 'main_kernel'
    gen_main(k, kn)
    if final:
        head = HEADER + f'; @launch grid=(256,1,1) block=(256,1,1) lds={LDS_BYTES}\n'
    else:
        head = f'; @launch kernel=main_kernel grid=(256,1,1) block=(256,1,1) lds={LDS_BYTES}\n'
    head += '.amdgcn_target "amdgcn-amd-amdhsa--gfx950"\n.text\n'
    open(sys.argv[1], 'w').write(head + k.text() + kd(kn, 512, 102, 256))
    print('nops inserted', k.nops_inserted, 'lines', len(k.lines))
    if TS_ON:
        open(sys.argv[1] + '.names', 'w').write('\n'.join(_ts_names))


if __name__ == '__main__':
    main()
```

```python
S, D, H, DH, F = 2048, 448, 16, 28, 1792
NT = 64
KS = 28

_off = 0
def _alloc(n):
    global _off
    o = _off
    _off += (n + 4095) // 4096 * 4096
    return o

FLAGS = _alloc(131072)
CSP_13 = _alloc(4 * 112 * 128 + 4096)
ST = [None] * 4
ST[1] = _alloc(64 * 14 * 256)
ST[2] = _alloc(64 * 14 * 256)
WO_P = _alloc(14 * 32 * 1024)
WQKV_P = _alloc(16 * 3 * 28 * 1024)
W2_P = _alloc(14 * 112 * 1024)
W13_P = _alloc(112 * 28 * 1024)
XF = [None] * 4
XF[1] = _alloc(64 * 28 * 1024)
OF = [_alloc(64 * 32 * 1024), None]
KV = [_alloc(16 * 64 * 4096) for _ in range(2)]
HF = [_alloc(64 * 112 * 1024), None]
HF[1] = _alloc(64 * 112 * 1024)
OF[1] = _alloc(64 * 32 * 1024)
for _i in (0, 2, 3):
    XF[_i] = _alloc(64 * 28 * 1024)
for _i in (0, 3):
    ST[_i] = _alloc(64 * 14 * 256)
CS_QKV = _alloc(48 * 128)
CS_13 = _alloc(112 * 128 + 1024)
QFB = _alloc(16 * 64 * 2048)
CSF_QKV = _alloc(48 * 1024)
TS = _alloc(1 << 20)
WS_USED = _off
WS_BYTES = 268435456

def swap23(m):
    return (m & ~12) | ((m & 4) << 1) | ((m & 8) >> 1)
```

```python
S, D, H, DH, F = 2048, 448, 16, 28, 1792
NT = 64
KS = 28

_off = 0
def _alloc(n):
    global _off
    o = _off
    _off += (n + 4095) // 4096 * 4096
    return o

FLAGS = _alloc(131072)
CSP_13 = _alloc(4 * 112 * 128 + 4096)
ST = [None] * 4
ST[1] = _alloc(64 * 14 * 256)
ST[2] = _alloc(64 * 14 * 256)
WO_P = _alloc(14 * 32 * 1024)
WQKV_P = _alloc(16 * 3 * 28 * 1024)
W2_P = _alloc(14 * 112 * 1024)
W13_P = _alloc(112 * 28 * 1024)
XF = [None] * 4
XF[1] = _alloc(64 * 28 * 1024)
OF = [_alloc(64 * 32 * 1024), None]
KV = [_alloc(16 * 64 * 4096) for _ in range(2)]
HF = [_alloc(64 * 112 * 1024), None]
HF[1] = _alloc(64 * 112 * 1024)
OF[1] = _alloc(64 * 32 * 1024)
for _i in (0, 2, 3):
    XF[_i] = _alloc(64 * 28 * 1024)
for _i in (0, 3):
    ST[_i] = _alloc(64 * 14 * 256)
CS_QKV = _alloc(48 * 128)
CS_13 = _alloc(112 * 128 + 1024)
QFB = _alloc(16 * 64 * 2048)
CSF_QKV = _alloc(48 * 1024)
TS = _alloc(1 << 20)
R0 = 64 << 20
RSZ = 6 << 20
_r = 0
def _ra(n):
    global _r
    o = _r
    _r += n
    return o
RX = [None] * 4
RST = [None] * 4
RX[1] = _ra(8 * 28672)
RST[1] = _ra(8 * 3584)
RST[2] = _ra(8 * 3584)
RO = [_ra(16 * 16384), None]
RH = [_ra(8 * 114688), None]
RKV = [_ra(16 * 32768), None]
assert _r <= 2 << 20
_r = 2 << 20
RKV[1] = _ra(16 * 32768)
RX[2] = _ra(8 * 28672)
RX[3] = _ra(8 * 28672)
RST[3] = _ra(8 * 3584)
RO[1] = _ra(16 * 16384)
RH[1] = _ra(8 * 114688)
assert _r <= RSZ
WS_USED = _off
WS_BYTES = 268435456

def swap23(m):
    return (m & ~12) | ((m & 4) << 1) | ((m & 8) >> 1)
```

```python
from common5 import *

sW, sRB, sIDX, sTT, sL = 3, 4, 5, 6, 7
sP2 = 24
sBW13, sLW, sBWQ, sLWQ, sBW2, sBWO = 25, 26, 27, 28, 29, 31
sTW13, sTWQ, sTW2, sTWO = 33, 34, 35, 36
sHFL, sHPL, sHB = 33, 34, 35
sKV, sOF, sX1, sST1, sHF, sX2, sST2 = 37, 38, 39, 40, 41, 42, 43
sL1, sFAST, sACT, sSPIN = 44, 45, 46, 47
sT0, sT1, sT2, sT3, sT4, sT5 = 48, 49, 50, 51, 52, 53
sFT, sTT3, sFTo, sTTo = 54, 55, 56, 57
sTS = 58
sE, sHOFF, sCNT, sDM = 60, 61, 62, 63
sMASK = 64
sHI, sN28 = 96, 98
sOADR, sXADR = 100, 101
sSADR, sDS = 1, 0
Ctx.sL = sL
vDUM = 0
vL16, vLANE, vN, vHH, vSTO, vSTI, vL16b, vONES = 1, 2, 3, 4, 5, 6, 7, 8
vF14, vFH, vZERO, vKVA, vTS, vL2S, vL4S, vSCR = 9, 10, 11, 12, 13, 14, 15, 16
vKE, vFL, vTA, vM, vR, vT0, vT1, vT2, vT3, vNEG, vMX, vAD = 17, 18, 19, 20, 21, 22, 23, 24, 25, 26, 27, 28
MB = 28

TS_ON = False
FORCE_SLOW = False
FORCE_FALLBACK = False
_ts_names = []
XDEPTH = 10
WARM = True
P4FREE = 6
HPLAIN = False
CODEPF = 47 * 1024
PROPOS = 1
GNQ1 = 6
LAYER = None
DUTYPOS = 0
F_PK = FLAGS + 65536
MODE = 'fast'


def ts(k, name):
    if not TS_ON:
        return
    if name in _ts_names:
        i = _ts_names.index(name)
    else:
        i = len(_ts_names)
        _ts_names.append(name)
    assert i < 62
    k(f's_memrealtime s[{sTS}:{sTS + 1}]')
    k(f'v_writelane_b32 v{vTS}, s{sTS}, {i}')


def wait_flags(k, voff, soff, sexp, vFL=vFL):
    Lp, Ld = k.newlabel('poll'), k.newlabel('polled')
    k(f's_mov_b32 s{sSPIN}, 0')
    k.label(Lp, pad=False)
    k(f"""
    buffer_load_dword v{vFL}, v{voff}, s[8:11], s{soff} offen sc1
    s_add_u32 s{sSPIN}, s{sSPIN}, 1
    s_cmp_gt_u32 s{sSPIN}, {SPIN_MAX}
    s_cbranch_scc1 {Ld}
    s_waitcnt vmcnt(0)
    v_cmp_gt_u32 vcc, {sexp}, v{vFL}
    s_nop 1
    s_cbranch_vccnz {Lp}
    """)
    k.label(Ld, pad=False)
    k('s_waitcnt vmcnt(0)')


def publish(k, stores):
    for s_ in stores:
        k(s_ + ('' if MODE == 'fast' else ' sc1'))


def set_flag(k, soff, val, always_sc1=False, h=None):
    k(f'v_mov_b32 v{vFL}, {val}')
    if h is None:
        k('s_waitcnt vmcnt(0)')
    else:
        k.wait_vm(h)
    pol = ' sc1' if (always_sc1 or MODE != 'fast') else ''
    k('s_mov_b64 exec, 1')
    k(f'buffer_store_dword v{vFL}, v{vZERO}, s[8:11], s{soff} offen{pol}')
    k('s_mov_b64 exec, -1')


def dma_chunks(n, ssrc, src_off, slds, lds_off):
    out = []
    for i in range(n):
        c = []
        if i % 4 == 0:
            c += [f's_add_u32 m0, s{slds}, {lds_off + i * 1024}', f's_add_u32 s{sP2}, s{ssrc}, {src_off + i * 1024}']
        c.append(f'buffer_load_dwordx4 v{vL16}, s[8:11], s{sP2} offen offset:{(i % 4) * 1024} lds')
        out.append(c)
    return out


def load_chunks(dsts, ssrc, tmp, src_off=0, pol=''):
    out = []
    for i, d in enumerate(dsts):
        c = []
        if i % 4 == 0:
            c.append(f's_add_u32 s{tmp}, s{ssrc}, {src_off + i * 1024}')
        c.append(f'buffer_load_dwordx4 {d}, v{vL16}, s[8:11], s{tmp} offen offset:{(i % 4) * 1024}{pol}')
        out.append(c)
    return out


def touch(n, sbase, off=0):
    return [f'v_min_u32 v{vTA}, {n - 1}, v{vLANE}',
            f'v_lshlrev_b32 v{vTA}, 7, v{vTA}',
            f's_add_u32 s{sDS}, s{sbase}, {off}',
            f'buffer_load_dword v{vDUM}, v{vTA}, s[8:11], s{sDS} offen sc1']


def flat(chs):
    return [x for c in chs for x in c]


W13_SLOT = [0, 1, 2, 3, 4, 0, 1]


def pf_wqkv():
    return dma_chunks(21, sBWQ, 0, sLWQ, 0)


def pf_w13(i):
    return dma_chunks(7, sBW13, i * SLOT, sLW, W13_SLOT[i] * SLOT)


def pf_w2():
    ch = (load_chunks([a4(4 * i) for i in range(28)], sBW2, sDM) +
          load_chunks([a4(112 + 4 * i) for i in range(28)], sBW2 + 1, sDM))
    return [flat(ch[i:i + 4]) for i in range(0, 56, 4)]


def t_w13(i):
    return touch(28, sTW13, i * SLOT)


def t_wqkv():
    return touch(64, sTWQ, 0) + touch(20, sTWQ, 8192)


def t_w2():
    return touch(64, sTW2, 0) + touch(34, sTW2, 8192)


def t_wo():
    return touch(28, sTWO, 0)


def t_O():
    return touch(16, sOADR)


def t_X():
    return touch(16, sXADR) + touch(2, sSADR)


def t_H():
    return touch(56, sHOFF)


def idle_q():
    return lines(f"""
    s_and_b32 s{sT5}, s{sRB}, 1
    s_lshl_b32 s{sT5}, s{sT5}, 1
    s_add_u32 s{sT5}, s{sT5}, s{sIDX}
    s_sub_u32 s{sT5}, s{sT5}, 14
    s_lshl_b32 s{sT5}, s{sT5}, 2
    s_add_u32 s{sT5}, s{sT5}, s{sW}
    v_lshlrev_b32 v{vTA}, 7, v{vLANE}
    """)


def idle_touch(base, per_wave, n, first=0):
    out = [f's_mul_i32 s{sT4}, s{sT5}, {per_wave}', f's_add_u32 s{sT4}, s{sT4}, {base + first * 8192}']
    for i in range(n):
        out += [f'buffer_load_dword v{vDUM}, v{vTA}, s[8:11], s{sT4} offen',
                f's_add_u32 s{sT4}, s{sT4}, 8192']
    return out


def L0(ls):
    if LAYER is not None:
        return ('seq', list(ls) if LAYER == 0 else [])
    return ('L0', list(ls))


def L1(ls):
    if LAYER is not None:
        return ('seq', list(ls) if LAYER == 1 else [])

    def fn(k):
        k(f's_cmp_eq_u32 s{sL}, 0')
        k.skip_begin('s_cbranch_scc1')
        for x in ls:
            k(x)
        k.skip_end()
    return ('call', fn)


def res_addr(k, dst, base):
    k(f"""
    s_mul_i32 s{dst}, s{sTT3}, 28
    s_lshl_b32 s{sT1}, s{sFT}, 1
    s_add_u32 s{dst}, s{dst}, s{sT1}
    s_lshl_b32 s{dst}, s{dst}, 10
    s_add_u32 s{dst}, s{dst}, {base}
    """)


def st_addr(k, dst, base):
    k(f"""
    s_mul_i32 s{dst}, s{sTT3}, 14
    s_add_u32 s{dst}, s{dst}, s{sFT}
    s_lshl_b32 s{dst}, s{dst}, 8
    s_add_u32 s{dst}, s{dst}, {base}
    """)


def setup(k, end_label):
    k('s_cmp_ge_u32 s2, 256')
    k(f's_cbranch_scc1 {end_label}')
    k(f"""
    s_load_dwordx16 s[72:87], s[0:1], 0
    s_load_dwordx2 s[16:17], s[0:1], 64
    s_load_dwordx2 s[8:9], s[0:1], 72
    v_lshrrev_b32 v{vT0}, 6, v0
    v_and_b32 v{vLANE}, 63, v0
    v_readfirstlane_b32 s{sW}, v{vT0}
    v_lshlrev_b32 v{vL16}, 4, v{vLANE}
    v_and_b32 v{vN}, 31, v{vLANE}
    v_lshrrev_b32 v{vHH}, 5, v{vLANE}
    s_and_b32 s{sT0}, s2, 7
    s_lshr_b32 s{sT1}, s2, 3
    s_lshr_b32 s{sT2}, s{sT1}, 4
    s_lshl_b32 s{sRB}, s{sT0}, 1
    s_add_u32 s{sRB}, s{sRB}, s{sT2}
    s_and_b32 s{sIDX}, s{sT1}, 15
    s_lshl_b32 s{sTT}, s{sRB}, 2
    s_add_u32 s{sTT}, s{sTT}, s{sW}
    s_mov_b32 s10, {WS_BYTES}
    s_mov_b32 s11, 0x00020000
    s_mov_b32 s14, {S * D * 2}
    s_mov_b32 s15, 0x00020000
    s_mov_b32 s18, 256
    s_mov_b32 s19, 0x00020000
    s_mov_b32 s22, {S * D * 2}
    s_mov_b32 s23, 0x00020000
    s_mov_b32 s{sL}, 0
    s_mov_b32 s{sHI}, 0
    s_mov_b32 s{sHI + 1}, -1
    s_lshl_b32 s{sT1}, s{sW}, 12
    s_add_u32 s{sT1}, s{sT1}, {KVB}
    v_add_u32 v{vKVA}, s{sT1}, v{vL16}
    v_mov_b32 v{vZERO}, 0
    v_mov_b32 v{vTS}, 0
    v_mov_b32 v{vONES}, {ONES_BF16}
    v_cmp_eq_u32 s[{sN28}:{sN28 + 1}], 28, v{vN}
    s_cmp_ge_u32 s{sIDX}, 7
    s_cselect_b32 s{sT0}, 1, 0
    s_mul_i32 s{sT1}, s{sT0}, 7
    s_sub_u32 s{sT1}, s{sIDX}, s{sT1}
    s_cmp_lt_u32 s{sIDX}, 14
    s_cselect_b32 s{sACT}, 1, 0
    s_cselect_b32 s{sT1}, s{sT1}, 0
    s_lshl_b32 s{sFT}, s{sT1}, 1
    s_and_b32 s{sT2}, s{sW}, 1
    s_add_u32 s{sFT}, s{sFT}, s{sT2}
    s_xor_b32 s{sFTo}, s{sFT}, 1
    s_lshl_b32 s{sTT3}, s{sRB}, 2
    s_lshl_b32 s{sT0}, s{sT0}, 1
    s_add_u32 s{sTT3}, s{sTT3}, s{sT0}
    s_lshr_b32 s{sT2}, s{sW}, 1
    s_add_u32 s{sTT3}, s{sTT3}, s{sT2}
    s_xor_b32 s{sTTo}, s{sTT3}, 1
    s_mul_i32 s{sLW}, s{sW}, 7168
    s_waitcnt lgkmcnt(0)
    s_mov_b32 s20, s72
    s_mov_b32 s21, s73
    s_mov_b32 s12, s86
    s_mov_b32 s13, s87
    """)


def setup2_salu():
    return lines(f"""
    s_mov_b32 s{sFAST}, 0
    s_mul_i32 s{sBW13}, s{sIDX}, {7 * SLOT}
    s_add_u32 s{sBW13}, s{sBW13}, {W13_P}
    s_add_u32 s{sBW13}, s{sBW13}, s{sLW}
    s_mul_i32 s{sLWQ}, s{sW}, {21 * 1024}
    s_mul_i32 s{sBWQ}, s{sIDX}, {84 * 1024}
    s_add_u32 s{sBWQ}, s{sBWQ}, {WQKV_P}
    s_add_u32 s{sBWQ}, s{sBWQ}, s{sLWQ}
    s_mul_i32 s{sP2}, s{sW}, {28 * 1024}
    s_add_u32 s{sP2}, s{sP2}, {W2_P}
    s_mul_i32 s{sBW2}, s{sFT}, {112 * 1024}
    s_add_u32 s{sBW2}, s{sBW2}, s{sP2}
    s_mul_i32 s{sBW2 + 1}, s{sFTo}, {112 * 1024}
    s_add_u32 s{sBW2 + 1}, s{sBW2 + 1}, s{sP2}
    s_lshl_b32 s{sP2}, s{sW}, 13
    s_add_u32 s{sP2}, s{sP2}, {WO_P}
    s_lshl_b32 s{sBWO}, s{sFT}, 15
    s_add_u32 s{sBWO}, s{sBWO}, s{sP2}
    s_lshl_b32 s{sBWO + 1}, s{sFTo}, 15
    s_add_u32 s{sBWO + 1}, s{sBWO + 1}, s{sP2}
    """)


def setup2_valu():
    out = lines(f"""
    v_lshlrev_b32 v{vSTO}, 3, v{vN}
    v_mul_u32_u24 v{vSTI}, 1792, v{vHH}
    v_add_u32 v{vSTI}, v{vSTI}, v{vSTO}
    v_lshl_or_b32 v{vSTO}, v{vHH}, 2, v{vSTO}
    v_add_u32 v{vL16b}, {2 * SLOT}, v{vL16}
    v_min_u32 v{vF14}, 13, v{vLANE}
    v_lshlrev_b32 v{vF14}, 2, v{vF14}
    v_add_u32 v{vL2S}, {2 * SLOT}, v{vL16}
    v_add_u32 v{vL4S}, {4 * SLOT}, v{vL16}
    v_add_u32 v{vSCR}, {SCR}, v{vL16}
    v_mov_b32 v{vNEG}, {f32bits(-1e30)}
    v_and_b32 v{vFH}, 3, v{vLANE}
    v_lshlrev_b32 v{vFH}, 2, v{vFH}
    v_bfe_u32 v{vT0}, v{vLANE}, 2, 1
    v_lshl_or_b32 v{vFH}, v{vT0}, 7, v{vFH}
    s_lshl_b32 s{sT1}, s{sW}, 4
    v_add_u32 v{vFH}, s{sT1}, v{vFH}
    v_lshlrev_b32 v{vT0}, 2, v{vHH}
    v_sub_u32 v{vT0}, v{vN}, v{vT0}
    """)
    for r in range(16):
        c = 8 * (r >> 2) + (r & 3)
        out.append(f'v_cmp_ge_i32 s[{sMASK + 2 * r}:{sMASK + 2 * r + 1}], v{vT0}, {c}')
    return out


def signal(k):
    k(f"""
    s_getreg_b32 s{sE}, hwreg(HW_REG_XCC_ID, 0, 4)
    s_mul_i32 s{sCNT}, s{sE}, s{sE}
    s_lshl_b32 s{sCNT}, s{sCNT}, 16
    s_lshl_b32 s{sE}, s{sE}, 8
    s_or_b32 s{sE}, s{sE}, s{sCNT}
    s_or_b32 s{sE}, s{sE}, 1
    v_mov_b32 v{vFL}, s{sE}
    s_lshl_b32 s{sCNT}, s{sRB}, 4
    s_cmp_eq_u32 s{sW}, 0
    s_cselect_b32 s{sCNT}, s{sCNT}, 4096
    s_mov_b64 exec, 1
    buffer_atomic_add v{vFL}, v{vZERO}, s[16:19], s{sCNT} offen sc1
    s_mov_b64 exec, -1
    """)


def global_check(k, pre=False):
    Lp, Ld, Lg = k.newlabel('gpoll'), k.newlabel('gdone'), k.newlabel('ggood')
    k(f"""
    v_and_b32 v{vT1}, 15, v{vLANE}
    v_lshlrev_b32 v{vT1}, 4, v{vT1}
    s_mov_b32 s{sSPIN}, 0
    """)
    if pre:
        k(f"""
        v_and_b32 v{vT0}, 0xff, v{vFL}
        v_cmp_gt_u32 vcc, 16, v{vT0}
        s_nop 1
        s_cbranch_vccz {Lg}
        """)
    k.label(Lp, pad=False)
    k(f"""
    buffer_load_dword v{vFL}, v{vT1}, s[16:19], 0 offen sc1
    s_add_u32 s{sSPIN}, s{sSPIN}, 1
    s_cmp_gt_u32 s{sSPIN}, {SPIN_MAX}
    s_cbranch_scc1 {Ld}
    s_waitcnt vmcnt(0)
    v_and_b32 v{vT0}, 0xff, v{vFL}
    v_cmp_gt_u32 vcc, 16, v{vT0}
    s_nop 1
    s_cbranch_vccz {Lg}
    s_sleep 24
    s_branch {Lp}
    """)
    k.label(Lg, pad=False)
    k(f"""
    s_getreg_b32 s{sT0}, hwreg(HW_REG_XCC_ID, 0, 4)
    s_mul_i32 s{sT1}, s{sT0}, s{sT0}
    s_lshl_b32 s{sT1}, s{sT1}, 20
    s_lshl_b32 s{sT0}, s{sT0}, 12
    s_or_b32 s{sT0}, s{sT0}, s{sT1}
    s_or_b32 s{sT0}, s{sT0}, 16
    v_readlane_b32 s{sT1}, v{vFL}, s{sRB}
    s_nop 3
    s_cmp_eq_u32 s{sT0}, s{sT1}
    s_cselect_b32 s{sFAST}, {0 if FORCE_SLOW else 1}, 0
    """)
    k.label(Ld, pad=False)
    k('s_waitcnt vmcnt(0)')


def set_layer(k, l):
    fast = MODE == 'fast'
    k(f"""
    s_mov_b32 s{sL1}, {l + 1}
    s_lshr_b32 s{sT5}, s{sRB}, 1
    s_mul_i32 s{sT1}, s{sT5}, {RSZ - 8 * 28672}
    s_add_u32 s{sX1}, s{sT1}, {R0 + (RX[1] if fast else RX[2 * l + 1])}
    s_add_u32 s{sX2}, s{sT1}, {R0 + (RX[1] if fast else RX[2])}
    s_mul_i32 s{sT1}, s{sT5}, {RSZ - 8 * 3584}
    s_add_u32 s{sST1}, s{sT1}, {R0 + (RST[1] if fast else RST[2 * l + 1])}
    s_add_u32 s{sST2}, s{sT1}, {R0 + RST[2]}
    s_mov_b32 s{sKV}, {R0 + RKV[l]}
    s_mul_i32 s{sT1}, s{sT5}, {RSZ - 8 * 2048}
    s_add_u32 s{sOF}, s{sT1}, {R0 + (RO[0] if fast else RO[l])}
    s_mul_i32 s{sT1}, s{sT5}, {RSZ - 8 * 114688}
    s_add_u32 s{sHF}, s{sT1}, {R0 + (RH[0] if fast else RH[l])}
    s_lshl_b32 s{sOADR}, s{sIDX}, 3
    s_add_u32 s{sOADR}, s{sOADR}, s{sTT}
    s_lshl_b32 s{sOADR}, s{sOADR}, 11
    s_add_u32 s{sOADR}, s{sOADR}, s{sOF}
    s_mul_i32 s{sHOFF}, s{sTT}, 112
    s_mul_i32 s{sT5}, s{sIDX}, 7
    s_add_u32 s{sHOFF}, s{sHOFF}, s{sT5}
    s_lshl_b32 s{sHOFF}, s{sHOFF}, 10
    s_add_u32 s{sHOFF}, s{sHOFF}, s{sHF}
    """)
    res_addr(k, sXADR, f's{sX1}')
    st_addr(k, sSADR, f's{sST1}')


def stats_loads(sbase, stt, dst):
    out = [f's_mul_i32 s{sT0}, s{stt}, {14 * 256}', f's_add_u32 s{sT0}, s{sT0}, s{sbase}']
    out += [f'buffer_load_dwordx2 {v2(dst + 2 * i)}, v{vSTI}, s[8:11], s{sT0} offen offset:{256 * i} sc1' for i in range(7)]
    return out


def stats_math(src):
    out = []
    for i in range(1, 7):
        out.append(f'v_add_f32 v{src}, v{src}, v{src + 2 * i}')
        out.append(f'v_add_f32 v{src + 1}, v{src + 1}, v{src + 2 * i + 1}')
    return out + ln_math(src, src + 1, vT0, vT1, vM, vR)


def mb_fill():
    return [f'v_mov_b32 v{MB + i}, v{vM}' for i in range(4)]


def halo(k, poll):
    k(f"""
    s_lshl_b32 s{sT2}, s{sRB}, 2
    s_lshl_b32 s{sT3}, s{sW}, 1
    s_add_u32 s{sT2}, s{sT2}, s{sT3}
    s_sub_i32 s{sT2}, s{sT2}, 8
    s_lshl_b32 s{sT5}, s{sW}, 13
    s_add_u32 s{sT5}, s{sT5}, {KVB}
    s_cmp_lt_i32 s{sT2}, 0
    """)
    Lfill, Ljoin = k.newlabel('A_fill'), k.newlabel('A_join')
    k(f's_cbranch_scc1 {Lfill}')
    st = (k.vm_seq, k.vm_done, k.lg_seq, k.lg_done, dict(k.pend))
    k(f"""
    s_lshl_b32 s{sT0}, s{sIDX}, 6
    s_add_u32 s{sT0}, s{sT0}, s{sT2}
    s_lshl_b32 s{sT4}, s{sT0}, 2
    s_add_u32 s{sT4}, s{sT4}, {F_KV}
    s_lshl_b32 s{sE}, s{sIDX}, 3
    s_add_u32 s{sE}, s{sE}, s{sT2}
    s_lshl_b32 s{sE}, s{sE}, 12
    s_add_u32 s{sE}, s{sE}, s{sKV}
    s_lshr_b32 s{sT0}, s{sT2}, 3
    s_mul_i32 s{sT0}, s{sT0}, {RSZ - 8 * 4096}
    s_add_u32 s{sE}, s{sE}, s{sT0}
    """)
    if poll:
        k(f'v_and_b32 v{vT0}, 1, v{vLANE}')
        k(f'v_lshlrev_b32 v{vT0}, 2, v{vT0}')
        wait_flags(k, vT0, sT4, f's{sL1}')
    emit(k, flat(dma_chunks(8, sE, 0, sT5, 0)))
    k(f's_branch {Ljoin}')
    k.label(Lfill, pad=False)
    z = 248
    k(f"""
    v_mov_b32 v{z}, 0
    v_mov_b32 v{z + 1}, 0
    v_mov_b32 v{z + 2}, 0
    v_mov_b32 v{z + 3}, 0
    v_mov_b32 v{z + 4}, 0
    v_mov_b32 v{z + 5}, 0
    v_mov_b32 v{z + 7}, 0
    v_mov_b32 v{vT1}, 0xf14a
    v_cndmask_b32 v{z + 6}, 0, v{vT1}, s[{sHI}:{sHI + 1}]
    v_add_u32 v{vT0}, s{sT5}, v{vL16}
    """)
    for t in range(2):
        k(f'ds_write_b128 v{vT0}, {v4(z)} offset:{4096 * t}')
        k(f'ds_write_b128 v{vT0}, {v4(z + 4)} offset:{4096 * t + 1024}')
        k(f'ds_write_b128 v{vT0}, {v4(z)} offset:{4096 * t + 2048}')
        k(f'ds_write_b128 v{vT0}, {v4(z)} offset:{4096 * t + 3072}')
    k('s_waitcnt lgkmcnt(0)')
    k.label(Ljoin, pad=False)
    k.vm_seq, k.vm_done, k.lg_seq, k.lg_done, k.pend = st[0], st[1], st[2], st[3], dict(st[4])


QF, KF, VF = 232, 216, 224
WO_R = 128
SA, PA, OA, NM, KB, VB, OS = 32, 48, 64, 80, 96, 104, 112


def att_tile_body(k, last, mem):
    k(f'{MF} {v16(SA)}, {v4(KB)}, {v4(QF)}, {v16(NM)}')
    k(f'{MF} {v16(SA)}, {v4(KB + 4)}, {v4(QF + 4)}, {v16(SA)}')
    k(f'{MF} {v16(OA)}, {v4(VB)}, {v4(PA)}, {v16(OA)}')
    k(f'{MF} {v16(OA)}, {v4(VB + 4)}, {v4(PA + 4)}, {v16(OA)}')
    k(f'ds_read_b128 {v4(VB)}, v{vAD} offset:2048')
    k(f'ds_read_b128 {v4(VB + 4)}, v{vAD} offset:3072')
    k(f'v_subrev_u32 v{vAD}, 4096, v{vAD}')
    if not last:
        k(f'ds_read_b128 {v4(KB)}, v{vAD}')
        k(f'ds_read_b128 {v4(KB + 4)}, v{vAD} offset:1024')
    emit(k, mem)
    if last:
        for r in range(16):
            k(f'v_cndmask_b32 v{SA + r}, v{SA + r}, v{vNEG}, s[{sMASK + 2 * r}:{sMASK + 2 * r + 1}]')
    for q in range(8):
        k(f'v_exp_f32 v{SA + 2 * q}, v{SA + 2 * q}')
        k(f'v_exp_f32 v{SA + 2 * q + 1}, v{SA + 2 * q + 1}')
        if q:
            k(f'v_cvt_pk_bf16_f32 v{PA + q - 1}, v{SA + 2 * q - 2}, v{SA + 2 * q - 1}')
    k(f'v_cvt_pk_bf16_f32 v{PA + 7}, v{SA + 14}, v{SA + 15}')


def loop_dma():
    out = []
    for i in range(3):
        out += [f's_add_u32 m0, s{sDM}, {W13_SLOT[i] * SLOT}',
                f's_add_u32 s{sP2}, s{sDS}, {i * SLOT}',
                f'buffer_load_dwordx4 v{vL16}, s[8:11], s{sP2} offen lds']
    out += [f's_add_u32 s{sDM}, s{sDM}, 1024', f's_add_u32 s{sDS}, s{sDS}, 1024']
    return out


def loop_dma0():
    out = [f's_min_u32 m0, s{sDM}, {80 * 1024}', f's_add_u32 s{sP2}, s{sDS}, m0']
    out += [f'buffer_load_dwordx4 v{vL16}, s[8:11], s{sP2} offen offset:{i * 1024} lds' for i in range(4)]
    out.append(f's_add_u32 s{sDM}, s{sDM}, 4096')
    return out


def attention(k):
    ts(k, 'ATT.start')
    k(f'{MF} {v16(SA)}, {v4(KF)}, {v4(QF)}, 0')
    k(f'{MF} {v16(SA)}, {v4(KF + 4)}, {v4(QF + 4)}, {v16(SA)}')
    k(f"""
    v_add_u32 v{vAD}, {7 * 4096}, v{vKVA}
    ds_read_b128 {v4(KB)}, v{vAD}
    ds_read_b128 {v4(KB + 4)}, v{vAD} offset:1024
    s_mul_i32 s{sT0}, s{sW}, s{sW}
    s_mul_i32 s{sDM}, s{sW}, 30
    s_lshl_b32 s{sT0}, s{sT0}, 1
    s_sub_u32 s{sDM}, s{sDM}, s{sT0}
    s_lshl_b32 s{sDM}, s{sDM}, 10
    s_sub_u32 s{sDS}, s{sBW13}, s{sLW}
    """)
    wo = load_chunks([v4(WO_R + 4 * i) for i in range(8)], sBWO, sT2) + load_chunks([v4(WO_R + 32 + 4 * i) for i in range(8)], sBWO + 1, sT2)
    for q in range(8):
        k(f'v_mov_b32 v{VB + q}, v{VF + q}')
    for r in range(16):
        k(f'v_mov_b32 v{OA + r}, 0')
    for r in range(16):
        k(f'v_cndmask_b32 v{SA + r}, v{vNEG}, v{SA + r}, s[{sMASK + 2 * r}:{sMASK + 2 * r + 1}]')
    k(f'v_max_f32 v{vMX}, v{SA}, v{SA + 1}')
    for r in range(2, 16, 2):
        k(f'v_max3_f32 v{vMX}, v{SA + r}, v{SA + r + 1}, v{vMX}')
    k(f"""
    v_mov_b32 v{vT1}, v{vMX}
    v_permlane32_swap_b32 v{vMX}, v{vT1}
    v_max_f32 v{vMX}, v{vMX}, v{vT1}
    """)
    for r in range(16):
        k(f'v_sub_f32 v{SA + r}, v{SA + r}, v{vMX}')
    for r in range(16):
        k(f'v_sub_f32 v{NM + r}, 0, v{vMX}')
    for r in range(16):
        k(f'v_exp_f32 v{SA + r}, v{SA + r}')
        if r % 4 == 3:
            emit_item(k, L1(flat(wo[r - 3:r + 1])))
    for r in parse_reg(f'v[{WO_R}:{WO_R + 63}]'):
        k.pend.pop(r, None)
    for q in range(8):
        k(f'v_cvt_pk_bf16_f32 v{PA + q}, v{SA + 2 * q}, v{SA + 2 * q + 1}')
    ts(k, 'ATT.diag')
    halo(k, True)
    LA, LAe, LB = k.newlabel('att1'), k.newlabel('att1e'), k.newlabel('att2')
    k(f's_mov_b32 s{sCNT}, s{sW}')
    k('s_waitcnt lgkmcnt(0)')
    k(f's_cmp_eq_u32 s{sCNT}, 0')
    k(f's_cbranch_scc1 {LAe}')
    k.label(LA, pad=False)
    k('s_nop 1')
    st = k.vm_seq
    att_tile_body(k, False, [])
    k.vm_seq = st
    k(f"""
    s_sub_u32 s{sCNT}, s{sCNT}, 1
    s_cmp_lg_u32 s{sCNT}, 0
    s_waitcnt lgkmcnt(0)
    s_cbranch_scc1 {LA}
    """)
    k.label(LAe, pad=False)
    ts(k, 'ATT.st1')
    Lw = k.newlabel('wready')
    if LAYER is None:
        k(f's_cmp_lg_u32 s{sL}, 0')
        k(f's_cbranch_scc1 {Lw}')
    elif LAYER == 1:
        k(f's_branch {Lw}')
    st = (k.vm_seq, k.vm_done, dict(k.pend))
    k(f"""
    s_mul_i32 s{sT0}, s{sIDX}, 7
    s_add_u32 s{sT1}, s{sT0}, 6
    s_and_b32 s{sT0}, s{sT0}, -4
    s_or_b32 s{sT1}, s{sT1}, 3
    v_add_u32 v{vT0}, s{sT0}, v{vLANE}
    v_min_u32 v{vT0}, s{sT1}, v{vT0}
    s_lshr_b32 s{sT2}, s{sFT}, 1
    s_lshl_b32 s{sT0}, s{sT2}, 3
    s_add_u32 s{sT0}, s{sT0}, 112
    v_and_b32 v{vT1}, 7, v{vLANE}
    v_add_u32 v{vT1}, s{sT0}, v{vT1}
    v_cmp_le_u32 vcc, 16, v{vLANE}
    s_lshl_b32 s{sT0}, s{sT2}, 1
    s_add_u32 s{sT0}, s{sT0}, 168
    v_cndmask_b32 v{vT0}, v{vT0}, v{vT1}, vcc
    v_and_b32 v{vT1}, 1, v{vLANE}
    v_add_u32 v{vT1}, s{sT0}, v{vT1}
    v_cmp_le_u32 vcc, 24, v{vLANE}
    v_bfe_u32 v{vT2}, v{vLANE}, 1, 3
    v_and_b32 v{vT3}, 1, v{vLANE}
    v_cndmask_b32 v{vT0}, v{vT0}, v{vT1}, vcc
    v_lshl_add_u32 v{vT2}, v{vT3}, 7, v{vT2}
    s_lshl_b32 s{sT0}, s{sIDX}, 3
    v_add_u32 v{vT2}, s{sT0}, v{vT2}
    v_cndmask_b32 v{vT0}, v{vT0}, v{vT2}, s[{sHI}:{sHI + 1}]
    v_lshlrev_b32 v{vT0}, 7, v{vT0}
    s_mov_b32 s{sT0}, {F_PK}
    """)
    wait_flags(k, vT0, sT0, '1')
    k.vm_seq, k.vm_done, k.pend = st
    k.label(Lw, pad=False)
    k('s_waitcnt vmcnt(0)')
    ts(k, 'ATT.halo')
    k('s_barrier')
    k(f"""
    ds_read_b128 {v4(KB)}, v{vAD}
    ds_read_b128 {v4(KB + 4)}, v{vAD} offset:1024
    s_sub_u32 s{sCNT}, 7, s{sW}
    """)
    emit_item(k, L0(([x.replace(f's{sDS},', f's{sT3},').replace(f's{sDS} ', f's{sT3} ') for x in SCHED['PRO']()] if PROPOS == 2 else []) + flat(wo) + lines(f"""
    v_lshlrev_b32 v{vT0}, 2, v{vN}
    v_lshl_add_u32 v{vT0}, v{vHH}, 9, v{vT0}
    s_mul_i32 s{sT0}, s{sIDX}, 7
    s_add_u32 s{sT0}, s{sT0}, s{sW}
    s_lshl_b32 s{sT0}, s{sT0}, 7
    s_add_u32 s{sT0}, s{sT0}, {CSP_13}
    """) + flat([[f's_add_u32 s{sT1}, s{sT0}, {q * 112 * 128}',
                 f'buffer_load_dword v{CSL + q}, v{vT0}, s[8:11], s{sT1} offen'] for q in range(4)])))
    k('s_waitcnt lgkmcnt(0)')
    k.label(LB, pad=False)
    k('s_nop 1')
    st = k.vm_seq
    att_tile_body(k, False, loop_dma0())
    k.vm_seq = st
    k(f"""
    s_sub_u32 s{sCNT}, s{sCNT}, 1
    s_cmp_lg_u32 s{sCNT}, 0
    s_waitcnt lgkmcnt(0)
    s_cbranch_scc1 {LB}
    """)
    k('s_nop 1')
    att_tile_body(k, True, [])
    k(f'{MF} {v16(OA)}, {v4(VB)}, {v4(PA)}, {v16(OA)}')
    k(f'{MF} {v16(OA)}, {v4(VB + 4)}, {v4(PA + 4)}, {v16(OA)}')
    k(f"""
    s_lshl_b32 s{sT4}, s{sTT}, 7
    s_lshl_b32 s{sT1}, s{sIDX}, 2
    s_add_u32 s{sT4}, s{sT4}, s{sT1}
    s_add_u32 s{sT4}, s{sT4}, {F_O}
    s_mov_b32 s{sT0}, {f32bits(2.0 ** 64)}
    """)
    Lok = k.newlabel('att_ok')
    k(f"""
    v_mov_b32 v{vT0}, v{OA + 12}
    v_mov_b32 v{vT1}, v{OA + 12}
    v_permlane32_swap_b32 v{vT0}, v{vT1}
    v_cmp_nge_f32 vcc, s{sT0}, v{vT1}
    s_nop 1
    """)
    k(f's_cbranch_vccz {Lok}' if not FORCE_FALLBACK else 's_nop 0')
    fallback(k)
    k.label(Lok)
    k(f'v_rcp_f32 v{vT1}, v{vT1}')
    for r in range(16):
        k(f'v_mul_f32 v{OA + r}, v{vT1}, v{OA + r}')
    for q in range(8):
        k(f'v_cvt_pk_bf16_f32 v{OA + q}, v{OA + 2 * q}, v{OA + 2 * q + 1}')
    ts(k, 'ATT.st2')
    publish(k, [f'buffer_store_dwordx4 {v4(OA)}, v{vL16}, s[8:11], s{sOADR} offen',
                f'buffer_store_dwordx4 {v4(OA + 4)}, v{vL16}, s[8:11], s{sOADR} offen offset:1024'])
    set_flag(k, sT4, f's{sL1}')
    ts(k, 'ATT.pub')


def fallback(k):
    def s_tile(c):
        k(f"""
        ds_read_b128 {v4(KB)}, v{vAD}
        ds_read_b128 {v4(KB + 4)}, v{vAD} offset:1024
        ds_read_b128 {v4(VB)}, v{vAD} offset:2048
        ds_read_b128 {v4(VB + 4)}, v{vAD} offset:3072
        """)
        k(f'{MF} {v16(SA)}, {v4(KB)}, {v4(QF)}, {c}')
        k(f'{MF} {v16(SA)}, {v4(KB + 4)}, {v4(QF + 4)}, {v16(SA)}')
        for cntv, a, b in ((0, SA, None), (8, None, SA)):
            k(f's_cmp_lg_u32 s{sCNT}, {cntv}')
            k.skip_begin('s_cbranch_scc1')
            for r in range(16):
                m = f's[{sMASK + 2 * r}:{sMASK + 2 * r + 1}]'
                if cntv == 0:
                    k(f'v_cndmask_b32 v{SA + r}, v{SA + r}, v{vNEG}, {m}')
                else:
                    k(f'v_cndmask_b32 v{SA + r}, v{vNEG}, v{SA + r}, {m}')
            k.skip_end()
    La, Lb = k.newlabel('fb1'), k.newlabel('fb2')
    k(f"""
    s_nop 7
    s_nop 7
    v_mov_b32 v{vAD}, v{vKVA}
    v_mov_b32 v{vMX}, v{vNEG}
    s_mov_b32 s{sCNT}, 0
    """)
    k.label(La)
    s_tile('0')
    for r in range(0, 16, 2):
        k(f'v_max3_f32 v{vMX}, v{SA + r}, v{SA + r + 1}, v{vMX}')
    k(f"""
    v_add_u32 v{vAD}, 4096, v{vAD}
    s_add_u32 s{sCNT}, s{sCNT}, 1
    s_cmp_lt_u32 s{sCNT}, 9
    s_waitcnt lgkmcnt(0)
    s_cbranch_scc1 {La}
    v_mov_b32 v{vT1}, v{vMX}
    v_permlane32_swap_b32 v{vMX}, v{vT1}
    v_max_f32 v{vMX}, v{vMX}, v{vT1}
    v_mov_b32 v{vAD}, v{vKVA}
    s_mov_b32 s{sCNT}, 0
    """)
    for r in range(16):
        k(f'v_mov_b32 v{OA + r}, 0')
    k.label(Lb)
    s_tile('0')
    for r in range(16):
        k(f'v_sub_f32 v{SA + r}, v{SA + r}, v{vMX}')
    for r in range(16):
        k(f'v_exp_f32 v{SA + r}, v{SA + r}')
    for q in range(8):
        k(f'v_cvt_pk_bf16_f32 v{PA + q}, v{SA + 2 * q}, v{SA + 2 * q + 1}')
    k(f'{MF} {v16(OA)}, {v4(VB)}, {v4(PA)}, {v16(OA)}')
    k(f'{MF} {v16(OA)}, {v4(VB + 4)}, {v4(PA + 4)}, {v16(OA)}')
    k(f"""
    v_add_u32 v{vAD}, 4096, v{vAD}
    s_add_u32 s{sCNT}, s{sCNT}, 1
    s_cmp_lt_u32 s{sCNT}, 9
    s_waitcnt lgkmcnt(0)
    s_cbranch_scc1 {Lb}
    v_mov_b32 v{vT0}, v{OA + 12}
    v_mov_b32 v{vT1}, v{OA + 12}
    v_permlane32_swap_b32 v{vT0}, v{vT1}
    """)


SK_ACC = [32, 48, 64, 80]
SK_XO = 96
RED = 3 * SLOT


def red_writes():
    out = {}
    for q in range(1, 4):
        o = lines(f"""
        s_xor_b32 s{sT0}, s{sW}, {q}
        s_mul_i32 s{sT0}, s{sT0}, 12288
        s_add_u32 s{sT0}, s{sT0}, {RED + (q - 1) * 4096}
        v_add_u32 v{vT0 + q - 1}, s{sT0}, v{vL16}
        """)
        for g in range(4):
            o.append(f'ds_write_b128 v{vT0 + q - 1}, {v4(SK_ACC[q] + 4 * g)} offset:{1024 * g}')
        out[q] = o
    return out


XR = 200


def red_setup():
    return lines(f"""
    s_mul_i32 s{sT0}, s{sW}, 12288
    s_add_u32 s{sT0}, s{sT0}, {RED}
    v_add_u32 v{vT3}, s{sT0}, v{vL16}
    """)


def red_finish(k):
    ACC = SK_ACC
    k.barrier()
    for g in range(4):
        for q in range(1, 4):
            k(f'ds_read_b128 {v4(ACC[q] + 4 * g)}, v{vT3} offset:{(q - 1) * 4096 + 1024 * g}')


def red_sum(k, g):
    ACC = SK_ACC
    k.wait_reg(v4(ACC[3] + 4 * g))
    for r in (4 * g, 4 * g + 2):
        k(f'v_pk_add_f32 {v2(ACC[1] + r)}, {v2(ACC[1] + r)}, {v2(ACC[2] + r)}')
        k(f'v_pk_add_f32 {v2(ACC[0] + r)}, {v2(ACC[0] + r)}, {v2(ACC[3] + r)}')
    for r in (4 * g, 4 * g + 2):
        k(f'v_pk_add_f32 {v2(ACC[0] + r)}, {v2(ACC[0] + r)}, {v2(ACC[1] + r)}')


def unpack_res(xo, dst):
    out = []
    for q in range(8):
        out.append(f'v_lshlrev_b32 v{dst + 2 * q}, 16, v{xo + q}')
        out.append(f'v_and_b32 v{dst + 2 * q + 1}, 0xffff0000, v{xo + q}')
    return out


def flag_addr(dst, fbase):
    return lines(f"""
    s_lshl_b32 s{dst}, s{sTT3}, 7
    s_lshl_b32 s{sT1}, s{sFT}, 2
    s_add_u32 s{dst}, s{dst}, s{sT1}
    s_add_u32 s{dst}, s{dst}, {fbase}
    """)


def res_epilogue(k, xo, sflag, val, scale, xr, Lfin):
    acc = SK_ACC[0]
    for g in range(4):
        red_sum(k, g)
        if scale is not None:
            for r in (4 * g, 4 * g + 2):
                k(f'v_pk_fma_f32 {v2(acc + r)}, {v2(acc + r)}, {v2(scale)}, {v2(xr + r)}')
        for q in (2 * g, 2 * g + 1):
            k(f'v_cvt_pk_bf16_f32 v{xo + q}, v{acc + 2 * q}, v{acc + 2 * q + 1}')
        if g == 1 and Lfin is None:
            publish(k, [f'buffer_store_dwordx4 {v4(xo)}, v{vL16}, s[8:11], s{sXADR} offen'])
    if Lfin:
        if LAYER == 1:
            k(f's_branch {Lfin}')
            return
        if LAYER is None:
            k(f's_cmp_eq_u32 s{sL}, 1')
            k(f's_cbranch_scc1 {Lfin}')
        publish(k, [f'buffer_store_dwordx4 {v4(xo)}, v{vL16}, s[8:11], s{sXADR} offen'])
    publish(k, [f'buffer_store_dwordx4 {v4(xo + 4)}, v{vL16}, s[8:11], s{sXADR} offen offset:1024'])
    k(f'v_mov_b32 v{vT0}, 0')
    k(f'v_mov_b32 v{vT1}, 0')
    emit(k, stats_ops(xo, 8, vT0, vT1, vONES))
    k(f"""
    v_permlane32_swap_b32 v{vT0}, v{vT1}
    v_add_f32 v{vT0}, v{vT0}, v{vT1}
    """)
    publish(k, [f'buffer_store_dword v{vT0}, v{vSTO}, s[8:11], s{sSADR} offen'])
    set_flag(k, sflag, val)


def rowmajor_addr(k):
    k(f"""
    v_mul_u32_u24 v{vT0}, 896, v{vN}
    v_lshl_add_u32 v{vT0}, v{vHH}, 4, v{vT0}
    s_mul_i32 s{sT0}, s{sTT3}, {32 * 896}
    s_lshl_b32 s{sT1}, s{sFT}, 6
    s_add_u32 s{sT0}, s{sT0}, s{sT1}
    """)


def phase_P3(k):
    ACC, XO = SK_ACC, SK_XO
    O_R = 192
    Lskip, Lj = k.newlabel('p3_skip'), k.newlabel('p3_join')
    k(f's_cmp_eq_u32 s{sACT}, 0')
    k(f's_cbranch_scc1 {Lskip}')
    La, Lb = k.newlabel('p3_l1'), k.newlabel('p3_res')
    if LAYER is None:
        k(f's_cmp_lg_u32 s{sL}, 0')
        k(f's_cbranch_scc1 {La}')
    if LAYER != 1:
        rowmajor_addr(k)
        k(f"""
        buffer_load_dwordx4 {v4(XO)}, v{vT0}, s[20:23], s{sT0} offen
        buffer_load_dwordx4 {v4(XO + 4)}, v{vT0}, s[20:23], s{sT0} offen offset:32
        """)
    if LAYER is None:
        k(f's_branch {Lb}')
        k.label(La, pad=False)
        k.vm_seq -= 2
        for r in parse_reg(f'v[{XO}:{XO + 7}]'):
            k.pend.pop(r, None)
    if LAYER != 0:
        res_addr(k, sT0, f's{sX2}')
        k(f"""
        buffer_load_dwordx4 {v4(XO)}, v{vL16}, s[8:11], s{sT0} offen sc1
        buffer_load_dwordx4 {v4(XO + 4)}, v{vL16}, s[8:11], s{sT0} offen offset:1024 sc1
        """)
    k.label(Lb, pad=False)
    k(f"""
    s_and_b32 s{sT4}, s{sTT3}, -2
    s_lshl_b32 s{sT4}, s{sT4}, 7
    s_add_u32 s{sT4}, s{sT4}, {F_O}
    s_lshl_b32 s{sT1}, s{sW}, 16
    s_add_u32 s{sT1}, s{sT1}, s{sOF}
    s_lshl_b32 s{sT2}, s{sTT3}, 11
    s_add_u32 s{sT2}, s{sT2}, s{sT1}
    s_lshl_b32 s{sT3}, s{sTTo}, 11
    s_add_u32 s{sT3}, s{sT3}, s{sT1}
    """)
    emit(k, SCHED['P3_pre']())
    emit(k, red_setup() + flag_addr(sE, F_X1))
    k('s_barrier')
    emit(k, unpack_res(XO, ACC[0]))
    wait_flags(k, vFH, sT4, f's{sL1}')
    ts(k, 'P3.ready')
    for q in (1, 0):
        for i in range(8):
            if i and i % 2 == 0:
                k(f's_add_u32 s{sT2 + q}, s{sT2 + q}, {8 * 2048}')
            k(f'buffer_load_dwordx4 {v4(O_R + 32 * q + 4 * i)}, v{vL16}, s[8:11], s{sT2 + q} offen offset:{(i % 2) * 1024} sc1')

    def mf(qa, qb, ks):
        a = ACC[qa + 2 * qb]
        c = '0' if (ks == 0 and qa + qb) else v16(a)
        return dict(m=f'{MF} {v16(a)}, {v4(WO_R + 32 * qa + 4 * ks)}, {v4(O_R + 32 * qb + 4 * ks)}, {c}')
    rw = red_writes()
    M = [mf(qa, 1, ks) for ks in range(8) for qa in range(2)] + [mf(1, 0, ks) for ks in range(8)] + [mf(0, 0, ks) for ks in range(8)]
    fl = F(SCHED['P3_mm'](), earliest=2) + F(rw[2] + rw[3], earliest=18) + F(rw[1], earliest=26)
    flush(k, weave(k, M, fl, free=6, pairwait=False))
    ts(k, 'P3.mfma')
    red_finish(k)
    res_epilogue(k, XO, sE, f's{sL1}', None, None, None)
    ts(k, 'P3.pub')
    k(f's_branch {Lj}')
    k.label(Lskip, pad=False)
    emit(k, SCHED['P3_idle']())
    k.label(Lj, pad=False)
    k.drained()


P5_XO = 232
P5_ORDER = ([ks for ks in range(28) if ks % 7 < 4] + [ks for ks in range(28) if ks % 7 in (4, 5)] +
            [ks for ks in range(28) if ks % 7 == 6])
P5_SLOTS = [96 + 8 * i for i in range(6)] + [160 + 8 * i for i in range(8)]
HDEPTH = 6


def p5_reg(pos, q):
    return v4(P5_SLOTS[pos % len(P5_SLOTS)] + 4 * q)


def p5_hload(pos):
    ks = P5_ORDER[pos]
    out = []
    for q in (1, 0):
        out += [f's_add_u32 s{sT0}, s{sHB + q}, {ks * 1024}',
                f'buffer_load_dwordx4 {p5_reg(pos, q)}, v{vL16}, s[8:11], s{sT0} offen sc1']
    return out


def lvl(n):
    if LAYER is not None:
        return str(3 * LAYER + n)
    return f's{[None, sE, sCNT, sDS][n]}'


def p5_poll():
    return [f'buffer_load_dword v{vTA}, v{vFH}, s[8:11], s{sHPL} offen sc1']


def p5_check(n):
    def fn(k):
        k(f'v_cmp_gt_u32 vcc, {lvl(n)}, v{vTA}')
        k('s_nop 1')
        Lok = k.newlabel('hok')
        k(f's_cbranch_vccz {Lok}')
        st = (k.vm_seq, k.vm_done, dict(k.pend), k.pos, list(k.hist))
        wait_flags(k, vFH, sHPL, lvl(n), vFL=vTA)
        k.vm_seq, k.vm_done, k.pend, k.pos, k.hist = st
        k.label(Lok, pad=False)
    return ('call', fn)


def phase_P5(k, Lfin, epi6, hs):
    ACC, XO = SK_ACC, P5_XO
    STT, XRF = 144, 240
    Lskip, Ljoin = k.newlabel('p5_skip'), k.newlabel('p5_join')
    k(f's_cmp_eq_u32 s{sACT}, 0')
    k(f's_cbranch_scc1 {Lskip}')
    st0 = (k.vm_seq, k.vm_done, k.lg_seq, k.lg_done, dict(k.pend), k.pos, list(k.hist))

    def mf(pos, qa, qb):
        a = ACC[qa + 2 * qb]
        c = '0' if pos == 0 else v16(a)
        return f'{MF} {v16(a)}, {a4(112 * qa + 4 * P5_ORDER[pos])}, {p5_reg(pos, qb)}, {c}'
    TAIL = 5
    M = []
    for pos in range(28):
        nxt = pos + HDEPTH
        pre = []
        if nxt == 16:
            pre.append(p5_check(2))
        if nxt == 24:
            pre.append(p5_check(3))
        if nxt < 28:
            pre += p5_hload(nxt)
        if nxt in (12, 20):
            pre += p5_poll()
        M.append(dict(pre=pre, m=mf(pos, 0, 1), w=1))
        M.append(dict(m=mf(pos, 1, 1)))
        M.append(dict(m=mf(pos, 1, 0), w=1))
        if pos < 28 - TAIL:
            M.append(dict(m=mf(pos, 0, 0)))
    n0 = len(M)
    M += [dict(m=mf(pos, 0, 0)) for pos in range(28 - TAIL, 28)]
    rw = red_writes()
    wq = pf_wqkv()
    wqg = [L0(flat(wq[i:i + 4])) for i in range(0, 21, 4)]
    first_free = 4 * (28 - HDEPTH)
    fl = F(epi6, earliest=0)
    fl.append((26, None, ('call', lambda k: set_flag(k, sHFL, lvl(3), h=hs[6]))))
    fl.append((27, None, ('call', lambda k: res_addr(k, sT2, f's{sX1}'))))
    fl += F([f'buffer_load_dwordx4 {v4(XO)}, v{vL16}, s[8:11], s{sT2} offen sc1',
             f'buffer_load_dwordx4 {v4(XO + 4)}, v{vL16}, s[8:11], s{sT2} offen offset:1024 sc1'], earliest=27)
    sl = [x.replace(f's{sT0}', f's{sT3}') for x in stats_loads(sST1, sTT3, STT)]
    fl += F(sl, earliest=29)
    fl += F(stats_math(STT) + [f'v_mul_f32 v{MB}, v{vR}, v{vR}', f'v_mul_f32 v{MB + 1}, v{vR}, v{vR}'] +
            unpack_res(XO, XRF), earliest=52)
    fl.append((52, None, ('call', lambda k: emit(k, [x.replace(f's{sT0}', f's{sT3}') for x in red_setup()] + flag_addr(sT5, F_XIN)))))
    fl.append((first_free - 2, first_free, 's_barrier'))
    for i, g in enumerate(wqg):
        fl += F([g], earliest=first_free + 2 * i)
    fl += F(rw[2] + rw[3] + rw[1], earliest=n0)
    flush(k, weave(k, M, fl, free=6, pairwait=False))
    ts(k, 'P5.mfma')
    red_finish(k)
    res_epilogue(k, XO, sT5, '1', MB, XRF, Lfin)
    if LAYER != 1:
        ts(k, 'P5.pub')
        k(f's_branch {Ljoin}')
    k.label(Lskip, pad=False)
    k.vm_seq, k.vm_done, k.lg_seq, k.lg_done, k.pend, k.pos, k.hist = st0[0], st0[1], st0[2], st0[3], dict(st0[4]), st0[5], list(st0[6])
    emit(k, epi6)
    set_flag(k, sHFL, lvl(3))
    if LAYER == 1:
        k('s_branch MAIN_tail')
        return
    if LAYER is None:
        k(f's_cmp_eq_u32 s{sL}, 1')
        k('s_cbranch_scc1 MAIN_tail')
    k('s_barrier')
    emit(k, flat(pf_wqkv()))
    k.label(Ljoin, pad=False)
    k('s_waitcnt vmcnt(0) lgkmcnt(0)')
    k.drained()
    k('s_barrier')


def phase_P4(k, Lfin):
    XB = 32
    ACC = [144, 160, 176]
    WB, NB, PF = 192, 8, 6
    ET = 224
    k(f"""
    s_lshl_b32 s{sT4}, s{sTT}, 7
    s_add_u32 s{sT4}, s{sT4}, {F_X1}
    s_mul_i32 s{sT3}, s{sTT}, {28 * 1024}
    s_add_u32 s{sT3}, s{sT3}, s{sX1}
    """)
    k('s_waitcnt vmcnt(0)')
    if LAYER is None:
        k(f's_cmp_lg_u32 s{sL}, 0')
        k.skip_begin('s_cbranch_scc1')
        emit(k, cs13_build())
        k.skip_end()
    elif LAYER == 0:
        emit(k, cs13_build())
    k('s_barrier')
    emit(k, SCHED['P4_pre']())
    acc_of = [0, 1, 2, 0, 1, 2, 0]
    seq = [(i, ks) for ks in range(29) for i in range(2)] + [(i, ks) for i in range(2, 7) for ks in range(29)]
    start = {i: 58 + 29 * (i - 2) for i in range(2, 7)}
    endi = {0: 56, 1: 57}
    endi.update({i: start[i] + 28 for i in range(2, 7)})

    def wread(n):
        i, ks = seq[n]
        if ks == 28:
            return f'ds_read_b128 {v4(WB + 4 * (n % NB))}, v{vSCR} offset:{1024 + 1024 * i}'
        s = W13_SLOT[i]
        base = {0: vL16, 1: vL16, 2: vL2S, 3: vL2S, 4: vL4S}[s]
        off = (s % 2) * SLOT + ks * 1024 if s < 4 else ks * 1024
        return f'ds_read_b128 {v4(WB + 4 * (n % NB))}, v{base} offset:{off}'

    def mf(n):
        i, ks = seq[n]
        a = v16(ACC[acc_of[i]])
        b = v4(MB) if ks == 28 else v4(XB + 4 * ks)
        return f'{MF} {a}, {v4(WB + 4 * (n % NB))}, {b}, {"0" if ks == 0 else a}'
    for n in range(PF):
        k(wread(n))
    wait_flags(k, vF14, sT4, f's{sL1}')
    ts(k, 'P4.ready')
    xl = load_chunks([v4(XB + 4 * i) for i in range(28)], sT3, sT2, pol=' sc1')
    for i in range(4):
        emit(k, xl[i])
    emit(k, stats_loads(sST1, sTT, ET))
    for i in range(4, XDEPTH):
        emit(k, xl[i])

    def epi(i):
        a = ACC[acc_of[i]]
        out = []
        e0 = ET + 8 * (i % 2)
        for r in range(8):
            out.append(f'v_mul_f32 v{e0 + r}, v{vKE}, v{a + r}')
        for r in range(8):
            out.append(f'v_exp_f32 v{e0 + r}, v{e0 + r}')
            out.append(f'v_mul_f32 v{a + r}, v{a + r}, v{a + 8 + r}')
        for r in range(8):
            out.append(f'v_add_f32 v{e0 + r}, 1.0, v{e0 + r}')
        for r in range(8):
            out.append(f'v_rcp_f32 v{e0 + r}, v{e0 + r}')
            if r:
                out.append(f'v_mul_f32 v{a + r - 1}, v{a + r - 1}, v{e0 + r - 1}')
        out.append(f'v_mul_f32 v{a + 7}, v{a + 7}, v{e0 + 7}')
        o = 240 + 4 * (i % 2)
        for q in range(4):
            out.append(f'v_cvt_pk_bf16_f32 v{o + q}, v{a + 2 * q}, v{a + 2 * q + 1}')

        def st(k):
            if i == 4:
                k(f's_add_u32 s{sHOFF}, s{sHOFF}, 4096')
            st_ = f'buffer_store_dwordx4 {v4(o)}, v{vL16}, s[8:11], s{sHOFF} offen offset:{(i % 4) * 1024}'
            if MODE == 'fast' and LAYER is not None:
                k(st_ + (' sc1' if (LAYER == 0 and not HPLAIN) else ''))
            elif MODE == 'fast':
                La, Lb = k.newlabel('h0'), k.newlabel('h1')
                k(f's_cmp_eq_u32 s{sL}, 0')
                k(f's_cbranch_scc1 {La}')
                k(st_)
                k(f's_branch {Lb}')
                k.label(La, pad=False)
                k.vm_seq -= 1
                k.pos -= 2
                k(st_ + ' sc1')
                k.label(Lb, pad=False)
            else:
                publish(k, [st_])
            hs[i] = k.vm_mark()
        out.append(('call', st))
        return out
    hs, hd = {}, {}

    def mark(name):
        def fn(k):
            hd[name] = k.vm_mark()
        return ('call', fn)

    def bar(name, tsn):
        def fn(k):
            k.wait_vm(hd[name])
            k.barrier()
            ts(k, tsn)
        return ('call', fn)
    b1, b2 = start[3] - PF, start[5] - PF
    M = []
    for n in range(len(seq)):
        pre = []
        if n == b1:
            pre.append(bar('t34', 'P4.b1'))
        if n == b2:
            pre.append(bar('t56', 'P4.b2'))
        if n + PF < len(seq):
            pre.append(wread(n + PF))
        i, ks = seq[n]
        if n < 58 and i == 0 and ks + XDEPTH < 28:
            pre += xl[ks + XDEPTH]
        M.append(dict(pre=pre, m=mf(n), need=[v4(WB + 4 * (n % NB))], w=1 if (n < 56 and i == 0) else 0))
    nx = 2 * (28 - XDEPTH)
    fl = F(stats_math(ET) + mb_fill() + [f'v_mul_f32 v{vKE}, {f32bits(-LOG2E)}, v{vR}'], earliest=6, deadline=54)
    fl += F(lines(f"""
    s_lshl_b32 s{sHFL}, s{sTT}, 7
    s_lshl_b32 s{sT1}, s{sIDX}, 2
    s_add_u32 s{sHFL}, s{sHFL}, s{sT1}
    s_add_u32 s{sHFL}, s{sHFL}, {F_H}
    s_and_b32 s{sHPL}, s{sTT3}, -2
    s_lshl_b32 s{sHPL}, s{sHPL}, 7
    s_add_u32 s{sHPL}, s{sHPL}, {F_H}
    s_mul_i32 s{sT1}, s{sW}, {28 * 1024}
    s_add_u32 s{sT1}, s{sT1}, s{sHF}
    s_mul_i32 s{sHB}, s{sTT3}, {112 * 1024}
    s_add_u32 s{sHB}, s{sHB}, s{sT1}
    s_mul_i32 s{sHB + 1}, s{sTTo}, {112 * 1024}
    s_add_u32 s{sHB + 1}, s{sHB + 1}, s{sT1}
    """), earliest=6)
    fl.append((6, None, ('call', lambda k: (res_addr(k, sXADR, f's{sX2}'), st_addr(k, sSADR, f's{sST2}')))))
    c34 = pf_w13(3) + pf_w13(4)
    for j, c in enumerate(c34):
        fl += F(c, earliest=nx + (j * 3) // 2, deadline=b1 - 8)
    fl.append((0, b1 - 8, mark('t34')))
    fl += F(flat(SCHED['P4_p1']()), earliest=58)

    def interleave(ep, mem, e0, dl):
        out = []
        step = max(1, len(ep) // (len(mem) + 1)) if mem else 10 ** 9
        mem = list(mem)
        for j, x in enumerate(ep):
            out.append(x)
            if mem and j % step == step - 1:
                out += mem.pop(0)
        for m in mem:
            out += m
        return F(out, earliest=e0, deadline=dl)
    S4 = SCHED['P4_mid']()
    n4 = len(S4)
    fl += interleave(epi(0), [], endi[0] + 3, start[3])
    fl += interleave(epi(1), [], endi[1] + 3, start[4])
    c56 = pf_w13(5) + pf_w13(6) + [[mark('t56')]]
    fl += interleave(epi(2), c56, max(endi[2] + 3, b1 + 1), b2 - 10)
    fl += interleave(epi(3), S4[:n4 // 2], endi[3] + 3, start[5] + 8)
    if LAYER is None:
        fl += F(lines(f"""
        s_mul_i32 s{sE}, s{sL}, 3
        s_add_u32 s{sCNT}, s{sE}, 2
        s_add_u32 s{sE}, s{sE}, 1
        """), earliest=0)
    fl += interleave(epi(4)[:30], S4[n4 // 2:], endi[4] + 3, start[6])
    fl.append((start[5] + 16, start[6], ('call', lambda k: set_flag(k, sHFL, lvl(1), h=hs[3]))))
    fl += F(epi(4)[30:], earliest=0, deadline=start[6] + 4)
    fl += interleave(epi(5), [], endi[5] + 3, len(seq) - 8)
    M[start[6] + 8]['pre'] += p5_poll()
    for p in range(HDEPTH):
        n = start[6] + 18 + 2 * p
        M[n]['pre'] = M[n]['pre'] + ([p5_check(1)] if p == 0 else []) + p5_hload(p)
    rest = weave(k, M, fl, free=P4FREE)
    flush(k, rest)
    if LAYER is None:
        k(f's_add_u32 s{sDS}, s{sE}, 2')
    set_flag(k, sHFL, lvl(2), h=hs[5])
    ts(k, 'P4.mfma')
    phase_P5(k, Lfin, epi(6), hs)


def phase_G(k):
    A_X, A_Q, A_K, A_V, WB, RT = 32, 144, 160, 176, 192, 240
    NB, PF = 6, 4
    NQ1 = GNQ1
    k(f"""
    s_lshl_b32 s{sT4}, s{sTT}, 7
    s_add_u32 s{sT4}, s{sT4}, {F_XIN}
    s_mul_i32 s{sT3}, s{sTT}, {28 * 1024}
    s_add_u32 s{sT3}, s{sT3}, s{sX2}
    """)
    seq = []
    for ks in range(29):
        seq += [('K', ks), ('V', ks)]
        if ks < NQ1:
            seq.append(('Q', ks))
    n1 = len(seq)
    seq += [('Q', ks) for ks in range(NQ1, 29)]
    pidx = {'Q': 0, 'K': 1, 'V': 2}

    def wread(n):
        p, ks = seq[n]
        b = v4(WB + 4 * (n % NB))
        if ks == 28:
            return f'ds_read_b128 {b}, v{vSCR} offset:{9216 + 1024 * pidx[p]}'
        if p == 'V':
            return f'ds_read_b128 {b}, v{vL16b} offset:{ks * 1024}'
        return f'ds_read_b128 {b}, v{vL16} offset:{(pidx[p] * 28 + ks) * 1024}'

    def mf(n):
        p, ks = seq[n]
        b = v4(WB + 4 * (n % NB))
        x = v4(MB) if ks == 28 else v4(A_X + 4 * ks)
        a = {'Q': A_Q, 'K': A_K, 'V': A_V}[p]
        c = '0' if ks == 0 else v16(a)
        if p == 'V':
            return f'{MF} {v16(a)}, {x}, {b}, {c}'
        return f'{MF} {v16(a)}, {b}, {x}, {c}'
    for n in range(PF):
        k(wread(n))
    emit(k, SCHED['G_pre']())
    ts(k, 'G.start')
    wait_flags(k, vF14, sT4, '1')
    ts(k, 'G.ready')
    xl = load_chunks([v4(A_X + 4 * i) for i in range(28)], sT3, sT2, pol=' sc1')
    STT = 216
    for i in range(4):
        emit(k, xl[i])
    emit(k, stats_loads(sST2, sTT, STT))
    for i in range(4, XDEPTH):
        emit(k, xl[i])
    M = []
    for n in range(len(seq)):
        pre = [wread(n + PF)] if n + PF < len(seq) else []
        p, ks = seq[n]
        if p == 'K' and ks + XDEPTH < 28:
            pre = pre + xl[ks + XDEPTH]
        M.append(dict(pre=pre, m=mf(n), need=[v4(WB + 4 * (n % NB))], w=1 if p == 'K' else 0))
    gather = lines(f"""
    s_lshl_b32 s{sT0}, s{sW}, 8
    s_add_u32 s{sT0}, s{sT0}, {SCR}
    v_lshlrev_b32 v{vT0}, 2, v{vN}
    v_add_u32 v{vT0}, s{sT0}, v{vT0}
    ds_write_b32 v{vT0}, v{vR}
    v_lshlrev_b32 v{vT1}, 4, v{vHH}
    v_add_u32 v{vT1}, s{sT0}, v{vT1}
    """) + [f'ds_read_b128 {v4(RT + 4 * g)}, v{vT1} offset:{32 * g}' for g in range(4)]
    fl = F(stats_math(STT) + mb_fill() + gather, earliest=8, deadline=n1 - 6)
    fl += F(lines(f"""
    s_lshl_b32 s{sT0}, s{sIDX}, 6
    s_add_u32 s{sT0}, s{sT0}, s{sTT}
    s_lshl_b32 s{sT4}, s{sT0}, 2
    s_add_u32 s{sT4}, s{sT4}, {F_KV}
    s_lshl_b32 s{sT5}, s{sIDX}, 3
    s_add_u32 s{sT5}, s{sT5}, s{sTT}
    s_lshl_b32 s{sT5}, s{sT5}, 12
    s_add_u32 s{sT5}, s{sT5}, s{sKV}
    s_lshr_b32 s{sT0}, s{sRB}, 1
    s_mul_i32 s{sT0}, s{sT0}, {RSZ - 8 * 4096}
    s_add_u32 s{sT5}, s{sT5}, s{sT0}
    """), earliest=8)
    ep = []
    for r in range(16):
        ep.append(f'v_mul_f32 v{A_K + r}, v{vR}, v{A_K + r}')
    for q in range(8):
        ep.append(f'v_cvt_pk_bf16_f32 v{KF + q}, v{A_K + 2 * q}, v{A_K + 2 * q + 1}')
    for i in range(2):
        ep.append(f'buffer_store_dwordx4 {v4(KF + 4 * i)}, v{vL16}, s[8:11], s{sT5} offen offset:{1024 * i} sc1')
    for r in range(16):
        ep.append(f'v_mul_f32 v{A_V + r}, v{RT + r}, v{A_V + r}')
    for q in range(8):
        ep.append(f'v_cvt_pk_bf16_f32 v{VF + q}, v{A_V + 2 * q}, v{A_V + 2 * q + 1}')
        ep.append(f'v_cndmask_b32 v{VF + q}, v{VF + q}, v{vONES}, s[{sN28}:{sN28 + 1}]')
    for i in range(2, 4):
        ep.append(f'buffer_store_dwordx4 {v4(KF + 4 * i)}, v{vL16}, s[8:11], s{sT5} offen offset:{1024 * i} sc1')
    hk = {}
    ep.append(('call', lambda k: hk.__setitem__('h', k.vm_mark())))
    for i in range(4):
        ep.append(f'ds_write_b128 v{vKVA}, {v4(KF + 4 * i)} offset:{8 * 4096 + 1024 * i}')
    ep += SCHED['G_q']()
    fl += F(ep, earliest=n1 + 1)
    fl.append((len(seq) - 2, None, ('call', lambda k: set_flag(k, sT4, '2', always_sc1=True, h=hk['h']))))
    flush(k, weave(k, M, fl, free=6))
    ts(k, 'G.mfma')
    k(f'v_mul_f32 v{vT0}, {f32bits(28 ** -0.5 * LOG2E)}, v{vR}')
    for r in range(16):
        k(f'v_mul_f32 v{A_Q + r}, v{vT0}, v{A_Q + r}')
    for q in range(8):
        k(f'v_cvt_pk_bf16_f32 v{QF + q}, v{A_Q + 2 * q}, v{A_Q + 2 * q + 1}')
    k(f'v_mov_b32 v{vT1}, 0x3f80')
    k(f'v_cndmask_b32 v{QF + 6}, v{QF + 6}, v{vT1}, s[{sHI}:{sHI + 1}]')
    ts(k, 'G.pub')
    k.barrier()


F_DUTY = 3 * SLOT
F_SCR = SCR
F_CSX = LDS_BYTES - 1536
F_XR = F_DUTY + 29184
OOBS = 0x20000000


def _exper():
    if '-nodutyslow' in sys.argv:
        return f's_bitcmp1_b32 0xAA54, s{sIDX}\n    s_cbranch_scc1 F_none'
    if '-noduty' in sys.argv:
        return 's_branch F_none'
    return ''


def front(k):
    EXPER = _exper()
    T0, T1, T2, T3, T4, T5 = sT0, sT1, sT2, sT3, sT4, sT5
    sKIND, sDST, sCSD, sA1, sWOFF, sPIT, sSRC, sXRB = 88, 89, 90, 91, 92, 93, 94, 95
    sPAD, sHP, sXT, sIMG, sXS, sZM, sSA, sSB, sD8 = 72, 74, 77, 78, 79, 80, 82, 83, 84
    vTR, vTR2, vXO, vDT, vS1, vS2, vCSK, vCSV, vCSQ, vIMG, vOQ, vOQ2, vDS = 5, 6, 7, 9, 10, 14, 15, 16, 17, 19, 26, 27, 144
    X, AQ, AK, AV, WB, RT = 32, 144, 160, 176, 192, 240
    NB, PF = 6, 4
    XA = 240
    k(f"""
    v_and_b32 v{vT0}, 3, v{vLANE}
    v_lshrrev_b32 v{vT1}, 2, v{vLANE}
    s_lshl_b32 s{T0}, s{sRB}, 2
    v_add_u32 v{vT2}, s{T0}, v{vT0}
    v_lshlrev_b32 v{vT3}, 7, v{vT2}
    s_lshl_b32 s{T1}, s{sIDX}, 2
    s_add_u32 s{T1}, s{T1}, {F_O}
    v_add_u32 v{vT3}, s{T1}, v{vT3}                  ; F_O
    v_and_b32 v5, 1, v{vT1}
    v_lshl_add_u32 v{vT3}, v5, 14, v{vT3}            ; kind 1: F_H = F_O + 16384
    s_and_b32 s{T0}, s{sTT3}, -2
    s_and_b32 s{T1}, s{sFT}, -2
    v_lshrrev_b32 v6, 1, v{vT0}
    v_add_u32 v6, s{T0}, v6                          ; tt3
    v_and_b32 v7, 1, v{vT0}
    v_add_u32 v7, s{T1}, v7                          ; ft
    v_lshlrev_b32 v6, 7, v6
    v_lshl_add_u32 v6, v7, 2, v6
    v_add_u32 v6, {F_XIN}, v6
    v_lshl_add_u32 v6, v5, 14, v6
    v_cmp_le_u32 vcc, 2, v{vT1}
    s_lshl_b32 s{T0}, s{sIDX}, 8
    s_add_u32 s{T0}, s{T0}, {F_KV}
    v_cndmask_b32 v{vT3}, v{vT3}, v6, vcc
    v_lshlrev_b32 v6, 2, v{vT2}
    v_add_u32 v6, s{T0}, v6
    v_cmp_le_u32 vcc, 4, v{vT1}
    s_lshl_b32 s{T0}, s2, 7
    s_add_u32 s{T0}, s{T0}, {F_PK}
    v_cndmask_b32 v{vT3}, v{vT3}, v6, vcc
    v_mov_b32 v6, s{T0}
    v_cmp_le_u32 vcc, 5, v{vT1}
    s_cmp_eq_u32 s{sW}, 0
    s_cselect_b32 s{T0}, 0, {OOBS}
    v_cndmask_b32 v{vT3}, v{vT3}, v6, vcc
    s_mov_b64 exec, 0x1fffff
    buffer_store_dword v{vZERO}, v{vT3}, s[8:11], s{T0} offen sc1
    s_mov_b64 exec, -1
    """)
    h_zero = k.vm_mark()
    assert F_H - F_O == 16384 and F_X1 - F_XIN == 16384
    k(f"""
    s_mov_b32 s64, s74
    s_mov_b32 s65, s75
    s_mov_b32 s66, {448 * 1344 * 2}
    s_mov_b32 s67, 0x00020000
    s_mov_b32 s71, 0x00020000
    """)
    Lw2, Lwo, Lnone, Ldec = 'F_w2', 'F_wo', 'F_none', 'F_dec'
    k(f"""
    s_lshr_b32 s{T4}, s{sW}, 1
    s_and_b32 s{T5}, s{sW}, 1
    s_cmp_ge_u32 s2, 182
    s_cbranch_scc1 {Lnone}
    {EXPER}
    s_cmp_ge_u32 s2, 168
    s_cbranch_scc1 {Lwo}
    s_cmp_ge_u32 s2, 112
    s_cbranch_scc1 {Lw2}
    s_lshr_b32 s{T0}, s2, 2
    s_and_b32 s{T1}, s2, 3
    s_cmp_eq_u32 s{T4}, 1
    s_cselect_b32 s68, s82, s80
    s_cselect_b32 s69, s83, s81
    s_mov_b32 s70, {448 * 1792 * 2}
    s_mov_b32 s{sKIND}, 0
    s_mov_b32 s{sPIT}, 3584
    s_mul_i32 s{sSRC}, s{T1}, 112
    s_mul_i32 s{T2}, s{T5}, 56
    s_add_u32 s{sSRC}, s{sSRC}, s{T2}
    s_mul_i32 s{sSRC}, s{sSRC}, 3584
    s_lshl_b32 s{T2}, s{T0}, 7
    s_add_u32 s{sSRC}, s{sSRC}, s{T2}
    s_lshl_b32 s{T2}, s{T0}, 2
    s_add_u32 s{T2}, s{T2}, s{sW}
    s_mul_i32 s{sDST}, s{T2}, 28
    s_mul_i32 s{T0}, s{T1}, 7
    s_add_u32 s{sDST}, s{sDST}, s{T0}
    s_lshl_b32 s{sDST}, s{sDST}, 10
    s_add_u32 s{sDST}, s{sDST}, {W13_P}
    s_mul_i32 s{sCSD}, s{T1}, 112
    s_add_u32 s{sCSD}, s{sCSD}, s{T2}
    s_lshl_b32 s{sCSD}, s{sCSD}, 7
    s_add_u32 s{sCSD}, s{sCSD}, {CSP_13}
    s_mov_b32 s{sA1}, 14336
    s_lshl_b32 s{sWOFF}, s{sW}, 5
    s_branch {Ldec}
    """)
    k.label(Lw2, pad=False)
    k(f"""
    s_sub_u32 s{T0}, s2, 112
    s_and_b32 s{T1}, s{T0}, 7
    s_lshr_b32 s{T0}, s{T0}, 3
    s_mov_b32 s68, s84
    s_mov_b32 s69, s85
    s_mov_b32 s70, {1792 * 448 * 2}
    s_mov_b32 s{sKIND}, 1
    s_mov_b32 s{sPIT}, 896
    s_mul_i32 s{sSRC}, s{T1}, 224
    s_mul_i32 s{T2}, s{sW}, 56
    s_add_u32 s{sSRC}, s{sSRC}, s{T2}
    s_mul_i32 s{sSRC}, s{sSRC}, 896
    s_lshl_b32 s{T2}, s{T0}, 7
    s_add_u32 s{sSRC}, s{sSRC}, s{T2}
    s_lshl_b32 s{T2}, s{T0}, 1
    s_add_u32 s{T2}, s{T2}, s{T5}
    s_mul_i32 s{sDST}, s{T2}, 112
    s_mul_i32 s{T0}, s{T1}, 14
    s_add_u32 s{sDST}, s{sDST}, s{T0}
    s_mul_i32 s{T0}, s{T4}, 7
    s_add_u32 s{sDST}, s{sDST}, s{T0}
    s_lshl_b32 s{sDST}, s{sDST}, 10
    s_add_u32 s{sDST}, s{sDST}, {W2_P}
    s_mov_b32 s{sCSD}, 0
    s_mov_b32 s{sA1}, 32
    s_mul_i32 s{sWOFF}, s{T4}, {112 * 128}
    s_lshl_b32 s{T0}, s{T5}, 6
    s_add_u32 s{sWOFF}, s{sWOFF}, s{T0}
    s_branch {Ldec}
    """)
    k.label(Lwo, pad=False)
    k(f"""
    s_sub_u32 s{T0}, s2, 168
    s_and_b32 s{T1}, s{T0}, 1
    s_lshr_b32 s{T0}, s{T0}, 1
    s_mov_b32 s68, s76
    s_mov_b32 s69, s77
    s_mov_b32 s70, {448 * 448 * 2}
    s_mov_b32 s{sKIND}, 2
    s_mov_b32 s{sPIT}, 896
    s_mul_i32 s{sSRC}, s{T1}, 224
    s_mul_i32 s{T2}, s{sW}, 56
    s_add_u32 s{sSRC}, s{sSRC}, s{T2}
    s_mul_i32 s{sSRC}, s{sSRC}, 896
    s_lshl_b32 s{T2}, s{T0}, 7
    s_add_u32 s{sSRC}, s{sSRC}, s{T2}
    s_lshl_b32 s{T2}, s{T0}, 1
    s_add_u32 s{T2}, s{T2}, s{T5}
    s_lshl_b32 s{sDST}, s{T2}, 5
    s_lshl_b32 s{T0}, s{T1}, 4
    s_add_u32 s{sDST}, s{sDST}, s{T0}
    s_lshl_b32 s{T0}, s{T4}, 3
    s_add_u32 s{sDST}, s{sDST}, s{T0}
    s_lshl_b32 s{sDST}, s{sDST}, 10
    s_add_u32 s{sDST}, s{sDST}, {WO_P}
    s_mov_b32 s{sCSD}, 0
    s_mov_b32 s{sA1}, 32
    s_mul_i32 s{sWOFF}, s{T4}, {112 * 128}
    s_lshl_b32 s{T0}, s{T5}, 6
    s_add_u32 s{sWOFF}, s{sWOFF}, s{T0}
    s_branch {Ldec}
    """)
    k.label(Lnone, pad=False)
    k(f"""
    s_mov_b32 s68, s76
    s_mov_b32 s69, s77
    s_mov_b32 s70, 0
    s_mov_b32 s{sKIND}, 3
    s_mov_b32 s{sPIT}, 0
    s_mov_b32 s{sSRC}, 0
    s_mov_b32 s{sDST}, 0
    s_mov_b32 s{sCSD}, 0
    s_mov_b32 s{sA1}, 0
    s_mov_b32 s{sWOFF}, 0
    """)
    k.label(Ldec, pad=False)
    k(f"""
    v_lshrrev_b32 v{vT1}, 3, v{vLANE}
    v_mul_lo_u32 v{vDS}, v{vT1}, s{sPIT}
    v_and_b32 v{vT2}, 7, v{vLANE}
    v_lshl_add_u32 v{vDS}, v{vT2}, 4, v{vDS}
    s_lshl_b32 s{sPIT}, s{sPIT}, 3
    v_xor_b32 v{vT2}, v{vT2}, v{vT1}
    v_mul_u32_u24 v{vXO}, 896, v{vT1}
    v_lshl_add_u32 v{vXO}, v{vT2}, 4, v{vXO}
    v_lshrrev_b32 v{vIMG}, 2, v{vLANE}
    v_mul_u32_u24 v{vIMG}, 2688, v{vIMG}
    v_and_b32 v{vT1}, 3, v{vLANE}
    v_lshl_add_u32 v{vIMG}, v{vT1}, 4, v{vIMG}
    s_mul_i32 s{sIMG}, s{sW}, {7 * 16 * 2688}
    s_mul_i32 s{T2}, s{sIDX}, 56
    s_add_u32 s{sIMG}, s{sIMG}, s{T2}
    s_mul_i32 s{sXS}, s{sTT}, {32 * 896}
    """)
    hx, himg = {}, {}
    def xslot(c):
        return [0, 1, 2, 0, 1, 2, 1][c]

    def xbase(c):
        return [(sLW, 0), (sXRB, 0), (sXRB, 4096)][xslot(c)]

    def duty_dma():
        for i in range(7):
            k(f's_add_u32 m0, s{sLW}, {F_DUTY + i * 1024}')
            k(f'buffer_load_dwordx4 v{vDS}, s[68:71], s{sSRC} offen lds')
            k(f's_add_u32 s{sSRC}, s{sSRC}, s{sPIT}')

    def xdma(c):
        b, o = xbase(c)
        for i in range(4):
            k(f's_add_u32 m0, s{b}, {o + i * 1024}')
            k(f's_add_u32 s{sXT}, s{sXS}, {i * 8 * 896 + c * 128}')
            k(f'buffer_load_dwordx4 v{vXO}, s[20:23], s{sXT} offen lds')
        hx[c] = k.vm_mark()

    def img_dma(p):
        for i in range(7):
            k(f's_add_u32 m0, s{sLW}, {p * SLOT + i * 1024}')
            k(f's_add_u32 s{sXT}, s{sIMG}, {i * 16 * 2688 + p * 896}')
            k(f'buffer_load_dwordx4 v{vIMG}, s[64:67], s{sXT} offen lds')
        himg[p] = k.vm_mark()
    k(f"""
    s_lshl_b32 s{sXRB}, s{sW}, 13
    s_add_u32 s{sXRB}, s{sXRB}, {F_XR}
    """)
    if CODEPF:
        k(f"""
        s_getpc_b64 s[{sTS}:{sTS + 1}]
        s_lshr_b32 s{T0}, s2, 3
        s_lshl_b32 s{T0}, s{T0}, 2
        s_add_u32 s{T0}, s{T0}, s{sW}
        s_lshl_b32 s{T0}, s{T0}, 9
        v_min_u32 v{vT1}, 3, v{vLANE}
        v_lshlrev_b32 v{vT1}, 7, v{vT1}
        v_add_u32 v{vT1}, s{T0}, v{vT1}
        v_min_u32 v{vT1}, {CODEPF}, v{vT1}
        global_load_dword v{vDUM}, v{vT1}, s[{sTS}:{sTS + 1}]
        """)
    if WARM:
        k(f"""
        s_lshr_b32 s{T0}, s2, 3
        s_lshl_b32 s{T0}, s{T0}, 2
        s_add_u32 s{T0}, s{T0}, s{sW}
        v_lshlrev_b32 v{vT1}, 7, v{vLANE}
        s_mul_i32 s{T2}, s{T0}, {74 * 128}
        buffer_load_dword v{vDUM}, v{vT1}, s[64:67], s{T2} offen
        v_min_u32 v{vT2}, 9, v{vLANE}
        v_lshlrev_b32 v{vT2}, 7, v{vT2}
        s_add_u32 s{T2}, s{T2}, 8192
        buffer_load_dword v{vDUM}, v{vT2}, s[64:67], s{T2} offen
        v_min_u32 v{vT2}, 13, v{vLANE}
        v_lshlrev_b32 v{vT2}, 7, v{vT2}
        s_lshr_b32 s{T2}, s{sRB}, 1
        s_mul_i32 s{T2}, s{T2}, {256 * 896}
        s_mul_i32 s{T0}, s{T0}, 1792
        s_add_u32 s{T2}, s{T2}, s{T0}
        buffer_load_dword v{vDUM}, v{vT2}, s[20:23], s{T2} offen
        """)
    set_layer(k, 0)
    if PROPOS == 0:
        emit(k, [x.replace(f'v{vTA},', f'v{vT3},').replace(f'v{vTA}', f'v{vT3}') for x in SCHED['PRO']()])
    if DUTYPOS == 0:
        duty_dma()
    xdma(0)
    xdma(1)
    xdma(2)
    img_dma(1)
    k.wait_vm(h_zero)
    signal(k)
    if DUTYPOS == 1:
        duty_dma()
    ts(k, 'F.issued')
    k(f"""
    v_lshlrev_b32 v{vT1}, 3, v{vHH}
    v_bfe_u32 v{vT2}, v{vLANE}, 2, 2
    v_add_u32 v{vT1}, v{vT1}, v{vT2}
    v_and_b32 v{vT2}, 1, v{vLANE}
    v_lshlrev_b32 v{vT2}, 4, v{vT2}
    v_bfe_u32 v{vT3}, v{vLANE}, 1, 1
    v_lshl_or_b32 v{vT2}, v{vT3}, 3, v{vT2}
    v_bfe_u32 v{vT3}, v{vLANE}, 4, 1
    v_lshl_add_u32 v{vTR}, v{vT1}, 6, v{vT2}
    v_lshl_add_u32 v{vTR}, v{vT3}, 5, v{vTR}
    v_add_u32 v{vTR2}, {2 * SLOT}, v{vTR}
    v_lshl_add_u32 v{vDT}, v{vT1}, 7, v{vT2}
    v_mad_u32_u24 v{vDT}, v{vT3}, s{sA1}, v{vDT}
    s_add_u32 s{T0}, s{sWOFF}, {F_DUTY}
    v_add_u32 v{vDT}, s{T0}, v{vDT}
    v_add_u32 v{vOQ}, s{sLW}, v{vTR}
    v_add_u32 v{vOQ2}, s{sLW}, v{vTR2}
    v_mov_b32 v{vS1}, 0
    v_mov_b32 v{vS2}, 0
    v_mov_b32 v{vCSK}, 0
    v_mov_b32 v{vCSV}, 0
    v_mov_b32 v{vCSQ}, 0
    v_cmp_le_u32 s[{sPAD}:{sPAD + 1}], 28, v{vN}
    s_sub_u32 s{T0}, s{sXRB}, s{sLW}
    """)
    for i in range(4):
        k(f"""
        v_add_u32 v{vT1}, {2 * i}, v{vHH}
        v_and_b32 v{vT2}, 7, v{vN}
        v_xor_b32 v{vT1}, v{vT1}, v{vT2}
        v_lshlrev_b32 v{vT1}, 4, v{vT1}
        v_lshl_add_u32 v{XA + i}, v{vN}, 7, v{vT1}
        v_add_u32 v{XA + i}, s{sLW}, v{XA + i}
        v_add_u32 v{XA + 4 + i}, s{T0}, v{XA + i}
        """)
    k(f's_or_b64 s[{sHP}:{sHP + 1}], s[{sHI}:{sHI + 1}], s[{sPAD}:{sPAD + 1}]')
    emit(k, setup2_salu())

    k(f"""
    s_movk_i32 s{sSA}, 2048
    s_cmp_eq_u32 s{sKIND}, 2
    s_cselect_b32 s{sSA}, 1792, s{sSA}
    s_cselect_b32 s{sSB}, 256, 0
    s_mov_b32 s{sZM}, 0
    s_cselect_b32 s{sZM + 1}, -1, 0
    s_add_u32 s{T0}, s{sDST}, 4096
    s_cmp_eq_u32 s{sKIND}, 2
    s_cselect_b32 s{sD8}, s{T0}, {OOBS}
    s_cmp_eq_u32 s{sKIND}, 0
    s_cselect_b32 s{sCSD}, s{sCSD}, {OOBS}
    s_cmp_eq_u32 s{sKIND}, 3
    s_cselect_b32 s{sDST}, {OOBS}, s{sDST}
    """)

    def x_rd(c):
        k.wait_vm(hx[c])
        for i in range(4):
            a, o = (XA + i, 0) if xslot(c) == 0 else (XA + 4 + i, 4096 * (xslot(c) - 1))
            k(f'ds_read_b128 {v4(X + 16 * c + 4 * i)}, v{a} offset:{o}')

    def x_st(c):
        emit(k, stats_ops(X + 16 * c, 16, vS1, vS2, vONES))

    def own_quarter(p, acc, buf):
        k.wait_vm(himg[p])
        base = vOQ if p < 2 else vOQ2
        for i in range(7):
            off = (p * SLOT if p < 2 else 0) + i * 1024
            k(f'ds_read_b64_tr_b16 {v2(buf + 4 * i)}, v{base} offset:{off}')
            k(f'ds_read_b64_tr_b16 {v2(buf + 4 * i + 2)}, v{base} offset:{off + 256}')
        for i in range(28):
            k(f'v_dot2_f32_bf16 v{acc}, v{buf + i}, v{vONES}, v{acc}')
        k(f"""
        v_mov_b32 v{vT0}, v{acc}
        v_permlane32_swap_b32 v{acc}, v{vT0}
        v_add_f32 v{acc}, v{acc}, v{vT0}
        s_mul_i32 s{T0}, s{sW}, 384
        s_add_u32 s{T0}, s{T0}, {F_CSX}
        v_lshlrev_b32 v{vT3}, 2, v{vN}
        v_add_u32 v{vT2}, s{T0}, v{vT3}
        ds_write_b32 v{vT2}, v{acc} offset:{128 * p}
        """)
    for c in range(3):
        x_rd(c)
    k.wait_lg()
    for c in range(3, 6):
        xdma(c)
    img_dma(2)
    ts(k, 'F.iss2')
    for c in range(3):
        x_st(c)
    own_quarter(1, vCSK, WB)
    x_rd(3)
    x_rd(4)
    k.wait_lg()
    xdma(6)
    if DUTYPOS == 2:
        duty_dma()
    ts(k, 'F.iss3')
    x_rd(5)
    for c in range(3, 6):
        x_st(c)
    own_quarter(2, vCSV, WB)
    x_rd(6)
    x_st(6)
    emit(k, ln_math(vS1, vS2, vT0, vT1, vM, vR) + mb_fill())
    k(f'v_lshlrev_b32 v{vT3}, 2, v{vN}')
    k(f'v_add_u32 v{vS1}, {F_CSX}, v{vT3}')
    gather = lines(f"""
    s_lshl_b32 s{T0}, s{sW}, 8
    s_add_u32 s{T0}, s{T0}, {F_SCR}
    v_add_u32 v{vT1}, s{T0}, v{vT3}
    ds_write_b32 v{vT1}, v{vR}
    v_lshlrev_b32 v{vT1}, 4, v{vHH}
    v_add_u32 v{vT1}, s{T0}, v{vT1}
    """) + [f'ds_read_b128 {v4(RT + 4 * g)}, v{vT1} offset:{32 * g}' for g in range(4)]
    ts(k, 'F.pre')
    k.barrier()
    ts(k, 'F.barA')
    pidx = {'Q': 0, 'K': 1, 'V': 2}

    def gemm(seq, CFR):
        def wread(n):
            p, ks = seq[n]
            b = WB + 4 * (n % NB)
            base, off = (vTR2, ks * 1024) if p == 'V' else (vTR, pidx[p] * SLOT + ks * 1024)
            return [f'ds_read_b64_tr_b16 {v2(b)}, v{base} offset:{off}',
                    f'ds_read_b64_tr_b16 {v2(b + 2)}, v{base} offset:{off + 256}']
        M = []
        for n, (p, ks) in enumerate(seq):
            b = v4(WB + 4 * (n % NB))
            x = v4(X + 4 * ks)
            a = {'Q': AQ, 'K': AK, 'V': AV}[p]
            c = '0' if ks == 0 else v16(a)
            m = f'{MF} {v16(a)}, {x}, {b}, {c}' if p == 'V' else f'{MF} {v16(a)}, {b}, {x}, {c}'
            M.append(dict(pre=wread(n + PF) if n + PF < len(seq) else [], m=m, need=[b]))
        for p, cf in CFR:
            a = {'Q': AQ, 'K': AK, 'V': AV}[p]
            M.append(dict(m=f'{MF} {v16(a)}, {v4(MB)}, {v4(cf)}, {v16(a)}' if p == 'V' else f'{MF} {v16(a)}, {v4(cf)}, {v4(MB)}, {v16(a)}'))
        for n in range(PF):
            emit(k, wread(n))
        return M

    def cs_frag(p, cf, t):
        fl = [f'ds_read_b32 v{t + w}, v{vS1} offset:{w * 384 + p * 128}' for w in range(4)]
        fl += ['s_nop 0'] * 6
        fl += [f'v_add_f32 v{t}, v{t}, v{t + 1}', f'v_add_f32 v{t + 2}, v{t + 2}, v{t + 3}', f'v_add_f32 v{t}, v{t}, v{t + 2}',
               f'v_cndmask_b32 v{t}, v{t}, 0, s[{sHP}:{sHP + 1}]']
        fl += split3(t, cf, cf + 1, vT0, vT2)
        fl += [f'v_mov_b32 v{cf + 2}, 0', f'v_mov_b32 v{cf + 3}, 0',
               ('call', lambda k: cs_store(k, cf))]
        return fl

    def cs_store(k, cf):
        k(f'ds_write_b128 v{vS2}, {v4(cf)}')
        k(f'v_add_u32 v{vS2}, 1024, v{vS2}')
    k(f'v_add_u32 v{vS2}, {SCR_CSQ + 1024}, v{vL16}')
    M = gemm([(p, ks) for ks in range(28) for p in 'KV'], [('K', QF), ('V', QF + 4)])
    fl = F(gather + cs_frag(1, QF, KF) + cs_frag(2, QF + 4, KF), earliest=1, deadline=54)
    late = []
    for i in range(7):
        late.append([f's_add_u32 m0, s{sLW}, {i * 1024}', f's_add_u32 s{sXT}, s{sIMG}, {i * 16 * 2688}',
                     f'buffer_load_dwordx4 v{vIMG}, s[64:67], s{sXT} offen lds'])
    late[-1].append(('call', lambda k: himg.__setitem__(0, k.vm_mark())))
    for j, c in enumerate(late):
        n = 1 + 5 * j
        M[n]['pre'] = M[n]['pre'] + c
    fl += F(lines(f"""
    s_lshl_b32 s{T0}, s{sIDX}, 6
    s_add_u32 s{T0}, s{T0}, s{sTT}
    s_lshl_b32 s{T4}, s{T0}, 2
    s_add_u32 s{T4}, s{T4}, {F_KV}
    s_lshl_b32 s{T5}, s{sIDX}, 3
    s_add_u32 s{T5}, s{T5}, s{sTT}
    s_lshl_b32 s{T5}, s{T5}, 12
    s_add_u32 s{T5}, s{T5}, s{sKV}
    s_lshr_b32 s{T0}, s{sRB}, 1
    s_mul_i32 s{T0}, s{T0}, {RSZ - 8 * 4096}
    s_add_u32 s{T5}, s{T5}, s{T0}
    """), earliest=2)
    flush(k, weave(k, M, fl, free=6))
    ts(k, 'F.kv')
    for r in range(16):
        k(f'v_mul_f32 v{AK + r}, v{vR}, v{AK + r}')
    for q in range(8):
        k(f'v_cvt_pk_bf16_f32 v{KF + q}, v{AK + 2 * q}, v{AK + 2 * q + 1}')
    k(f'v_cndmask_b32 v{KF + 6}, v{KF + 6}, 0, s[{sHI}:{sHI + 1}]')
    k(f'v_cndmask_b32 v{KF + 7}, v{KF + 7}, 0, s[{sHI}:{sHI + 1}]')
    for i in range(2):
        k(f'buffer_store_dwordx4 {v4(KF + 4 * i)}, v{vL16}, s[8:11], s{T5} offen offset:{1024 * i} sc1')
    for r in range(16):
        k(f'v_mul_f32 v{AV + r}, v{RT + r}, v{AV + r}')
    for q in range(8):
        k(f'v_cvt_pk_bf16_f32 v{VF + q}, v{AV + 2 * q}, v{AV + 2 * q + 1}')
        k(f'v_cndmask_b32 v{VF + q}, v{VF + q}, v{vONES}, s[{sN28}:{sN28 + 1}]')
    for i in range(2, 4):
        k(f'buffer_store_dwordx4 {v4(KF + 4 * i)}, v{vL16}, s[8:11], s{T5} offen offset:{1024 * i} sc1')
    hkv = k.vm_mark()
    for i in range(4):
        k(f'ds_write_b128 v{vKVA}, {v4(KF + 4 * i)} offset:{8 * 4096 + 1024 * i}')
    own_quarter(0, vCSQ, AK)
    set_flag(k, T4, '1', always_sc1=True, h=hkv)
    if PROPOS == 1:
        emit(k, SCHED['PRO']())
    ts(k, 'F.kvpub')
    k.barrier()
    k(f"""
    v_and_b32 v{vXO}, 15, v{vLANE}
    v_lshlrev_b32 v{vXO}, 4, v{vXO}
    buffer_load_dword v{vCSK}, v{vXO}, s[16:19], 0 offen sc1
    """)
    DB = AK
    for i in range(8):
        k(f'ds_read_b64_tr_b16 {v2(DB + 4 * i)}, v{vDT}')
        k(f'ds_read_b64_tr_b16 {v2(DB + 4 * i + 2)}, v{vDT} offset:512')
        k(f's_{"add" if i % 2 == 0 else "sub"}_u32 s{T0}, s{sSA}, s{sSB}')
        k(f'v_add_u32 v{vDT}, s{T0}, v{vDT}')
    k(f'v_mov_b32 v{vT1}, 0')
    dst = []
    for i in range(8):
        if i & 1:
            k(f'v_cndmask_b32 v{DB + 4 * i + 2}, v{DB + 4 * i + 2}, 0, s[{sZM}:{sZM + 1}]')
            k(f'v_cndmask_b32 v{DB + 4 * i + 3}, v{DB + 4 * i + 3}, 0, s[{sZM}:{sZM + 1}]')
        dst.append(([f's_add_u32 s{sDST}, s{sDST}, 4096'] if i == 4 else []) +
                   [f'buffer_store_dwordx4 {v4(DB + 4 * i)}, v{vL16}, s[8:11], s{sD8 if i == 7 else sDST} offen offset:{(i % 4) * 1024} sc1'])
    emit(k, dst[0] + dst[1])
    for i in range(28):
        k(f'v_dot2_f32_bf16 v{vT1}, v{DB + i}, v{vONES}, v{vT1}')
    k(f"""
    v_mov_b32 v{vT0}, v{vT1}
    v_permlane32_swap_b32 v{vT1}, v{vT0}
    v_add_f32 v{vT1}, v{vT1}, v{vT0}
    v_lshlrev_b32 v{vT3}, 2, v{vN}
    buffer_store_dword v{vT1}, v{vT3}, s[8:11], s{sCSD} offen sc1
    """)
    ts(k, 'F.duty')
    SH = RT + 8
    share = lines(f"""
    s_cmp_ge_u32 s{sRB}, 7
    s_cselect_b32 s{T0}, 1, 0
    s_cmp_ge_u32 s{sRB}, 14
    s_cselect_b32 s{T0}, 2, s{T0}
    s_mul_i32 s{T1}, s{T0}, 7
    s_sub_u32 s{T1}, s{sRB}, s{T1}
    s_mul_i32 s{T0}, s{T0}, {SLOT}
    s_lshl_b32 s{T1}, s{T1}, 10
    s_add_u32 s{T0}, s{T0}, s{T1}
    v_add_u32 v{vT1}, s{T0}, v{vOQ}
    ds_read_b64_tr_b16 {v2(SH)}, v{vT1}
    ds_read_b64_tr_b16 {v2(SH + 2)}, v{vT1} offset:256
    s_mul_i32 s{T2}, s{sIDX}, {84 * 1024}
    s_add_u32 s{T2}, s{T2}, s{sLW}
    s_add_u32 s{T2}, s{T2}, {WQKV_P}
    s_add_u32 s{T3}, s{T2}, s{T0}
    s_min_u32 s{T1}, s{sRB}, 4
    s_lshl_b32 s{T1}, s{T1}, 10
    s_add_u32 s{T1}, s{T1}, {2 * SLOT + 2048}
    v_add_u32 v{vT1}, s{T1}, v{vOQ}
    ds_read_b64_tr_b16 {v2(SH + 4)}, v{vT1}
    ds_read_b64_tr_b16 {v2(SH + 6)}, v{vT1} offset:256
    s_add_u32 s{T2}, s{T2}, s{T1}
    s_cmp_gt_u32 s{sRB}, 4
    s_cselect_b32 s{T2}, {OOBS}, s{T2}
    """) + ['s_nop 0'] * 2
    share += [f'v_cndmask_b32 v{SH + q}, v{SH + q}, 0, s[{sPAD}:{sPAD + 1}]' for q in range(8)]
    share += [f'buffer_store_dwordx4 {v4(SH)}, v{vL16}, s[8:11], s{T3} offen sc1',
              f'buffer_store_dwordx4 {v4(SH + 4)}, v{vL16}, s[8:11], s{T2} offen sc1']
    k(f'v_add_u32 v{vS2}, {SCR_CSQ}, v{vL16}')
    M = gemm([('Q', ks) for ks in range(28)], [('Q', RT)])
    for i in range(2, 8):
        M[3 * (i - 2) + 1]['pre'] = M[3 * (i - 2) + 1]['pre'] + dst[i]
    fl = F(cs_frag(0, RT, RT + 4), earliest=1, deadline=26) + F(share, earliest=1)
    flush(k, weave(k, M, fl, free=6))
    k(f'v_mov_b32 v{vFL}, v{vCSK}')
    emit(k, setup2_valu())
    k(f'v_mul_f32 v{vT0}, {f32bits(28 ** -0.5 * LOG2E)}, v{vR}')
    for r in range(16):
        k(f'v_mul_f32 v{AQ + r}, v{vT0}, v{AQ + r}')
    for q in range(8):
        k(f'v_cvt_pk_bf16_f32 v{QF + q}, v{AQ + 2 * q}, v{AQ + 2 * q + 1}')
    k(f"""
    v_mov_b32 v{vT1}, 0x3f80
    v_cndmask_b32 v{QF + 6}, v{QF + 6}, v{vT1}, s[{sHI}:{sHI + 1}]
    v_cndmask_b32 v{QF + 7}, v{QF + 7}, 0, s[{sHI}:{sHI + 1}]
    """)
    ts(k, 'F.q')
    global_check(k, pre=True)
    ts(k, 'F.chk')
    k.barrier()
    k(f's_cmp_lg_u32 s{sW}, 0')
    k.skip_begin('s_cbranch_scc1')
    k(f"""
    s_lshl_b32 s{T0}, s2, 7
    s_add_u32 s{T0}, s{T0}, {F_PK}
    v_mov_b32 v{vFL}, 1
    s_mov_b64 exec, 1
    buffer_store_dword v{vFL}, v{vZERO}, s[8:11], s{T0} offen sc1
    s_mov_b64 exec, -1
    """)
    k.skip_end()
    k(f's_cmp_eq_u32 s{sFAST}, 0')
    k('s_cbranch_scc1 SLOW_entry')


CSL = 112


def cs13_build():
    c = CSL
    out = [f'v_add_f32 v{c}, v{c}, v{c + 1}', f'v_add_f32 v{c + 2}, v{c + 2}, v{c + 3}', f'v_add_f32 v{c}, v{c}, v{c + 2}']
    out += split3(c, c + 4, c + 5, vT1, vT2)
    out += [f'v_mov_b32 v{c + i}, 0' for i in range(6, 12)]
    out += lines(f"""
    s_lshl_b32 s{sT0}, s{sW}, 10
    s_add_u32 s{sT0}, s{sT0}, {SCR_CS13}
    v_lshlrev_b32 v{vT0}, 4, v{vN}
    v_lshl_add_u32 v{vT0}, v{vHH}, 12, v{vT0}
    v_add_u32 v{vT0}, s{sT0}, v{vT0}
    ds_write_b128 v{vT0}, {v4(c + 4)}
    ds_write_b128 v{vT0}, {v4(c + 8)} offset:512
    s_waitcnt lgkmcnt(0)
    """)
    return out


SCHED = {}


def sched_a(v='a'):
    w2 = pf_w2()
    none = lambda: []
    SCHED.update({
        'PRO': lambda: t_X() + t_O(),
        'P3_pre': none,
        'P3_mm': lambda: [L1(t_H())] + [L0(g) for g in w2[:4]],
        'P3_idle': lambda: ['s_barrier'] + [L1(t_H())],
        'P5_idle': none,
        'P4_pre': none, 'P4_p1': none,
        'P4_mid': lambda: [[L0(g)] for g in w2[4:]] + [[L0(touch(2, sSADR))]],
        'G_pre': lambda: t_O(), 'G_q': none,
    })
    if v in 'ef':
        ch = (load_chunks([a4(4 * i) for i in range(28)], sBW2, sDM) + load_chunks([a4(112 + 4 * i) for i in range(28)], sBW2 + 1, sDM))
        n0 = 16 if v == 'e' else 24
        SCHED.update({
            'P3_mm': lambda: [L1(t_H())] + [L0(flat(ch[i:i + 2])) for i in range(0, n0, 2)],
            'P4_mid': lambda: [[L0(c)] for c in ch[n0:]] + [[L0(touch(2, sSADR))]],
        })
    if v == 'x':
        SCHED.update({'P3_mm': lambda: [L1(t_H())], 'P4_mid': lambda: [[L0(touch(2, sSADR))]]})
    if v == 'y':
        global HPLAIN
        HPLAIN = True
        ch = (load_chunks([a4(4 * i) for i in range(28)], sBW2, sDM) + load_chunks([a4(112 + 4 * i) for i in range(28)], sBW2 + 1, sDM))
        SCHED.update({
            'P3_mm': lambda: [L0(flat(ch[i:i + 2])) for i in range(0, 16, 2)] + [L1(t_H())],
            'P3_idle': lambda: ['s_barrier'] + [L1(t_H())],
            'P4_p1': lambda: [[L0(t_H())]],
            'P4_mid': lambda: [[L0(c)] for c in ch[16:]] + [[L0(touch(2, sSADR))]],
        })
    if v in 'bc':
        n3 = 7 if v == 'b' else 10
        SCHED.update({
            'P3_idle': lambda: ['s_barrier'] + [L1(t_H())] + idle_q() + idle_touch(W13_P + 3 * SLOT, 7 * SLOT, n3),
            'P5_idle': lambda: idle_q() + idle_touch(WQKV_P, 84 * 1024, 11) + idle_touch(WO_P, 28 * 1024, 4),
        })
    if v == 'd':
        SCHED.update({
            'P3_idle': lambda: ['s_barrier'] + [L1(t_H())] + idle_q() + [L0(idle_touch(W2_P, 98 * 1024, 7, 4)), L1(idle_touch(W13_P + 3 * SLOT, 7 * SLOT, 7))],
            'P5_idle': lambda: idle_q() + idle_touch(WQKV_P, 84 * 1024, 11) + idle_touch(WO_P, 28 * 1024, 4) + idle_touch(W13_P, 7 * SLOT, 7),
        })


def layer_switch(k):
    k(f's_mov_b32 s{sL}, 1')
    if TS_ON:
        k(f'v_accvgpr_write_b32 a255, v{vTS}')
        k(f'v_mov_b32 v{vTS}, 0')
    set_layer(k, 1)
    phase_G(k)


def phases(k):
    k.lg_done = k.lg_seq
    k.pend = {}
    attention(k)
    phase_P3(k)
    phase_P4(k, 'MAIN_fin')


def body(k, sfx):
    global LAYER
    if sfx == '_s':
        LAYER = None
        k.label('SLOW_entry', pad=False)
        set_layer(k, 0)
        k.label('ATT' + sfx)
        phases(k)
        layer_switch(k)
        k('s_branch ATT' + sfx)
    else:
        LAYER = 0
        phases(k)
        LAYER = 1
        layer_switch(k)
        phases(k)


def gen_main(k, name):
    global MODE
    kstart(k, name)
    k.ignore.add(('v', vDUM))
    end = 'MAIN_end'
    MODE = 'fast'
    setup(k, end)
    ts(k, 'start')
    front(k)
    body(k, '_f')
    k.label('MAIN_fin', pad=False)
    rowmajor_addr(k)
    k(f"""
    buffer_store_dwordx4 {v4(P5_XO)}, v{vT0}, s[12:15], s{sT0} offen
    buffer_store_dwordx4 {v4(P5_XO + 4)}, v{vT0}, s[12:15], s{sT0} offen offset:32
    """)
    ts(k, 'P5.pub')
    k.label('MAIN_tail', pad=False)
    if TS_ON:
        k(f"""
        v_writelane_b32 v{vTS}, s{sFAST}, 63
        s_lshl_b32 s{sT0}, s2, 2
        s_add_u32 s{sT0}, s{sT0}, s{sW}
        s_lshl_b32 s{sT0}, s{sT0}, 9
        s_add_u32 s{sT0}, s{sT0}, {TS}
        v_lshlrev_b32 v{vT0}, 2, v{vLANE}
        buffer_store_dword a255, v{vT0}, s[8:11], s{sT0} offen
        buffer_store_dword v{vTS}, v{vT0}, s[8:11], s{sT0} offen offset:256
        """)
        if '-gts' in sys.argv:
            want = [(0, 'F.barA'), (0, 'ATT.start'), (0, 'ATT.pub'), (0, 'P4.ready'), (0, 'P4.mfma'), (0, 'P5.pub'),
                    (1, 'ATT.start'), (1, 'ATT.pub'), (1, 'P4.ready'), (1, 'P4.mfma'), (1, 'P5.mfma'), (1, 'P5.pub')]
            slots_ = [1, 2, 3, 5, 6, 7, 9, 10, 11, 13, 14, 15]
            k(f's_lshl_b32 s{sT0}, s{sW}, 8')
            k(f's_or_b32 s{sT0}, s{sT0}, s2')
            k(f's_cmp_lg_u32 s{sT0}, 40')
            k('s_cbranch_scc1 MAIN_end')
            k(f'v_accvgpr_read_b32 v{vT1}, a255')
            k('s_nop 1')
            k(f'v_readlane_b32 s{sT1}, v{vT1}, 0')
            k('s_mov_b64 exec, 1')
            for (l, n), sl in zip(want, slots_):
                k(f'v_readlane_b32 s{sT2}, v{vT1 if l == 0 else vTS}, {_ts_names.index(n)}')
                k('s_nop 3')
                k(f's_sub_u32 s{sT2}, s{sT2}, s{sT1}')
                k(f'v_mov_b32 v{vT2}, s{sT2}')
                k(f'buffer_store_dword v{vT2}, v{vZERO}, s[16:19], 0 offen offset:{4 * sl}')
    k.drained()
    k.label(end, pad=False)
    k('s_endpgm')
    MODE = 'slow'
    k.drained()
    body(k, '_s')


HEADER = """; Persistent single-launch implementation (generated by a Python script written for this task).
"""


def main():
    global TS_ON, FORCE_SLOW, FORCE_FALLBACK
    TS_ON = '-ts' in sys.argv
    FORCE_SLOW = '-slow' in sys.argv
    FORCE_FALLBACK = '-fb' in sys.argv
    global WARM
    WARM = '-nowarm' not in sys.argv
    global XDEPTH, P4FREE
    for a in sys.argv:
        if a.startswith('-x'):
            XDEPTH = int(a[2:])
        if a.startswith('-f') and a[2:].isdigit():
            P4FREE = int(a[2:])
    global CODEPF
    if '-nocode' in sys.argv:
        CODEPF = 0
    global PROPOS
    PROPOS = int([a[2:] for a in sys.argv if a.startswith('-p')][0]) if any(a.startswith('-p') for a in sys.argv) else 1
    global GNQ1
    GNQ1 = int([a[2:] for a in sys.argv if a.startswith('-q')][0]) if any(a.startswith('-q') for a in sys.argv) else 6
    global DUTYPOS
    DUTYPOS = int([a[2:] for a in sys.argv if a.startswith('-d')][0]) if any(a.startswith('-d') for a in sys.argv) else 2
    sched_a([a[2:] for a in sys.argv if a.startswith('-s') and len(a) == 3][0] if any(a.startswith('-s') and len(a) == 3 for a in sys.argv) else 'a')
    k = K()
    final = '-final' in sys.argv
    kn = 'interleave_layers__sliding_block__glu_gated_swiglu__prompt_kernel' if final else 'main_kernel'
    gen_main(k, kn)
    if final:
        head = HEADER + f'; @launch grid=(256,1,1) block=(256,1,1) lds={LDS_BYTES}\n'
    else:
        head = f'; @launch kernel=main_kernel grid=(256,1,1) block=(256,1,1) lds={LDS_BYTES}\n'
    head += '.amdgcn_target "amdgcn-amd-amdhsa--gfx950"\n.text\n'
    open(sys.argv[1], 'w').write(head + k.text() + kd(kn, 512, 102, 256))
    print('nops inserted', k.nops_inserted, 'lines', len(k.lines))
    if TS_ON:
        open(sys.argv[1] + '.names', 'w').write('\n'.join(_ts_names))


if __name__ == '__main__':
    main()
```

```python
import re

TRANS = ('v_exp_f32', 'v_log_f32', 'v_rcp_f32', 'v_rsq_f32', 'v_sqrt_f32', 'v_sin_f32', 'v_cos_f32',
         'v_rcp_iflag_f32')

_reg_re = re.compile(r'^(-|\|)?(abs\()?([vas])(\d+|\[(\d+):(\d+)\])\)?\|?$')


def parse_reg(tok):
    tok = tok.strip()
    if tok == 'vcc':
        return [('s', 106), ('s', 107)]
    if tok == 'vcc_lo':
        return [('s', 106)]
    if tok == 'vcc_hi':
        return [('s', 107)]
    if tok == 'exec':
        return [('s', 126), ('s', 127)]
    if tok == 'm0':
        return [('s', 124)]
    m = _reg_re.match(tok)
    if not m:
        return []
    f = m.group(3)
    if m.group(5) is not None:
        return [(f, i) for i in range(int(m.group(5)), int(m.group(6)) + 1)]
    return [(f, int(m.group(4)))]


def split_ops(s):
    out, depth, cur = [], 0, ''
    for ch in s:
        if ch in '[(':
            depth += 1
        if ch in '])':
            depth -= 1
        if ch == ',' and depth == 0:
            out.append(cur.strip())
            cur = ''
        else:
            cur += ch
    if cur.strip():
        out.append(cur.strip())
    return out


class Inst:
    __slots__ = ('text', 'op', 'reads', 'writes', 'kind', 'passes', 'srcc', 'srcab', 'wide_store_data', 'lds_dma',
                 'nstates', 'is_trans', 'is_dpp', 'is_permlane', 'is_readlane', 'cnt')


def classify(text):
    t = text.split(';')[0].strip()
    parts = t.split(None, 1)
    op = parts[0]
    rest = parts[1] if len(parts) > 1 else ''
    ops = split_ops(rest)
    mods = []
    clean = []
    for o in ops:
        ws = o.split()
        clean.append(ws[0] if ws else '')
        mods += ws[1:]
    ops = clean
    I = Inst()
    I.text = text
    I.op = op
    I.reads, I.writes = [], []
    I.kind = 'other'
    I.passes = 0
    I.srcc = []
    I.srcab = []
    I.wide_store_data = []
    I.lds_dma = False
    I.nstates = 1
    base = re.sub(r'_(e32|e64|dpp|sdwa)$', '', op)
    I.is_trans = base in TRANS
    I.is_dpp = op.endswith('_dpp')
    I.is_permlane = base.startswith('v_permlane')
    I.is_readlane = base in ('v_readfirstlane_b32', 'v_readlane_b32')
    I.cnt = None
    R = lambda k: parse_reg(ops[k]) if k < len(ops) else []
    allr = lambda a: [r for k in range(a, len(ops)) for r in parse_reg(ops[k])]
    if op == 's_nop':
        I.kind = 'nop'
        I.nstates = int(ops[0], 0) + 1
    elif op in ('s_waitcnt', 's_barrier', 's_endpgm', 's_sleep', 's_setprio', 's_branch') or op.startswith('s_cbranch'):
        I.kind = 'ctl'
        if op in ('s_cbranch_vccz', 's_cbranch_vccnz'):
            I.reads = parse_reg('vcc')
    elif op.startswith('v_mfma'):
        I.kind = 'mfma'
        I.writes = R(0)
        I.srcab = R(1) + R(2)
        I.srcc = R(3)
        I.reads = I.srcab + I.srcc
        if '32x32x16' in op:
            I.passes = 8
        elif '16x16x32' in op:
            I.passes = 4
        else:
            raise ValueError('unknown mfma ' + op)
    elif op.startswith('buffer_load') or op.startswith('global_load'):
        I.kind = 'vmem'
        I.cnt = 'vm'
        if 'lds' in mods:
            I.lds_dma = True
            I.reads = allr(0) + parse_reg('m0')
        else:
            I.writes = R(0)
            I.reads = allr(1)
            if 'd16' in op:
                I.reads = I.reads + R(0)
    elif op.startswith('buffer_store') or op.startswith('global_store'):
        I.kind = 'vmem'
        I.cnt = 'vm'
        I.reads = allr(0)
        if op.endswith('x4') or op.endswith('x3'):
            I.wide_store_data = R(0) if op.startswith('buffer') else R(1)
    elif op.startswith('buffer_atomic') or op.startswith('global_atomic'):
        I.kind = 'vmem'
        I.cnt = 'vm'
        I.reads = allr(0)
        if 'sc0' in mods:
            I.writes = R(0)
    elif op in ('buffer_inv', 'buffer_wbl2'):
        I.kind = 'vmem'
        I.cnt = 'vm'
    elif op.startswith('ds_read') or op.startswith('ds_bpermute') or op.startswith('ds_permute') or op.startswith('ds_swizzle'):
        I.kind = 'ds'
        I.cnt = 'lgkm'
        I.writes = R(0)
        I.reads = allr(1)
    elif op.startswith('ds_write') or op.startswith('ds_add') or op.startswith('ds_max'):
        I.kind = 'ds'
        I.cnt = 'lgkm'
        I.reads = allr(0)
    elif op.startswith('s_load') or op in ('s_memtime', 's_memrealtime'):
        I.kind = 'smem'
        I.cnt = 'smem'
        I.writes = R(0)
        I.reads = allr(1)
    elif op.startswith('s_cmp') or op.startswith('s_bitcmp'):
        I.kind = 'salu'
        I.reads = allr(0)
    elif op.startswith('s_'):
        I.kind = 'salu'
        I.writes = R(0)
        I.reads = allr(1)
        if 'saveexec' in op:
            I.writes = I.writes + parse_reg('exec')
            I.reads = I.reads + parse_reg('exec')
        if op in ('s_addk_i32', 's_mulk_i32'):
            I.reads = I.reads + R(0)
    elif op.startswith('v_'):
        I.kind = 'valu'
        if I.is_permlane or base == 'v_swap_b32':
            I.writes = R(0) + R(1)
            I.reads = R(0) + R(1)
        elif base.startswith('v_cmp'):
            I.writes = R(0)
            I.reads = allr(1)
            if base.startswith('v_cmpx'):
                I.writes = I.writes + parse_reg('exec')
        elif base in ('v_add_co_u32', 'v_sub_co_u32', 'v_addc_co_u32', 'v_subb_co_u32', 'v_subrev_co_u32'):
            I.writes = R(0) + R(1)
            I.reads = allr(2)
        else:
            I.writes = R(0)
            I.reads = allr(1)
            if base in ('v_fmac_f32', 'v_dot2c_f32_bf16', 'v_writelane_b32') or I.is_dpp:
                I.reads = I.reads + R(0)
            if base == 'v_cndmask_b32' and len(ops) == 3:
                I.reads = I.reads + parse_reg('vcc')
    else:
        raise ValueError('cannot classify: ' + text)
    return I


class Handle:
    def __init__(self, seq):
        self.seq = seq


class K:
    def __init__(self):
        self.lines = []
        self.hist = []
        self.pos = 0
        self.vm_seq = 0
        self.vm_done = 0
        self.lg_seq = 0
        self.lg_done = 0
        self.smem_pending = False
        self.pend = {}
        self.uid = 0
        self.nops_inserted = 0
        self.cond_stack = []
        self.cold_stack = []
        self.cold = []
        self.skip_stack = []
        self.ignore = set()

    def raw(self, s):
        self.lines.append(s)

    def comment(self, s):
        self.lines.append('    ; ' + s)

    def newlabel(self, base='L'):
        self.uid += 1
        return f'{base}_{self.uid}'

    def _emit_wait(self, vm=None, lg=None):
        parts = []
        if vm is not None:
            parts.append(f'vmcnt({min(vm, 63)})')
        if lg is not None:
            parts.append(f'lgkmcnt({min(lg, 15)})')
        self._push(classify('s_waitcnt ' + ' '.join(parts)))
        if vm is not None:
            self.vm_done = max(self.vm_done, self.vm_seq - min(vm, 63))
        if lg is not None:
            self.lg_done = max(self.lg_done, self.lg_seq - min(lg, 15))
            if lg == 0:
                self.smem_pending = False
        self._gc()

    def _gc(self):
        dead = []
        for r, (k, seq) in self.pend.items():
            if k == 'vm' and seq <= self.vm_done:
                dead.append(r)
            elif k == 'lgkm' and seq <= self.lg_done:
                dead.append(r)
            elif k == 'smem' and not self.smem_pending:
                dead.append(r)
        for r in dead:
            del self.pend[r]

    def vm_mark(self):
        return Handle(self.vm_seq)

    def lg_mark(self):
        return Handle(self.lg_seq)

    def wait_vm(self, h=None):
        seq = self.vm_seq if h is None else h.seq
        if seq <= self.vm_done:
            return
        self._emit_wait(vm=self.vm_seq - seq)

    def wait_lg(self, h=None):
        seq = self.lg_seq if h is None else h.seq
        if self.smem_pending:
            self._emit_wait(lg=0)
            return
        if seq <= self.lg_done:
            return
        self._emit_wait(lg=self.lg_seq - seq)

    def wait_reg(self, tok):
        need_vm = need_lg = None
        for r in parse_reg(tok):
            p = self.pend.get(r)
            if p is None:
                continue
            if p[0] == 'vm':
                n = self.vm_seq - p[1]
                need_vm = n if need_vm is None else min(need_vm, n)
            elif p[0] == 'lgkm':
                n = self.lg_seq - p[1]
                need_lg = n if need_lg is None else min(need_lg, n)
            else:
                need_lg = 0
        if need_lg is not None and self.smem_pending:
            need_lg = 0
        if need_vm is not None or need_lg is not None:
            self._emit_wait(need_vm, need_lg)

    def wait_all(self):
        self._emit_wait(vm=0, lg=0)

    def barrier(self):
        self.wait_lg()
        self('s_barrier')

    def _needed_states(self, I):
        need = 0
        rset = set(I.reads)
        wset = set(I.writes)
        for pos, P in reversed(self.hist):
            dist = self.pos - pos - P.nstates
            if dist >= 20:
                continue
            req = 0
            pw = set(P.writes)
            if P.kind == 'valu':
                vw = {r for r in pw if r[0] in 'va'}
                sw = {r for r in pw if r[0] == 's'}
                if I.kind == 'mfma' and vw & rset:
                    req = max(req, 2)
                if P.op.startswith('v_dot') and vw & (rset | wset):
                    same_c = (I.op == P.op and I.writes == P.writes and not (vw & set(I.reads[:-len(I.writes)])))
                    if not same_c:
                        req = max(req, 3)
                if I.kind == 'valu':
                    if P.is_trans and not I.is_trans and vw & rset:
                        req = max(req, 1)
                    if P.is_trans and I.is_trans and vw & rset:
                        req = max(req, 1)
                    if I.is_readlane and vw & rset:
                        req = max(req, 1)
                    if (I.is_permlane or I.is_dpp) and vw & rset:
                        req = max(req, 2)
                    if sw & rset:
                        req = max(req, 4 if I.is_readlane else 2)
                if I.kind in ('vmem', 'ds') and sw & rset:
                    req = max(req, 5)
                if I.kind in ('vmem', 'ds') and P.is_trans and vw & rset:
                    req = max(req, 1)
                if I.kind in ('salu', 'ctl', 'smem') and sw & rset:
                    req = max(req, 1)
                if ('s', 126) in sw:
                    req = max(req, 5)
            elif P.kind == 'mfma':
                np_ = P.passes
                full = {4: 8, 8: 12}[np_]
                if I.kind == 'mfma':
                    if set(I.srcab) & pw:
                        req = max(req, full)
                    if set(I.srcc) & pw:
                        if I.srcc == P.writes and I.passes == P.passes:
                            pass
                        else:
                            req = max(req, np_ + 2)
                    if wset & pw and not (I.writes == P.writes and I.passes == P.passes):
                        req = max(req, full)
                else:
                    if (rset | wset) & pw:
                        req = max(req, full)
                    if I.kind in ('valu', 'vmem', 'ds') and wset & set(P.srcc):
                        req = max(req, {4: 3, 8: 7}[np_])
            elif P.kind == 'salu':
                if ('s', 124) in pw and (I.lds_dma or 'addtid' in I.op):
                    req = max(req, 1)
            if P.wide_store_data and wset & set(P.wide_store_data):
                req = max(req, 2)
            need = max(need, req - dist)
        return need

    def _push(self, I):
        self.lines.append('    ' + I.text)
        self.hist.append((self.pos, I))
        self.pos += I.nstates
        if len(self.hist) > 120:
            self.hist = [(p, i) for (p, i) in self.hist if self.pos - p < 40]

    def __call__(self, text):
        for line in text.strip().split('\n'):
            line = line.strip()
            if not line or line.startswith(';'):
                continue
            self._one(line)

    def _one(self, line):
        I = classify(line)
        if I.op == 's_waitcnt':
            vm = re.search(r'vmcnt\((\d+)\)', line)
            lg = re.search(r'lgkmcnt\((\d+)\)', line)
            self._emit_wait(int(vm.group(1)) if vm else None, int(lg.group(1)) if lg else None)
            return
        need_vm, need_lg, need_smem = None, None, False
        for r in list(I.reads) + list(I.writes):
            p = self.pend.get(r)
            if p is None:
                continue
            k, seq = p
            if k == 'vm':
                if 'd16' in I.op and r in I.writes and I.kind == 'vmem':
                    continue
                n = self.vm_seq - seq
                need_vm = n if need_vm is None else min(need_vm, n)
            elif k == 'lgkm':
                n = self.lg_seq - seq
                need_lg = n if need_lg is None else min(need_lg, n)
            else:
                need_smem = True
        if need_smem or (need_lg is not None and self.smem_pending):
            need_lg = 0
        if need_vm is not None or need_lg is not None:
            self._emit_wait(need_vm, need_lg)
        n = self._needed_states(I)
        while n > 0:
            k = min(n, 16)
            self._push(classify(f's_nop {k - 1}'))
            self.nops_inserted += 1
            n -= k
        self._push(I)
        if I.cnt == 'vm':
            self.vm_seq += 1
            for r in I.writes:
                if r not in self.ignore:
                    self.pend[r] = ('vm', self.vm_seq)
        elif I.cnt == 'lgkm':
            self.lg_seq += 1
            for r in I.writes:
                self.pend[r] = ('lgkm', self.lg_seq)
        elif I.cnt == 'smem':
            self.smem_pending = True
            for r in I.writes:
                self.pend[r] = ('smem', 0)

    def label(self, name, pad=True):
        self.lines.append(name + ':')
        if pad:
            self.hist = []
            self._push(classify('s_nop 7'))
            self._push(classify('s_nop 4'))

    def skip_begin(self, branch):
        lab = self.newlabel('sk')
        self(f'{branch} {lab}')
        self.skip_stack.append((lab, self.pos, list(self.hist), self.vm_seq, self.vm_done, self.lg_seq, self.lg_done,
                                dict(self.pend)))
        self.hist_mark = len(self.hist)

    def skip_end(self):
        lab, p0, hist0, vs, vd, ls, ld, pend = self.skip_stack.pop()
        assert self.lg_seq == ls or self.lg_done == self.lg_seq, 'LDS ops inside a skipped block must be drained'
        delta = self.pos - p0
        inside = [(p - delta, i) for (p, i) in self.hist if p >= p0]
        self.hist = hist0 + inside
        self.pos = p0
        self.vm_seq, self.vm_done, self.lg_seq, self.lg_done, self.pend = vs, vd, ls, ld, pend
        self.lines.append(lab + ':')

    def if_begin(self, skip_branch):
        lab = self.newlabel('Lskip')
        self(f'{skip_branch} {lab}')
        self.cond_stack.append((lab, self.vm_seq, self.vm_done, self.lg_seq, self.lg_done, dict(self.pend),
                                self.smem_pending))

    def if_end(self, pad=True):
        lab, vs, vd, ls, ld, pend, sp = self.cond_stack.pop()
        vm = 0 if self.vm_seq != vs and self.vm_done < self.vm_seq else None
        lg = 0 if (self.lg_seq != ls and self.lg_done < self.lg_seq) or self.smem_pending != sp else None
        if vm is not None or lg is not None:
            self._emit_wait(vm, lg)
        self.vm_seq, self.vm_done, self.lg_seq, self.lg_done, self.pend, self.smem_pending = vs, vd, ls, ld, pend, sp
        self.label(lab, pad)

    def cold_begin(self):
        self.cold_stack.append((self.lines, self.vm_seq, self.vm_done, self.lg_seq, self.lg_done, dict(self.pend),
                                self.smem_pending, self.pos, list(self.hist)))
        self.lines = []

    def cold_end(self):
        cl = self.lines
        (self.lines, self.vm_seq, self.vm_done, self.lg_seq, self.lg_done, self.pend, self.smem_pending, self.pos,
         self.hist) = self.cold_stack.pop()
        self.cold += cl

    def flush_cold(self):
        self.lines += self.cold
        self.cold = []

    def drained(self):
        self.vm_done = self.vm_seq
        self.lg_done = self.lg_seq
        self.smem_pending = False
        self.pend = {}

    def text(self):
        return '\n'.join(self.lines) + '\n'


def vr(base, n=1, f='v'):
    return f'{f}{base}' if n == 1 else f'{f}[{base}:{base + n - 1}]'


def v4(b):
    return f'v[{b}:{b + 3}]'


def a4(b):
    return f'a[{b}:{b + 3}]'


def v16(b):
    return f'v[{b}:{b + 15}]'


def v2(b):
    return f'v[{b}:{b + 1}]'
```

```python
from common5 import *

sW, sRB, sIDX, sTT, sL = 3, 4, 5, 6, 7
sP2 = 24
sBW13, sLW, sBWQ, sLWQ, sBW2, sBWO = 25, 26, 27, 28, 29, 31
sTW13, sTWQ, sTW2, sTWO = 33, 34, 35, 36
sHFL, sHPL, sHB = 33, 34, 35
sKV, sOF, sX1, sST1, sHF, sX2, sST2 = 37, 38, 39, 40, 41, 42, 43
sL1, sFAST, sACT, sSPIN = 44, 45, 46, 47
sT0, sT1, sT2, sT3, sT4, sT5 = 48, 49, 50, 51, 52, 53
sFT, sTT3, sFTo, sTTo = 54, 55, 56, 57
sTS = 58
sE, sHOFF, sCNT, sDM = 60, 61, 62, 63
sMASK = 64
sHI, sN28 = 96, 98
sOADR, sXADR = 100, 101
sSADR, sDS = 1, 0
Ctx.sL = sL
vDUM = 0
vL16, vLANE, vN, vHH, vSTO, vSTI, vL16b, vONES = 1, 2, 3, 4, 5, 6, 7, 8
vF14, vFH, vZERO, vKVA, vTS, vL2S, vL4S, vSCR = 9, 10, 11, 12, 13, 14, 15, 16
vKE, vFL, vTA, vM, vR, vT0, vT1, vT2, vT3, vNEG, vMX, vAD = 17, 18, 19, 20, 21, 22, 23, 24, 25, 26, 27, 28
MB = 28

TS_ON = False
FORCE_SLOW = False
FORCE_FALLBACK = False
_ts_names = []
XDEPTH = 10
WARM = True
P4FREE = 6
HPLAIN = False
CODEPF = 47 * 1024
PROPOS = 1
GNQ1 = 6
LAYER = None
DUTYPOS = 0
F_PK = FLAGS + 65536
MODE = 'fast'


def ts(k, name):
    if not TS_ON:
        return
    if name in _ts_names:
        i = _ts_names.index(name)
    else:
        i = len(_ts_names)
        _ts_names.append(name)
    assert i < 62
    k(f's_memrealtime s[{sTS}:{sTS + 1}]')
    k(f'v_writelane_b32 v{vTS}, s{sTS}, {i}')


def wait_flags(k, voff, soff, sexp, vFL=vFL):
    Lp, Ld = k.newlabel('poll'), k.newlabel('polled')
    k(f's_mov_b32 s{sSPIN}, 0')
    k.label(Lp, pad=False)
    k(f"""
    buffer_load_dword v{vFL}, v{voff}, s[8:11], s{soff} offen sc1
    s_add_u32 s{sSPIN}, s{sSPIN}, 1
    s_cmp_gt_u32 s{sSPIN}, {SPIN_MAX}
    s_cbranch_scc1 {Ld}
    s_waitcnt vmcnt(0)
    v_cmp_gt_u32 vcc, {sexp}, v{vFL}
    s_nop 1
    s_cbranch_vccnz {Lp}
    """)
    k.label(Ld, pad=False)
    k('s_waitcnt vmcnt(0)')


def publish(k, stores):
    for s_ in stores:
        k(s_ + ('' if MODE == 'fast' else ' sc1'))


def set_flag(k, soff, val, always_sc1=False, h=None):
    k(f'v_mov_b32 v{vFL}, {val}')
    if h is None:
        k('s_waitcnt vmcnt(0)')
    else:
        k.wait_vm(h)
    pol = ' sc1' if (always_sc1 or MODE != 'fast') else ''
    k('s_mov_b64 exec, 1')
    k(f'buffer_store_dword v{vFL}, v{vZERO}, s[8:11], s{soff} offen{pol}')
    k('s_mov_b64 exec, -1')


def dma_chunks(n, ssrc, src_off, slds, lds_off):
    out = []
    for i in range(n):
        c = []
        if i % 4 == 0:
            c += [f's_add_u32 m0, s{slds}, {lds_off + i * 1024}', f's_add_u32 s{sP2}, s{ssrc}, {src_off + i * 1024}']
        c.append(f'buffer_load_dwordx4 v{vL16}, s[8:11], s{sP2} offen offset:{(i % 4) * 1024} lds')
        out.append(c)
    return out


def load_chunks(dsts, ssrc, tmp, src_off=0, pol=''):
    out = []
    for i, d in enumerate(dsts):
        c = []
        if i % 4 == 0:
            c.append(f's_add_u32 s{tmp}, s{ssrc}, {src_off + i * 1024}')
        c.append(f'buffer_load_dwordx4 {d}, v{vL16}, s[8:11], s{tmp} offen offset:{(i % 4) * 1024}{pol}')
        out.append(c)
    return out


def touch(n, sbase, off=0):
    return [f'v_min_u32 v{vTA}, {n - 1}, v{vLANE}',
            f'v_lshlrev_b32 v{vTA}, 7, v{vTA}',
            f's_add_u32 s{sDS}, s{sbase}, {off}',
            f'buffer_load_dword v{vDUM}, v{vTA}, s[8:11], s{sDS} offen sc1']


def flat(chs):
    return [x for c in chs for x in c]


W13_SLOT = [0, 1, 2, 3, 4, 0, 1]


def pf_wqkv():
    return dma_chunks(21, sBWQ, 0, sLWQ, 0)


def pf_w13(i):
    return dma_chunks(7, sBW13, i * SLOT, sLW, W13_SLOT[i] * SLOT)


def pf_w2():
    ch = (load_chunks([a4(4 * i) for i in range(28)], sBW2, sDM) +
          load_chunks([a4(112 + 4 * i) for i in range(28)], sBW2 + 1, sDM))
    return [flat(ch[i:i + 4]) for i in range(0, 56, 4)]


def t_w13(i):
    return touch(28, sTW13, i * SLOT)


def t_wqkv():
    return touch(64, sTWQ, 0) + touch(20, sTWQ, 8192)


def t_w2():
    return touch(64, sTW2, 0) + touch(34, sTW2, 8192)


def t_wo():
    return touch(28, sTWO, 0)


def t_O():
    return touch(16, sOADR)


def t_X():
    return touch(16, sXADR) + touch(2, sSADR)


def t_H():
    return touch(56, sHOFF)


def idle_q():
    return lines(f"""
    s_and_b32 s{sT5}, s{sRB}, 1
    s_lshl_b32 s{sT5}, s{sT5}, 1
    s_add_u32 s{sT5}, s{sT5}, s{sIDX}
    s_sub_u32 s{sT5}, s{sT5}, 14
    s_lshl_b32 s{sT5}, s{sT5}, 2
    s_add_u32 s{sT5}, s{sT5}, s{sW}
    v_lshlrev_b32 v{vTA}, 7, v{vLANE}
    """)


def idle_touch(base, per_wave, n, first=0):
    out = [f's_mul_i32 s{sT4}, s{sT5}, {per_wave}', f's_add_u32 s{sT4}, s{sT4}, {base + first * 8192}']
    for i in range(n):
        out += [f'buffer_load_dword v{vDUM}, v{vTA}, s[8:11], s{sT4} offen',
                f's_add_u32 s{sT4}, s{sT4}, 8192']
    return out


def L0(ls):
    if LAYER is not None:
        return ('seq', list(ls) if LAYER == 0 else [])
    return ('L0', list(ls))


def L1(ls):
    if LAYER is not None:
        return ('seq', list(ls) if LAYER == 1 else [])

    def fn(k):
        k(f's_cmp_eq_u32 s{sL}, 0')
        k.skip_begin('s_cbranch_scc1')
        for x in ls:
            k(x)
        k.skip_end()
    return ('call', fn)


def res_addr(k, dst, base):
    k(f"""
    s_mul_i32 s{dst}, s{sTT3}, 28
    s_lshl_b32 s{sT1}, s{sFT}, 1
    s_add_u32 s{dst}, s{dst}, s{sT1}
    s_lshl_b32 s{dst}, s{dst}, 10
    s_add_u32 s{dst}, s{dst}, {base}
    """)


def st_addr(k, dst, base):
    k(f"""
    s_mul_i32 s{dst}, s{sTT3}, 14
    s_add_u32 s{dst}, s{dst}, s{sFT}
    s_lshl_b32 s{dst}, s{dst}, 8
    s_add_u32 s{dst}, s{dst}, {base}
    """)


def setup(k, end_label):
    k('s_cmp_ge_u32 s2, 256')
    k(f's_cbranch_scc1 {end_label}')
    k(f"""
    s_load_dwordx16 s[72:87], s[0:1], 0
    s_load_dwordx2 s[16:17], s[0:1], 64
    s_load_dwordx2 s[8:9], s[0:1], 72
    v_lshrrev_b32 v{vT0}, 6, v0
    v_and_b32 v{vLANE}, 63, v0
    v_readfirstlane_b32 s{sW}, v{vT0}
    v_lshlrev_b32 v{vL16}, 4, v{vLANE}
    v_and_b32 v{vN}, 31, v{vLANE}
    v_lshrrev_b32 v{vHH}, 5, v{vLANE}
    s_and_b32 s{sT0}, s2, 7
    s_lshr_b32 s{sT1}, s2, 3
    s_lshr_b32 s{sT2}, s{sT1}, 4
    s_lshl_b32 s{sRB}, s{sT0}, 1
    s_add_u32 s{sRB}, s{sRB}, s{sT2}
    s_and_b32 s{sIDX}, s{sT1}, 15
    s_lshl_b32 s{sTT}, s{sRB}, 2
    s_add_u32 s{sTT}, s{sTT}, s{sW}
    s_mov_b32 s10, {WS_BYTES}
    s_mov_b32 s11, 0x00020000
    s_mov_b32 s14, {S * D * 2}
    s_mov_b32 s15, 0x00020000
    s_mov_b32 s18, 256
    s_mov_b32 s19, 0x00020000
    s_mov_b32 s22, {S * D * 2}
    s_mov_b32 s23, 0x00020000
    s_mov_b32 s{sL}, 0
    s_mov_b32 s{sHI}, 0
    s_mov_b32 s{sHI + 1}, -1
    s_lshl_b32 s{sT1}, s{sW}, 12
    s_add_u32 s{sT1}, s{sT1}, {KVB}
    v_add_u32 v{vKVA}, s{sT1}, v{vL16}
    v_mov_b32 v{vZERO}, 0
    v_mov_b32 v{vTS}, 0
    v_mov_b32 v{vONES}, {ONES_BF16}
    v_cmp_eq_u32 s[{sN28}:{sN28 + 1}], 28, v{vN}
    s_cmp_ge_u32 s{sIDX}, 7
    s_cselect_b32 s{sT0}, 1, 0
    s_mul_i32 s{sT1}, s{sT0}, 7
    s_sub_u32 s{sT1}, s{sIDX}, s{sT1}
    s_cmp_lt_u32 s{sIDX}, 14
    s_cselect_b32 s{sACT}, 1, 0
    s_cselect_b32 s{sT1}, s{sT1}, 0
    s_lshl_b32 s{sFT}, s{sT1}, 1
    s_and_b32 s{sT2}, s{sW}, 1
    s_add_u32 s{sFT}, s{sFT}, s{sT2}
    s_xor_b32 s{sFTo}, s{sFT}, 1
    s_lshl_b32 s{sTT3}, s{sRB}, 2
    s_lshl_b32 s{sT0}, s{sT0}, 1
    s_add_u32 s{sTT3}, s{sTT3}, s{sT0}
    s_lshr_b32 s{sT2}, s{sW}, 1
    s_add_u32 s{sTT3}, s{sTT3}, s{sT2}
    s_xor_b32 s{sTTo}, s{sTT3}, 1
    s_mul_i32 s{sLW}, s{sW}, 7168
    s_waitcnt lgkmcnt(0)
    s_mov_b32 s20, s72
    s_mov_b32 s21, s73
    s_mov_b32 s12, s86
    s_mov_b32 s13, s87
    """)


def setup2_salu():
    return lines(f"""
    s_mov_b32 s{sFAST}, 0
    s_mul_i32 s{sBW13}, s{sIDX}, {7 * SLOT}
    s_add_u32 s{sBW13}, s{sBW13}, {W13_P}
    s_add_u32 s{sBW13}, s{sBW13}, s{sLW}
    s_mul_i32 s{sLWQ}, s{sW}, {21 * 1024}
    s_mul_i32 s{sBWQ}, s{sIDX}, {84 * 1024}
    s_add_u32 s{sBWQ}, s{sBWQ}, {WQKV_P}
    s_add_u32 s{sBWQ}, s{sBWQ}, s{sLWQ}
    s_mul_i32 s{sP2}, s{sW}, {28 * 1024}
    s_add_u32 s{sP2}, s{sP2}, {W2_P}
    s_mul_i32 s{sBW2}, s{sFT}, {112 * 1024}
    s_add_u32 s{sBW2}, s{sBW2}, s{sP2}
    s_mul_i32 s{sBW2 + 1}, s{sFTo}, {112 * 1024}
    s_add_u32 s{sBW2 + 1}, s{sBW2 + 1}, s{sP2}
    s_lshl_b32 s{sP2}, s{sW}, 13
    s_add_u32 s{sP2}, s{sP2}, {WO_P}
    s_lshl_b32 s{sBWO}, s{sFT}, 15
    s_add_u32 s{sBWO}, s{sBWO}, s{sP2}
    s_lshl_b32 s{sBWO + 1}, s{sFTo}, 15
    s_add_u32 s{sBWO + 1}, s{sBWO + 1}, s{sP2}
    """)


def setup2_valu():
    out = lines(f"""
    v_lshlrev_b32 v{vSTO}, 3, v{vN}
    v_mul_u32_u24 v{vSTI}, 1792, v{vHH}
    v_add_u32 v{vSTI}, v{vSTI}, v{vSTO}
    v_lshl_or_b32 v{vSTO}, v{vHH}, 2, v{vSTO}
    v_add_u32 v{vL16b}, {2 * SLOT}, v{vL16}
    v_min_u32 v{vF14}, 13, v{vLANE}
    v_lshlrev_b32 v{vF14}, 2, v{vF14}
    v_add_u32 v{vL2S}, {2 * SLOT}, v{vL16}
    v_add_u32 v{vL4S}, {4 * SLOT}, v{vL16}
    v_add_u32 v{vSCR}, {SCR}, v{vL16}
    v_mov_b32 v{vNEG}, {f32bits(-1e30)}
    v_and_b32 v{vFH}, 3, v{vLANE}
    v_lshlrev_b32 v{vFH}, 2, v{vFH}
    v_bfe_u32 v{vT0}, v{vLANE}, 2, 1
    v_lshl_or_b32 v{vFH}, v{vT0}, 7, v{vFH}
    s_lshl_b32 s{sT1}, s{sW}, 4
    v_add_u32 v{vFH}, s{sT1}, v{vFH}
    v_lshlrev_b32 v{vT0}, 2, v{vHH}
    v_sub_u32 v{vT0}, v{vN}, v{vT0}
    """)
    for r in range(16):
        c = 8 * (r >> 2) + (r & 3)
        out.append(f'v_cmp_ge_i32 s[{sMASK + 2 * r}:{sMASK + 2 * r + 1}], v{vT0}, {c}')
    return out


def signal(k):
    k(f"""
    s_getreg_b32 s{sE}, hwreg(HW_REG_XCC_ID, 0, 4)
    s_mul_i32 s{sCNT}, s{sE}, s{sE}
    s_lshl_b32 s{sCNT}, s{sCNT}, 16
    s_lshl_b32 s{sE}, s{sE}, 8
    s_or_b32 s{sE}, s{sE}, s{sCNT}
    s_or_b32 s{sE}, s{sE}, 1
    v_mov_b32 v{vFL}, s{sE}
    s_lshl_b32 s{sCNT}, s{sRB}, 4
    s_cmp_eq_u32 s{sW}, 0
    s_cselect_b32 s{sCNT}, s{sCNT}, 4096
    s_mov_b64 exec, 1
    buffer_atomic_add v{vFL}, v{vZERO}, s[16:19], s{sCNT} offen sc1
    s_mov_b64 exec, -1
    """)


def global_check(k, pre=False):
    Lp, Ld, Lg = k.newlabel('gpoll'), k.newlabel('gdone'), k.newlabel('ggood')
    k(f"""
    v_and_b32 v{vT1}, 15, v{vLANE}
    v_lshlrev_b32 v{vT1}, 4, v{vT1}
    s_mov_b32 s{sSPIN}, 0
    """)
    if pre:
        k(f"""
        v_and_b32 v{vT0}, 0xff, v{vFL}
        v_cmp_gt_u32 vcc, 16, v{vT0}
        s_nop 1
        s_cbranch_vccz {Lg}
        """)
    k.label(Lp, pad=False)
    k(f"""
    buffer_load_dword v{vFL}, v{vT1}, s[16:19], 0 offen sc1
    s_add_u32 s{sSPIN}, s{sSPIN}, 1
    s_cmp_gt_u32 s{sSPIN}, {SPIN_MAX}
    s_cbranch_scc1 {Ld}
    s_waitcnt vmcnt(0)
    v_and_b32 v{vT0}, 0xff, v{vFL}
    v_cmp_gt_u32 vcc, 16, v{vT0}
    s_nop 1
    s_cbranch_vccz {Lg}
    s_sleep 24
    s_branch {Lp}
    """)
    k.label(Lg, pad=False)
    k(f"""
    s_getreg_b32 s{sT0}, hwreg(HW_REG_XCC_ID, 0, 4)
    s_mul_i32 s{sT1}, s{sT0}, s{sT0}
    s_lshl_b32 s{sT1}, s{sT1}, 20
    s_lshl_b32 s{sT0}, s{sT0}, 12
    s_or_b32 s{sT0}, s{sT0}, s{sT1}
    s_or_b32 s{sT0}, s{sT0}, 16
    v_readlane_b32 s{sT1}, v{vFL}, s{sRB}
    s_nop 3
    s_cmp_eq_u32 s{sT0}, s{sT1}
    s_cselect_b32 s{sFAST}, {0 if FORCE_SLOW else 1}, 0
    """)
    k.label(Ld, pad=False)
    k('s_waitcnt vmcnt(0)')


def set_layer(k, l):
    fast = MODE == 'fast'
    k(f"""
    s_mov_b32 s{sL1}, {l + 1}
    s_mov_b32 s{sX1}, {XF[1] if fast else XF[2 * l + 1]}
    s_mov_b32 s{sX2}, {XF[1] if fast else XF[2]}
    s_mov_b32 s{sST1}, {ST[1] if fast else ST[2 * l + 1]}
    s_mov_b32 s{sST2}, {ST[2]}
    s_mov_b32 s{sKV}, {KV[l]}
    s_mov_b32 s{sOF}, {OF[0] if fast else OF[l]}
    s_mov_b32 s{sHF}, {HF[0] if fast else HF[l]}
    s_lshl_b32 s{sOADR}, s{sIDX}, 6
    s_add_u32 s{sOADR}, s{sOADR}, s{sTT}
    s_lshl_b32 s{sOADR}, s{sOADR}, 11
    s_add_u32 s{sOADR}, s{sOADR}, s{sOF}
    s_mul_i32 s{sHOFF}, s{sTT}, 112
    s_mul_i32 s{sT5}, s{sIDX}, 7
    s_add_u32 s{sHOFF}, s{sHOFF}, s{sT5}
    s_lshl_b32 s{sHOFF}, s{sHOFF}, 10
    s_add_u32 s{sHOFF}, s{sHOFF}, s{sHF}
    """)
    res_addr(k, sXADR, f's{sX1}')
    st_addr(k, sSADR, f's{sST1}')


def stats_loads(sbase, stt, dst):
    out = [f's_mul_i32 s{sT0}, s{stt}, {14 * 256}', f's_add_u32 s{sT0}, s{sT0}, s{sbase}']
    out += [f'buffer_load_dwordx2 {v2(dst + 2 * i)}, v{vSTI}, s[8:11], s{sT0} offen offset:{256 * i} sc1' for i in range(7)]
    return out


def stats_math(src):
    out = []
    for i in range(1, 7):
        out.append(f'v_add_f32 v{src}, v{src}, v{src + 2 * i}')
        out.append(f'v_add_f32 v{src + 1}, v{src + 1}, v{src + 2 * i + 1}')
    return out + ln_math(src, src + 1, vT0, vT1, vM, vR)


def mb_fill():
    return [f'v_mov_b32 v{MB + i}, v{vM}' for i in range(4)]


def halo(k, poll):
    k(f"""
    s_lshl_b32 s{sT2}, s{sRB}, 2
    s_lshl_b32 s{sT3}, s{sW}, 1
    s_add_u32 s{sT2}, s{sT2}, s{sT3}
    s_sub_i32 s{sT2}, s{sT2}, 8
    s_lshl_b32 s{sT5}, s{sW}, 13
    s_add_u32 s{sT5}, s{sT5}, {KVB}
    s_cmp_lt_i32 s{sT2}, 0
    """)
    Lfill, Ljoin = k.newlabel('A_fill'), k.newlabel('A_join')
    k(f's_cbranch_scc1 {Lfill}')
    st = (k.vm_seq, k.vm_done, k.lg_seq, k.lg_done, dict(k.pend))
    k(f"""
    s_lshl_b32 s{sT0}, s{sIDX}, 6
    s_add_u32 s{sT0}, s{sT0}, s{sT2}
    s_lshl_b32 s{sT4}, s{sT0}, 2
    s_add_u32 s{sT4}, s{sT4}, {F_KV}
    s_lshl_b32 s{sE}, s{sT0}, 12
    s_add_u32 s{sE}, s{sE}, s{sKV}
    """)
    if poll:
        k(f'v_and_b32 v{vT0}, 1, v{vLANE}')
        k(f'v_lshlrev_b32 v{vT0}, 2, v{vT0}')
        wait_flags(k, vT0, sT4, f's{sL1}')
    emit(k, flat(dma_chunks(8, sE, 0, sT5, 0)))
    k.cold_begin()
    k.label(Lfill, pad=False)
    z = 248
    k(f"""
    v_mov_b32 v{z}, 0
    v_mov_b32 v{z + 1}, 0
    v_mov_b32 v{z + 2}, 0
    v_mov_b32 v{z + 3}, 0
    v_mov_b32 v{z + 4}, 0
    v_mov_b32 v{z + 5}, 0
    v_mov_b32 v{z + 7}, 0
    v_mov_b32 v{vT1}, 0xf14a
    v_cndmask_b32 v{z + 6}, 0, v{vT1}, s[{sHI}:{sHI + 1}]
    v_add_u32 v{vT0}, s{sT5}, v{vL16}
    """)
    for t in range(2):
        k(f'ds_write_b128 v{vT0}, {v4(z)} offset:{4096 * t}')
        k(f'ds_write_b128 v{vT0}, {v4(z + 4)} offset:{4096 * t + 1024}')
        k(f'ds_write_b128 v{vT0}, {v4(z)} offset:{4096 * t + 2048}')
        k(f'ds_write_b128 v{vT0}, {v4(z)} offset:{4096 * t + 3072}')
    k('s_waitcnt lgkmcnt(0)')
    k(f's_branch {Ljoin}')
    k.cold_end()
    k.label(Ljoin, pad=False)
    k.vm_seq, k.vm_done, k.lg_seq, k.lg_done, k.pend = st[0], st[1], st[2], st[3], dict(st[4])


QF, KF, VF = 232, 216, 224
WO_R = 128
SA, PA, OA, NM, KB, VB, OS = 32, 48, 64, 80, 96, 104, 112


def att_tile_body(k, last, mem):
    k(f'{MF} {v16(SA)}, {v4(KB)}, {v4(QF)}, {v16(NM)}')
    k(f'{MF} {v16(SA)}, {v4(KB + 4)}, {v4(QF + 4)}, {v16(SA)}')
    k(f'{MF} {v16(OA)}, {v4(VB)}, {v4(PA)}, {v16(OA)}')
    k(f'{MF} {v16(OA)}, {v4(VB + 4)}, {v4(PA + 4)}, {v16(OA)}')
    k(f'ds_read_b128 {v4(VB)}, v{vAD} offset:2048')
    k(f'ds_read_b128 {v4(VB + 4)}, v{vAD} offset:3072')
    k(f'v_subrev_u32 v{vAD}, 4096, v{vAD}')
    if not last:
        k(f'ds_read_b128 {v4(KB)}, v{vAD}')
        k(f'ds_read_b128 {v4(KB + 4)}, v{vAD} offset:1024')
    emit(k, mem)
    if last:
        for r in range(16):
            k(f'v_cndmask_b32 v{SA + r}, v{SA + r}, v{vNEG}, s[{sMASK + 2 * r}:{sMASK + 2 * r + 1}]')
    for q in range(8):
        k(f'v_exp_f32 v{SA + 2 * q}, v{SA + 2 * q}')
        k(f'v_exp_f32 v{SA + 2 * q + 1}, v{SA + 2 * q + 1}')
        if q:
            k(f'v_cvt_pk_bf16_f32 v{PA + q - 1}, v{SA + 2 * q - 2}, v{SA + 2 * q - 1}')
    k(f'v_cvt_pk_bf16_f32 v{PA + 7}, v{SA + 14}, v{SA + 15}')


def loop_dma():
    out = []
    for i in range(3):
        out += [f's_add_u32 m0, s{sDM}, {W13_SLOT[i] * SLOT}',
                f's_add_u32 s{sP2}, s{sDS}, {i * SLOT}',
                f'buffer_load_dwordx4 v{vL16}, s[8:11], s{sP2} offen lds']
    out += [f's_add_u32 s{sDM}, s{sDM}, 1024', f's_add_u32 s{sDS}, s{sDS}, 1024']
    return out


def loop_dma0():
    out = [f's_min_u32 m0, s{sDM}, {80 * 1024}', f's_add_u32 s{sP2}, s{sDS}, m0']
    out += [f'buffer_load_dwordx4 v{vL16}, s[8:11], s{sP2} offen offset:{i * 1024} lds' for i in range(4)]
    out.append(f's_add_u32 s{sDM}, s{sDM}, 4096')
    return out


def pk_check(k):
    if LAYER == 1:
        return
    Lw = k.newlabel('wready')
    if LAYER is None:
        k(f's_cmp_lg_u32 s{sL}, 0')
        k(f's_cbranch_scc1 {Lw}')
    st = (k.vm_seq, k.vm_done, dict(k.pend))
    k(f"""
    s_mul_i32 s{sT0}, s{sIDX}, 7
    s_add_u32 s{sT1}, s{sT0}, 6
    s_and_b32 s{sT0}, s{sT0}, -4
    s_or_b32 s{sT1}, s{sT1}, 3
    v_add_u32 v{vT0}, s{sT0}, v{vLANE}
    v_min_u32 v{vT0}, s{sT1}, v{vT0}
    s_lshr_b32 s{sT2}, s{sFT}, 1
    s_lshl_b32 s{sT0}, s{sT2}, 3
    s_add_u32 s{sT0}, s{sT0}, 112
    v_and_b32 v{vT1}, 7, v{vLANE}
    v_add_u32 v{vT1}, s{sT0}, v{vT1}
    v_cmp_le_u32 vcc, 16, v{vLANE}
    s_lshl_b32 s{sT0}, s{sT2}, 1
    s_add_u32 s{sT0}, s{sT0}, 168
    v_cndmask_b32 v{vT0}, v{vT0}, v{vT1}, vcc
    v_and_b32 v{vT1}, 1, v{vLANE}
    v_add_u32 v{vT1}, s{sT0}, v{vT1}
    v_cmp_le_u32 vcc, 24, v{vLANE}
    v_bfe_u32 v{vT2}, v{vLANE}, 1, 3
    v_and_b32 v{vT3}, 1, v{vLANE}
    v_cndmask_b32 v{vT0}, v{vT0}, v{vT1}, vcc
    v_lshl_add_u32 v{vT2}, v{vT3}, 7, v{vT2}
    s_lshl_b32 s{sT0}, s{sIDX}, 3
    v_add_u32 v{vT2}, s{sT0}, v{vT2}
    v_cndmask_b32 v{vT0}, v{vT0}, v{vT2}, s[{sHI}:{sHI + 1}]
    v_lshlrev_b32 v{vT0}, 7, v{vT0}
    s_mov_b32 s{sT0}, {F_PK}
    """)
    wait_flags(k, vT0, sT0, '1')
    k.vm_seq, k.vm_done, k.pend = st
    k.label(Lw, pad=False)


def attention(k):
    ts(k, 'ATT.start')
    k(f'{MF} {v16(SA)}, {v4(KF)}, {v4(QF)}, 0')
    k(f'{MF} {v16(SA)}, {v4(KF + 4)}, {v4(QF + 4)}, {v16(SA)}')
    k(f"""
    v_add_u32 v{vAD}, {7 * 4096}, v{vKVA}
    ds_read_b128 {v4(KB)}, v{vAD}
    ds_read_b128 {v4(KB + 4)}, v{vAD} offset:1024
    s_mul_i32 s{sT0}, s{sW}, s{sW}
    s_mul_i32 s{sDM}, s{sW}, 30
    s_lshl_b32 s{sT0}, s{sT0}, 1
    s_sub_u32 s{sDM}, s{sDM}, s{sT0}
    s_lshl_b32 s{sDM}, s{sDM}, 10
    s_sub_u32 s{sDS}, s{sBW13}, s{sLW}
    """)
    wo = load_chunks([v4(WO_R + 4 * i) for i in range(8)], sBWO, sT2) + load_chunks([v4(WO_R + 32 + 4 * i) for i in range(8)], sBWO + 1, sT2)
    for q in range(8):
        k(f'v_mov_b32 v{VB + q}, v{VF + q}')
    for r in range(16):
        k(f'v_mov_b32 v{OA + r}, 0')
    for r in range(16):
        k(f'v_cndmask_b32 v{SA + r}, v{vNEG}, v{SA + r}, s[{sMASK + 2 * r}:{sMASK + 2 * r + 1}]')
    k(f'v_max_f32 v{vMX}, v{SA}, v{SA + 1}')
    for r in range(2, 16, 2):
        k(f'v_max3_f32 v{vMX}, v{SA + r}, v{SA + r + 1}, v{vMX}')
    k(f"""
    v_mov_b32 v{vT1}, v{vMX}
    v_permlane32_swap_b32 v{vMX}, v{vT1}
    v_max_f32 v{vMX}, v{vMX}, v{vT1}
    """)
    k(f'v_sub_f32 v{NM}, 0, v{vMX}')
    k(f'v_sub_f32 v{NM + 1}, 0, v{vMX}')
    for r in range(0, 16, 2):
        k(f'v_pk_add_f32 {v2(SA + r)}, {v2(SA + r)}, {v2(NM)}')
    for r in range(2, 16, 2):
        k(f'v_pk_mov_b32 {v2(NM + r)}, {v2(NM)}, {v2(NM)} op_sel:[0,1]')
    for r in range(16):
        k(f'v_exp_f32 v{SA + r}, v{SA + r}')
        if r % 4 == 3:
            emit_item(k, L1(flat(wo[r - 3:r + 1])))
    for r in parse_reg(f'v[{WO_R}:{WO_R + 63}]'):
        k.pend.pop(r, None)
    for q in range(8):
        k(f'v_cvt_pk_bf16_f32 v{PA + q}, v{SA + 2 * q}, v{SA + 2 * q + 1}')
    ts(k, 'ATT.diag')
    halo(k, True)
    LA, LAe, LB = k.newlabel('att1'), k.newlabel('att1e'), k.newlabel('att2')
    k(f's_mov_b32 s{sCNT}, s{sW}')
    k('s_waitcnt lgkmcnt(0)')
    k(f's_cmp_eq_u32 s{sCNT}, 0')
    k(f's_cbranch_scc1 {LAe}')
    k.label(LA, pad=False)
    k('s_nop 1')
    st = k.vm_seq
    att_tile_body(k, False, [])
    k.vm_seq = st
    k(f"""
    s_sub_u32 s{sCNT}, s{sCNT}, 1
    s_cmp_lg_u32 s{sCNT}, 0
    s_waitcnt lgkmcnt(0)
    s_cbranch_scc1 {LA}
    """)
    k.label(LAe, pad=False)
    ts(k, 'ATT.st1')
    pk_check(k)
    k('s_waitcnt vmcnt(0)')
    ts(k, 'ATT.halo')
    k('s_barrier')
    k(f"""
    ds_read_b128 {v4(KB)}, v{vAD}
    ds_read_b128 {v4(KB + 4)}, v{vAD} offset:1024
    s_sub_u32 s{sCNT}, 7, s{sW}
    """)
    emit_item(k, L0(([x.replace(f's{sDS},', f's{sT3},').replace(f's{sDS} ', f's{sT3} ') for x in SCHED['PRO']()] if PROPOS == 2 else []) + flat(wo) + lines(f"""
    v_lshlrev_b32 v{vT0}, 2, v{vN}
    v_lshl_add_u32 v{vT0}, v{vHH}, 9, v{vT0}
    s_mul_i32 s{sT0}, s{sIDX}, 7
    s_add_u32 s{sT0}, s{sT0}, s{sW}
    s_lshl_b32 s{sT0}, s{sT0}, 7
    s_add_u32 s{sT0}, s{sT0}, {CSP_13}
    """) + flat([[f's_add_u32 s{sT1}, s{sT0}, {q * 112 * 128}',
                 f'buffer_load_dword v{CSL + q}, v{vT0}, s[8:11], s{sT1} offen'] for q in range(4)])))
    k('s_waitcnt lgkmcnt(0)')
    k.label(LB, pad=False)
    k('s_nop 1')
    st = k.vm_seq
    att_tile_body(k, False, loop_dma0())
    k.vm_seq = st
    k(f"""
    s_sub_u32 s{sCNT}, s{sCNT}, 1
    s_cmp_lg_u32 s{sCNT}, 0
    s_waitcnt lgkmcnt(0)
    s_cbranch_scc1 {LB}
    """)
    k('s_nop 1')
    att_tile_body(k, True, [])
    k(f'{MF} {v16(OA)}, {v4(VB)}, {v4(PA)}, {v16(OA)}')
    k(f'{MF} {v16(OA)}, {v4(VB + 4)}, {v4(PA + 4)}, {v16(OA)}')
    k(f"""
    s_lshl_b32 s{sT4}, s{sTT}, 7
    s_lshl_b32 s{sT1}, s{sIDX}, 2
    s_add_u32 s{sT4}, s{sT4}, s{sT1}
    s_add_u32 s{sT4}, s{sT4}, {F_O}
    s_mov_b32 s{sT0}, {f32bits(2.0 ** 64)}
    """)
    Lok = k.newlabel('att_ok')
    k(f"""
    v_mov_b32 v{vT0}, v{OA + 12}
    v_mov_b32 v{vT1}, v{OA + 12}
    v_permlane32_swap_b32 v{vT0}, v{vT1}
    v_cmp_nge_f32 vcc, s{sT0}, v{vT1}
    s_nop 1
    """)
    Lfb = k.newlabel('att_fb')
    k(f's_cbranch_vccnz {Lfb}' if not FORCE_FALLBACK else f's_branch {Lfb}')
    k.cold_begin()
    k.label(Lfb, pad=False)
    fallback(k)
    k('s_nop 7')
    k(f's_branch {Lok}')
    k.cold_end()
    k.label(Lok, pad=False)
    k('s_nop 1')
    k(f'v_rcp_f32 v{vT0}, v{vT1}')
    for r in range(0, 16, 2):
        k(f'v_pk_mul_f32 {v2(OA + r)}, {v2(OA + r)}, {v2(vT0)} op_sel_hi:[1,0]')
    for q in range(8):
        k(f'v_cvt_pk_bf16_f32 v{OA + q}, v{OA + 2 * q}, v{OA + 2 * q + 1}')
    ts(k, 'ATT.st2')
    publish(k, [f'buffer_store_dwordx4 {v4(OA)}, v{vL16}, s[8:11], s{sOADR} offen',
                f'buffer_store_dwordx4 {v4(OA + 4)}, v{vL16}, s[8:11], s{sOADR} offen offset:1024'])
    set_flag(k, sT4, f's{sL1}')
    ts(k, 'ATT.pub')


def fallback(k):
    def s_tile(c):
        k(f"""
        ds_read_b128 {v4(KB)}, v{vAD}
        ds_read_b128 {v4(KB + 4)}, v{vAD} offset:1024
        ds_read_b128 {v4(VB)}, v{vAD} offset:2048
        ds_read_b128 {v4(VB + 4)}, v{vAD} offset:3072
        """)
        k(f'{MF} {v16(SA)}, {v4(KB)}, {v4(QF)}, {c}')
        k(f'{MF} {v16(SA)}, {v4(KB + 4)}, {v4(QF + 4)}, {v16(SA)}')
        for cntv, a, b in ((0, SA, None), (8, None, SA)):
            k(f's_cmp_lg_u32 s{sCNT}, {cntv}')
            k.skip_begin('s_cbranch_scc1')
            for r in range(16):
                m = f's[{sMASK + 2 * r}:{sMASK + 2 * r + 1}]'
                if cntv == 0:
                    k(f'v_cndmask_b32 v{SA + r}, v{SA + r}, v{vNEG}, {m}')
                else:
                    k(f'v_cndmask_b32 v{SA + r}, v{vNEG}, v{SA + r}, {m}')
            k.skip_end()
    La, Lb = k.newlabel('fb1'), k.newlabel('fb2')
    k(f"""
    s_nop 7
    s_nop 7
    v_mov_b32 v{vAD}, v{vKVA}
    v_mov_b32 v{vMX}, v{vNEG}
    s_mov_b32 s{sCNT}, 0
    """)
    k.label(La)
    s_tile('0')
    for r in range(0, 16, 2):
        k(f'v_max3_f32 v{vMX}, v{SA + r}, v{SA + r + 1}, v{vMX}')
    k(f"""
    v_add_u32 v{vAD}, 4096, v{vAD}
    s_add_u32 s{sCNT}, s{sCNT}, 1
    s_cmp_lt_u32 s{sCNT}, 9
    s_waitcnt lgkmcnt(0)
    s_cbranch_scc1 {La}
    v_mov_b32 v{vT1}, v{vMX}
    v_permlane32_swap_b32 v{vMX}, v{vT1}
    v_max_f32 v{vMX}, v{vMX}, v{vT1}
    v_mov_b32 v{vAD}, v{vKVA}
    s_mov_b32 s{sCNT}, 0
    """)
    for r in range(16):
        k(f'v_mov_b32 v{OA + r}, 0')
    k.label(Lb)
    s_tile('0')
    for r in range(16):
        k(f'v_sub_f32 v{SA + r}, v{SA + r}, v{vMX}')
    for r in range(16):
        k(f'v_exp_f32 v{SA + r}, v{SA + r}')
    for q in range(8):
        k(f'v_cvt_pk_bf16_f32 v{PA + q}, v{SA + 2 * q}, v{SA + 2 * q + 1}')
    k(f'{MF} {v16(OA)}, {v4(VB)}, {v4(PA)}, {v16(OA)}')
    k(f'{MF} {v16(OA)}, {v4(VB + 4)}, {v4(PA + 4)}, {v16(OA)}')
    k(f"""
    v_add_u32 v{vAD}, 4096, v{vAD}
    s_add_u32 s{sCNT}, s{sCNT}, 1
    s_cmp_lt_u32 s{sCNT}, 9
    s_waitcnt lgkmcnt(0)
    s_cbranch_scc1 {Lb}
    v_mov_b32 v{vT0}, v{OA + 12}
    v_mov_b32 v{vT1}, v{OA + 12}
    v_permlane32_swap_b32 v{vT0}, v{vT1}
    """)


SK_ACC = [32, 48, 64, 80]
SK_XO = 96
RED = 3 * SLOT


def red_writes():
    out = {}
    for q in range(1, 4):
        o = lines(f"""
        s_xor_b32 s{sT0}, s{sW}, {q}
        s_mul_i32 s{sT0}, s{sT0}, 12288
        s_add_u32 s{sT0}, s{sT0}, {RED + (q - 1) * 4096}
        v_add_u32 v{vT0 + q - 1}, s{sT0}, v{vL16}
        """)
        for g in range(4):
            o.append(f'ds_write_b128 v{vT0 + q - 1}, {v4(SK_ACC[q] + 4 * g)} offset:{1024 * g}')
        out[q] = o
    return out


XR = 200


def red_setup():
    return lines(f"""
    s_mul_i32 s{sT0}, s{sW}, 12288
    s_add_u32 s{sT0}, s{sT0}, {RED}
    v_add_u32 v{vT3}, s{sT0}, v{vL16}
    """)


def red_finish(k):
    ACC = SK_ACC
    k.barrier()
    for g in range(4):
        for q in range(1, 4):
            k(f'ds_read_b128 {v4(ACC[q] + 4 * g)}, v{vT3} offset:{(q - 1) * 4096 + 1024 * g}')


def red_sum(k, g):
    ACC = SK_ACC
    k.wait_reg(v4(ACC[3] + 4 * g))
    for r in (4 * g, 4 * g + 2):
        k(f'v_pk_add_f32 {v2(ACC[1] + r)}, {v2(ACC[1] + r)}, {v2(ACC[2] + r)}')
        k(f'v_pk_add_f32 {v2(ACC[0] + r)}, {v2(ACC[0] + r)}, {v2(ACC[3] + r)}')
    for r in (4 * g, 4 * g + 2):
        k(f'v_pk_add_f32 {v2(ACC[0] + r)}, {v2(ACC[0] + r)}, {v2(ACC[1] + r)}')


def unpack_res(xo, dst):
    out = []
    for q in range(8):
        out.append(f'v_lshlrev_b32 v{dst + 2 * q}, 16, v{xo + q}')
        out.append(f'v_and_b32 v{dst + 2 * q + 1}, 0xffff0000, v{xo + q}')
    return out


def flag_addr(dst, fbase):
    return lines(f"""
    s_lshl_b32 s{dst}, s{sTT3}, 7
    s_lshl_b32 s{sT1}, s{sFT}, 2
    s_add_u32 s{dst}, s{dst}, s{sT1}
    s_add_u32 s{dst}, s{dst}, {fbase}
    """)


def res_epilogue(k, xo, sflag, val, scale, xr, Lfin):
    acc = SK_ACC[0]
    for g in range(4):
        red_sum(k, g)
        if scale is not None:
            for r in (4 * g, 4 * g + 2):
                k(f'v_pk_fma_f32 {v2(acc + r)}, {v2(acc + r)}, {v2(scale)}, {v2(xr + r)}')
        for q in (2 * g, 2 * g + 1):
            k(f'v_cvt_pk_bf16_f32 v{xo + q}, v{acc + 2 * q}, v{acc + 2 * q + 1}')
        if g == 1 and Lfin is None:
            publish(k, [f'buffer_store_dwordx4 {v4(xo)}, v{vL16}, s[8:11], s{sXADR} offen'])
    if Lfin:
        if LAYER == 1:
            return
        if LAYER is None:
            k(f's_cmp_eq_u32 s{sL}, 1')
            k(f's_cbranch_scc1 {Lfin}')
        publish(k, [f'buffer_store_dwordx4 {v4(xo)}, v{vL16}, s[8:11], s{sXADR} offen'])
    publish(k, [f'buffer_store_dwordx4 {v4(xo + 4)}, v{vL16}, s[8:11], s{sXADR} offen offset:1024'])
    k(f'v_mov_b32 v{vT0}, 0')
    k(f'v_mov_b32 v{vT1}, 0')
    emit(k, stats_ops(xo, 8, vT0, vT1, vONES))
    k(f"""
    v_permlane32_swap_b32 v{vT0}, v{vT1}
    v_add_f32 v{vT0}, v{vT0}, v{vT1}
    """)
    publish(k, [f'buffer_store_dword v{vT0}, v{vSTO}, s[8:11], s{sSADR} offen'])
    set_flag(k, sflag, val)


def rowmajor_addr(k):
    k(f"""
    v_mul_u32_u24 v{vT0}, 896, v{vN}
    v_lshl_add_u32 v{vT0}, v{vHH}, 4, v{vT0}
    s_mul_i32 s{sT0}, s{sTT3}, {32 * 896}
    s_lshl_b32 s{sT1}, s{sFT}, 6
    s_add_u32 s{sT0}, s{sT0}, s{sT1}
    """)


def phase_P3(k):
    ACC, XO = SK_ACC, SK_XO
    O_R = 192
    Lskip, Lj = k.newlabel('p3_skip'), k.newlabel('p3_join')
    k(f's_cmp_eq_u32 s{sACT}, 0')
    k(f's_cbranch_scc1 {Lskip}')
    La, Lb = k.newlabel('p3_l1'), k.newlabel('p3_res')
    if LAYER is None:
        k(f's_cmp_lg_u32 s{sL}, 0')
        k(f's_cbranch_scc1 {La}')
    if LAYER != 1:
        rowmajor_addr(k)
        k(f"""
        buffer_load_dwordx4 {v4(XO)}, v{vT0}, s[20:23], s{sT0} offen
        buffer_load_dwordx4 {v4(XO + 4)}, v{vT0}, s[20:23], s{sT0} offen offset:32
        """)
    if LAYER is None:
        k(f's_branch {Lb}')
        k.label(La, pad=False)
        k.vm_seq -= 2
        for r in parse_reg(f'v[{XO}:{XO + 7}]'):
            k.pend.pop(r, None)
    if LAYER != 0:
        res_addr(k, sT0, f's{sX2}')
        k(f"""
        buffer_load_dwordx4 {v4(XO)}, v{vL16}, s[8:11], s{sT0} offen sc1
        buffer_load_dwordx4 {v4(XO + 4)}, v{vL16}, s[8:11], s{sT0} offen offset:1024 sc1
        """)
    k.label(Lb, pad=False)
    k(f"""
    s_and_b32 s{sT4}, s{sTT3}, -2
    s_lshl_b32 s{sT4}, s{sT4}, 7
    s_add_u32 s{sT4}, s{sT4}, {F_O}
    s_lshl_b32 s{sT1}, s{sW}, 19
    s_add_u32 s{sT1}, s{sT1}, s{sOF}
    s_lshl_b32 s{sT2}, s{sTT3}, 11
    s_add_u32 s{sT2}, s{sT2}, s{sT1}
    s_lshl_b32 s{sT3}, s{sTTo}, 11
    s_add_u32 s{sT3}, s{sT3}, s{sT1}
    """)
    emit(k, SCHED['P3_pre']())
    emit(k, red_setup() + flag_addr(sE, F_X1))
    k('s_barrier')
    emit(k, unpack_res(XO, ACC[0]))
    wait_flags(k, vFH, sT4, f's{sL1}')
    ts(k, 'P3.ready')
    for q in (1, 0):
        for i in range(8):
            if i and i % 2 == 0:
                k(f's_add_u32 s{sT2 + q}, s{sT2 + q}, {64 * 2048}')
            k(f'buffer_load_dwordx4 {v4(O_R + 32 * q + 4 * i)}, v{vL16}, s[8:11], s{sT2 + q} offen offset:{(i % 2) * 1024} sc1')

    def mf(qa, qb, ks):
        a = ACC[qa + 2 * qb]
        c = '0' if (ks == 0 and qa + qb) else v16(a)
        return dict(m=f'{MF} {v16(a)}, {v4(WO_R + 32 * qa + 4 * ks)}, {v4(O_R + 32 * qb + 4 * ks)}, {c}')
    rw = red_writes()
    M = [mf(qa, 1, ks) for ks in range(8) for qa in range(2)] + [mf(1, 0, ks) for ks in range(8)] + [mf(0, 0, ks) for ks in range(8)]
    fl = F(SCHED['P3_mm'](), earliest=2) + F(rw[2] + rw[3], earliest=18) + F(rw[1], earliest=26)
    flush(k, weave(k, M, fl, free=6, pairwait=False))
    ts(k, 'P3.mfma')
    red_finish(k)
    res_epilogue(k, XO, sE, f's{sL1}', None, None, None)
    ts(k, 'P3.pub')
    k.cold_begin()
    k.label(Lskip, pad=False)
    emit(k, SCHED['P3_idle']())
    k(f's_branch {Lj}')
    k.cold_end()
    k.label(Lj, pad=False)
    k.drained()


P5_XO = 232
P5_ORDER = ([ks for ks in range(28) if ks % 7 < 4] + [ks for ks in range(28) if ks % 7 in (4, 5)] +
            [ks for ks in range(28) if ks % 7 == 6])
P5_SLOTS = [96 + 8 * i for i in range(6)] + [160 + 8 * i for i in range(8)]
HDEPTH = 6


def p5_reg(pos, q):
    return v4(P5_SLOTS[pos % len(P5_SLOTS)] + 4 * q)


def p5_hload(pos):
    ks = P5_ORDER[pos]
    out = []
    for q in (1, 0):
        out += [f's_add_u32 s{sT0}, s{sHB + q}, {ks * 1024}',
                f'buffer_load_dwordx4 {p5_reg(pos, q)}, v{vL16}, s[8:11], s{sT0} offen sc1']
    return out


def lvl(n):
    if LAYER is not None:
        return str(3 * LAYER + n)
    return f's{[None, sE, sCNT, sDS][n]}'


def p5_poll():
    return [f'buffer_load_dword v{vTA}, v{vFH}, s[8:11], s{sHPL} offen sc1']


def p5_check(n):
    def fn(k):
        k(f'v_cmp_gt_u32 vcc, {lvl(n)}, v{vTA}')
        k('s_nop 1')
        Lok, Lc = k.newlabel('hok'), k.newlabel('hwait')
        k(f's_cbranch_vccnz {Lc}')
        k.cold_begin()
        k.label(Lc, pad=False)
        wait_flags(k, vFH, sHPL, lvl(n), vFL=vTA)
        k(f's_branch {Lok}')
        k.cold_end()
        k.label(Lok, pad=False)
    return ('call', fn)


def phase_P5(k, Lfin, epi6, hs):
    ACC, XO = SK_ACC, P5_XO
    STT, XRF = 144, 240
    Lskip, Ljoin = k.newlabel('p5_skip'), k.newlabel('p5_join')
    k(f's_cmp_eq_u32 s{sACT}, 0')
    k(f's_cbranch_scc1 {Lskip}')
    st0 = (k.vm_seq, k.vm_done, k.lg_seq, k.lg_done, dict(k.pend), k.pos, list(k.hist))

    def mf(pos, qa, qb):
        a = ACC[qa + 2 * qb]
        c = '0' if pos == 0 else v16(a)
        return f'{MF} {v16(a)}, {a4(112 * qa + 4 * P5_ORDER[pos])}, {p5_reg(pos, qb)}, {c}'
    TAIL = 5
    M = []
    for pos in range(28):
        nxt = pos + HDEPTH
        pre = []
        if nxt == 16:
            pre.append(p5_check(2))
        if nxt == 24:
            pre.append(p5_check(3))
        if nxt < 28:
            pre += p5_hload(nxt)
        if nxt in (12, 20):
            pre += p5_poll()
        M.append(dict(pre=pre, m=mf(pos, 0, 1), w=1))
        M.append(dict(m=mf(pos, 1, 1)))
        M.append(dict(m=mf(pos, 1, 0), w=1))
        if pos < 28 - TAIL:
            M.append(dict(m=mf(pos, 0, 0)))
    n0 = len(M)
    M += [dict(m=mf(pos, 0, 0)) for pos in range(28 - TAIL, 28)]
    rw = red_writes()
    wq = pf_wqkv()
    wqg = [L0(flat(wq[i:i + 4])) for i in range(0, 21, 4)]
    first_free = 4 * (28 - HDEPTH)
    fl = F(epi6, earliest=0)
    fl.append((26, None, ('call', lambda k: set_flag(k, sHFL, lvl(3), h=hs[6]))))
    fl.append((27, None, ('call', lambda k: res_addr(k, sT2, f's{sX1}'))))
    fl += F([f'buffer_load_dwordx4 {v4(XO)}, v{vL16}, s[8:11], s{sT2} offen sc1',
             f'buffer_load_dwordx4 {v4(XO + 4)}, v{vL16}, s[8:11], s{sT2} offen offset:1024 sc1'], earliest=27)
    sl = [x.replace(f's{sT0}', f's{sT3}') for x in stats_loads(sST1, sTT3, STT)]
    fl += F(sl, earliest=29)
    fl += F(stats_math(STT) + [f'v_mul_f32 v{MB}, v{vR}, v{vR}', f'v_mul_f32 v{MB + 1}, v{vR}, v{vR}'] +
            unpack_res(XO, XRF), earliest=52)
    fl.append((52, None, ('call', lambda k: emit(k, [x.replace(f's{sT0}', f's{sT3}') for x in red_setup()] + flag_addr(sT5, F_XIN)))))
    fl.append((first_free - 2, first_free, 's_barrier'))
    for i, g in enumerate(wqg):
        fl += F([g], earliest=first_free + 2 * i)
    fl += F(rw[2] + rw[3] + rw[1], earliest=n0)
    flush(k, weave(k, M, fl, free=6, pairwait=False))
    ts(k, 'P5.mfma')
    red_finish(k)
    res_epilogue(k, XO, sT5, '1', MB, XRF, Lfin)
    if LAYER != 1:
        ts(k, 'P5.pub')
    k.cold_begin()
    k.label(Lskip, pad=False)
    k.vm_seq, k.vm_done, k.lg_seq, k.lg_done, k.pend, k.pos, k.hist = st0[0], st0[1], st0[2], st0[3], dict(st0[4]), st0[5], list(st0[6])
    emit(k, epi6)
    set_flag(k, sHFL, lvl(3))
    if LAYER == 1:
        k('s_branch MAIN_tail')
        k.cold_end()
        return
    if LAYER is None:
        k(f's_cmp_eq_u32 s{sL}, 1')
        k('s_cbranch_scc1 MAIN_tail')
    k('s_barrier')
    emit(k, flat(pf_wqkv()))
    k(f's_branch {Ljoin}')
    k.cold_end()
    k.label(Ljoin, pad=False)
    k('s_waitcnt vmcnt(0) lgkmcnt(0)')
    k.drained()
    k('s_barrier')


def phase_P4(k, Lfin):
    XB = 32
    ACC = [144, 160, 176]
    WB, NB, PF = 192, 8, 6
    ET = 224
    k(f"""
    s_lshl_b32 s{sT4}, s{sTT}, 7
    s_add_u32 s{sT4}, s{sT4}, {F_X1}
    s_mul_i32 s{sT3}, s{sTT}, {28 * 1024}
    s_add_u32 s{sT3}, s{sT3}, s{sX1}
    """)
    k('s_waitcnt vmcnt(0)')
    if LAYER is None:
        k(f's_cmp_lg_u32 s{sL}, 0')
        k.skip_begin('s_cbranch_scc1')
        emit(k, cs13_build())
        k.skip_end()
    elif LAYER == 0:
        emit(k, cs13_build())
    k('s_barrier')
    emit(k, SCHED['P4_pre']())
    acc_of = [0, 1, 2, 0, 1, 2, 0]
    seq = [(i, ks) for ks in range(29) for i in range(2)] + [(i, ks) for i in range(2, 7) for ks in range(29)]
    start = {i: 58 + 29 * (i - 2) for i in range(2, 7)}
    endi = {0: 56, 1: 57}
    endi.update({i: start[i] + 28 for i in range(2, 7)})

    def wread(n):
        i, ks = seq[n]
        if ks == 28:
            return f'ds_read_b128 {v4(WB + 4 * (n % NB))}, v{vSCR} offset:{1024 + 1024 * i}'
        s = W13_SLOT[i]
        base = {0: vL16, 1: vL16, 2: vL2S, 3: vL2S, 4: vL4S}[s]
        off = (s % 2) * SLOT + ks * 1024 if s < 4 else ks * 1024
        return f'ds_read_b128 {v4(WB + 4 * (n % NB))}, v{base} offset:{off}'

    def mf(n):
        i, ks = seq[n]
        a = v16(ACC[acc_of[i]])
        b = v4(MB) if ks == 28 else v4(XB + 4 * ks)
        return f'{MF} {a}, {v4(WB + 4 * (n % NB))}, {b}, {"0" if ks == 0 else a}'
    for n in range(PF):
        k(wread(n))
    wait_flags(k, vF14, sT4, f's{sL1}')
    ts(k, 'P4.ready')
    xl = load_chunks([v4(XB + 4 * i) for i in range(28)], sT3, sT2, pol=' sc1')
    for i in range(4):
        emit(k, xl[i])
    emit(k, stats_loads(sST1, sTT, ET))
    for i in range(4, XDEPTH):
        emit(k, xl[i])

    def epi(i):
        a = ACC[acc_of[i]]
        out = []
        e0 = ET + 8 * (i % 2)
        for r in range(8):
            out.append(f'v_mul_f32 v{e0 + r}, v{vKE}, v{a + r}')
        for r in range(8):
            out.append(f'v_exp_f32 v{e0 + r}, v{e0 + r}')
            out.append(f'v_mul_f32 v{a + r}, v{a + r}, v{a + 8 + r}')
        for r in range(8):
            out.append(f'v_add_f32 v{e0 + r}, 1.0, v{e0 + r}')
        for r in range(8):
            out.append(f'v_rcp_f32 v{e0 + r}, v{e0 + r}')
            if r:
                out.append(f'v_mul_f32 v{a + r - 1}, v{a + r - 1}, v{e0 + r - 1}')
        out.append(f'v_mul_f32 v{a + 7}, v{a + 7}, v{e0 + 7}')
        o = 240 + 4 * (i % 2)
        for q in range(4):
            out.append(f'v_cvt_pk_bf16_f32 v{o + q}, v{a + 2 * q}, v{a + 2 * q + 1}')

        def st(k):
            if i == 4:
                k(f's_add_u32 s{sHOFF}, s{sHOFF}, 4096')
            st_ = f'buffer_store_dwordx4 {v4(o)}, v{vL16}, s[8:11], s{sHOFF} offen offset:{(i % 4) * 1024}'
            if MODE == 'fast' and LAYER is not None:
                k(st_ + (' sc1' if (LAYER == 0 and not HPLAIN) else ''))
            elif MODE == 'fast':
                La, Lb = k.newlabel('h0'), k.newlabel('h1')
                k(f's_cmp_eq_u32 s{sL}, 0')
                k(f's_cbranch_scc1 {La}')
                k(st_)
                k(f's_branch {Lb}')
                k.label(La, pad=False)
                k.vm_seq -= 1
                k.pos -= 2
                k(st_ + ' sc1')
                k.label(Lb, pad=False)
            else:
                publish(k, [st_])
            hs[i] = k.vm_mark()
        out.append(('call', st))
        return out
    hs, hd = {}, {}

    def mark(name):
        def fn(k):
            hd[name] = k.vm_mark()
        return ('call', fn)

    def bar(name, tsn):
        def fn(k):
            k.wait_vm(hd[name])
            k.barrier()
            ts(k, tsn)
        return ('call', fn)
    b1, b2 = start[3] - PF, start[5] - PF
    M = []
    for n in range(len(seq)):
        pre = []
        if n == b1:
            pre.append(bar('t34', 'P4.b1'))
        if n == b2:
            pre.append(bar('t56', 'P4.b2'))
        if n + PF < len(seq):
            pre.append(wread(n + PF))
        i, ks = seq[n]
        if n < 58 and i == 0 and ks + XDEPTH < 28:
            pre += xl[ks + XDEPTH]
        M.append(dict(pre=pre, m=mf(n), need=[v4(WB + 4 * (n % NB))], w=1 if (n < 56 and i == 0) else 0))
    nx = 2 * (28 - XDEPTH)
    fl = F(stats_math(ET) + mb_fill() + [f'v_mul_f32 v{vKE}, {f32bits(-LOG2E)}, v{vR}'], earliest=6, deadline=54)
    fl += F(lines(f"""
    s_lshl_b32 s{sHFL}, s{sTT}, 7
    s_lshl_b32 s{sT1}, s{sIDX}, 2
    s_add_u32 s{sHFL}, s{sHFL}, s{sT1}
    s_add_u32 s{sHFL}, s{sHFL}, {F_H}
    s_and_b32 s{sHPL}, s{sTT3}, -2
    s_lshl_b32 s{sHPL}, s{sHPL}, 7
    s_add_u32 s{sHPL}, s{sHPL}, {F_H}
    s_mul_i32 s{sT1}, s{sW}, {28 * 1024}
    s_add_u32 s{sT1}, s{sT1}, s{sHF}
    s_mul_i32 s{sHB}, s{sTT3}, {112 * 1024}
    s_add_u32 s{sHB}, s{sHB}, s{sT1}
    s_mul_i32 s{sHB + 1}, s{sTTo}, {112 * 1024}
    s_add_u32 s{sHB + 1}, s{sHB + 1}, s{sT1}
    """), earliest=6)
    fl.append((6, None, ('call', lambda k: (res_addr(k, sXADR, f's{sX2}'), st_addr(k, sSADR, f's{sST2}')))))
    c34 = pf_w13(3) + pf_w13(4)
    for j, c in enumerate(c34):
        fl += F(c, earliest=nx + (j * 3) // 2, deadline=b1 - 8)
    fl.append((0, b1 - 8, mark('t34')))
    fl += F(flat(SCHED['P4_p1']()), earliest=58)

    def interleave(ep, mem, e0, dl):
        out = []
        step = max(1, len(ep) // (len(mem) + 1)) if mem else 10 ** 9
        mem = list(mem)
        for j, x in enumerate(ep):
            out.append(x)
            if mem and j % step == step - 1:
                out += mem.pop(0)
        for m in mem:
            out += m
        return F(out, earliest=e0, deadline=dl)
    S4 = SCHED['P4_mid']()
    n4 = len(S4)
    fl += interleave(epi(0), [], endi[0] + 3, start[3])
    fl += interleave(epi(1), [], endi[1] + 3, start[4])
    c56 = pf_w13(5) + pf_w13(6) + [[mark('t56')]]
    fl += interleave(epi(2), c56, max(endi[2] + 3, b1 + 1), b2 - 10)
    fl += interleave(epi(3), S4[:n4 // 2], endi[3] + 3, start[5] + 8)
    if LAYER is None:
        fl += F(lines(f"""
        s_mul_i32 s{sE}, s{sL}, 3
        s_add_u32 s{sCNT}, s{sE}, 2
        s_add_u32 s{sE}, s{sE}, 1
        """), earliest=0)
    fl += interleave(epi(4)[:30], S4[n4 // 2:], endi[4] + 3, start[6])
    fl.append((start[5] + 16, start[6], ('call', lambda k: set_flag(k, sHFL, lvl(1), h=hs[3]))))
    fl += F(epi(4)[30:], earliest=0, deadline=start[6] + 4)
    fl += interleave(epi(5), [], endi[5] + 3, len(seq) - 8)
    M[start[6] + 8]['pre'] += p5_poll()
    for p in range(HDEPTH):
        n = start[6] + 18 + 2 * p
        M[n]['pre'] = M[n]['pre'] + ([p5_check(1)] if p == 0 else []) + p5_hload(p)
    rest = weave(k, M, fl, free=P4FREE)
    flush(k, rest)
    if LAYER is None:
        k(f's_add_u32 s{sDS}, s{sE}, 2')
    set_flag(k, sHFL, lvl(2), h=hs[5])
    ts(k, 'P4.mfma')
    phase_P5(k, Lfin, epi(6), hs)


def phase_G(k):
    A_X, A_Q, A_K, A_V, WB, RT = 32, 144, 160, 176, 192, 240
    NB, PF = 6, 4
    NQ1 = GNQ1
    k(f"""
    s_lshl_b32 s{sT4}, s{sTT}, 7
    s_add_u32 s{sT4}, s{sT4}, {F_XIN}
    s_mul_i32 s{sT3}, s{sTT}, {28 * 1024}
    s_add_u32 s{sT3}, s{sT3}, s{sX2}
    """)
    seq = []
    for ks in range(29):
        seq += [('K', ks), ('V', ks)]
        if ks < NQ1:
            seq.append(('Q', ks))
    n1 = len(seq)
    seq += [('Q', ks) for ks in range(NQ1, 29)]
    pidx = {'Q': 0, 'K': 1, 'V': 2}

    def wread(n):
        p, ks = seq[n]
        b = v4(WB + 4 * (n % NB))
        if ks == 28:
            return f'ds_read_b128 {b}, v{vSCR} offset:{9216 + 1024 * pidx[p]}'
        if p == 'V':
            return f'ds_read_b128 {b}, v{vL16b} offset:{ks * 1024}'
        return f'ds_read_b128 {b}, v{vL16} offset:{(pidx[p] * 28 + ks) * 1024}'

    def mf(n):
        p, ks = seq[n]
        b = v4(WB + 4 * (n % NB))
        x = v4(MB) if ks == 28 else v4(A_X + 4 * ks)
        a = {'Q': A_Q, 'K': A_K, 'V': A_V}[p]
        c = '0' if ks == 0 else v16(a)
        if p == 'V':
            return f'{MF} {v16(a)}, {x}, {b}, {c}'
        return f'{MF} {v16(a)}, {b}, {x}, {c}'
    for n in range(PF):
        k(wread(n))
    emit(k, SCHED['G_pre']())
    ts(k, 'G.start')
    wait_flags(k, vF14, sT4, '1')
    ts(k, 'G.ready')
    xl = load_chunks([v4(A_X + 4 * i) for i in range(28)], sT3, sT2, pol=' sc1')
    STT = 216
    for i in range(4):
        emit(k, xl[i])
    emit(k, stats_loads(sST2, sTT, STT))
    for i in range(4, XDEPTH):
        emit(k, xl[i])
    M = []
    for n in range(len(seq)):
        pre = [wread(n + PF)] if n + PF < len(seq) else []
        p, ks = seq[n]
        if p == 'K' and ks + XDEPTH < 28:
            pre = pre + xl[ks + XDEPTH]
        M.append(dict(pre=pre, m=mf(n), need=[v4(WB + 4 * (n % NB))], w=1 if p == 'K' else 0))
    gather = lines(f"""
    s_lshl_b32 s{sT0}, s{sW}, 8
    s_add_u32 s{sT0}, s{sT0}, {SCR}
    v_lshlrev_b32 v{vT0}, 2, v{vN}
    v_add_u32 v{vT0}, s{sT0}, v{vT0}
    ds_write_b32 v{vT0}, v{vR}
    v_lshlrev_b32 v{vT1}, 4, v{vHH}
    v_add_u32 v{vT1}, s{sT0}, v{vT1}
    """) + [f'ds_read_b128 {v4(RT + 4 * g)}, v{vT1} offset:{32 * g}' for g in range(4)]
    fl = F(stats_math(STT) + mb_fill() + gather, earliest=8, deadline=n1 - 6)
    fl += F(lines(f"""
    s_lshl_b32 s{sT0}, s{sIDX}, 6
    s_add_u32 s{sT0}, s{sT0}, s{sTT}
    s_lshl_b32 s{sT4}, s{sT0}, 2
    s_add_u32 s{sT4}, s{sT4}, {F_KV}
    s_lshl_b32 s{sT5}, s{sT0}, 12
    s_add_u32 s{sT5}, s{sT5}, s{sKV}
    """), earliest=8)
    ep = []
    for r in range(16):
        ep.append(f'v_mul_f32 v{A_K + r}, v{vR}, v{A_K + r}')
    for q in range(8):
        ep.append(f'v_cvt_pk_bf16_f32 v{KF + q}, v{A_K + 2 * q}, v{A_K + 2 * q + 1}')
    for i in range(2):
        ep.append(f'buffer_store_dwordx4 {v4(KF + 4 * i)}, v{vL16}, s[8:11], s{sT5} offen offset:{1024 * i} sc1')
    for r in range(16):
        ep.append(f'v_mul_f32 v{A_V + r}, v{RT + r}, v{A_V + r}')
    for q in range(8):
        ep.append(f'v_cvt_pk_bf16_f32 v{VF + q}, v{A_V + 2 * q}, v{A_V + 2 * q + 1}')
        ep.append(f'v_cndmask_b32 v{VF + q}, v{VF + q}, v{vONES}, s[{sN28}:{sN28 + 1}]')
    for i in range(2, 4):
        ep.append(f'buffer_store_dwordx4 {v4(KF + 4 * i)}, v{vL16}, s[8:11], s{sT5} offen offset:{1024 * i} sc1')
    hk = {}
    ep.append(('call', lambda k: hk.__setitem__('h', k.vm_mark())))
    for i in range(4):
        ep.append(f'ds_write_b128 v{vKVA}, {v4(KF + 4 * i)} offset:{8 * 4096 + 1024 * i}')
    ep += SCHED['G_q']()
    fl += F(ep, earliest=n1 + 1)
    fl.append((len(seq) - 2, None, ('call', lambda k: set_flag(k, sT4, '2', always_sc1=True, h=hk['h']))))
    flush(k, weave(k, M, fl, free=6))
    ts(k, 'G.mfma')
    k(f'v_mul_f32 v{vT0}, {f32bits(28 ** -0.5 * LOG2E)}, v{vR}')
    for r in range(0, 16, 2):
        k(f'v_pk_mul_f32 {v2(A_Q + r)}, {v2(A_Q + r)}, {v2(vT0)} op_sel_hi:[1,0]')
    for q in range(8):
        k(f'v_cvt_pk_bf16_f32 v{QF + q}, v{A_Q + 2 * q}, v{A_Q + 2 * q + 1}')
    k(f'v_mov_b32 v{vT1}, 0x3f80')
    k(f'v_cndmask_b32 v{QF + 6}, v{QF + 6}, v{vT1}, s[{sHI}:{sHI + 1}]')
    ts(k, 'G.pub')
    k.barrier()


F_DUTY = 3 * SLOT
F_SCR = SCR
F_CSX = LDS_BYTES - 1536
F_XR = F_DUTY + 29184
OOBS = 0x20000000


def _exper():
    if '-nodutyslow' in sys.argv:
        return f's_bitcmp1_b32 0xAA54, s{sIDX}\n    s_cbranch_scc1 F_none'
    if '-noduty' in sys.argv:
        return 's_branch F_none'
    return ''


def front(k):
    EXPER = _exper()
    T0, T1, T2, T3, T4, T5 = sT0, sT1, sT2, sT3, sT4, sT5
    sKIND, sDST, sCSD, sA1, sWOFF, sPIT, sSRC, sXRB = 88, 89, 90, 91, 92, 93, 94, 95
    sPAD, sHP, sXT, sIMG, sXS, sZM, sSA, sSB, sD8 = 72, 74, 77, 78, 79, 80, 82, 83, 84
    vTR, vTR2, vXO, vDT, vS1, vS2, vCSK, vCSV, vCSQ, vIMG, vOQ, vOQ2, vDS = 5, 6, 7, 9, 10, 14, 15, 16, 17, 19, 26, 27, 144
    X, AQ, AK, AV, WB, RT = 32, 144, 160, 176, 192, 240
    NB, PF = 6, 4
    XA = 240
    k(f"""
    v_and_b32 v{vT0}, 3, v{vLANE}
    v_lshrrev_b32 v{vT1}, 2, v{vLANE}
    s_lshl_b32 s{T0}, s{sRB}, 2
    v_add_u32 v{vT2}, s{T0}, v{vT0}
    v_lshlrev_b32 v{vT3}, 7, v{vT2}
    s_lshl_b32 s{T1}, s{sIDX}, 2
    s_add_u32 s{T1}, s{T1}, {F_O}
    v_add_u32 v{vT3}, s{T1}, v{vT3}                  ; F_O
    v_and_b32 v5, 1, v{vT1}
    v_lshl_add_u32 v{vT3}, v5, 14, v{vT3}            ; kind 1: F_H = F_O + 16384
    s_and_b32 s{T0}, s{sTT3}, -2
    s_and_b32 s{T1}, s{sFT}, -2
    v_lshrrev_b32 v6, 1, v{vT0}
    v_add_u32 v6, s{T0}, v6                          ; tt3
    v_and_b32 v7, 1, v{vT0}
    v_add_u32 v7, s{T1}, v7                          ; ft
    v_lshlrev_b32 v6, 7, v6
    v_lshl_add_u32 v6, v7, 2, v6
    v_add_u32 v6, {F_XIN}, v6
    v_lshl_add_u32 v6, v5, 14, v6
    v_cmp_le_u32 vcc, 2, v{vT1}
    s_lshl_b32 s{T0}, s{sIDX}, 8
    s_add_u32 s{T0}, s{T0}, {F_KV}
    v_cndmask_b32 v{vT3}, v{vT3}, v6, vcc
    v_lshlrev_b32 v6, 2, v{vT2}
    v_add_u32 v6, s{T0}, v6
    v_cmp_le_u32 vcc, 4, v{vT1}
    s_lshl_b32 s{T0}, s2, 7
    s_add_u32 s{T0}, s{T0}, {F_PK}
    v_cndmask_b32 v{vT3}, v{vT3}, v6, vcc
    v_mov_b32 v6, s{T0}
    v_cmp_le_u32 vcc, 5, v{vT1}
    s_cmp_eq_u32 s{sW}, 0
    s_cselect_b32 s{T0}, 0, {OOBS}
    v_cndmask_b32 v{vT3}, v{vT3}, v6, vcc
    s_mov_b64 exec, 0x1fffff
    buffer_store_dword v{vZERO}, v{vT3}, s[8:11], s{T0} offen sc1
    s_mov_b64 exec, -1
    """)
    h_zero = k.vm_mark()
    assert F_H - F_O == 16384 and F_X1 - F_XIN == 16384
    k(f"""
    s_mov_b32 s64, s74
    s_mov_b32 s65, s75
    s_mov_b32 s66, {448 * 1344 * 2}
    s_mov_b32 s67, 0x00020000
    s_mov_b32 s71, 0x00020000
    """)
    Lw2, Lwo, Lnone, Ldec = 'F_w2', 'F_wo', 'F_none', 'F_dec'
    k(f"""
    s_lshr_b32 s{T4}, s{sW}, 1
    s_and_b32 s{T5}, s{sW}, 1
    s_cmp_ge_u32 s2, 182
    s_cbranch_scc1 {Lnone}
    {EXPER}
    s_cmp_ge_u32 s2, 168
    s_cbranch_scc1 {Lwo}
    s_cmp_ge_u32 s2, 112
    s_cbranch_scc1 {Lw2}
    s_lshr_b32 s{T0}, s2, 2
    s_and_b32 s{T1}, s2, 3
    s_cmp_eq_u32 s{T4}, 1
    s_cselect_b32 s68, s82, s80
    s_cselect_b32 s69, s83, s81
    s_mov_b32 s70, {448 * 1792 * 2}
    s_mov_b32 s{sKIND}, 0
    s_mov_b32 s{sPIT}, 3584
    s_mul_i32 s{sSRC}, s{T1}, 112
    s_mul_i32 s{T2}, s{T5}, 56
    s_add_u32 s{sSRC}, s{sSRC}, s{T2}
    s_mul_i32 s{sSRC}, s{sSRC}, 3584
    s_lshl_b32 s{T2}, s{T0}, 7
    s_add_u32 s{sSRC}, s{sSRC}, s{T2}
    s_lshl_b32 s{T2}, s{T0}, 2
    s_add_u32 s{T2}, s{T2}, s{sW}
    s_mul_i32 s{sDST}, s{T2}, 28
    s_mul_i32 s{T0}, s{T1}, 7
    s_add_u32 s{sDST}, s{sDST}, s{T0}
    s_lshl_b32 s{sDST}, s{sDST}, 10
    s_add_u32 s{sDST}, s{sDST}, {W13_P}
    s_mul_i32 s{sCSD}, s{T1}, 112
    s_add_u32 s{sCSD}, s{sCSD}, s{T2}
    s_lshl_b32 s{sCSD}, s{sCSD}, 7
    s_add_u32 s{sCSD}, s{sCSD}, {CSP_13}
    s_mov_b32 s{sA1}, 14336
    s_lshl_b32 s{sWOFF}, s{sW}, 5
    s_branch {Ldec}
    """)
    k.label(Lw2, pad=False)
    k(f"""
    s_sub_u32 s{T0}, s2, 112
    s_and_b32 s{T1}, s{T0}, 7
    s_lshr_b32 s{T0}, s{T0}, 3
    s_mov_b32 s68, s84
    s_mov_b32 s69, s85
    s_mov_b32 s70, {1792 * 448 * 2}
    s_mov_b32 s{sKIND}, 1
    s_mov_b32 s{sPIT}, 896
    s_mul_i32 s{sSRC}, s{T1}, 224
    s_mul_i32 s{T2}, s{sW}, 56
    s_add_u32 s{sSRC}, s{sSRC}, s{T2}
    s_mul_i32 s{sSRC}, s{sSRC}, 896
    s_lshl_b32 s{T2}, s{T0}, 7
    s_add_u32 s{sSRC}, s{sSRC}, s{T2}
    s_lshl_b32 s{T2}, s{T0}, 1
    s_add_u32 s{T2}, s{T2}, s{T5}
    s_mul_i32 s{sDST}, s{T2}, 112
    s_mul_i32 s{T0}, s{T1}, 14
    s_add_u32 s{sDST}, s{sDST}, s{T0}
    s_mul_i32 s{T0}, s{T4}, 7
    s_add_u32 s{sDST}, s{sDST}, s{T0}
    s_lshl_b32 s{sDST}, s{sDST}, 10
    s_add_u32 s{sDST}, s{sDST}, {W2_P}
    s_mov_b32 s{sCSD}, 0
    s_mov_b32 s{sA1}, 32
    s_mul_i32 s{sWOFF}, s{T4}, {112 * 128}
    s_lshl_b32 s{T0}, s{T5}, 6
    s_add_u32 s{sWOFF}, s{sWOFF}, s{T0}
    s_branch {Ldec}
    """)
    k.label(Lwo, pad=False)
    k(f"""
    s_sub_u32 s{T0}, s2, 168
    s_and_b32 s{T1}, s{T0}, 1
    s_lshr_b32 s{T0}, s{T0}, 1
    s_mov_b32 s68, s76
    s_mov_b32 s69, s77
    s_mov_b32 s70, {448 * 448 * 2}
    s_mov_b32 s{sKIND}, 2
    s_mov_b32 s{sPIT}, 896
    s_mul_i32 s{sSRC}, s{T1}, 224
    s_mul_i32 s{T2}, s{sW}, 56
    s_add_u32 s{sSRC}, s{sSRC}, s{T2}
    s_mul_i32 s{sSRC}, s{sSRC}, 896
    s_lshl_b32 s{T2}, s{T0}, 7
    s_add_u32 s{sSRC}, s{sSRC}, s{T2}
    s_lshl_b32 s{T2}, s{T0}, 1
    s_add_u32 s{T2}, s{T2}, s{T5}
    s_lshl_b32 s{sDST}, s{T2}, 5
    s_lshl_b32 s{T0}, s{T1}, 4
    s_add_u32 s{sDST}, s{sDST}, s{T0}
    s_lshl_b32 s{T0}, s{T4}, 3
    s_add_u32 s{sDST}, s{sDST}, s{T0}
    s_lshl_b32 s{sDST}, s{sDST}, 10
    s_add_u32 s{sDST}, s{sDST}, {WO_P}
    s_mov_b32 s{sCSD}, 0
    s_mov_b32 s{sA1}, 32
    s_mul_i32 s{sWOFF}, s{T4}, {112 * 128}
    s_lshl_b32 s{T0}, s{T5}, 6
    s_add_u32 s{sWOFF}, s{sWOFF}, s{T0}
    s_branch {Ldec}
    """)
    k.label(Lnone, pad=False)
    k(f"""
    s_mov_b32 s68, s76
    s_mov_b32 s69, s77
    s_mov_b32 s70, 0
    s_mov_b32 s{sKIND}, 3
    s_mov_b32 s{sPIT}, 0
    s_mov_b32 s{sSRC}, 0
    s_mov_b32 s{sDST}, 0
    s_mov_b32 s{sCSD}, 0
    s_mov_b32 s{sA1}, 0
    s_mov_b32 s{sWOFF}, 0
    """)
    k.label(Ldec, pad=False)
    k(f"""
    v_lshrrev_b32 v{vT1}, 3, v{vLANE}
    v_mul_lo_u32 v{vDS}, v{vT1}, s{sPIT}
    v_and_b32 v{vT2}, 7, v{vLANE}
    v_lshl_add_u32 v{vDS}, v{vT2}, 4, v{vDS}
    s_lshl_b32 s{sPIT}, s{sPIT}, 3
    v_xor_b32 v{vT2}, v{vT2}, v{vT1}
    v_mul_u32_u24 v{vXO}, 896, v{vT1}
    v_lshl_add_u32 v{vXO}, v{vT2}, 4, v{vXO}
    v_lshrrev_b32 v{vIMG}, 2, v{vLANE}
    v_mul_u32_u24 v{vIMG}, 2688, v{vIMG}
    v_and_b32 v{vT1}, 3, v{vLANE}
    v_lshl_add_u32 v{vIMG}, v{vT1}, 4, v{vIMG}
    s_mul_i32 s{sIMG}, s{sW}, {7 * 16 * 2688}
    s_mul_i32 s{T2}, s{sIDX}, 56
    s_add_u32 s{sIMG}, s{sIMG}, s{T2}
    s_mul_i32 s{sXS}, s{sTT}, {32 * 896}
    """)
    hx, himg = {}, {}
    def xslot(c):
        return [0, 1, 2, 0, 1, 2, 1][c]

    def xbase(c):
        return [(sLW, 0), (sXRB, 0), (sXRB, 4096)][xslot(c)]

    def duty_dma():
        for i in range(7):
            k(f's_add_u32 m0, s{sLW}, {F_DUTY + i * 1024}')
            k(f'buffer_load_dwordx4 v{vDS}, s[68:71], s{sSRC} offen lds')
            k(f's_add_u32 s{sSRC}, s{sSRC}, s{sPIT}')

    def xdma(c):
        b, o = xbase(c)
        for i in range(4):
            k(f's_add_u32 m0, s{b}, {o + i * 1024}')
            k(f's_add_u32 s{sXT}, s{sXS}, {i * 8 * 896 + c * 128}')
            k(f'buffer_load_dwordx4 v{vXO}, s[20:23], s{sXT} offen lds')
        hx[c] = k.vm_mark()

    def img_dma(p):
        for i in range(7):
            k(f's_add_u32 m0, s{sLW}, {p * SLOT + i * 1024}')
            k(f's_add_u32 s{sXT}, s{sIMG}, {i * 16 * 2688 + p * 896}')
            k(f'buffer_load_dwordx4 v{vIMG}, s[64:67], s{sXT} offen lds')
        himg[p] = k.vm_mark()
    k(f"""
    s_lshl_b32 s{sXRB}, s{sW}, 13
    s_add_u32 s{sXRB}, s{sXRB}, {F_XR}
    """)
    if CODEPF:
        k(f"""
        s_getpc_b64 s[{sTS}:{sTS + 1}]
        s_lshr_b32 s{T0}, s2, 3
        s_lshl_b32 s{T0}, s{T0}, 2
        s_add_u32 s{T0}, s{T0}, s{sW}
        s_lshl_b32 s{T0}, s{T0}, 9
        v_min_u32 v{vT1}, 3, v{vLANE}
        v_lshlrev_b32 v{vT1}, 7, v{vT1}
        v_add_u32 v{vT1}, s{T0}, v{vT1}
        v_min_u32 v{vT1}, {CODEPF}, v{vT1}
        global_load_dword v{vDUM}, v{vT1}, s[{sTS}:{sTS + 1}]
        """)
    if WARM:
        k(f"""
        s_lshr_b32 s{T0}, s2, 3
        s_lshl_b32 s{T0}, s{T0}, 2
        s_add_u32 s{T0}, s{T0}, s{sW}
        v_lshlrev_b32 v{vT1}, 7, v{vLANE}
        s_mul_i32 s{T2}, s{T0}, {74 * 128}
        buffer_load_dword v{vDUM}, v{vT1}, s[64:67], s{T2} offen
        v_min_u32 v{vT2}, 9, v{vLANE}
        v_lshlrev_b32 v{vT2}, 7, v{vT2}
        s_add_u32 s{T2}, s{T2}, 8192
        buffer_load_dword v{vDUM}, v{vT2}, s[64:67], s{T2} offen
        v_min_u32 v{vT2}, 13, v{vLANE}
        v_lshlrev_b32 v{vT2}, 7, v{vT2}
        s_lshr_b32 s{T2}, s{sRB}, 1
        s_mul_i32 s{T2}, s{T2}, {256 * 896}
        s_mul_i32 s{T0}, s{T0}, 1792
        s_add_u32 s{T2}, s{T2}, s{T0}
        buffer_load_dword v{vDUM}, v{vT2}, s[20:23], s{T2} offen
        """)
    set_layer(k, 0)
    if PROPOS == 0:
        emit(k, [x.replace(f'v{vTA},', f'v{vT3},').replace(f'v{vTA}', f'v{vT3}') for x in SCHED['PRO']()])
    if DUTYPOS == 0:
        duty_dma()
    xdma(0)
    xdma(1)
    xdma(2)
    img_dma(1)
    k.wait_vm(h_zero)
    signal(k)
    if DUTYPOS == 1:
        duty_dma()
    ts(k, 'F.issued')
    k(f"""
    v_lshlrev_b32 v{vT1}, 3, v{vHH}
    v_bfe_u32 v{vT2}, v{vLANE}, 2, 2
    v_add_u32 v{vT1}, v{vT1}, v{vT2}
    v_and_b32 v{vT2}, 1, v{vLANE}
    v_lshlrev_b32 v{vT2}, 4, v{vT2}
    v_bfe_u32 v{vT3}, v{vLANE}, 1, 1
    v_lshl_or_b32 v{vT2}, v{vT3}, 3, v{vT2}
    v_bfe_u32 v{vT3}, v{vLANE}, 4, 1
    v_lshl_add_u32 v{vTR}, v{vT1}, 6, v{vT2}
    v_lshl_add_u32 v{vTR}, v{vT3}, 5, v{vTR}
    v_add_u32 v{vTR2}, {2 * SLOT}, v{vTR}
    v_lshl_add_u32 v{vDT}, v{vT1}, 7, v{vT2}
    v_mad_u32_u24 v{vDT}, v{vT3}, s{sA1}, v{vDT}
    s_add_u32 s{T0}, s{sWOFF}, {F_DUTY}
    v_add_u32 v{vDT}, s{T0}, v{vDT}
    v_add_u32 v{vOQ}, s{sLW}, v{vTR}
    v_add_u32 v{vOQ2}, s{sLW}, v{vTR2}
    v_mov_b32 v{vS1}, 0
    v_mov_b32 v{vS2}, 0
    v_mov_b32 v{vCSK}, 0
    v_mov_b32 v{vCSV}, 0
    v_mov_b32 v{vCSQ}, 0
    v_cmp_le_u32 s[{sPAD}:{sPAD + 1}], 28, v{vN}
    s_sub_u32 s{T0}, s{sXRB}, s{sLW}
    """)
    for i in range(4):
        k(f"""
        v_add_u32 v{vT1}, {2 * i}, v{vHH}
        v_and_b32 v{vT2}, 7, v{vN}
        v_xor_b32 v{vT1}, v{vT1}, v{vT2}
        v_lshlrev_b32 v{vT1}, 4, v{vT1}
        v_lshl_add_u32 v{XA + i}, v{vN}, 7, v{vT1}
        v_add_u32 v{XA + i}, s{sLW}, v{XA + i}
        v_add_u32 v{XA + 4 + i}, s{T0}, v{XA + i}
        """)
    k(f's_or_b64 s[{sHP}:{sHP + 1}], s[{sHI}:{sHI + 1}], s[{sPAD}:{sPAD + 1}]')
    emit(k, setup2_salu())

    k(f"""
    s_movk_i32 s{sSA}, 2048
    s_cmp_eq_u32 s{sKIND}, 2
    s_cselect_b32 s{sSA}, 1792, s{sSA}
    s_cselect_b32 s{sSB}, 256, 0
    s_mov_b32 s{sZM}, 0
    s_cselect_b32 s{sZM + 1}, -1, 0
    s_add_u32 s{T0}, s{sDST}, 4096
    s_cmp_eq_u32 s{sKIND}, 2
    s_cselect_b32 s{sD8}, s{T0}, {OOBS}
    s_cmp_eq_u32 s{sKIND}, 0
    s_cselect_b32 s{sCSD}, s{sCSD}, {OOBS}
    s_cmp_eq_u32 s{sKIND}, 3
    s_cselect_b32 s{sDST}, {OOBS}, s{sDST}
    """)

    def x_rd(c):
        k.wait_vm(hx[c])
        for i in range(4):
            a, o = (XA + i, 0) if xslot(c) == 0 else (XA + 4 + i, 4096 * (xslot(c) - 1))
            k(f'ds_read_b128 {v4(X + 16 * c + 4 * i)}, v{a} offset:{o}')

    def x_st(c):
        emit(k, stats_ops(X + 16 * c, 16, vS1, vS2, vONES))

    def own_quarter(p, acc, buf):
        k.wait_vm(himg[p])
        base = vOQ if p < 2 else vOQ2
        for i in range(7):
            off = (p * SLOT if p < 2 else 0) + i * 1024
            k(f'ds_read_b64_tr_b16 {v2(buf + 4 * i)}, v{base} offset:{off}')
            k(f'ds_read_b64_tr_b16 {v2(buf + 4 * i + 2)}, v{base} offset:{off + 256}')
        for i in range(28):
            k(f'v_dot2_f32_bf16 v{acc}, v{buf + i}, v{vONES}, v{acc}')
        k(f"""
        v_mov_b32 v{vT0}, v{acc}
        v_permlane32_swap_b32 v{acc}, v{vT0}
        v_add_f32 v{acc}, v{acc}, v{vT0}
        s_mul_i32 s{T0}, s{sW}, 384
        s_add_u32 s{T0}, s{T0}, {F_CSX}
        v_lshlrev_b32 v{vT3}, 2, v{vN}
        v_add_u32 v{vT2}, s{T0}, v{vT3}
        ds_write_b32 v{vT2}, v{acc} offset:{128 * p}
        """)
    for c in range(3):
        x_rd(c)
    k.wait_lg()
    for c in range(3, 6):
        xdma(c)
    img_dma(2)
    ts(k, 'F.iss2')
    for c in range(3):
        x_st(c)
    own_quarter(1, vCSK, WB)
    x_rd(3)
    x_rd(4)
    k.wait_lg()
    xdma(6)
    if DUTYPOS == 2:
        duty_dma()
    ts(k, 'F.iss3')
    x_rd(5)
    for c in range(3, 6):
        x_st(c)
    own_quarter(2, vCSV, WB)
    x_rd(6)
    x_st(6)
    emit(k, ln_math(vS1, vS2, vT0, vT1, vM, vR) + mb_fill())
    k(f'v_lshlrev_b32 v{vT3}, 2, v{vN}')
    k(f'v_add_u32 v{vS1}, {F_CSX}, v{vT3}')
    gather = lines(f"""
    s_lshl_b32 s{T0}, s{sW}, 8
    s_add_u32 s{T0}, s{T0}, {F_SCR}
    v_add_u32 v{vT1}, s{T0}, v{vT3}
    ds_write_b32 v{vT1}, v{vR}
    v_lshlrev_b32 v{vT1}, 4, v{vHH}
    v_add_u32 v{vT1}, s{T0}, v{vT1}
    """) + [f'ds_read_b128 {v4(RT + 4 * g)}, v{vT1} offset:{32 * g}' for g in range(4)]
    ts(k, 'F.pre')
    k.barrier()
    ts(k, 'F.barA')
    pidx = {'Q': 0, 'K': 1, 'V': 2}

    def gemm(seq, CFR):
        def wread(n):
            p, ks = seq[n]
            b = WB + 4 * (n % NB)
            base, off = (vTR2, ks * 1024) if p == 'V' else (vTR, pidx[p] * SLOT + ks * 1024)
            return [f'ds_read_b64_tr_b16 {v2(b)}, v{base} offset:{off}',
                    f'ds_read_b64_tr_b16 {v2(b + 2)}, v{base} offset:{off + 256}']
        M = []
        for n, (p, ks) in enumerate(seq):
            b = v4(WB + 4 * (n % NB))
            x = v4(X + 4 * ks)
            a = {'Q': AQ, 'K': AK, 'V': AV}[p]
            c = '0' if ks == 0 else v16(a)
            m = f'{MF} {v16(a)}, {x}, {b}, {c}' if p == 'V' else f'{MF} {v16(a)}, {b}, {x}, {c}'
            M.append(dict(pre=wread(n + PF) if n + PF < len(seq) else [], m=m, need=[b]))
        for p, cf in CFR:
            a = {'Q': AQ, 'K': AK, 'V': AV}[p]
            M.append(dict(m=f'{MF} {v16(a)}, {v4(MB)}, {v4(cf)}, {v16(a)}' if p == 'V' else f'{MF} {v16(a)}, {v4(cf)}, {v4(MB)}, {v16(a)}'))
        for n in range(PF):
            emit(k, wread(n))
        return M

    def cs_frag(p, cf, t):
        fl = [f'ds_read_b32 v{t + w}, v{vS1} offset:{w * 384 + p * 128}' for w in range(4)]
        fl += ['s_nop 0'] * 6
        fl += [f'v_add_f32 v{t}, v{t}, v{t + 1}', f'v_add_f32 v{t + 2}, v{t + 2}, v{t + 3}', f'v_add_f32 v{t}, v{t}, v{t + 2}',
               f'v_cndmask_b32 v{t}, v{t}, 0, s[{sHP}:{sHP + 1}]']
        fl += split3(t, cf, cf + 1, vT0, vT2)
        fl += [f'v_mov_b32 v{cf + 2}, 0', f'v_mov_b32 v{cf + 3}, 0',
               ('call', lambda k: cs_store(k, cf))]
        return fl

    def cs_store(k, cf):
        k(f'ds_write_b128 v{vS2}, {v4(cf)}')
        k(f'v_add_u32 v{vS2}, 1024, v{vS2}')
    k(f'v_add_u32 v{vS2}, {SCR_CSQ + 1024}, v{vL16}')
    M = gemm([(p, ks) for ks in range(28) for p in 'KV'], [('K', QF), ('V', QF + 4)])
    fl = F(gather + cs_frag(1, QF, KF) + cs_frag(2, QF + 4, KF), earliest=1, deadline=54)
    late = []
    for i in range(7):
        late.append([f's_add_u32 m0, s{sLW}, {i * 1024}', f's_add_u32 s{sXT}, s{sIMG}, {i * 16 * 2688}',
                     f'buffer_load_dwordx4 v{vIMG}, s[64:67], s{sXT} offen lds'])
    late[-1].append(('call', lambda k: himg.__setitem__(0, k.vm_mark())))
    for j, c in enumerate(late):
        n = 1 + 5 * j
        M[n]['pre'] = M[n]['pre'] + c
    fl += F(lines(f"""
    s_lshl_b32 s{T0}, s{sIDX}, 6
    s_add_u32 s{T0}, s{T0}, s{sTT}
    s_lshl_b32 s{T4}, s{T0}, 2
    s_add_u32 s{T4}, s{T4}, {F_KV}
    s_lshl_b32 s{T5}, s{T0}, 12
    s_add_u32 s{T5}, s{T5}, s{sKV}
    """), earliest=2)
    flush(k, weave(k, M, fl, free=6))
    ts(k, 'F.kv')
    k(f'v_mov_b32 v{vT0}, v{vR}')
    for r in range(0, 16, 2):
        k(f'v_pk_mul_f32 {v2(AK + r)}, {v2(AK + r)}, {v2(vT0)} op_sel_hi:[1,0]')
    for q in range(8):
        k(f'v_cvt_pk_bf16_f32 v{KF + q}, v{AK + 2 * q}, v{AK + 2 * q + 1}')
    k(f'v_cndmask_b32 v{KF + 6}, v{KF + 6}, 0, s[{sHI}:{sHI + 1}]')
    k(f'v_cndmask_b32 v{KF + 7}, v{KF + 7}, 0, s[{sHI}:{sHI + 1}]')
    for i in range(2):
        k(f'buffer_store_dwordx4 {v4(KF + 4 * i)}, v{vL16}, s[8:11], s{T5} offen offset:{1024 * i} sc1')
    for r in range(0, 16, 2):
        k(f'v_pk_mul_f32 {v2(AV + r)}, {v2(AV + r)}, {v2(RT + r)}')
    for q in range(8):
        k(f'v_cvt_pk_bf16_f32 v{VF + q}, v{AV + 2 * q}, v{AV + 2 * q + 1}')
        k(f'v_cndmask_b32 v{VF + q}, v{VF + q}, v{vONES}, s[{sN28}:{sN28 + 1}]')
    for i in range(2, 4):
        k(f'buffer_store_dwordx4 {v4(KF + 4 * i)}, v{vL16}, s[8:11], s{T5} offen offset:{1024 * i} sc1')
    hkv = k.vm_mark()
    for i in range(4):
        k(f'ds_write_b128 v{vKVA}, {v4(KF + 4 * i)} offset:{8 * 4096 + 1024 * i}')
    own_quarter(0, vCSQ, AK)
    set_flag(k, T4, '1', always_sc1=True, h=hkv)
    if PROPOS == 1:
        emit(k, SCHED['PRO']())
    ts(k, 'F.kvpub')
    k.barrier()
    k(f"""
    v_and_b32 v{vXO}, 15, v{vLANE}
    v_lshlrev_b32 v{vXO}, 4, v{vXO}
    buffer_load_dword v{vCSK}, v{vXO}, s[16:19], 0 offen sc1
    """)
    DB = AK
    for i in range(8):
        k(f'ds_read_b64_tr_b16 {v2(DB + 4 * i)}, v{vDT}')
        k(f'ds_read_b64_tr_b16 {v2(DB + 4 * i + 2)}, v{vDT} offset:512')
        k(f's_{"add" if i % 2 == 0 else "sub"}_u32 s{T0}, s{sSA}, s{sSB}')
        k(f'v_add_u32 v{vDT}, s{T0}, v{vDT}')
    k(f'v_mov_b32 v{vT1}, 0')
    dst = []
    for i in range(8):
        if i & 1:
            k(f'v_cndmask_b32 v{DB + 4 * i + 2}, v{DB + 4 * i + 2}, 0, s[{sZM}:{sZM + 1}]')
            k(f'v_cndmask_b32 v{DB + 4 * i + 3}, v{DB + 4 * i + 3}, 0, s[{sZM}:{sZM + 1}]')
        dst.append(([f's_add_u32 s{sDST}, s{sDST}, 4096'] if i == 4 else []) +
                   [f'buffer_store_dwordx4 {v4(DB + 4 * i)}, v{vL16}, s[8:11], s{sD8 if i == 7 else sDST} offen offset:{(i % 4) * 1024} sc1'])
    emit(k, dst[0] + dst[1])
    for i in range(28):
        k(f'v_dot2_f32_bf16 v{vT1}, v{DB + i}, v{vONES}, v{vT1}')
    k(f"""
    v_mov_b32 v{vT0}, v{vT1}
    v_permlane32_swap_b32 v{vT1}, v{vT0}
    v_add_f32 v{vT1}, v{vT1}, v{vT0}
    v_lshlrev_b32 v{vT3}, 2, v{vN}
    buffer_store_dword v{vT1}, v{vT3}, s[8:11], s{sCSD} offen sc1
    """)
    ts(k, 'F.duty')
    SH = RT + 8
    share = lines(f"""
    s_cmp_ge_u32 s{sRB}, 7
    s_cselect_b32 s{T0}, 1, 0
    s_cmp_ge_u32 s{sRB}, 14
    s_cselect_b32 s{T0}, 2, s{T0}
    s_mul_i32 s{T1}, s{T0}, 7
    s_sub_u32 s{T1}, s{sRB}, s{T1}
    s_mul_i32 s{T0}, s{T0}, {SLOT}
    s_lshl_b32 s{T1}, s{T1}, 10
    s_add_u32 s{T0}, s{T0}, s{T1}
    v_add_u32 v{vT1}, s{T0}, v{vOQ}
    ds_read_b64_tr_b16 {v2(SH)}, v{vT1}
    ds_read_b64_tr_b16 {v2(SH + 2)}, v{vT1} offset:256
    s_mul_i32 s{T2}, s{sIDX}, {84 * 1024}
    s_add_u32 s{T2}, s{T2}, s{sLW}
    s_add_u32 s{T2}, s{T2}, {WQKV_P}
    s_add_u32 s{T3}, s{T2}, s{T0}
    s_min_u32 s{T1}, s{sRB}, 4
    s_lshl_b32 s{T1}, s{T1}, 10
    s_add_u32 s{T1}, s{T1}, {2 * SLOT + 2048}
    v_add_u32 v{vT1}, s{T1}, v{vOQ}
    ds_read_b64_tr_b16 {v2(SH + 4)}, v{vT1}
    ds_read_b64_tr_b16 {v2(SH + 6)}, v{vT1} offset:256
    s_add_u32 s{T2}, s{T2}, s{T1}
    s_cmp_gt_u32 s{sRB}, 4
    s_cselect_b32 s{T2}, {OOBS}, s{T2}
    """) + ['s_nop 0'] * 2
    share += [f'v_cndmask_b32 v{SH + q}, v{SH + q}, 0, s[{sPAD}:{sPAD + 1}]' for q in range(8)]
    share += [f'buffer_store_dwordx4 {v4(SH)}, v{vL16}, s[8:11], s{T3} offen sc1',
              f'buffer_store_dwordx4 {v4(SH + 4)}, v{vL16}, s[8:11], s{T2} offen sc1']
    k(f'v_add_u32 v{vS2}, {SCR_CSQ}, v{vL16}')
    M = gemm([('Q', ks) for ks in range(28)], [('Q', RT)])
    for i in range(2, 8):
        M[3 * (i - 2) + 1]['pre'] = M[3 * (i - 2) + 1]['pre'] + dst[i]
    fl = F(cs_frag(0, RT, RT + 4), earliest=1, deadline=26) + F(share, earliest=1)
    flush(k, weave(k, M, fl, free=6))
    k(f'v_mov_b32 v{vFL}, v{vCSK}')
    emit(k, setup2_valu())
    k(f'v_mul_f32 v{vT0}, {f32bits(28 ** -0.5 * LOG2E)}, v{vR}')
    for r in range(0, 16, 2):
        k(f'v_pk_mul_f32 {v2(AQ + r)}, {v2(AQ + r)}, {v2(vT0)} op_sel_hi:[1,0]')
    for q in range(8):
        k(f'v_cvt_pk_bf16_f32 v{QF + q}, v{AQ + 2 * q}, v{AQ + 2 * q + 1}')
    k(f"""
    v_mov_b32 v{vT1}, 0x3f80
    v_cndmask_b32 v{QF + 6}, v{QF + 6}, v{vT1}, s[{sHI}:{sHI + 1}]
    v_cndmask_b32 v{QF + 7}, v{QF + 7}, 0, s[{sHI}:{sHI + 1}]
    """)
    ts(k, 'F.q')
    global_check(k, pre=True)
    ts(k, 'F.chk')
    k.barrier()
    k(f's_cmp_lg_u32 s{sW}, 0')
    k.skip_begin('s_cbranch_scc1')
    k(f"""
    s_lshl_b32 s{T0}, s2, 7
    s_add_u32 s{T0}, s{T0}, {F_PK}
    v_mov_b32 v{vFL}, 1
    s_mov_b64 exec, 1
    buffer_store_dword v{vFL}, v{vZERO}, s[8:11], s{T0} offen sc1
    s_mov_b64 exec, -1
    """)
    k.skip_end()
    k(f's_cmp_eq_u32 s{sFAST}, 0')
    k('s_cbranch_scc1 SLOW_entry')


CSL = 112


def cs13_build():
    c = CSL
    out = [f'v_add_f32 v{c}, v{c}, v{c + 1}', f'v_add_f32 v{c + 2}, v{c + 2}, v{c + 3}', f'v_add_f32 v{c}, v{c}, v{c + 2}']
    out += split3(c, c + 4, c + 5, vT1, vT2)
    out += [f'v_mov_b32 v{c + i}, 0' for i in range(6, 12)]
    out += lines(f"""
    s_lshl_b32 s{sT0}, s{sW}, 10
    s_add_u32 s{sT0}, s{sT0}, {SCR_CS13}
    v_lshlrev_b32 v{vT0}, 4, v{vN}
    v_lshl_add_u32 v{vT0}, v{vHH}, 12, v{vT0}
    v_add_u32 v{vT0}, s{sT0}, v{vT0}
    ds_write_b128 v{vT0}, {v4(c + 4)}
    ds_write_b128 v{vT0}, {v4(c + 8)} offset:512
    s_waitcnt lgkmcnt(0)
    """)
    return out


SCHED = {}


def sched_a(v='a'):
    w2 = pf_w2()
    none = lambda: []
    SCHED.update({
        'PRO': lambda: t_X() + t_O(),
        'P3_pre': none,
        'P3_mm': lambda: [L1(t_H())] + [L0(g) for g in w2[:4]],
        'P3_idle': lambda: ['s_barrier'] + [L1(t_H())],
        'P5_idle': none,
        'P4_pre': none, 'P4_p1': none,
        'P4_mid': lambda: [[L0(g)] for g in w2[4:]] + [[L0(touch(2, sSADR))]],
        'G_pre': lambda: t_O(), 'G_q': none,
    })
    if v in 'ef':
        ch = (load_chunks([a4(4 * i) for i in range(28)], sBW2, sDM) + load_chunks([a4(112 + 4 * i) for i in range(28)], sBW2 + 1, sDM))
        n0 = 16 if v == 'e' else 24
        SCHED.update({
            'P3_mm': lambda: [L1(t_H())] + [L0(flat(ch[i:i + 2])) for i in range(0, n0, 2)],
            'P4_mid': lambda: [[L0(c)] for c in ch[n0:]] + [[L0(touch(2, sSADR))]],
        })
    if v == 'x':
        SCHED.update({'P3_mm': lambda: [L1(t_H())], 'P4_mid': lambda: [[L0(touch(2, sSADR))]]})
    if v == 'y':
        global HPLAIN
        HPLAIN = True
        ch = (load_chunks([a4(4 * i) for i in range(28)], sBW2, sDM) + load_chunks([a4(112 + 4 * i) for i in range(28)], sBW2 + 1, sDM))
        SCHED.update({
            'P3_mm': lambda: [L0(flat(ch[i:i + 2])) for i in range(0, 16, 2)] + [L1(t_H())],
            'P3_idle': lambda: ['s_barrier'] + [L1(t_H())],
            'P4_p1': lambda: [[L0(t_H())]],
            'P4_mid': lambda: [[L0(c)] for c in ch[16:]] + [[L0(touch(2, sSADR))]],
        })
    if v in 'bc':
        n3 = 7 if v == 'b' else 10
        SCHED.update({
            'P3_idle': lambda: ['s_barrier'] + [L1(t_H())] + idle_q() + idle_touch(W13_P + 3 * SLOT, 7 * SLOT, n3),
            'P5_idle': lambda: idle_q() + idle_touch(WQKV_P, 84 * 1024, 11) + idle_touch(WO_P, 28 * 1024, 4),
        })
    if v == 'd':
        SCHED.update({
            'P3_idle': lambda: ['s_barrier'] + [L1(t_H())] + idle_q() + [L0(idle_touch(W2_P, 98 * 1024, 7, 4)), L1(idle_touch(W13_P + 3 * SLOT, 7 * SLOT, 7))],
            'P5_idle': lambda: idle_q() + idle_touch(WQKV_P, 84 * 1024, 11) + idle_touch(WO_P, 28 * 1024, 4) + idle_touch(W13_P, 7 * SLOT, 7),
        })


def layer_switch(k):
    k(f's_mov_b32 s{sL}, 1')
    if TS_ON:
        k(f'v_accvgpr_write_b32 a255, v{vTS}')
        k(f'v_mov_b32 v{vTS}, 0')
    set_layer(k, 1)
    phase_G(k)


def phases(k):
    k.lg_done = k.lg_seq
    k.pend = {}
    attention(k)
    phase_P3(k)
    phase_P4(k, 'MAIN_fin')


def body(k, sfx):
    global LAYER
    if sfx == '_s':
        LAYER = None
        k.label('SLOW_entry', pad=False)
        set_layer(k, 0)
        k.label('ATT' + sfx)
        phases(k)
        layer_switch(k)
        k('s_branch ATT' + sfx)
    else:
        LAYER = 0
        phases(k)
        LAYER = 1
        layer_switch(k)
        phases(k)


def gen_main(k, name):
    global MODE
    kstart(k, name)
    k.ignore.add(('v', vDUM))
    end = 'MAIN_end'
    MODE = 'fast'
    setup(k, end)
    ts(k, 'start')
    front(k)
    body(k, '_f')
    k.label('MAIN_fin', pad=False)
    rowmajor_addr(k)
    k(f"""
    buffer_store_dwordx4 {v4(P5_XO)}, v{vT0}, s[12:15], s{sT0} offen
    buffer_store_dwordx4 {v4(P5_XO + 4)}, v{vT0}, s[12:15], s{sT0} offen offset:32
    """)
    ts(k, 'P5.pub')
    k.label('MAIN_tail', pad=False)
    if TS_ON:
        k(f"""
        v_writelane_b32 v{vTS}, s{sFAST}, 63
        s_lshl_b32 s{sT0}, s2, 2
        s_add_u32 s{sT0}, s{sT0}, s{sW}
        s_lshl_b32 s{sT0}, s{sT0}, 9
        s_add_u32 s{sT0}, s{sT0}, {TS}
        v_lshlrev_b32 v{vT0}, 2, v{vLANE}
        buffer_store_dword a255, v{vT0}, s[8:11], s{sT0} offen
        buffer_store_dword v{vTS}, v{vT0}, s[8:11], s{sT0} offen offset:256
        """)
        if '-gts' in sys.argv:
            want = [(0, 'F.barA'), (0, 'ATT.start'), (0, 'ATT.pub'), (0, 'P4.ready'), (0, 'P4.mfma'), (0, 'P5.pub'),
                    (1, 'ATT.start'), (1, 'ATT.pub'), (1, 'P4.ready'), (1, 'P4.mfma'), (1, 'P5.mfma'), (1, 'P5.pub')]
            slots_ = [1, 2, 3, 5, 6, 7, 9, 10, 11, 13, 14, 15]
            k(f's_lshl_b32 s{sT0}, s{sW}, 8')
            k(f's_or_b32 s{sT0}, s{sT0}, s2')
            k(f's_cmp_lg_u32 s{sT0}, 40')
            k('s_cbranch_scc1 MAIN_end')
            k(f'v_accvgpr_read_b32 v{vT1}, a255')
            k('s_nop 1')
            k(f'v_readlane_b32 s{sT1}, v{vT1}, 0')
            k('s_mov_b64 exec, 1')
            for (l, n), sl in zip(want, slots_):
                k(f'v_readlane_b32 s{sT2}, v{vT1 if l == 0 else vTS}, {_ts_names.index(n)}')
                k('s_nop 3')
                k(f's_sub_u32 s{sT2}, s{sT2}, s{sT1}')
                k(f'v_mov_b32 v{vT2}, s{sT2}')
                k(f'buffer_store_dword v{vT2}, v{vZERO}, s[16:19], 0 offen offset:{4 * sl}')
    k.drained()
    k.label(end, pad=False)
    k('s_endpgm')
    k.flush_cold()
    MODE = 'slow'
    k.drained()
    body(k, '_s')
    k.flush_cold()


HEADER = """; Persistent single-launch implementation (generated by a Python script written for this task).
"""


def main():
    global TS_ON, FORCE_SLOW, FORCE_FALLBACK
    TS_ON = '-ts' in sys.argv
    FORCE_SLOW = '-slow' in sys.argv
    FORCE_FALLBACK = '-fb' in sys.argv
    global WARM
    WARM = '-nowarm' not in sys.argv
    global XDEPTH, P4FREE
    for a in sys.argv:
        if a.startswith('-x'):
            XDEPTH = int(a[2:])
        if a.startswith('-f') and a[2:].isdigit():
            P4FREE = int(a[2:])
    global CODEPF
    if '-nocode' in sys.argv:
        CODEPF = 0
    global PROPOS
    PROPOS = int([a[2:] for a in sys.argv if a.startswith('-p')][0]) if any(a.startswith('-p') for a in sys.argv) else 1
    global GNQ1
    GNQ1 = int([a[2:] for a in sys.argv if a.startswith('-q')][0]) if any(a.startswith('-q') for a in sys.argv) else 6
    global DUTYPOS
    DUTYPOS = int([a[2:] for a in sys.argv if a.startswith('-d')][0]) if any(a.startswith('-d') for a in sys.argv) else 2
    sched_a([a[2:] for a in sys.argv if a.startswith('-s') and len(a) == 3][0] if any(a.startswith('-s') and len(a) == 3 for a in sys.argv) else 'a')
    k = K()
    final = '-final' in sys.argv
    kn = 'interleave_layers__sliding_block__glu_gated_swiglu__prompt_kernel' if final else 'main_kernel'
    gen_main(k, kn)
    if final:
        head = HEADER + f'; @launch grid=(256,1,1) block=(256,1,1) lds={LDS_BYTES}\n'
    else:
        head = f'; @launch kernel=main_kernel grid=(256,1,1) block=(256,1,1) lds={LDS_BYTES}\n'
    head += '.amdgcn_target "amdgcn-amd-amdhsa--gfx950"\n.text\n'
    open(sys.argv[1], 'w').write(head + k.text() + kd(kn, 512, 102, 256))
    print('nops inserted', k.nops_inserted, 'lines', len(k.lines))
    if TS_ON:
        open(sys.argv[1] + '.names', 'w').write('\n'.join(_ts_names))


if __name__ == '__main__':
    main()
```

```python
from common5 import *

sW, sRB, sIDX, sTT, sL = 3, 4, 5, 6, 7
sP2 = 24
sBW13, sLW, sBWQ, sLWQ, sBW2, sBWO = 25, 26, 27, 28, 29, 31
sTW13, sTWQ, sTW2, sTWO = 33, 34, 35, 36
sHFL, sHPL, sHB = 33, 34, 35
sKV, sOF, sX1, sST1, sHF, sX2, sST2 = 37, 38, 39, 40, 41, 42, 43
sL1, sFAST, sACT, sSPIN = 44, 45, 46, 47
sT0, sT1, sT2, sT3, sT4, sT5 = 48, 49, 50, 51, 52, 53
sFT, sTT3, sFTo, sTTo = 54, 55, 56, 57
sTS = 58
sE, sHOFF, sCNT, sDM = 60, 61, 62, 63
sMASK = 64
sHI, sN28 = 96, 98
sOADR, sXADR = 100, 101
sSADR, sDS = 1, 0
Ctx.sL = sL
vDUM = 0
vL16, vLANE, vN, vHH, vSTO, vSTI, vL16b, vONES = 1, 2, 3, 4, 5, 6, 7, 8
vF14, vFH, vZERO, vKVA, vTS, vL2S, vL4S, vSCR = 9, 10, 11, 12, 13, 14, 15, 16
vKE, vFL, vTA, vM, vR, vT0, vT1, vT2, vT3, vNEG, vMX, vAD = 17, 18, 19, 20, 21, 22, 23, 24, 25, 26, 27, 28
MB = 28

TS_ON = False
FORCE_SLOW = False
FORCE_FALLBACK = False
_ts_names = []
XDEPTH = 10
WARM = True
P4FREE = 6
HPLAIN = False
CODEPF = 47 * 1024
PROPOS = 1
GNQ1 = 6
LAYER = None
DUTYPOS = 0
F_PK = FLAGS + 65536
MODE = 'fast'


def ts(k, name):
    if not TS_ON:
        return
    if name in _ts_names:
        i = _ts_names.index(name)
    else:
        i = len(_ts_names)
        _ts_names.append(name)
    assert i < 62
    k(f's_memrealtime s[{sTS}:{sTS + 1}]')
    k(f'v_writelane_b32 v{vTS}, s{sTS}, {i}')


def wait_flags(k, voff, soff, sexp, vFL=vFL):
    Lp, Ld = k.newlabel('poll'), k.newlabel('polled')
    k(f's_mov_b32 s{sSPIN}, 0')
    k.label(Lp, pad=False)
    k(f"""
    buffer_load_dword v{vFL}, v{voff}, s[8:11], s{soff} offen sc1
    s_add_u32 s{sSPIN}, s{sSPIN}, 1
    s_cmp_gt_u32 s{sSPIN}, {SPIN_MAX}
    s_cbranch_scc1 {Ld}
    s_waitcnt vmcnt(0)
    v_cmp_gt_u32 vcc, {sexp}, v{vFL}
    s_nop 1
    s_cbranch_vccnz {Lp}
    """)
    k.label(Ld, pad=False)
    k('s_waitcnt vmcnt(0)')


def publish(k, stores):
    for s_ in stores:
        k(s_ + ('' if MODE == 'fast' else ' sc1'))


def set_flag(k, soff, val, always_sc1=False, h=None):
    k(f'v_mov_b32 v{vFL}, {val}')
    if h is None:
        k('s_waitcnt vmcnt(0)')
    else:
        k.wait_vm(h)
    pol = ' sc1' if (always_sc1 or MODE != 'fast') else ''
    k('s_mov_b64 exec, 1')
    k(f'buffer_store_dword v{vFL}, v{vZERO}, s[8:11], s{soff} offen{pol}')
    k('s_mov_b64 exec, -1')


def dma_chunks(n, ssrc, src_off, slds, lds_off):
    out = []
    for i in range(n):
        c = []
        if i % 4 == 0:
            c += [f's_add_u32 m0, s{slds}, {lds_off + i * 1024}', f's_add_u32 s{sP2}, s{ssrc}, {src_off + i * 1024}']
        c.append(f'buffer_load_dwordx4 v{vL16}, s[8:11], s{sP2} offen offset:{(i % 4) * 1024} lds')
        out.append(c)
    return out


def load_chunks(dsts, ssrc, tmp, src_off=0, pol=''):
    out = []
    for i, d in enumerate(dsts):
        c = []
        if i % 4 == 0:
            c.append(f's_add_u32 s{tmp}, s{ssrc}, {src_off + i * 1024}')
        c.append(f'buffer_load_dwordx4 {d}, v{vL16}, s[8:11], s{tmp} offen offset:{(i % 4) * 1024}{pol}')
        out.append(c)
    return out


def touch(n, sbase, off=0):
    return [f'v_min_u32 v{vTA}, {n - 1}, v{vLANE}',
            f'v_lshlrev_b32 v{vTA}, 7, v{vTA}',
            f's_add_u32 s{sDS}, s{sbase}, {off}',
            f'buffer_load_dword v{vDUM}, v{vTA}, s[8:11], s{sDS} offen sc1']


def flat(chs):
    return [x for c in chs for x in c]


W13_SLOT = [0, 1, 2, 3, 4, 0, 1]


def pf_wqkv():
    return dma_chunks(21, sBWQ, 0, sLWQ, 0)


def pf_w13(i):
    return dma_chunks(7, sBW13, i * SLOT, sLW, W13_SLOT[i] * SLOT)


def pf_w2():
    ch = (load_chunks([a4(4 * i) for i in range(28)], sBW2, sDM) +
          load_chunks([a4(112 + 4 * i) for i in range(28)], sBW2 + 1, sDM))
    return [flat(ch[i:i + 4]) for i in range(0, 56, 4)]


def t_w13(i):
    return touch(28, sTW13, i * SLOT)


def t_wqkv():
    return touch(64, sTWQ, 0) + touch(20, sTWQ, 8192)


def t_w2():
    return touch(64, sTW2, 0) + touch(34, sTW2, 8192)


def t_wo():
    return touch(28, sTWO, 0)


def t_O():
    return touch(16, sOADR)


def t_X():
    return touch(16, sXADR) + touch(2, sSADR)


def t_H():
    return touch(56, sHOFF)


def idle_q():
    return lines(f"""
    s_and_b32 s{sT5}, s{sRB}, 1
    s_lshl_b32 s{sT5}, s{sT5}, 1
    s_add_u32 s{sT5}, s{sT5}, s{sIDX}
    s_sub_u32 s{sT5}, s{sT5}, 14
    s_lshl_b32 s{sT5}, s{sT5}, 2
    s_add_u32 s{sT5}, s{sT5}, s{sW}
    v_lshlrev_b32 v{vTA}, 7, v{vLANE}
    """)


def idle_touch(base, per_wave, n, first=0):
    out = [f's_mul_i32 s{sT4}, s{sT5}, {per_wave}', f's_add_u32 s{sT4}, s{sT4}, {base + first * 8192}']
    for i in range(n):
        out += [f'buffer_load_dword v{vDUM}, v{vTA}, s[8:11], s{sT4} offen',
                f's_add_u32 s{sT4}, s{sT4}, 8192']
    return out


def L0(ls):
    if LAYER is not None:
        return ('seq', list(ls) if LAYER == 0 else [])
    return ('L0', list(ls))


def L1(ls):
    if LAYER is not None:
        return ('seq', list(ls) if LAYER == 1 else [])

    def fn(k):
        k(f's_cmp_eq_u32 s{sL}, 0')
        k.skip_begin('s_cbranch_scc1')
        for x in ls:
            k(x)
        k.skip_end()
    return ('call', fn)


def res_addr(k, dst, base):
    k(f"""
    s_mul_i32 s{dst}, s{sTT3}, 28
    s_lshl_b32 s{sT1}, s{sFT}, 1
    s_add_u32 s{dst}, s{dst}, s{sT1}
    s_lshl_b32 s{dst}, s{dst}, 10
    s_add_u32 s{dst}, s{dst}, {base}
    """)


def st_addr(k, dst, base):
    k(f"""
    s_mul_i32 s{dst}, s{sTT3}, 14
    s_add_u32 s{dst}, s{dst}, s{sFT}
    s_lshl_b32 s{dst}, s{dst}, 8
    s_add_u32 s{dst}, s{dst}, {base}
    """)


def setup(k, end_label):
    k('s_cmp_ge_u32 s2, 256')
    k(f's_cbranch_scc1 {end_label}')
    k(f"""
    s_load_dwordx16 s[72:87], s[0:1], 0
    s_load_dwordx2 s[16:17], s[0:1], 64
    s_load_dwordx2 s[8:9], s[0:1], 72
    v_lshrrev_b32 v{vT0}, 6, v0
    v_and_b32 v{vLANE}, 63, v0
    v_readfirstlane_b32 s{sW}, v{vT0}
    v_lshlrev_b32 v{vL16}, 4, v{vLANE}
    v_and_b32 v{vN}, 31, v{vLANE}
    v_lshrrev_b32 v{vHH}, 5, v{vLANE}
    s_and_b32 s{sT0}, s2, 7
    s_lshr_b32 s{sT1}, s2, 3
    s_lshr_b32 s{sT2}, s{sT1}, 4
    s_lshl_b32 s{sRB}, s{sT0}, 1
    s_add_u32 s{sRB}, s{sRB}, s{sT2}
    s_and_b32 s{sIDX}, s{sT1}, 15
    s_lshl_b32 s{sTT}, s{sRB}, 2
    s_add_u32 s{sTT}, s{sTT}, s{sW}
    s_mov_b32 s10, {WS_BYTES}
    s_mov_b32 s11, 0x00020000
    s_mov_b32 s14, {S * D * 2}
    s_mov_b32 s15, 0x00020000
    s_mov_b32 s18, 256
    s_mov_b32 s19, 0x00020000
    s_mov_b32 s22, {S * D * 2}
    s_mov_b32 s23, 0x00020000
    s_mov_b32 s{sL}, 0
    s_mov_b32 s{sHI}, 0
    s_mov_b32 s{sHI + 1}, -1
    s_lshl_b32 s{sT1}, s{sW}, 12
    s_add_u32 s{sT1}, s{sT1}, {KVB}
    v_add_u32 v{vKVA}, s{sT1}, v{vL16}
    v_mov_b32 v{vZERO}, 0
    v_mov_b32 v{vTS}, 0
    v_mov_b32 v{vONES}, {ONES_BF16}
    v_cmp_eq_u32 s[{sN28}:{sN28 + 1}], 28, v{vN}
    s_cmp_ge_u32 s{sIDX}, 7
    s_cselect_b32 s{sT0}, 1, 0
    s_mul_i32 s{sT1}, s{sT0}, 7
    s_sub_u32 s{sT1}, s{sIDX}, s{sT1}
    s_cmp_lt_u32 s{sIDX}, 14
    s_cselect_b32 s{sACT}, 1, 0
    s_cselect_b32 s{sT1}, s{sT1}, 0
    s_lshl_b32 s{sFT}, s{sT1}, 1
    s_and_b32 s{sT2}, s{sW}, 1
    s_add_u32 s{sFT}, s{sFT}, s{sT2}
    s_xor_b32 s{sFTo}, s{sFT}, 1
    s_lshl_b32 s{sTT3}, s{sRB}, 2
    s_lshl_b32 s{sT0}, s{sT0}, 1
    s_add_u32 s{sTT3}, s{sTT3}, s{sT0}
    s_lshr_b32 s{sT2}, s{sW}, 1
    s_add_u32 s{sTT3}, s{sTT3}, s{sT2}
    s_xor_b32 s{sTTo}, s{sTT3}, 1
    s_mul_i32 s{sLW}, s{sW}, 7168
    s_waitcnt lgkmcnt(0)
    s_mov_b32 s20, s72
    s_mov_b32 s21, s73
    s_mov_b32 s12, s86
    s_mov_b32 s13, s87
    """)


def setup2_salu():
    return lines(f"""
    s_mov_b32 s{sFAST}, 0
    s_mul_i32 s{sBW13}, s{sIDX}, {7 * SLOT}
    s_add_u32 s{sBW13}, s{sBW13}, {W13_P}
    s_add_u32 s{sBW13}, s{sBW13}, s{sLW}
    s_mul_i32 s{sLWQ}, s{sW}, {21 * 1024}
    s_mul_i32 s{sBWQ}, s{sIDX}, {84 * 1024}
    s_add_u32 s{sBWQ}, s{sBWQ}, {WQKV_P}
    s_add_u32 s{sBWQ}, s{sBWQ}, s{sLWQ}
    s_mul_i32 s{sP2}, s{sW}, {28 * 1024}
    s_add_u32 s{sP2}, s{sP2}, {W2_P}
    s_mul_i32 s{sBW2}, s{sFT}, {112 * 1024}
    s_add_u32 s{sBW2}, s{sBW2}, s{sP2}
    s_mul_i32 s{sBW2 + 1}, s{sFTo}, {112 * 1024}
    s_add_u32 s{sBW2 + 1}, s{sBW2 + 1}, s{sP2}
    s_lshl_b32 s{sP2}, s{sW}, 13
    s_add_u32 s{sP2}, s{sP2}, {WO_P}
    s_lshl_b32 s{sBWO}, s{sFT}, 15
    s_add_u32 s{sBWO}, s{sBWO}, s{sP2}
    s_lshl_b32 s{sBWO + 1}, s{sFTo}, 15
    s_add_u32 s{sBWO + 1}, s{sBWO + 1}, s{sP2}
    """)


def setup2_valu():
    out = lines(f"""
    v_lshlrev_b32 v{vSTO}, 3, v{vN}
    v_mul_u32_u24 v{vSTI}, 1792, v{vHH}
    v_add_u32 v{vSTI}, v{vSTI}, v{vSTO}
    v_lshl_or_b32 v{vSTO}, v{vHH}, 2, v{vSTO}
    v_add_u32 v{vL16b}, {2 * SLOT}, v{vL16}
    v_min_u32 v{vF14}, 13, v{vLANE}
    v_lshlrev_b32 v{vF14}, 2, v{vF14}
    v_add_u32 v{vL2S}, {2 * SLOT}, v{vL16}
    v_add_u32 v{vL4S}, {4 * SLOT}, v{vL16}
    v_add_u32 v{vSCR}, {SCR}, v{vL16}
    v_mov_b32 v{vNEG}, {f32bits(-1e30)}
    v_and_b32 v{vFH}, 3, v{vLANE}
    v_lshlrev_b32 v{vFH}, 2, v{vFH}
    v_bfe_u32 v{vT0}, v{vLANE}, 2, 1
    v_lshl_or_b32 v{vFH}, v{vT0}, 7, v{vFH}
    s_lshl_b32 s{sT1}, s{sW}, 4
    v_add_u32 v{vFH}, s{sT1}, v{vFH}
    v_lshlrev_b32 v{vT0}, 2, v{vHH}
    v_sub_u32 v{vT0}, v{vN}, v{vT0}
    """)
    for r in range(16):
        c = 8 * (r >> 2) + (r & 3)
        out.append(f'v_cmp_ge_i32 s[{sMASK + 2 * r}:{sMASK + 2 * r + 1}], v{vT0}, {c}')
    return out


def signal(k):
    k(f"""
    s_getreg_b32 s{sE}, hwreg(HW_REG_XCC_ID, 0, 4)
    s_mul_i32 s{sCNT}, s{sE}, s{sE}
    s_lshl_b32 s{sCNT}, s{sCNT}, 16
    s_lshl_b32 s{sE}, s{sE}, 8
    s_or_b32 s{sE}, s{sE}, s{sCNT}
    s_or_b32 s{sE}, s{sE}, 1
    v_mov_b32 v{vFL}, s{sE}
    s_lshl_b32 s{sCNT}, s{sRB}, 4
    s_cmp_eq_u32 s{sW}, 0
    s_cselect_b32 s{sCNT}, s{sCNT}, 4096
    s_mov_b64 exec, 1
    buffer_atomic_add v{vFL}, v{vZERO}, s[16:19], s{sCNT} offen sc1
    s_mov_b64 exec, -1
    """)


def global_check(k, pre=False):
    Lp, Ld, Lg = k.newlabel('gpoll'), k.newlabel('gdone'), k.newlabel('ggood')
    k(f"""
    v_and_b32 v{vT1}, 15, v{vLANE}
    v_lshlrev_b32 v{vT1}, 4, v{vT1}
    s_mov_b32 s{sSPIN}, 0
    """)
    if pre:
        k(f"""
        v_and_b32 v{vT0}, 0xff, v{vFL}
        v_cmp_gt_u32 vcc, 16, v{vT0}
        s_nop 1
        s_cbranch_vccz {Lg}
        """)
    k.label(Lp, pad=False)
    k(f"""
    buffer_load_dword v{vFL}, v{vT1}, s[16:19], 0 offen sc1
    s_add_u32 s{sSPIN}, s{sSPIN}, 1
    s_cmp_gt_u32 s{sSPIN}, {SPIN_MAX}
    s_cbranch_scc1 {Ld}
    s_waitcnt vmcnt(0)
    v_and_b32 v{vT0}, 0xff, v{vFL}
    v_cmp_gt_u32 vcc, 16, v{vT0}
    s_nop 1
    s_cbranch_vccz {Lg}
    s_sleep 24
    s_branch {Lp}
    """)
    k.label(Lg, pad=False)
    k(f"""
    s_getreg_b32 s{sT0}, hwreg(HW_REG_XCC_ID, 0, 4)
    s_mul_i32 s{sT1}, s{sT0}, s{sT0}
    s_lshl_b32 s{sT1}, s{sT1}, 20
    s_lshl_b32 s{sT0}, s{sT0}, 12
    s_or_b32 s{sT0}, s{sT0}, s{sT1}
    s_or_b32 s{sT0}, s{sT0}, 16
    v_readlane_b32 s{sT1}, v{vFL}, s{sRB}
    s_nop 3
    s_cmp_eq_u32 s{sT0}, s{sT1}
    s_cselect_b32 s{sFAST}, {0 if FORCE_SLOW else 1}, 0
    """)
    k.label(Ld, pad=False)
    k('s_waitcnt vmcnt(0)')


def set_layer(k, l):
    fast = MODE == 'fast'
    k(f"""
    s_mov_b32 s{sL1}, {l + 1}
    s_mov_b32 s{sX1}, {XF[1] if fast else XF[2 * l + 1]}
    s_mov_b32 s{sX2}, {XF[1] if fast else XF[2]}
    s_mov_b32 s{sST1}, {ST[1] if fast else ST[2 * l + 1]}
    s_mov_b32 s{sST2}, {ST[2]}
    s_mov_b32 s{sKV}, {KV[l]}
    s_mov_b32 s{sOF}, {OF[0] if fast else OF[l]}
    s_mov_b32 s{sHF}, {HF[0] if fast else HF[l]}
    s_lshl_b32 s{sOADR}, s{sIDX}, 6
    s_add_u32 s{sOADR}, s{sOADR}, s{sTT}
    s_lshl_b32 s{sOADR}, s{sOADR}, 11
    s_add_u32 s{sOADR}, s{sOADR}, s{sOF}
    s_mul_i32 s{sHOFF}, s{sTT}, 112
    s_mul_i32 s{sT5}, s{sIDX}, 7
    s_add_u32 s{sHOFF}, s{sHOFF}, s{sT5}
    s_lshl_b32 s{sHOFF}, s{sHOFF}, 10
    s_add_u32 s{sHOFF}, s{sHOFF}, s{sHF}
    """)
    res_addr(k, sXADR, f's{sX1}')
    st_addr(k, sSADR, f's{sST1}')


def stats_loads(sbase, stt, dst):
    out = [f's_mul_i32 s{sT0}, s{stt}, {14 * 256}', f's_add_u32 s{sT0}, s{sT0}, s{sbase}']
    out += [f'buffer_load_dwordx2 {v2(dst + 2 * i)}, v{vSTI}, s[8:11], s{sT0} offen offset:{256 * i} sc1' for i in range(7)]
    return out


def stats_math(src):
    out = []
    for i in range(1, 7):
        out.append(f'v_add_f32 v{src}, v{src}, v{src + 2 * i}')
        out.append(f'v_add_f32 v{src + 1}, v{src + 1}, v{src + 2 * i + 1}')
    return out + ln_math(src, src + 1, vT0, vT1, vM, vR)


def mb_fill():
    return [f'v_mov_b32 v{MB + i}, v{vM}' for i in range(4)]


def halo(k, poll):
    k(f"""
    s_lshl_b32 s{sT2}, s{sRB}, 2
    s_lshl_b32 s{sT3}, s{sW}, 1
    s_add_u32 s{sT2}, s{sT2}, s{sT3}
    s_sub_i32 s{sT2}, s{sT2}, 8
    s_lshl_b32 s{sT5}, s{sW}, 13
    s_add_u32 s{sT5}, s{sT5}, {KVB}
    s_cmp_lt_i32 s{sT2}, 0
    """)
    Lfill, Ljoin = k.newlabel('A_fill'), k.newlabel('A_join')
    k(f's_cbranch_scc1 {Lfill}')
    st = (k.vm_seq, k.vm_done, k.lg_seq, k.lg_done, dict(k.pend))
    k(f"""
    s_lshl_b32 s{sT0}, s{sIDX}, 6
    s_add_u32 s{sT0}, s{sT0}, s{sT2}
    s_lshl_b32 s{sT4}, s{sT0}, 2
    s_add_u32 s{sT4}, s{sT4}, {F_KV}
    s_lshl_b32 s{sE}, s{sT0}, 12
    s_add_u32 s{sE}, s{sE}, s{sKV}
    """)
    if poll:
        k(f'v_and_b32 v{vT0}, 1, v{vLANE}')
        k(f'v_lshlrev_b32 v{vT0}, 2, v{vT0}')
        wait_flags(k, vT0, sT4, f's{sL1}')
    emit(k, flat(dma_chunks(8, sE, 0, sT5, 0)))
    k.cold_begin()
    k.label(Lfill, pad=False)
    z = 248
    k(f"""
    v_mov_b32 v{z}, 0
    v_mov_b32 v{z + 1}, 0
    v_mov_b32 v{z + 2}, 0
    v_mov_b32 v{z + 3}, 0
    v_mov_b32 v{z + 4}, 0
    v_mov_b32 v{z + 5}, 0
    v_mov_b32 v{z + 7}, 0
    v_mov_b32 v{vT1}, 0xf14a
    v_cndmask_b32 v{z + 6}, 0, v{vT1}, s[{sHI}:{sHI + 1}]
    v_add_u32 v{vT0}, s{sT5}, v{vL16}
    """)
    for t in range(2):
        k(f'ds_write_b128 v{vT0}, {v4(z)} offset:{4096 * t}')
        k(f'ds_write_b128 v{vT0}, {v4(z + 4)} offset:{4096 * t + 1024}')
        k(f'ds_write_b128 v{vT0}, {v4(z)} offset:{4096 * t + 2048}')
        k(f'ds_write_b128 v{vT0}, {v4(z)} offset:{4096 * t + 3072}')
    k('s_waitcnt lgkmcnt(0)')
    k(f's_branch {Ljoin}')
    k.cold_end()
    k.label(Ljoin, pad=False)
    k.vm_seq, k.vm_done, k.lg_seq, k.lg_done, k.pend = st[0], st[1], st[2], st[3], dict(st[4])


QF, KF, VF = 232, 216, 224
WO_R = 128
SA, PA, OA, NM, KB, VB, OS = 32, 48, 64, 80, 96, 104, 112


def att_tile_body(k, last, mem):
    k(f'{MF} {v16(SA)}, {v4(KB)}, {v4(QF)}, {v16(NM)}')
    k(f'{MF} {v16(SA)}, {v4(KB + 4)}, {v4(QF + 4)}, {v16(SA)}')
    k(f'{MF} {v16(OA)}, {v4(VB)}, {v4(PA)}, {v16(OA)}')
    k(f'{MF} {v16(OA)}, {v4(VB + 4)}, {v4(PA + 4)}, {v16(OA)}')
    k(f'ds_read_b128 {v4(VB)}, v{vAD} offset:2048')
    k(f'ds_read_b128 {v4(VB + 4)}, v{vAD} offset:3072')
    k(f'v_subrev_u32 v{vAD}, 4096, v{vAD}')
    if not last:
        k(f'ds_read_b128 {v4(KB)}, v{vAD}')
        k(f'ds_read_b128 {v4(KB + 4)}, v{vAD} offset:1024')
    emit(k, mem)
    if last:
        for r in range(16):
            k(f'v_cndmask_b32 v{SA + r}, v{SA + r}, v{vNEG}, s[{sMASK + 2 * r}:{sMASK + 2 * r + 1}]')
    for q in range(8):
        k(f'v_exp_f32 v{SA + 2 * q}, v{SA + 2 * q}')
        k(f'v_exp_f32 v{SA + 2 * q + 1}, v{SA + 2 * q + 1}')
        if q:
            k(f'v_cvt_pk_bf16_f32 v{PA + q - 1}, v{SA + 2 * q - 2}, v{SA + 2 * q - 1}')
    k(f'v_cvt_pk_bf16_f32 v{PA + 7}, v{SA + 14}, v{SA + 15}')


def loop_dma():
    out = []
    for i in range(3):
        out += [f's_add_u32 m0, s{sDM}, {W13_SLOT[i] * SLOT}',
                f's_add_u32 s{sP2}, s{sDS}, {i * SLOT}',
                f'buffer_load_dwordx4 v{vL16}, s[8:11], s{sP2} offen lds']
    out += [f's_add_u32 s{sDM}, s{sDM}, 1024', f's_add_u32 s{sDS}, s{sDS}, 1024']
    return out


def loop_dma0():
    out = [f's_min_u32 m0, s{sDM}, {80 * 1024}', f's_add_u32 s{sP2}, s{sDS}, m0']
    out += [f'buffer_load_dwordx4 v{vL16}, s[8:11], s{sP2} offen offset:{i * 1024} lds' for i in range(4)]
    out.append(f's_add_u32 s{sDM}, s{sDM}, 4096')
    return out


def pk_check(k):
    if LAYER == 1:
        return
    Lw = k.newlabel('wready')
    if LAYER is None:
        k(f's_cmp_lg_u32 s{sL}, 0')
        k(f's_cbranch_scc1 {Lw}')
    st = (k.vm_seq, k.vm_done, dict(k.pend))
    k(f"""
    s_mul_i32 s{sT0}, s{sIDX}, 7
    s_add_u32 s{sT1}, s{sT0}, 6
    s_and_b32 s{sT0}, s{sT0}, -4
    s_or_b32 s{sT1}, s{sT1}, 3
    v_add_u32 v{vT0}, s{sT0}, v{vLANE}
    v_min_u32 v{vT0}, s{sT1}, v{vT0}
    s_lshr_b32 s{sT2}, s{sFT}, 1
    s_lshl_b32 s{sT0}, s{sT2}, 3
    s_add_u32 s{sT0}, s{sT0}, 112
    v_and_b32 v{vT1}, 7, v{vLANE}
    v_add_u32 v{vT1}, s{sT0}, v{vT1}
    v_cmp_le_u32 vcc, 16, v{vLANE}
    s_lshl_b32 s{sT0}, s{sT2}, 1
    s_add_u32 s{sT0}, s{sT0}, 168
    v_cndmask_b32 v{vT0}, v{vT0}, v{vT1}, vcc
    v_and_b32 v{vT1}, 1, v{vLANE}
    v_add_u32 v{vT1}, s{sT0}, v{vT1}
    v_cmp_le_u32 vcc, 24, v{vLANE}
    v_bfe_u32 v{vT2}, v{vLANE}, 1, 3
    v_and_b32 v{vT3}, 1, v{vLANE}
    v_cndmask_b32 v{vT0}, v{vT0}, v{vT1}, vcc
    v_lshl_add_u32 v{vT2}, v{vT3}, 7, v{vT2}
    s_lshl_b32 s{sT0}, s{sIDX}, 3
    v_add_u32 v{vT2}, s{sT0}, v{vT2}
    v_cndmask_b32 v{vT0}, v{vT0}, v{vT2}, s[{sHI}:{sHI + 1}]
    v_lshlrev_b32 v{vT0}, 7, v{vT0}
    s_mov_b32 s{sT0}, {F_PK}
    """)
    wait_flags(k, vT0, sT0, '1')
    k.vm_seq, k.vm_done, k.pend = st
    k.label(Lw, pad=False)


def attention(k):
    ts(k, 'ATT.start')
    k(f'{MF} {v16(SA)}, {v4(KF)}, {v4(QF)}, 0')
    k(f'{MF} {v16(SA)}, {v4(KF + 4)}, {v4(QF + 4)}, {v16(SA)}')
    k(f"""
    v_add_u32 v{vAD}, {7 * 4096}, v{vKVA}
    ds_read_b128 {v4(KB)}, v{vAD}
    ds_read_b128 {v4(KB + 4)}, v{vAD} offset:1024
    s_mul_i32 s{sT0}, s{sW}, s{sW}
    s_mul_i32 s{sDM}, s{sW}, 30
    s_lshl_b32 s{sT0}, s{sT0}, 1
    s_sub_u32 s{sDM}, s{sDM}, s{sT0}
    s_lshl_b32 s{sDM}, s{sDM}, 10
    s_sub_u32 s{sDS}, s{sBW13}, s{sLW}
    """)
    wo = load_chunks([v4(WO_R + 4 * i) for i in range(8)], sBWO, sT2) + load_chunks([v4(WO_R + 32 + 4 * i) for i in range(8)], sBWO + 1, sT2)
    for q in range(8):
        k(f'v_mov_b32 v{VB + q}, v{VF + q}')
    for r in range(16):
        k(f'v_mov_b32 v{OA + r}, 0')
    for r in range(16):
        k(f'v_cndmask_b32 v{SA + r}, v{vNEG}, v{SA + r}, s[{sMASK + 2 * r}:{sMASK + 2 * r + 1}]')
    k(f'v_max_f32 v{vMX}, v{SA}, v{SA + 1}')
    for r in range(2, 16, 2):
        k(f'v_max3_f32 v{vMX}, v{SA + r}, v{SA + r + 1}, v{vMX}')
    k(f"""
    v_mov_b32 v{vT1}, v{vMX}
    v_permlane32_swap_b32 v{vMX}, v{vT1}
    v_max_f32 v{vMX}, v{vMX}, v{vT1}
    """)
    k(f'v_sub_f32 v{NM}, 0, v{vMX}')
    k(f'v_sub_f32 v{NM + 1}, 0, v{vMX}')
    for r in range(0, 16, 2):
        k(f'v_pk_add_f32 {v2(SA + r)}, {v2(SA + r)}, {v2(NM)}')
    for r in range(2, 16, 2):
        k(f'v_pk_mov_b32 {v2(NM + r)}, {v2(NM)}, {v2(NM)} op_sel:[0,1]')
    for r in range(16):
        k(f'v_exp_f32 v{SA + r}, v{SA + r}')
        if r % 4 == 3:
            emit_item(k, L1(flat(wo[r - 3:r + 1])))
    for r in parse_reg(f'v[{WO_R}:{WO_R + 63}]'):
        k.pend.pop(r, None)
    for q in range(8):
        k(f'v_cvt_pk_bf16_f32 v{PA + q}, v{SA + 2 * q}, v{SA + 2 * q + 1}')
    ts(k, 'ATT.diag')
    halo(k, True)
    LA, LAe, LB = k.newlabel('att1'), k.newlabel('att1e'), k.newlabel('att2')
    k(f's_mov_b32 s{sCNT}, s{sW}')
    k('s_waitcnt lgkmcnt(0)')
    k(f's_cmp_eq_u32 s{sCNT}, 0')
    k(f's_cbranch_scc1 {LAe}')
    k.label(LA, pad=False)
    k('s_nop 1')
    st = k.vm_seq
    att_tile_body(k, False, [])
    k.vm_seq = st
    k(f"""
    s_sub_u32 s{sCNT}, s{sCNT}, 1
    s_cmp_lg_u32 s{sCNT}, 0
    s_waitcnt lgkmcnt(0)
    s_cbranch_scc1 {LA}
    """)
    k.label(LAe, pad=False)
    ts(k, 'ATT.st1')
    pk_check(k)
    k('s_waitcnt vmcnt(0)')
    ts(k, 'ATT.halo')
    k('s_barrier')
    k(f"""
    ds_read_b128 {v4(KB)}, v{vAD}
    ds_read_b128 {v4(KB + 4)}, v{vAD} offset:1024
    s_sub_u32 s{sCNT}, 7, s{sW}
    """)
    emit_item(k, L0(([x.replace(f's{sDS},', f's{sT3},').replace(f's{sDS} ', f's{sT3} ') for x in SCHED['PRO']()] if PROPOS == 2 else []) + flat(wo) + lines(f"""
    v_lshlrev_b32 v{vT0}, 2, v{vN}
    v_lshl_add_u32 v{vT0}, v{vHH}, 9, v{vT0}
    s_mul_i32 s{sT0}, s{sIDX}, 7
    s_add_u32 s{sT0}, s{sT0}, s{sW}
    s_lshl_b32 s{sT0}, s{sT0}, 7
    s_add_u32 s{sT0}, s{sT0}, {CSP_13}
    """) + flat([[f's_add_u32 s{sT1}, s{sT0}, {q * 112 * 128}',
                 f'buffer_load_dword v{CSL + q}, v{vT0}, s[8:11], s{sT1} offen'] for q in range(4)])))
    k('s_waitcnt lgkmcnt(0)')
    k.label(LB, pad=False)
    k('s_nop 1')
    st = k.vm_seq
    att_tile_body(k, False, loop_dma0())
    k.vm_seq = st
    k(f"""
    s_sub_u32 s{sCNT}, s{sCNT}, 1
    s_cmp_lg_u32 s{sCNT}, 0
    s_waitcnt lgkmcnt(0)
    s_cbranch_scc1 {LB}
    """)
    k('s_nop 1')
    att_tile_body(k, True, [])
    k(f'{MF} {v16(OA)}, {v4(VB)}, {v4(PA)}, {v16(OA)}')
    k(f'{MF} {v16(OA)}, {v4(VB + 4)}, {v4(PA + 4)}, {v16(OA)}')
    k(f"""
    s_lshl_b32 s{sT4}, s{sTT}, 7
    s_lshl_b32 s{sT1}, s{sIDX}, 2
    s_add_u32 s{sT4}, s{sT4}, s{sT1}
    s_add_u32 s{sT4}, s{sT4}, {F_O}
    s_mov_b32 s{sT0}, {f32bits(2.0 ** 64)}
    """)
    Lok = k.newlabel('att_ok')
    k(f"""
    v_mov_b32 v{vT0}, v{OA + 12}
    v_mov_b32 v{vT1}, v{OA + 12}
    v_permlane32_swap_b32 v{vT0}, v{vT1}
    v_cmp_nge_f32 vcc, s{sT0}, v{vT1}
    s_nop 1
    """)
    Lfb = k.newlabel('att_fb')
    k(f's_cbranch_vccnz {Lfb}' if not FORCE_FALLBACK else f's_branch {Lfb}')
    k.cold_begin()
    k.label(Lfb, pad=False)
    fallback(k)
    k('s_nop 7')
    k(f's_branch {Lok}')
    k.cold_end()
    k.label(Lok, pad=False)
    k('s_nop 1')
    k(f'v_rcp_f32 v{vT0}, v{vT1}')
    for r in range(0, 16, 2):
        k(f'v_pk_mul_f32 {v2(OA + r)}, {v2(OA + r)}, {v2(vT0)} op_sel_hi:[1,0]')
    for q in range(8):
        k(f'v_cvt_pk_bf16_f32 v{OA + q}, v{OA + 2 * q}, v{OA + 2 * q + 1}')
    ts(k, 'ATT.st2')
    publish(k, [f'buffer_store_dwordx4 {v4(OA)}, v{vL16}, s[8:11], s{sOADR} offen',
                f'buffer_store_dwordx4 {v4(OA + 4)}, v{vL16}, s[8:11], s{sOADR} offen offset:1024'])
    set_flag(k, sT4, f's{sL1}')
    ts(k, 'ATT.pub')


def fallback(k):
    def s_tile(c):
        k(f"""
        ds_read_b128 {v4(KB)}, v{vAD}
        ds_read_b128 {v4(KB + 4)}, v{vAD} offset:1024
        ds_read_b128 {v4(VB)}, v{vAD} offset:2048
        ds_read_b128 {v4(VB + 4)}, v{vAD} offset:3072
        """)
        k(f'{MF} {v16(SA)}, {v4(KB)}, {v4(QF)}, {c}')
        k(f'{MF} {v16(SA)}, {v4(KB + 4)}, {v4(QF + 4)}, {v16(SA)}')
        for cntv, a, b in ((0, SA, None), (8, None, SA)):
            k(f's_cmp_lg_u32 s{sCNT}, {cntv}')
            k.skip_begin('s_cbranch_scc1')
            for r in range(16):
                m = f's[{sMASK + 2 * r}:{sMASK + 2 * r + 1}]'
                if cntv == 0:
                    k(f'v_cndmask_b32 v{SA + r}, v{SA + r}, v{vNEG}, {m}')
                else:
                    k(f'v_cndmask_b32 v{SA + r}, v{vNEG}, v{SA + r}, {m}')
            k.skip_end()
    La, Lb = k.newlabel('fb1'), k.newlabel('fb2')
    k(f"""
    s_nop 7
    s_nop 7
    v_mov_b32 v{vAD}, v{vKVA}
    v_mov_b32 v{vMX}, v{vNEG}
    s_mov_b32 s{sCNT}, 0
    """)
    k.label(La)
    s_tile('0')
    for r in range(0, 16, 2):
        k(f'v_max3_f32 v{vMX}, v{SA + r}, v{SA + r + 1}, v{vMX}')
    k(f"""
    v_add_u32 v{vAD}, 4096, v{vAD}
    s_add_u32 s{sCNT}, s{sCNT}, 1
    s_cmp_lt_u32 s{sCNT}, 9
    s_waitcnt lgkmcnt(0)
    s_cbranch_scc1 {La}
    v_mov_b32 v{vT1}, v{vMX}
    v_permlane32_swap_b32 v{vMX}, v{vT1}
    v_max_f32 v{vMX}, v{vMX}, v{vT1}
    v_mov_b32 v{vAD}, v{vKVA}
    s_mov_b32 s{sCNT}, 0
    """)
    for r in range(16):
        k(f'v_mov_b32 v{OA + r}, 0')
    k.label(Lb)
    s_tile('0')
    for r in range(16):
        k(f'v_sub_f32 v{SA + r}, v{SA + r}, v{vMX}')
    for r in range(16):
        k(f'v_exp_f32 v{SA + r}, v{SA + r}')
    for q in range(8):
        k(f'v_cvt_pk_bf16_f32 v{PA + q}, v{SA + 2 * q}, v{SA + 2 * q + 1}')
    k(f'{MF} {v16(OA)}, {v4(VB)}, {v4(PA)}, {v16(OA)}')
    k(f'{MF} {v16(OA)}, {v4(VB + 4)}, {v4(PA + 4)}, {v16(OA)}')
    k(f"""
    v_add_u32 v{vAD}, 4096, v{vAD}
    s_add_u32 s{sCNT}, s{sCNT}, 1
    s_cmp_lt_u32 s{sCNT}, 9
    s_waitcnt lgkmcnt(0)
    s_cbranch_scc1 {Lb}
    v_mov_b32 v{vT0}, v{OA + 12}
    v_mov_b32 v{vT1}, v{OA + 12}
    v_permlane32_swap_b32 v{vT0}, v{vT1}
    """)


SK_ACC = [32, 48, 64, 80]
SK_XO = 96
RED = 3 * SLOT


def red_writes():
    out = {}
    for q in range(1, 4):
        o = lines(f"""
        s_xor_b32 s{sT0}, s{sW}, {q}
        s_mul_i32 s{sT0}, s{sT0}, 12288
        s_add_u32 s{sT0}, s{sT0}, {RED + (q - 1) * 4096}
        v_add_u32 v{vT0 + q - 1}, s{sT0}, v{vL16}
        """)
        for g in range(4):
            o.append(f'ds_write_b128 v{vT0 + q - 1}, {v4(SK_ACC[q] + 4 * g)} offset:{1024 * g}')
        out[q] = o
    return out


XR = 200


def red_setup():
    return lines(f"""
    s_mul_i32 s{sT0}, s{sW}, 12288
    s_add_u32 s{sT0}, s{sT0}, {RED}
    v_add_u32 v{vT3}, s{sT0}, v{vL16}
    """)


def red_finish(k):
    ACC = SK_ACC
    k.barrier()
    for g in range(4):
        for q in range(1, 4):
            k(f'ds_read_b128 {v4(ACC[q] + 4 * g)}, v{vT3} offset:{(q - 1) * 4096 + 1024 * g}')


def red_sum(k, g):
    ACC = SK_ACC
    k.wait_reg(v4(ACC[3] + 4 * g))
    for r in (4 * g, 4 * g + 2):
        k(f'v_pk_add_f32 {v2(ACC[1] + r)}, {v2(ACC[1] + r)}, {v2(ACC[2] + r)}')
        k(f'v_pk_add_f32 {v2(ACC[0] + r)}, {v2(ACC[0] + r)}, {v2(ACC[3] + r)}')
    for r in (4 * g, 4 * g + 2):
        k(f'v_pk_add_f32 {v2(ACC[0] + r)}, {v2(ACC[0] + r)}, {v2(ACC[1] + r)}')


def unpack_res(xo, dst):
    out = []
    for q in range(8):
        out.append(f'v_lshlrev_b32 v{dst + 2 * q}, 16, v{xo + q}')
        out.append(f'v_and_b32 v{dst + 2 * q + 1}, 0xffff0000, v{xo + q}')
    return out


def flag_addr(dst, fbase):
    return lines(f"""
    s_lshl_b32 s{dst}, s{sTT3}, 7
    s_lshl_b32 s{sT1}, s{sFT}, 2
    s_add_u32 s{dst}, s{dst}, s{sT1}
    s_add_u32 s{dst}, s{dst}, {fbase}
    """)


def res_epilogue(k, xo, sflag, val, scale, xr, Lfin):
    acc = SK_ACC[0]
    for g in range(4):
        red_sum(k, g)
        if scale is not None:
            for r in (4 * g, 4 * g + 2):
                k(f'v_pk_fma_f32 {v2(acc + r)}, {v2(acc + r)}, {v2(scale)}, {v2(xr + r)}')
        for q in (2 * g, 2 * g + 1):
            k(f'v_cvt_pk_bf16_f32 v{xo + q}, v{acc + 2 * q}, v{acc + 2 * q + 1}')
        if g == 1 and Lfin is None:
            publish(k, [f'buffer_store_dwordx4 {v4(xo)}, v{vL16}, s[8:11], s{sXADR} offen'])
    if Lfin:
        if LAYER == 1:
            return
        if LAYER is None:
            k(f's_cmp_eq_u32 s{sL}, 1')
            k(f's_cbranch_scc1 {Lfin}')
        publish(k, [f'buffer_store_dwordx4 {v4(xo)}, v{vL16}, s[8:11], s{sXADR} offen'])
    publish(k, [f'buffer_store_dwordx4 {v4(xo + 4)}, v{vL16}, s[8:11], s{sXADR} offen offset:1024'])
    k(f'v_mov_b32 v{vT0}, 0')
    k(f'v_mov_b32 v{vT1}, 0')
    emit(k, stats_ops(xo, 8, vT0, vT1, vONES))
    k(f"""
    v_permlane32_swap_b32 v{vT0}, v{vT1}
    v_add_f32 v{vT0}, v{vT0}, v{vT1}
    """)
    publish(k, [f'buffer_store_dword v{vT0}, v{vSTO}, s[8:11], s{sSADR} offen'])
    set_flag(k, sflag, val)


def rowmajor_addr(k):
    k(f"""
    v_mul_u32_u24 v{vT0}, 896, v{vN}
    v_lshl_add_u32 v{vT0}, v{vHH}, 4, v{vT0}
    s_mul_i32 s{sT0}, s{sTT3}, {32 * 896}
    s_lshl_b32 s{sT1}, s{sFT}, 6
    s_add_u32 s{sT0}, s{sT0}, s{sT1}
    """)


def phase_P3(k):
    ACC, XO = SK_ACC, SK_XO
    O_R = 192
    Lskip, Lj = k.newlabel('p3_skip'), k.newlabel('p3_join')
    k(f's_cmp_eq_u32 s{sACT}, 0')
    k(f's_cbranch_scc1 {Lskip}')
    La, Lb = k.newlabel('p3_l1'), k.newlabel('p3_res')
    if LAYER is None:
        k(f's_cmp_lg_u32 s{sL}, 0')
        k(f's_cbranch_scc1 {La}')
    if LAYER != 1:
        rowmajor_addr(k)
        k(f"""
        buffer_load_dwordx4 {v4(XO)}, v{vT0}, s[20:23], s{sT0} offen
        buffer_load_dwordx4 {v4(XO + 4)}, v{vT0}, s[20:23], s{sT0} offen offset:32
        """)
    if LAYER is None:
        k(f's_branch {Lb}')
        k.label(La, pad=False)
        k.vm_seq -= 2
        for r in parse_reg(f'v[{XO}:{XO + 7}]'):
            k.pend.pop(r, None)
    if LAYER != 0:
        res_addr(k, sT0, f's{sX2}')
        k(f"""
        buffer_load_dwordx4 {v4(XO)}, v{vL16}, s[8:11], s{sT0} offen sc1
        buffer_load_dwordx4 {v4(XO + 4)}, v{vL16}, s[8:11], s{sT0} offen offset:1024 sc1
        """)
    k.label(Lb, pad=False)
    k(f"""
    s_and_b32 s{sT4}, s{sTT3}, -2
    s_lshl_b32 s{sT4}, s{sT4}, 7
    s_add_u32 s{sT4}, s{sT4}, {F_O}
    s_lshl_b32 s{sT1}, s{sW}, 19
    s_add_u32 s{sT1}, s{sT1}, s{sOF}
    s_lshl_b32 s{sT2}, s{sTT3}, 11
    s_add_u32 s{sT2}, s{sT2}, s{sT1}
    s_lshl_b32 s{sT3}, s{sTTo}, 11
    s_add_u32 s{sT3}, s{sT3}, s{sT1}
    """)
    emit(k, SCHED['P3_pre']())
    emit(k, red_setup() + flag_addr(sE, F_X1))
    k('s_barrier')
    emit(k, unpack_res(XO, ACC[0]))
    wait_flags(k, vFH, sT4, f's{sL1}')
    ts(k, 'P3.ready')
    for q in (1, 0):
        for i in range(8):
            if i and i % 2 == 0:
                k(f's_add_u32 s{sT2 + q}, s{sT2 + q}, {64 * 2048}')
            k(f'buffer_load_dwordx4 {v4(O_R + 32 * q + 4 * i)}, v{vL16}, s[8:11], s{sT2 + q} offen offset:{(i % 2) * 1024} sc1')

    def mf(qa, qb, ks):
        a = ACC[qa + 2 * qb]
        c = '0' if (ks == 0 and qa + qb) else v16(a)
        return dict(m=f'{MF} {v16(a)}, {v4(WO_R + 32 * qa + 4 * ks)}, {v4(O_R + 32 * qb + 4 * ks)}, {c}')
    rw = red_writes()
    M = [mf(qa, 1, ks) for ks in range(8) for qa in range(2)] + [mf(1, 0, ks) for ks in range(8)] + [mf(0, 0, ks) for ks in range(8)]
    fl = F(SCHED['P3_mm'](), earliest=2) + F(rw[2] + rw[3], earliest=18) + F(rw[1], earliest=26)
    flush(k, weave(k, M, fl, free=6, pairwait=False))
    ts(k, 'P3.mfma')
    red_finish(k)
    res_epilogue(k, XO, sE, f's{sL1}', None, None, None)
    ts(k, 'P3.pub')
    k.cold_begin()
    k.label(Lskip, pad=False)
    emit(k, SCHED['P3_idle']())
    k(f's_branch {Lj}')
    k.cold_end()
    k.label(Lj, pad=False)
    k.drained()


P5_XO = 232
P5_ORDER = ([ks for ks in range(28) if ks % 7 < 4] + [ks for ks in range(28) if ks % 7 in (4, 5)] +
            [ks for ks in range(28) if ks % 7 == 6])
P5_SLOTS = [96 + 8 * i for i in range(6)] + [160 + 8 * i for i in range(8)]
HDEPTH = 6


def p5_reg(pos, q):
    return v4(P5_SLOTS[pos % len(P5_SLOTS)] + 4 * q)


def p5_hload(pos):
    ks = P5_ORDER[pos]
    out = []
    for q in (1, 0):
        out += [f's_add_u32 s{sT0}, s{sHB + q}, {ks * 1024}',
                f'buffer_load_dwordx4 {p5_reg(pos, q)}, v{vL16}, s[8:11], s{sT0} offen sc1']
    return out


def lvl(n):
    if LAYER is not None:
        return str(3 * LAYER + n)
    return f's{[None, sE, sCNT, sDS][n]}'


def p5_poll():
    return [f'buffer_load_dword v{vTA}, v{vFH}, s[8:11], s{sHPL} offen sc1']


def p5_check(n):
    def fn(k):
        k(f'v_cmp_gt_u32 vcc, {lvl(n)}, v{vTA}')
        k('s_nop 1')
        Lok, Lc = k.newlabel('hok'), k.newlabel('hwait')
        k(f's_cbranch_vccnz {Lc}')
        k.cold_begin()
        k.label(Lc, pad=False)
        wait_flags(k, vFH, sHPL, lvl(n), vFL=vTA)
        k(f's_branch {Lok}')
        k.cold_end()
        k.label(Lok, pad=False)
    return ('call', fn)


def phase_P5(k, Lfin, epi6, hs):
    ACC, XO = SK_ACC, P5_XO
    STT, XRF = 144, 240
    Lskip, Ljoin = k.newlabel('p5_skip'), k.newlabel('p5_join')
    k(f's_cmp_eq_u32 s{sACT}, 0')
    k(f's_cbranch_scc1 {Lskip}')
    st0 = (k.vm_seq, k.vm_done, k.lg_seq, k.lg_done, dict(k.pend), k.pos, list(k.hist))

    def mf(pos, qa, qb):
        a = ACC[qa + 2 * qb]
        c = '0' if pos == 0 else v16(a)
        return f'{MF} {v16(a)}, {a4(112 * qa + 4 * P5_ORDER[pos])}, {p5_reg(pos, qb)}, {c}'
    TAIL = 5
    M = []
    for pos in range(28):
        nxt = pos + HDEPTH
        pre = []
        if nxt == 16:
            pre.append(p5_check(2))
        if nxt == 24:
            pre.append(p5_check(3))
        if nxt < 28:
            pre += p5_hload(nxt)
        if nxt in (12, 20):
            pre += p5_poll()
        M.append(dict(pre=pre, m=mf(pos, 0, 1), w=1))
        M.append(dict(m=mf(pos, 1, 1)))
        M.append(dict(m=mf(pos, 1, 0), w=1))
        if pos < 28 - TAIL:
            M.append(dict(m=mf(pos, 0, 0)))
    n0 = len(M)
    M += [dict(m=mf(pos, 0, 0)) for pos in range(28 - TAIL, 28)]
    rw = red_writes()
    wq = pf_wqkv()
    wqg = [L0(flat(wq[i:i + 4])) for i in range(0, 21, 4)]
    first_free = 4 * (28 - HDEPTH)
    fl = F(epi6, earliest=0)
    fl.append((26, None, ('call', lambda k: set_flag(k, sHFL, lvl(3), h=hs[6]))))
    fl.append((27, None, ('call', lambda k: res_addr(k, sT2, f's{sX1}'))))
    fl += F([f'buffer_load_dwordx4 {v4(XO)}, v{vL16}, s[8:11], s{sT2} offen sc1',
             f'buffer_load_dwordx4 {v4(XO + 4)}, v{vL16}, s[8:11], s{sT2} offen offset:1024 sc1'], earliest=27)
    sl = [x.replace(f's{sT0}', f's{sT3}') for x in stats_loads(sST1, sTT3, STT)]
    fl += F(sl, earliest=29)
    fl += F(stats_math(STT) + [f'v_mul_f32 v{MB}, v{vR}, v{vR}', f'v_mul_f32 v{MB + 1}, v{vR}, v{vR}'] +
            unpack_res(XO, XRF), earliest=52)
    fl.append((52, None, ('call', lambda k: emit(k, [x.replace(f's{sT0}', f's{sT3}') for x in red_setup()] + flag_addr(sT5, F_XIN)))))
    fl.append((first_free - 2, first_free, 's_barrier'))
    for i, g in enumerate(wqg):
        fl += F([g], earliest=first_free + 2 * i)
    fl += F(rw[2] + rw[3] + rw[1], earliest=n0)
    flush(k, weave(k, M, fl, free=6, pairwait=False))
    ts(k, 'P5.mfma')
    red_finish(k)
    res_epilogue(k, XO, sT5, '1', MB, XRF, Lfin)
    if LAYER != 1:
        ts(k, 'P5.pub')
    k.cold_begin()
    k.label(Lskip, pad=False)
    k.vm_seq, k.vm_done, k.lg_seq, k.lg_done, k.pend, k.pos, k.hist = st0[0], st0[1], st0[2], st0[3], dict(st0[4]), st0[5], list(st0[6])
    emit(k, epi6)
    set_flag(k, sHFL, lvl(3))
    if LAYER == 1:
        k('s_branch MAIN_tail')
        k.cold_end()
        return
    if LAYER is None:
        k(f's_cmp_eq_u32 s{sL}, 1')
        k('s_cbranch_scc1 MAIN_tail')
    k('s_barrier')
    emit(k, flat(pf_wqkv()))
    k(f's_branch {Ljoin}')
    k.cold_end()
    k.label(Ljoin, pad=False)
    k('s_waitcnt vmcnt(0) lgkmcnt(0)')
    k.drained()
    k('s_barrier')


def phase_P4(k, Lfin):
    XB = 32
    ACC = [144, 160, 176]
    WB, NB, PF = 192, 8, 6
    ET = 224
    k(f"""
    s_lshl_b32 s{sT4}, s{sTT}, 7
    s_add_u32 s{sT4}, s{sT4}, {F_X1}
    s_mul_i32 s{sT3}, s{sTT}, {28 * 1024}
    s_add_u32 s{sT3}, s{sT3}, s{sX1}
    """)
    k('s_waitcnt vmcnt(0)')
    if LAYER is None:
        k(f's_cmp_lg_u32 s{sL}, 0')
        k.skip_begin('s_cbranch_scc1')
        emit(k, cs13_build())
        k.skip_end()
    elif LAYER == 0:
        emit(k, cs13_build())
    k('s_barrier')
    emit(k, SCHED['P4_pre']())
    acc_of = [0, 1, 2, 0, 1, 2, 0]
    seq = [(i, ks) for ks in range(29) for i in range(2)] + [(i, ks) for i in range(2, 7) for ks in range(29)]
    start = {i: 58 + 29 * (i - 2) for i in range(2, 7)}
    endi = {0: 56, 1: 57}
    endi.update({i: start[i] + 28 for i in range(2, 7)})

    def wread(n):
        i, ks = seq[n]
        if ks == 28:
            return f'ds_read_b128 {v4(WB + 4 * (n % NB))}, v{vSCR} offset:{1024 + 1024 * i}'
        s = W13_SLOT[i]
        base = {0: vL16, 1: vL16, 2: vL2S, 3: vL2S, 4: vL4S}[s]
        off = (s % 2) * SLOT + ks * 1024 if s < 4 else ks * 1024
        return f'ds_read_b128 {v4(WB + 4 * (n % NB))}, v{base} offset:{off}'

    def mf(n):
        i, ks = seq[n]
        a = v16(ACC[acc_of[i]])
        b = v4(MB) if ks == 28 else v4(XB + 4 * ks)
        return f'{MF} {a}, {v4(WB + 4 * (n % NB))}, {b}, {"0" if ks == 0 else a}'
    for n in range(PF):
        k(wread(n))
    wait_flags(k, vF14, sT4, f's{sL1}')
    ts(k, 'P4.ready')
    xl = load_chunks([v4(XB + 4 * i) for i in range(28)], sT3, sT2, pol=' sc1')
    for i in range(4):
        emit(k, xl[i])
    emit(k, stats_loads(sST1, sTT, ET))
    for i in range(4, XDEPTH):
        emit(k, xl[i])

    def epi(i):
        a = ACC[acc_of[i]]
        out = []
        e0 = ET + 8 * (i % 2)
        for r in range(8):
            out.append(f'v_mul_f32 v{e0 + r}, v{vKE}, v{a + r}')
        for r in range(8):
            out.append(f'v_exp_f32 v{e0 + r}, v{e0 + r}')
            out.append(f'v_mul_f32 v{a + r}, v{a + r}, v{a + 8 + r}')
        for r in range(8):
            out.append(f'v_add_f32 v{e0 + r}, 1.0, v{e0 + r}')
        for r in range(8):
            out.append(f'v_rcp_f32 v{e0 + r}, v{e0 + r}')
            if r:
                out.append(f'v_mul_f32 v{a + r - 1}, v{a + r - 1}, v{e0 + r - 1}')
        out.append(f'v_mul_f32 v{a + 7}, v{a + 7}, v{e0 + 7}')
        o = 240 + 4 * (i % 2)
        for q in range(4):
            out.append(f'v_cvt_pk_bf16_f32 v{o + q}, v{a + 2 * q}, v{a + 2 * q + 1}')

        def st(k):
            if i == 4:
                k(f's_add_u32 s{sHOFF}, s{sHOFF}, 4096')
            st_ = f'buffer_store_dwordx4 {v4(o)}, v{vL16}, s[8:11], s{sHOFF} offen offset:{(i % 4) * 1024}'
            if MODE == 'fast' and LAYER is not None:
                k(st_ + (' sc1' if (LAYER == 0 and not HPLAIN) else ''))
            elif MODE == 'fast':
                La, Lb = k.newlabel('h0'), k.newlabel('h1')
                k(f's_cmp_eq_u32 s{sL}, 0')
                k(f's_cbranch_scc1 {La}')
                k(st_)
                k(f's_branch {Lb}')
                k.label(La, pad=False)
                k.vm_seq -= 1
                k.pos -= 2
                k(st_ + ' sc1')
                k.label(Lb, pad=False)
            else:
                publish(k, [st_])
            hs[i] = k.vm_mark()
        out.append(('call', st))
        return out
    hs, hd = {}, {}

    def mark(name):
        def fn(k):
            hd[name] = k.vm_mark()
        return ('call', fn)

    def bar(name, tsn):
        def fn(k):
            k.wait_vm(hd[name])
            k.barrier()
            ts(k, tsn)
        return ('call', fn)
    b1, b2 = start[3] - PF, start[5] - PF
    M = []
    for n in range(len(seq)):
        pre = []
        if n == b1:
            pre.append(bar('t34', 'P4.b1'))
        if n == b2:
            pre.append(bar('t56', 'P4.b2'))
        if n + PF < len(seq):
            pre.append(wread(n + PF))
        i, ks = seq[n]
        if n < 58 and i == 0 and ks + XDEPTH < 28:
            pre += xl[ks + XDEPTH]
        M.append(dict(pre=pre, m=mf(n), need=[v4(WB + 4 * (n % NB))], w=1 if (n < 56 and i == 0) else 0))
    nx = 2 * (28 - XDEPTH)
    fl = F(stats_math(ET) + mb_fill() + [f'v_mul_f32 v{vKE}, {f32bits(-LOG2E)}, v{vR}'], earliest=6, deadline=54)
    fl += F(lines(f"""
    s_lshl_b32 s{sHFL}, s{sTT}, 7
    s_lshl_b32 s{sT1}, s{sIDX}, 2
    s_add_u32 s{sHFL}, s{sHFL}, s{sT1}
    s_add_u32 s{sHFL}, s{sHFL}, {F_H}
    s_and_b32 s{sHPL}, s{sTT3}, -2
    s_lshl_b32 s{sHPL}, s{sHPL}, 7
    s_add_u32 s{sHPL}, s{sHPL}, {F_H}
    s_mul_i32 s{sT1}, s{sW}, {28 * 1024}
    s_add_u32 s{sT1}, s{sT1}, s{sHF}
    s_mul_i32 s{sHB}, s{sTT3}, {112 * 1024}
    s_add_u32 s{sHB}, s{sHB}, s{sT1}
    s_mul_i32 s{sHB + 1}, s{sTTo}, {112 * 1024}
    s_add_u32 s{sHB + 1}, s{sHB + 1}, s{sT1}
    """), earliest=6)
    fl.append((6, None, ('call', lambda k: (res_addr(k, sXADR, f's{sX2}'), st_addr(k, sSADR, f's{sST2}')))))
    c34 = pf_w13(3) + pf_w13(4)
    for j, c in enumerate(c34):
        fl += F(c, earliest=nx + (j * 3) // 2, deadline=b1 - 8)
    fl.append((0, b1 - 8, mark('t34')))
    fl += F(flat(SCHED['P4_p1']()), earliest=58)

    def interleave(ep, mem, e0, dl):
        out = []
        step = max(1, len(ep) // (len(mem) + 1)) if mem else 10 ** 9
        mem = list(mem)
        for j, x in enumerate(ep):
            out.append(x)
            if mem and j % step == step - 1:
                out += mem.pop(0)
        for m in mem:
            out += m
        return F(out, earliest=e0, deadline=dl)
    S4 = SCHED['P4_mid']()
    n4 = len(S4)
    fl += interleave(epi(0), [], endi[0] + 3, start[3])
    fl += interleave(epi(1), [], endi[1] + 3, start[4])
    c56 = pf_w13(5) + pf_w13(6) + [[mark('t56')]]
    fl += interleave(epi(2), c56, max(endi[2] + 3, b1 + 1), b2 - 10)
    fl += interleave(epi(3), S4[:n4 // 2], endi[3] + 3, start[5] + 8)
    if LAYER is None:
        fl += F(lines(f"""
        s_mul_i32 s{sE}, s{sL}, 3
        s_add_u32 s{sCNT}, s{sE}, 2
        s_add_u32 s{sE}, s{sE}, 1
        """), earliest=0)
    fl += interleave(epi(4)[:30], S4[n4 // 2:], endi[4] + 3, start[6])
    fl.append((start[5] + 16, start[6], ('call', lambda k: set_flag(k, sHFL, lvl(1), h=hs[3]))))
    fl += F(epi(4)[30:], earliest=0, deadline=start[6] + 4)
    fl += interleave(epi(5), [], endi[5] + 3, len(seq) - 8)
    M[start[6] + 8]['pre'] += p5_poll()
    for p in range(HDEPTH):
        n = start[6] + 18 + 2 * p
        M[n]['pre'] = M[n]['pre'] + ([p5_check(1)] if p == 0 else []) + p5_hload(p)
    rest = weave(k, M, fl, free=P4FREE)
    flush(k, rest)
    if LAYER is None:
        k(f's_add_u32 s{sDS}, s{sE}, 2')
    set_flag(k, sHFL, lvl(2), h=hs[5])
    ts(k, 'P4.mfma')
    phase_P5(k, Lfin, epi(6), hs)


def phase_G(k):
    A_X, A_Q, A_K, A_V, WB, RT = 32, 144, 160, 176, 192, 240
    NB, PF = 6, 4
    NQ1 = GNQ1
    k(f"""
    s_lshl_b32 s{sT4}, s{sTT}, 7
    s_add_u32 s{sT4}, s{sT4}, {F_XIN}
    s_mul_i32 s{sT3}, s{sTT}, {28 * 1024}
    s_add_u32 s{sT3}, s{sT3}, s{sX2}
    """)
    seq = []
    for ks in range(29):
        seq += [('K', ks), ('V', ks)]
        if ks < NQ1:
            seq.append(('Q', ks))
    n1 = len(seq)
    seq += [('Q', ks) for ks in range(NQ1, 29)]
    pidx = {'Q': 0, 'K': 1, 'V': 2}

    def wread(n):
        p, ks = seq[n]
        b = v4(WB + 4 * (n % NB))
        if ks == 28:
            return f'ds_read_b128 {b}, v{vSCR} offset:{9216 + 1024 * pidx[p]}'
        if p == 'V':
            return f'ds_read_b128 {b}, v{vL16b} offset:{ks * 1024}'
        return f'ds_read_b128 {b}, v{vL16} offset:{(pidx[p] * 28 + ks) * 1024}'

    def mf(n):
        p, ks = seq[n]
        b = v4(WB + 4 * (n % NB))
        x = v4(MB) if ks == 28 else v4(A_X + 4 * ks)
        a = {'Q': A_Q, 'K': A_K, 'V': A_V}[p]
        c = '0' if ks == 0 else v16(a)
        if p == 'V':
            return f'{MF} {v16(a)}, {x}, {b}, {c}'
        return f'{MF} {v16(a)}, {b}, {x}, {c}'
    for n in range(PF):
        k(wread(n))
    emit(k, SCHED['G_pre']())
    ts(k, 'G.start')
    wait_flags(k, vF14, sT4, '1')
    ts(k, 'G.ready')
    xl = load_chunks([v4(A_X + 4 * i) for i in range(28)], sT3, sT2, pol=' sc1')
    STT = 216
    for i in range(4):
        emit(k, xl[i])
    emit(k, stats_loads(sST2, sTT, STT))
    for i in range(4, XDEPTH):
        emit(k, xl[i])
    M = []
    for n in range(len(seq)):
        pre = [wread(n + PF)] if n + PF < len(seq) else []
        p, ks = seq[n]
        if p == 'K' and ks + XDEPTH < 28:
            pre = pre + xl[ks + XDEPTH]
        M.append(dict(pre=pre, m=mf(n), need=[v4(WB + 4 * (n % NB))], w=1 if p == 'K' else 0))
    gather = lines(f"""
    s_lshl_b32 s{sT0}, s{sW}, 8
    s_add_u32 s{sT0}, s{sT0}, {SCR}
    v_lshlrev_b32 v{vT0}, 2, v{vN}
    v_add_u32 v{vT0}, s{sT0}, v{vT0}
    ds_write_b32 v{vT0}, v{vR}
    v_lshlrev_b32 v{vT1}, 4, v{vHH}
    v_add_u32 v{vT1}, s{sT0}, v{vT1}
    """) + [f'ds_read_b128 {v4(RT + 4 * g)}, v{vT1} offset:{32 * g}' for g in range(4)]
    fl = F(stats_math(STT) + mb_fill() + gather, earliest=8, deadline=n1 - 6)
    fl += F(lines(f"""
    s_lshl_b32 s{sT0}, s{sIDX}, 6
    s_add_u32 s{sT0}, s{sT0}, s{sTT}
    s_lshl_b32 s{sT4}, s{sT0}, 2
    s_add_u32 s{sT4}, s{sT4}, {F_KV}
    s_lshl_b32 s{sT5}, s{sT0}, 12
    s_add_u32 s{sT5}, s{sT5}, s{sKV}
    """), earliest=8)
    ep = []
    for r in range(16):
        ep.append(f'v_mul_f32 v{A_K + r}, v{vR}, v{A_K + r}')
    for q in range(8):
        ep.append(f'v_cvt_pk_bf16_f32 v{KF + q}, v{A_K + 2 * q}, v{A_K + 2 * q + 1}')
    for i in range(2):
        ep.append(f'buffer_store_dwordx4 {v4(KF + 4 * i)}, v{vL16}, s[8:11], s{sT5} offen offset:{1024 * i} sc1')
    for r in range(16):
        ep.append(f'v_mul_f32 v{A_V + r}, v{RT + r}, v{A_V + r}')
    for q in range(8):
        ep.append(f'v_cvt_pk_bf16_f32 v{VF + q}, v{A_V + 2 * q}, v{A_V + 2 * q + 1}')
        ep.append(f'v_cndmask_b32 v{VF + q}, v{VF + q}, v{vONES}, s[{sN28}:{sN28 + 1}]')
    for i in range(2, 4):
        ep.append(f'buffer_store_dwordx4 {v4(KF + 4 * i)}, v{vL16}, s[8:11], s{sT5} offen offset:{1024 * i} sc1')
    hk = {}
    ep.append(('call', lambda k: hk.__setitem__('h', k.vm_mark())))
    for i in range(4):
        ep.append(f'ds_write_b128 v{vKVA}, {v4(KF + 4 * i)} offset:{8 * 4096 + 1024 * i}')
    ep += SCHED['G_q']()
    fl += F(ep, earliest=n1 + 1)
    fl.append((len(seq) - 2, None, ('call', lambda k: set_flag(k, sT4, '2', always_sc1=True, h=hk['h']))))
    flush(k, weave(k, M, fl, free=6))
    ts(k, 'G.mfma')
    k(f'v_mul_f32 v{vT0}, {f32bits(28 ** -0.5 * LOG2E)}, v{vR}')
    for r in range(0, 16, 2):
        k(f'v_pk_mul_f32 {v2(A_Q + r)}, {v2(A_Q + r)}, {v2(vT0)} op_sel_hi:[1,0]')
    for q in range(8):
        k(f'v_cvt_pk_bf16_f32 v{QF + q}, v{A_Q + 2 * q}, v{A_Q + 2 * q + 1}')
    k(f'v_mov_b32 v{vT1}, 0x3f80')
    k(f'v_cndmask_b32 v{QF + 6}, v{QF + 6}, v{vT1}, s[{sHI}:{sHI + 1}]')
    ts(k, 'G.pub')
    k.barrier()


F_DUTY = 3 * SLOT
F_SCR = SCR
F_CSX = LDS_BYTES - 1536
F_XR = F_DUTY + 29184
OOBS = 0x20000000


def _exper():
    if '-nodutyslow' in sys.argv:
        return f's_bitcmp1_b32 0xAA54, s{sIDX}\n    s_cbranch_scc1 F_none'
    if '-noduty' in sys.argv:
        return 's_branch F_none'
    return ''


def front(k):
    EXPER = _exper()
    T0, T1, T2, T3, T4, T5 = sT0, sT1, sT2, sT3, sT4, sT5
    sKIND, sDST, sCSD, sA1, sWOFF, sPIT, sSRC, sXRB = 88, 89, 90, 91, 92, 93, 94, 95
    sPAD, sHP, sXT, sIMG, sXS, sZM, sSA, sSB, sD8 = 72, 74, 77, 78, 79, 80, 82, 83, 84
    vTR, vTR2, vXO, vDT, vS1, vS2, vCSK, vCSV, vCSQ, vIMG, vOQ, vOQ2, vDS = 5, 6, 7, 9, 10, 14, 15, 16, 17, 19, 26, 27, 144
    X, AQ, AK, AV, WB, RT = 32, 144, 160, 176, 192, 240
    NB, PF = 6, 4
    XA = 240
    k(f"""
    v_and_b32 v{vT0}, 3, v{vLANE}
    v_lshrrev_b32 v{vT1}, 2, v{vLANE}
    s_lshl_b32 s{T0}, s{sRB}, 2
    v_add_u32 v{vT2}, s{T0}, v{vT0}
    v_lshlrev_b32 v{vT3}, 7, v{vT2}
    s_lshl_b32 s{T1}, s{sIDX}, 2
    s_add_u32 s{T1}, s{T1}, {F_O}
    v_add_u32 v{vT3}, s{T1}, v{vT3}                  ; F_O
    v_and_b32 v5, 1, v{vT1}
    v_lshl_add_u32 v{vT3}, v5, 14, v{vT3}            ; kind 1: F_H = F_O + 16384
    s_and_b32 s{T0}, s{sTT3}, -2
    s_and_b32 s{T1}, s{sFT}, -2
    v_lshrrev_b32 v6, 1, v{vT0}
    v_add_u32 v6, s{T0}, v6                          ; tt3
    v_and_b32 v7, 1, v{vT0}
    v_add_u32 v7, s{T1}, v7                          ; ft
    v_lshlrev_b32 v6, 7, v6
    v_lshl_add_u32 v6, v7, 2, v6
    v_add_u32 v6, {F_XIN}, v6
    v_lshl_add_u32 v6, v5, 14, v6
    v_cmp_le_u32 vcc, 2, v{vT1}
    s_lshl_b32 s{T0}, s{sIDX}, 8
    s_add_u32 s{T0}, s{T0}, {F_KV}
    v_cndmask_b32 v{vT3}, v{vT3}, v6, vcc
    v_lshlrev_b32 v6, 2, v{vT2}
    v_add_u32 v6, s{T0}, v6
    v_cmp_le_u32 vcc, 4, v{vT1}
    s_lshl_b32 s{T0}, s2, 7
    s_add_u32 s{T0}, s{T0}, {F_PK}
    v_cndmask_b32 v{vT3}, v{vT3}, v6, vcc
    v_mov_b32 v6, s{T0}
    v_cmp_le_u32 vcc, 5, v{vT1}
    s_cmp_eq_u32 s{sW}, 0
    s_cselect_b32 s{T0}, 0, {OOBS}
    v_cndmask_b32 v{vT3}, v{vT3}, v6, vcc
    s_mov_b64 exec, 0x1fffff
    buffer_store_dword v{vZERO}, v{vT3}, s[8:11], s{T0} offen sc1
    s_mov_b64 exec, -1
    """)
    h_zero = k.vm_mark()
    assert F_H - F_O == 16384 and F_X1 - F_XIN == 16384
    k(f"""
    s_mov_b32 s64, s74
    s_mov_b32 s65, s75
    s_mov_b32 s66, {448 * 1344 * 2}
    s_mov_b32 s67, 0x00020000
    s_mov_b32 s71, 0x00020000
    """)
    Lw2, Lwo, Lnone, Ldec = 'F_w2', 'F_wo', 'F_none', 'F_dec'
    k(f"""
    s_lshr_b32 s{T4}, s{sW}, 1
    s_and_b32 s{T5}, s{sW}, 1
    s_cmp_ge_u32 s2, 182
    s_cbranch_scc1 {Lnone}
    {EXPER}
    s_cmp_ge_u32 s2, 168
    s_cbranch_scc1 {Lwo}
    s_cmp_ge_u32 s2, 112
    s_cbranch_scc1 {Lw2}
    s_lshr_b32 s{T0}, s2, 2
    s_and_b32 s{T1}, s2, 3
    s_cmp_eq_u32 s{T4}, 1
    s_cselect_b32 s68, s82, s80
    s_cselect_b32 s69, s83, s81
    s_mov_b32 s70, {448 * 1792 * 2}
    s_mov_b32 s{sKIND}, 0
    s_mov_b32 s{sPIT}, 3584
    s_mul_i32 s{sSRC}, s{T1}, 112
    s_mul_i32 s{T2}, s{T5}, 56
    s_add_u32 s{sSRC}, s{sSRC}, s{T2}
    s_mul_i32 s{sSRC}, s{sSRC}, 3584
    s_lshl_b32 s{T2}, s{T0}, 7
    s_add_u32 s{sSRC}, s{sSRC}, s{T2}
    s_lshl_b32 s{T2}, s{T0}, 2
    s_add_u32 s{T2}, s{T2}, s{sW}
    s_mul_i32 s{sDST}, s{T2}, 28
    s_mul_i32 s{T0}, s{T1}, 7
    s_add_u32 s{sDST}, s{sDST}, s{T0}
    s_lshl_b32 s{sDST}, s{sDST}, 10
    s_add_u32 s{sDST}, s{sDST}, {W13_P}
    s_mul_i32 s{sCSD}, s{T1}, 112
    s_add_u32 s{sCSD}, s{sCSD}, s{T2}
    s_lshl_b32 s{sCSD}, s{sCSD}, 7
    s_add_u32 s{sCSD}, s{sCSD}, {CSP_13}
    s_mov_b32 s{sA1}, 14336
    s_lshl_b32 s{sWOFF}, s{sW}, 5
    s_branch {Ldec}
    """)
    k.label(Lw2, pad=False)
    k(f"""
    s_sub_u32 s{T0}, s2, 112
    s_and_b32 s{T1}, s{T0}, 7
    s_lshr_b32 s{T0}, s{T0}, 3
    s_mov_b32 s68, s84
    s_mov_b32 s69, s85
    s_mov_b32 s70, {1792 * 448 * 2}
    s_mov_b32 s{sKIND}, 1
    s_mov_b32 s{sPIT}, 896
    s_mul_i32 s{sSRC}, s{T1}, 224
    s_mul_i32 s{T2}, s{sW}, 56
    s_add_u32 s{sSRC}, s{sSRC}, s{T2}
    s_mul_i32 s{sSRC}, s{sSRC}, 896
    s_lshl_b32 s{T2}, s{T0}, 7
    s_add_u32 s{sSRC}, s{sSRC}, s{T2}
    s_lshl_b32 s{T2}, s{T0}, 1
    s_add_u32 s{T2}, s{T2}, s{T5}
    s_mul_i32 s{sDST}, s{T2}, 112
    s_mul_i32 s{T0}, s{T1}, 14
    s_add_u32 s{sDST}, s{sDST}, s{T0}
    s_mul_i32 s{T0}, s{T4}, 7
    s_add_u32 s{sDST}, s{sDST}, s{T0}
    s_lshl_b32 s{sDST}, s{sDST}, 10
    s_add_u32 s{sDST}, s{sDST}, {W2_P}
    s_mov_b32 s{sCSD}, 0
    s_mov_b32 s{sA1}, 32
    s_mul_i32 s{sWOFF}, s{T4}, {112 * 128}
    s_lshl_b32 s{T0}, s{T5}, 6
    s_add_u32 s{sWOFF}, s{sWOFF}, s{T0}
    s_branch {Ldec}
    """)
    k.label(Lwo, pad=False)
    k(f"""
    s_sub_u32 s{T0}, s2, 168
    s_and_b32 s{T1}, s{T0}, 1
    s_lshr_b32 s{T0}, s{T0}, 1
    s_mov_b32 s68, s76
    s_mov_b32 s69, s77
    s_mov_b32 s70, {448 * 448 * 2}
    s_mov_b32 s{sKIND}, 2
    s_mov_b32 s{sPIT}, 896
    s_mul_i32 s{sSRC}, s{T1}, 224
    s_mul_i32 s{T2}, s{sW}, 56
    s_add_u32 s{sSRC}, s{sSRC}, s{T2}
    s_mul_i32 s{sSRC}, s{sSRC}, 896
    s_lshl_b32 s{T2}, s{T0}, 7
    s_add_u32 s{sSRC}, s{sSRC}, s{T2}
    s_lshl_b32 s{T2}, s{T0}, 1
    s_add_u32 s{T2}, s{T2}, s{T5}
    s_lshl_b32 s{sDST}, s{T2}, 5
    s_lshl_b32 s{T0}, s{T1}, 4
    s_add_u32 s{sDST}, s{sDST}, s{T0}
    s_lshl_b32 s{T0}, s{T4}, 3
    s_add_u32 s{sDST}, s{sDST}, s{T0}
    s_lshl_b32 s{sDST}, s{sDST}, 10
    s_add_u32 s{sDST}, s{sDST}, {WO_P}
    s_mov_b32 s{sCSD}, 0
    s_mov_b32 s{sA1}, 32
    s_mul_i32 s{sWOFF}, s{T4}, {112 * 128}
    s_lshl_b32 s{T0}, s{T5}, 6
    s_add_u32 s{sWOFF}, s{sWOFF}, s{T0}
    s_branch {Ldec}
    """)
    k.label(Lnone, pad=False)
    k(f"""
    s_mov_b32 s68, s76
    s_mov_b32 s69, s77
    s_mov_b32 s70, 0
    s_mov_b32 s{sKIND}, 3
    s_mov_b32 s{sPIT}, 0
    s_mov_b32 s{sSRC}, 0
    s_mov_b32 s{sDST}, 0
    s_mov_b32 s{sCSD}, 0
    s_mov_b32 s{sA1}, 0
    s_mov_b32 s{sWOFF}, 0
    """)
    k.label(Ldec, pad=False)
    k(f"""
    v_lshrrev_b32 v{vT1}, 3, v{vLANE}
    v_mul_lo_u32 v{vDS}, v{vT1}, s{sPIT}
    v_and_b32 v{vT2}, 7, v{vLANE}
    v_lshl_add_u32 v{vDS}, v{vT2}, 4, v{vDS}
    s_lshl_b32 s{sPIT}, s{sPIT}, 3
    v_xor_b32 v{vT2}, v{vT2}, v{vT1}
    v_mul_u32_u24 v{vXO}, 896, v{vT1}
    v_lshl_add_u32 v{vXO}, v{vT2}, 4, v{vXO}
    v_lshrrev_b32 v{vIMG}, 2, v{vLANE}
    v_mul_u32_u24 v{vIMG}, 2688, v{vIMG}
    v_and_b32 v{vT1}, 3, v{vLANE}
    v_lshl_add_u32 v{vIMG}, v{vT1}, 4, v{vIMG}
    s_mul_i32 s{sIMG}, s{sW}, {7 * 16 * 2688}
    s_mul_i32 s{T2}, s{sIDX}, 56
    s_add_u32 s{sIMG}, s{sIMG}, s{T2}
    s_mul_i32 s{sXS}, s{sTT}, {32 * 896}
    """)
    hx, himg = {}, {}
    def xslot(c):
        return [3, 4, 0, 1, 2, 1, 2][c]

    def xbase(c):
        return [(sLW, 0), (sXRB, 0), (sXRB, 4096), (sLW, 2 * SLOT), (sLW, F_DUTY)][xslot(c)]

    def duty_dma():
        for i in range(7):
            k(f's_add_u32 m0, s{sLW}, {F_DUTY + i * 1024}')
            k(f'buffer_load_dwordx4 v{vDS}, s[68:71], s{sSRC} offen lds')
            k(f's_add_u32 s{sSRC}, s{sSRC}, s{sPIT}')

    def xdma(c):
        b, o = xbase(c)
        for i in range(4):
            k(f's_add_u32 m0, s{b}, {o + i * 1024}')
            k(f's_add_u32 s{sXT}, s{sXS}, {i * 8 * 896 + c * 128}')
            k(f'buffer_load_dwordx4 v{vXO}, s[20:23], s{sXT} offen lds')
        hx[c] = k.vm_mark()

    def img_dma(p):
        for i in range(7):
            k(f's_add_u32 m0, s{sLW}, {p * SLOT + i * 1024}')
            k(f's_add_u32 s{sXT}, s{sIMG}, {i * 16 * 2688 + p * 896}')
            k(f'buffer_load_dwordx4 v{vIMG}, s[64:67], s{sXT} offen lds')
        himg[p] = k.vm_mark()
    k(f"""
    s_lshl_b32 s{sXRB}, s{sW}, 13
    s_add_u32 s{sXRB}, s{sXRB}, {F_XR}
    """)
    if CODEPF:
        k(f"""
        s_getpc_b64 s[{sTS}:{sTS + 1}]
        s_lshr_b32 s{T0}, s2, 3
        s_lshl_b32 s{T0}, s{T0}, 2
        s_add_u32 s{T0}, s{T0}, s{sW}
        s_lshl_b32 s{T0}, s{T0}, 9
        v_min_u32 v{vT1}, 3, v{vLANE}
        v_lshlrev_b32 v{vT1}, 7, v{vT1}
        v_add_u32 v{vT1}, s{T0}, v{vT1}
        v_min_u32 v{vT1}, {CODEPF}, v{vT1}
        global_load_dword v{vDUM}, v{vT1}, s[{sTS}:{sTS + 1}]
        """)
    if WARM:
        k(f"""
        s_lshr_b32 s{T0}, s2, 3
        s_lshl_b32 s{T0}, s{T0}, 2
        s_add_u32 s{T0}, s{T0}, s{sW}
        v_lshlrev_b32 v{vT1}, 7, v{vLANE}
        s_mul_i32 s{T2}, s{T0}, {74 * 128}
        buffer_load_dword v{vDUM}, v{vT1}, s[64:67], s{T2} offen
        v_min_u32 v{vT2}, 9, v{vLANE}
        v_lshlrev_b32 v{vT2}, 7, v{vT2}
        s_add_u32 s{T2}, s{T2}, 8192
        buffer_load_dword v{vDUM}, v{vT2}, s[64:67], s{T2} offen
        v_min_u32 v{vT2}, 13, v{vLANE}
        v_lshlrev_b32 v{vT2}, 7, v{vT2}
        s_lshr_b32 s{T2}, s{sRB}, 1
        s_mul_i32 s{T2}, s{T2}, {256 * 896}
        s_mul_i32 s{T0}, s{T0}, 1792
        s_add_u32 s{T2}, s{T2}, s{T0}
        buffer_load_dword v{vDUM}, v{vT2}, s[20:23], s{T2} offen
        """)
    set_layer(k, 0)
    if PROPOS == 0:
        emit(k, [x.replace(f'v{vTA},', f'v{vT3},').replace(f'v{vTA}', f'v{vT3}') for x in SCHED['PRO']()])
    if DUTYPOS == 0:
        duty_dma()
    for c in range(5):
        xdma(c)
    img_dma(1)
    k.wait_vm(h_zero)
    signal(k)
    if DUTYPOS == 1:
        duty_dma()
    ts(k, 'F.issued')
    k(f"""
    v_lshlrev_b32 v{vT1}, 3, v{vHH}
    v_bfe_u32 v{vT2}, v{vLANE}, 2, 2
    v_add_u32 v{vT1}, v{vT1}, v{vT2}
    v_and_b32 v{vT2}, 1, v{vLANE}
    v_lshlrev_b32 v{vT2}, 4, v{vT2}
    v_bfe_u32 v{vT3}, v{vLANE}, 1, 1
    v_lshl_or_b32 v{vT2}, v{vT3}, 3, v{vT2}
    v_bfe_u32 v{vT3}, v{vLANE}, 4, 1
    v_lshl_add_u32 v{vTR}, v{vT1}, 6, v{vT2}
    v_lshl_add_u32 v{vTR}, v{vT3}, 5, v{vTR}
    v_add_u32 v{vTR2}, {2 * SLOT}, v{vTR}
    v_lshl_add_u32 v{vDT}, v{vT1}, 7, v{vT2}
    v_mad_u32_u24 v{vDT}, v{vT3}, s{sA1}, v{vDT}
    s_add_u32 s{T0}, s{sWOFF}, {F_DUTY}
    v_add_u32 v{vDT}, s{T0}, v{vDT}
    v_add_u32 v{vOQ}, s{sLW}, v{vTR}
    v_add_u32 v{vOQ2}, s{sLW}, v{vTR2}
    v_mov_b32 v{vS1}, 0
    v_mov_b32 v{vS2}, 0
    v_mov_b32 v{vCSK}, 0
    v_mov_b32 v{vCSV}, 0
    v_mov_b32 v{vCSQ}, 0
    v_cmp_le_u32 s[{sPAD}:{sPAD + 1}], 28, v{vN}
    s_sub_u32 s{T0}, s{sXRB}, s{sLW}
    """)
    for i in range(4):
        k(f"""
        v_add_u32 v{vT1}, {2 * i}, v{vHH}
        v_and_b32 v{vT2}, 7, v{vN}
        v_xor_b32 v{vT1}, v{vT1}, v{vT2}
        v_lshlrev_b32 v{vT1}, 4, v{vT1}
        v_lshl_add_u32 v{XA + i}, v{vN}, 7, v{vT1}
        v_add_u32 v{XA + i}, s{sLW}, v{XA + i}
        v_add_u32 v{XA + 4 + i}, s{T0}, v{XA + i}
        v_add_u32 v{XA + 8 + i}, {F_DUTY}, v{XA + i}
        """)
    k(f's_or_b64 s[{sHP}:{sHP + 1}], s[{sHI}:{sHI + 1}], s[{sPAD}:{sPAD + 1}]')
    emit(k, setup2_salu())

    k(f"""
    s_movk_i32 s{sSA}, 2048
    s_cmp_eq_u32 s{sKIND}, 2
    s_cselect_b32 s{sSA}, 1792, s{sSA}
    s_cselect_b32 s{sSB}, 256, 0
    s_mov_b32 s{sZM}, 0
    s_cselect_b32 s{sZM + 1}, -1, 0
    s_add_u32 s{T0}, s{sDST}, 4096
    s_cmp_eq_u32 s{sKIND}, 2
    s_cselect_b32 s{sD8}, s{T0}, {OOBS}
    s_cmp_eq_u32 s{sKIND}, 0
    s_cselect_b32 s{sCSD}, s{sCSD}, {OOBS}
    s_cmp_eq_u32 s{sKIND}, 3
    s_cselect_b32 s{sDST}, {OOBS}, s{sDST}
    """)

    def x_rd(c):
        k.wait_vm(hx[c])
        for i in range(4):
            a, o = [(XA + i, 0), (XA + 4 + i, 0), (XA + 4 + i, 4096), (XA + i, 2 * SLOT), (XA + 8 + i, 0)][xslot(c)]
            k(f'ds_read_b128 {v4(X + 16 * c + 4 * i)}, v{a} offset:{o}')

    def x_st(c):
        emit(k, stats_ops(X + 16 * c, 16, vS1, vS2, vONES))

    def own_quarter(p, acc, buf):
        k.wait_vm(himg[p])
        base = vOQ if p < 2 else vOQ2
        for i in range(7):
            off = (p * SLOT if p < 2 else 0) + i * 1024
            k(f'ds_read_b64_tr_b16 {v2(buf + 4 * i)}, v{base} offset:{off}')
            k(f'ds_read_b64_tr_b16 {v2(buf + 4 * i + 2)}, v{base} offset:{off + 256}')
        for i in range(28):
            k(f'v_dot2_f32_bf16 v{acc}, v{buf + i}, v{vONES}, v{acc}')
        k(f"""
        v_mov_b32 v{vT0}, v{acc}
        v_permlane32_swap_b32 v{acc}, v{vT0}
        v_add_f32 v{acc}, v{acc}, v{vT0}
        s_mul_i32 s{T0}, s{sW}, 384
        s_add_u32 s{T0}, s{T0}, {F_CSX}
        v_lshlrev_b32 v{vT3}, 2, v{vN}
        v_add_u32 v{vT2}, s{T0}, v{vT3}
        ds_write_b32 v{vT2}, v{acc} offset:{128 * p}
        """)
    for c in range(5):
        x_rd(c)
    k.wait_lg()
    xdma(5)
    xdma(6)
    img_dma(2)
    duty_dma()
    ts(k, 'F.iss2')
    for c in range(5):
        x_st(c)
    own_quarter(1, vCSK, WB)
    x_rd(5)
    x_rd(6)
    x_st(5)
    x_st(6)
    emit(k, ln_math(vS1, vS2, vT0, vT1, vM, vR) + mb_fill())
    own_quarter(2, vCSV, WB)
    k(f'v_lshlrev_b32 v{vT3}, 2, v{vN}')
    k(f'v_add_u32 v{vS1}, {F_CSX}, v{vT3}')
    gather = lines(f"""
    s_lshl_b32 s{T0}, s{sW}, 8
    s_add_u32 s{T0}, s{T0}, {F_SCR}
    v_add_u32 v{vT1}, s{T0}, v{vT3}
    ds_write_b32 v{vT1}, v{vR}
    v_lshlrev_b32 v{vT1}, 4, v{vHH}
    v_add_u32 v{vT1}, s{T0}, v{vT1}
    """) + [f'ds_read_b128 {v4(RT + 4 * g)}, v{vT1} offset:{32 * g}' for g in range(4)]
    ts(k, 'F.pre')
    k.barrier()
    ts(k, 'F.barA')
    pidx = {'Q': 0, 'K': 1, 'V': 2}

    def gemm(seq, CFR):
        def wread(n):
            p, ks = seq[n]
            b = WB + 4 * (n % NB)
            base, off = (vTR2, ks * 1024) if p == 'V' else (vTR, pidx[p] * SLOT + ks * 1024)
            return [f'ds_read_b64_tr_b16 {v2(b)}, v{base} offset:{off}',
                    f'ds_read_b64_tr_b16 {v2(b + 2)}, v{base} offset:{off + 256}']
        M = []
        for n, (p, ks) in enumerate(seq):
            b = v4(WB + 4 * (n % NB))
            x = v4(X + 4 * ks)
            a = {'Q': AQ, 'K': AK, 'V': AV}[p]
            c = '0' if ks == 0 else v16(a)
            m = f'{MF} {v16(a)}, {x}, {b}, {c}' if p == 'V' else f'{MF} {v16(a)}, {b}, {x}, {c}'
            M.append(dict(pre=wread(n + PF) if n + PF < len(seq) else [], m=m, need=[b]))
        for p, cf in CFR:
            a = {'Q': AQ, 'K': AK, 'V': AV}[p]
            M.append(dict(m=f'{MF} {v16(a)}, {v4(MB)}, {v4(cf)}, {v16(a)}' if p == 'V' else f'{MF} {v16(a)}, {v4(cf)}, {v4(MB)}, {v16(a)}'))
        for n in range(PF):
            emit(k, wread(n))
        return M

    def cs_frag(p, cf, t):
        fl = [f'ds_read_b32 v{t + w}, v{vS1} offset:{w * 384 + p * 128}' for w in range(4)]
        fl += ['s_nop 0'] * 6
        fl += [f'v_add_f32 v{t}, v{t}, v{t + 1}', f'v_add_f32 v{t + 2}, v{t + 2}, v{t + 3}', f'v_add_f32 v{t}, v{t}, v{t + 2}',
               f'v_cndmask_b32 v{t}, v{t}, 0, s[{sHP}:{sHP + 1}]']
        fl += split3(t, cf, cf + 1, vT0, vT2)
        fl += [f'v_mov_b32 v{cf + 2}, 0', f'v_mov_b32 v{cf + 3}, 0',
               ('call', lambda k: cs_store(k, cf))]
        return fl

    def cs_store(k, cf):
        k(f'ds_write_b128 v{vS2}, {v4(cf)}')
        k(f'v_add_u32 v{vS2}, 1024, v{vS2}')
    k(f'v_add_u32 v{vS2}, {SCR_CSQ + 1024}, v{vL16}')
    M = gemm([(p, ks) for ks in range(28) for p in 'KV'], [('K', QF), ('V', QF + 4)])
    fl = F(gather + cs_frag(1, QF, KF) + cs_frag(2, QF + 4, KF), earliest=1, deadline=54)
    late = []
    for i in range(7):
        late.append([f's_add_u32 m0, s{sLW}, {i * 1024}', f's_add_u32 s{sXT}, s{sIMG}, {i * 16 * 2688}',
                     f'buffer_load_dwordx4 v{vIMG}, s[64:67], s{sXT} offen lds'])
    late[-1].append(('call', lambda k: himg.__setitem__(0, k.vm_mark())))
    for j, c in enumerate(late):
        n = 1 + 5 * j
        M[n]['pre'] = M[n]['pre'] + c
    fl += F(lines(f"""
    s_lshl_b32 s{T0}, s{sIDX}, 6
    s_add_u32 s{T0}, s{T0}, s{sTT}
    s_lshl_b32 s{T4}, s{T0}, 2
    s_add_u32 s{T4}, s{T4}, {F_KV}
    s_lshl_b32 s{T5}, s{T0}, 12
    s_add_u32 s{T5}, s{T5}, s{sKV}
    """), earliest=2)
    flush(k, weave(k, M, fl, free=6))
    ts(k, 'F.kv')
    k(f'v_mov_b32 v{vT0}, v{vR}')
    for r in range(0, 16, 2):
        k(f'v_pk_mul_f32 {v2(AK + r)}, {v2(AK + r)}, {v2(vT0)} op_sel_hi:[1,0]')
    for q in range(8):
        k(f'v_cvt_pk_bf16_f32 v{KF + q}, v{AK + 2 * q}, v{AK + 2 * q + 1}')
    k(f'v_cndmask_b32 v{KF + 6}, v{KF + 6}, 0, s[{sHI}:{sHI + 1}]')
    k(f'v_cndmask_b32 v{KF + 7}, v{KF + 7}, 0, s[{sHI}:{sHI + 1}]')
    for i in range(2):
        k(f'buffer_store_dwordx4 {v4(KF + 4 * i)}, v{vL16}, s[8:11], s{T5} offen offset:{1024 * i} sc1')
    for r in range(0, 16, 2):
        k(f'v_pk_mul_f32 {v2(AV + r)}, {v2(AV + r)}, {v2(RT + r)}')
    for q in range(8):
        k(f'v_cvt_pk_bf16_f32 v{VF + q}, v{AV + 2 * q}, v{AV + 2 * q + 1}')
        k(f'v_cndmask_b32 v{VF + q}, v{VF + q}, v{vONES}, s[{sN28}:{sN28 + 1}]')
    for i in range(2, 4):
        k(f'buffer_store_dwordx4 {v4(KF + 4 * i)}, v{vL16}, s[8:11], s{T5} offen offset:{1024 * i} sc1')
    hkv = k.vm_mark()
    for i in range(4):
        k(f'ds_write_b128 v{vKVA}, {v4(KF + 4 * i)} offset:{8 * 4096 + 1024 * i}')
    own_quarter(0, vCSQ, AK)
    set_flag(k, T4, '1', always_sc1=True, h=hkv)
    if PROPOS == 1:
        emit(k, SCHED['PRO']())
    ts(k, 'F.kvpub')
    k.barrier()
    k(f"""
    v_and_b32 v{vXO}, 15, v{vLANE}
    v_lshlrev_b32 v{vXO}, 4, v{vXO}
    buffer_load_dword v{vCSK}, v{vXO}, s[16:19], 0 offen sc1
    """)
    DB = AK
    for i in range(8):
        k(f'ds_read_b64_tr_b16 {v2(DB + 4 * i)}, v{vDT}')
        k(f'ds_read_b64_tr_b16 {v2(DB + 4 * i + 2)}, v{vDT} offset:512')
        k(f's_{"add" if i % 2 == 0 else "sub"}_u32 s{T0}, s{sSA}, s{sSB}')
        k(f'v_add_u32 v{vDT}, s{T0}, v{vDT}')
    k(f'v_mov_b32 v{vT1}, 0')
    dst = []
    for i in range(8):
        if i & 1:
            k(f'v_cndmask_b32 v{DB + 4 * i + 2}, v{DB + 4 * i + 2}, 0, s[{sZM}:{sZM + 1}]')
            k(f'v_cndmask_b32 v{DB + 4 * i + 3}, v{DB + 4 * i + 3}, 0, s[{sZM}:{sZM + 1}]')
        dst.append(([f's_add_u32 s{sDST}, s{sDST}, 4096'] if i == 4 else []) +
                   [f'buffer_store_dwordx4 {v4(DB + 4 * i)}, v{vL16}, s[8:11], s{sD8 if i == 7 else sDST} offen offset:{(i % 4) * 1024} sc1'])
    emit(k, dst[0] + dst[1])
    for i in range(28):
        k(f'v_dot2_f32_bf16 v{vT1}, v{DB + i}, v{vONES}, v{vT1}')
    k(f"""
    v_mov_b32 v{vT0}, v{vT1}
    v_permlane32_swap_b32 v{vT1}, v{vT0}
    v_add_f32 v{vT1}, v{vT1}, v{vT0}
    v_lshlrev_b32 v{vT3}, 2, v{vN}
    buffer_store_dword v{vT1}, v{vT3}, s[8:11], s{sCSD} offen sc1
    """)
    ts(k, 'F.duty')
    SH = RT + 8
    share = lines(f"""
    s_cmp_ge_u32 s{sRB}, 7
    s_cselect_b32 s{T0}, 1, 0
    s_cmp_ge_u32 s{sRB}, 14
    s_cselect_b32 s{T0}, 2, s{T0}
    s_mul_i32 s{T1}, s{T0}, 7
    s_sub_u32 s{T1}, s{sRB}, s{T1}
    s_mul_i32 s{T0}, s{T0}, {SLOT}
    s_lshl_b32 s{T1}, s{T1}, 10
    s_add_u32 s{T0}, s{T0}, s{T1}
    v_add_u32 v{vT1}, s{T0}, v{vOQ}
    ds_read_b64_tr_b16 {v2(SH)}, v{vT1}
    ds_read_b64_tr_b16 {v2(SH + 2)}, v{vT1} offset:256
    s_mul_i32 s{T2}, s{sIDX}, {84 * 1024}
    s_add_u32 s{T2}, s{T2}, s{sLW}
    s_add_u32 s{T2}, s{T2}, {WQKV_P}
    s_add_u32 s{T3}, s{T2}, s{T0}
    s_min_u32 s{T1}, s{sRB}, 4
    s_lshl_b32 s{T1}, s{T1}, 10
    s_add_u32 s{T1}, s{T1}, {2 * SLOT + 2048}
    v_add_u32 v{vT1}, s{T1}, v{vOQ}
    ds_read_b64_tr_b16 {v2(SH + 4)}, v{vT1}
    ds_read_b64_tr_b16 {v2(SH + 6)}, v{vT1} offset:256
    s_add_u32 s{T2}, s{T2}, s{T1}
    s_cmp_gt_u32 s{sRB}, 4
    s_cselect_b32 s{T2}, {OOBS}, s{T2}
    """) + ['s_nop 0'] * 2
    share += [f'v_cndmask_b32 v{SH + q}, v{SH + q}, 0, s[{sPAD}:{sPAD + 1}]' for q in range(8)]
    share += [f'buffer_store_dwordx4 {v4(SH)}, v{vL16}, s[8:11], s{T3} offen sc1',
              f'buffer_store_dwordx4 {v4(SH + 4)}, v{vL16}, s[8:11], s{T2} offen sc1']
    k(f'v_add_u32 v{vS2}, {SCR_CSQ}, v{vL16}')
    M = gemm([('Q', ks) for ks in range(28)], [('Q', RT)])
    for i in range(2, 8):
        M[3 * (i - 2) + 1]['pre'] = M[3 * (i - 2) + 1]['pre'] + dst[i]
    fl = F(cs_frag(0, RT, RT + 4), earliest=1, deadline=26) + F(share, earliest=1)
    flush(k, weave(k, M, fl, free=6))
    k(f'v_mov_b32 v{vFL}, v{vCSK}')
    emit(k, setup2_valu())
    k(f'v_mul_f32 v{vT0}, {f32bits(28 ** -0.5 * LOG2E)}, v{vR}')
    for r in range(0, 16, 2):
        k(f'v_pk_mul_f32 {v2(AQ + r)}, {v2(AQ + r)}, {v2(vT0)} op_sel_hi:[1,0]')
    for q in range(8):
        k(f'v_cvt_pk_bf16_f32 v{QF + q}, v{AQ + 2 * q}, v{AQ + 2 * q + 1}')
    k(f"""
    v_mov_b32 v{vT1}, 0x3f80
    v_cndmask_b32 v{QF + 6}, v{QF + 6}, v{vT1}, s[{sHI}:{sHI + 1}]
    v_cndmask_b32 v{QF + 7}, v{QF + 7}, 0, s[{sHI}:{sHI + 1}]
    """)
    ts(k, 'F.q')
    global_check(k, pre=True)
    ts(k, 'F.chk')
    k.barrier()
    k(f's_cmp_lg_u32 s{sW}, 0')
    k.skip_begin('s_cbranch_scc1')
    k(f"""
    s_lshl_b32 s{T0}, s2, 7
    s_add_u32 s{T0}, s{T0}, {F_PK}
    v_mov_b32 v{vFL}, 1
    s_mov_b64 exec, 1
    buffer_store_dword v{vFL}, v{vZERO}, s[8:11], s{T0} offen sc1
    s_mov_b64 exec, -1
    """)
    k.skip_end()
    k(f's_cmp_eq_u32 s{sFAST}, 0')
    k('s_cbranch_scc1 SLOW_entry')


CSL = 112


def cs13_build():
    c = CSL
    out = [f'v_add_f32 v{c}, v{c}, v{c + 1}', f'v_add_f32 v{c + 2}, v{c + 2}, v{c + 3}', f'v_add_f32 v{c}, v{c}, v{c + 2}']
    out += split3(c, c + 4, c + 5, vT1, vT2)
    out += [f'v_mov_b32 v{c + i}, 0' for i in range(6, 12)]
    out += lines(f"""
    s_lshl_b32 s{sT0}, s{sW}, 10
    s_add_u32 s{sT0}, s{sT0}, {SCR_CS13}
    v_lshlrev_b32 v{vT0}, 4, v{vN}
    v_lshl_add_u32 v{vT0}, v{vHH}, 12, v{vT0}
    v_add_u32 v{vT0}, s{sT0}, v{vT0}
    ds_write_b128 v{vT0}, {v4(c + 4)}
    ds_write_b128 v{vT0}, {v4(c + 8)} offset:512
    s_waitcnt lgkmcnt(0)
    """)
    return out


SCHED = {}


def sched_a(v='a'):
    w2 = pf_w2()
    none = lambda: []
    SCHED.update({
        'PRO': lambda: t_X() + t_O(),
        'P3_pre': none,
        'P3_mm': lambda: [L1(t_H())] + [L0(g) for g in w2[:4]],
        'P3_idle': lambda: ['s_barrier'] + [L1(t_H())],
        'P5_idle': none,
        'P4_pre': none, 'P4_p1': none,
        'P4_mid': lambda: [[L0(g)] for g in w2[4:]] + [[L0(touch(2, sSADR))]],
        'G_pre': lambda: t_O(), 'G_q': none,
    })
    if v in 'ef':
        ch = (load_chunks([a4(4 * i) for i in range(28)], sBW2, sDM) + load_chunks([a4(112 + 4 * i) for i in range(28)], sBW2 + 1, sDM))
        n0 = 16 if v == 'e' else 24
        SCHED.update({
            'P3_mm': lambda: [L1(t_H())] + [L0(flat(ch[i:i + 2])) for i in range(0, n0, 2)],
            'P4_mid': lambda: [[L0(c)] for c in ch[n0:]] + [[L0(touch(2, sSADR))]],
        })
    if v == 'x':
        SCHED.update({'P3_mm': lambda: [L1(t_H())], 'P4_mid': lambda: [[L0(touch(2, sSADR))]]})
    if v == 'y':
        global HPLAIN
        HPLAIN = True
        ch = (load_chunks([a4(4 * i) for i in range(28)], sBW2, sDM) + load_chunks([a4(112 + 4 * i) for i in range(28)], sBW2 + 1, sDM))
        SCHED.update({
            'P3_mm': lambda: [L0(flat(ch[i:i + 2])) for i in range(0, 16, 2)] + [L1(t_H())],
            'P3_idle': lambda: ['s_barrier'] + [L1(t_H())],
            'P4_p1': lambda: [[L0(t_H())]],
            'P4_mid': lambda: [[L0(c)] for c in ch[16:]] + [[L0(touch(2, sSADR))]],
        })
    if v in 'bc':
        n3 = 7 if v == 'b' else 10
        SCHED.update({
            'P3_idle': lambda: ['s_barrier'] + [L1(t_H())] + idle_q() + idle_touch(W13_P + 3 * SLOT, 7 * SLOT, n3),
            'P5_idle': lambda: idle_q() + idle_touch(WQKV_P, 84 * 1024, 11) + idle_touch(WO_P, 28 * 1024, 4),
        })
    if v == 'd':
        SCHED.update({
            'P3_idle': lambda: ['s_barrier'] + [L1(t_H())] + idle_q() + [L0(idle_touch(W2_P, 98 * 1024, 7, 4)), L1(idle_touch(W13_P + 3 * SLOT, 7 * SLOT, 7))],
            'P5_idle': lambda: idle_q() + idle_touch(WQKV_P, 84 * 1024, 11) + idle_touch(WO_P, 28 * 1024, 4) + idle_touch(W13_P, 7 * SLOT, 7),
        })


def layer_switch(k):
    k(f's_mov_b32 s{sL}, 1')
    if TS_ON:
        k(f'v_accvgpr_write_b32 a255, v{vTS}')
        k(f'v_mov_b32 v{vTS}, 0')
    set_layer(k, 1)
    phase_G(k)


def phases(k):
    k.lg_done = k.lg_seq
    k.pend = {}
    attention(k)
    phase_P3(k)
    phase_P4(k, 'MAIN_fin')


def body(k, sfx):
    global LAYER
    if sfx == '_s':
        LAYER = None
        k.label('SLOW_entry', pad=False)
        set_layer(k, 0)
        k.label('ATT' + sfx)
        phases(k)
        layer_switch(k)
        k('s_branch ATT' + sfx)
    else:
        LAYER = 0
        phases(k)
        LAYER = 1
        layer_switch(k)
        phases(k)


def gen_main(k, name):
    global MODE
    kstart(k, name)
    k.ignore.add(('v', vDUM))
    end = 'MAIN_end'
    MODE = 'fast'
    setup(k, end)
    ts(k, 'start')
    front(k)
    body(k, '_f')
    k.label('MAIN_fin', pad=False)
    rowmajor_addr(k)
    k(f"""
    buffer_store_dwordx4 {v4(P5_XO)}, v{vT0}, s[12:15], s{sT0} offen
    buffer_store_dwordx4 {v4(P5_XO + 4)}, v{vT0}, s[12:15], s{sT0} offen offset:32
    """)
    ts(k, 'P5.pub')
    k.label('MAIN_tail', pad=False)
    if TS_ON:
        k(f"""
        v_writelane_b32 v{vTS}, s{sFAST}, 63
        s_lshl_b32 s{sT0}, s2, 2
        s_add_u32 s{sT0}, s{sT0}, s{sW}
        s_lshl_b32 s{sT0}, s{sT0}, 9
        s_add_u32 s{sT0}, s{sT0}, {TS}
        v_lshlrev_b32 v{vT0}, 2, v{vLANE}
        buffer_store_dword a255, v{vT0}, s[8:11], s{sT0} offen
        buffer_store_dword v{vTS}, v{vT0}, s[8:11], s{sT0} offen offset:256
        """)
        if '-gts' in sys.argv:
            want = [(0, 'F.barA'), (0, 'ATT.start'), (0, 'ATT.pub'), (0, 'P4.ready'), (0, 'P4.mfma'), (0, 'P5.pub'),
                    (1, 'ATT.start'), (1, 'ATT.pub'), (1, 'P4.ready'), (1, 'P4.mfma'), (1, 'P5.mfma'), (1, 'P5.pub')]
            slots_ = [1, 2, 3, 5, 6, 7, 9, 10, 11, 13, 14, 15]
            k(f's_lshl_b32 s{sT0}, s{sW}, 8')
            k(f's_or_b32 s{sT0}, s{sT0}, s2')
            k(f's_cmp_lg_u32 s{sT0}, 40')
            k('s_cbranch_scc1 MAIN_end')
            k(f'v_accvgpr_read_b32 v{vT1}, a255')
            k('s_nop 1')
            k(f'v_readlane_b32 s{sT1}, v{vT1}, 0')
            k('s_mov_b64 exec, 1')
            for (l, n), sl in zip(want, slots_):
                k(f'v_readlane_b32 s{sT2}, v{vT1 if l == 0 else vTS}, {_ts_names.index(n)}')
                k('s_nop 3')
                k(f's_sub_u32 s{sT2}, s{sT2}, s{sT1}')
                k(f'v_mov_b32 v{vT2}, s{sT2}')
                k(f'buffer_store_dword v{vT2}, v{vZERO}, s[16:19], 0 offen offset:{4 * sl}')
    k.drained()
    k.label(end, pad=False)
    k('s_endpgm')
    k.flush_cold()
    MODE = 'slow'
    k.drained()
    body(k, '_s')
    k.flush_cold()


HEADER = """; Persistent single-launch implementation (generated by a Python script written for this task).
"""


def main():
    global TS_ON, FORCE_SLOW, FORCE_FALLBACK
    TS_ON = '-ts' in sys.argv
    FORCE_SLOW = '-slow' in sys.argv
    FORCE_FALLBACK = '-fb' in sys.argv
    global WARM
    WARM = '-nowarm' not in sys.argv
    global XDEPTH, P4FREE
    for a in sys.argv:
        if a.startswith('-x'):
            XDEPTH = int(a[2:])
        if a.startswith('-f') and a[2:].isdigit():
            P4FREE = int(a[2:])
    global CODEPF
    if '-nocode' in sys.argv:
        CODEPF = 0
    global PROPOS
    PROPOS = int([a[2:] for a in sys.argv if a.startswith('-p')][0]) if any(a.startswith('-p') for a in sys.argv) else 1
    global GNQ1
    GNQ1 = int([a[2:] for a in sys.argv if a.startswith('-q')][0]) if any(a.startswith('-q') for a in sys.argv) else 6
    global DUTYPOS
    DUTYPOS = int([a[2:] for a in sys.argv if a.startswith('-d')][0]) if any(a.startswith('-d') for a in sys.argv) else 2
    sched_a([a[2:] for a in sys.argv if a.startswith('-s') and len(a) == 3][0] if any(a.startswith('-s') and len(a) == 3 for a in sys.argv) else 'a')
    k = K()
    final = '-final' in sys.argv
    kn = 'interleave_layers__sliding_block__glu_gated_swiglu__prompt_kernel' if final else 'main_kernel'
    gen_main(k, kn)
    if final:
        head = HEADER + f'; @launch grid=(256,1,1) block=(256,1,1) lds={LDS_BYTES}\n'
    else:
        head = f'; @launch kernel=main_kernel grid=(256,1,1) block=(256,1,1) lds={LDS_BYTES}\n'
    head += '.amdgcn_target "amdgcn-amd-amdhsa--gfx950"\n.text\n'
    open(sys.argv[1], 'w').write(head + k.text() + kd(kn, 512, 102, 256))
    print('nops inserted', k.nops_inserted, 'lines', len(k.lines))
    if TS_ON:
        open(sys.argv[1] + '.names', 'w').write('\n'.join(_ts_names))


if __name__ == '__main__':
    main()
```
